```python
import torch

def _softmax(x, axis=-1):
    return torch.softmax(x, dim=axis)
def _gelu(x):
    return torch.nn.functional.gelu(x, approximate="tanh")
def _silu(x):
    return torch.nn.functional.silu(x)
def _sigmoid(x):
    return torch.sigmoid(x)
def _layernorm(x, axis=-1, eps=1e-5):
    m = x.mean(dim=axis, keepdim=True)
    v = x.var(dim=axis, keepdim=True, unbiased=False)
    return (x - m) / torch.sqrt(v + eps)
def _scatter_add(tgt, idx, src, axis=0):
    return tgt.clone().index_add_(axis, idx, src)
def _segment_sum(src, seg, n):
    out = torch.zeros((n,) + src.shape[1:], dtype=src.dtype)
    return out.index_add_(0, seg, src)
def _pad(x, pw):
    flat = tuple(v for pair in reversed(pw) for v in pair)
    return torch.nn.functional.pad(x, flat)

kernel_name = 'parallel_sum__sliding_block_cached__glu_gated_bilinear__decode'

def setup_inputs():

    _w = (lambda a: (lambda t: t.to(torch.bfloat16) if t.is_floating_point() else t)(torch.as_tensor(a)))
    def _A_setup():
        B, Sq, D = 1, 1, 512
        Hq, Hkv, Sk, Dh = 32, 8, 65536, 128
        assert Hq % Hkv == 0, (Hq, Hkv)
        return {
            "x": _w((lambda *s: torch.randn(*s, dtype=torch.bfloat16) * 0.05)(B, Sq, D)),
            "k_cache": _w((lambda *s: torch.randn(*s, dtype=torch.bfloat16) * 1.6)(B, Hkv, Sk, Dh)),
            "v_cache": _w((lambda *s: torch.randn(*s, dtype=torch.bfloat16) * 0.8)(B, Hkv, Sk, Dh)),
            "wq": _w((lambda *s: torch.randn(*s, dtype=torch.bfloat16) * 1.6)(D, Hq * Dh) * (D ** -0.5)),
            "wo": _w((lambda *s: torch.randn(*s, dtype=torch.bfloat16) * 0.8)(Hq * Dh, D) * ((Hq * Dh) ** -0.5)),
        }
    _A_in = _A_setup()

    def _B_setup():
        B, S, D, F = 1, 1, 512, 1792
        return {
            "x": _w((lambda *s: torch.randn(*s, dtype=torch.bfloat16) * 0.05)(B, S, D)),
            "w_gate": _w((lambda *s: torch.randn(*s, dtype=torch.bfloat16) * 0.4)(D, F) * (D ** -0.5)),
            "w_up": _w((lambda *s: torch.randn(*s, dtype=torch.bfloat16) * 0.4)(D, F) * (D ** -0.5)),
            "w_down": _w((lambda *s: torch.randn(*s, dtype=torch.bfloat16) * 0.4)(F, D) * (F ** -0.5)),
        }
    _B_in = _B_setup()

    return {
        "A_x": _A_in["x"],
        "A_k_cache": _A_in["k_cache"],
        "A_v_cache": _A_in["v_cache"],
        "A_wq": _A_in["wq"],
        "A_wo": _A_in["wo"],
        "B_x": _B_in["x"],
        "B_w_gate": _B_in["w_gate"],
        "B_w_up": _B_in["w_up"],
        "B_w_down": _B_in["w_down"],
    }

def reference(A_x, A_k_cache, A_v_cache, A_wq, A_wo, B_x, B_w_gate, B_w_up, B_w_down):
    def _A_ref(x, k_cache, v_cache, wq, wo):
        B, Sq, D = x.shape
        Hq, Dh = 32, 128
        Hkv, Sk = k_cache.shape[1], k_cache.shape[2]
        W = min(4096, max(256, Sk // 4))
        rep = Hq // Hkv
        q = (lambda x, *d: x.permute(*d))((x @ wq).reshape(B, Sq, Hq, Dh), 0, 2, 1, 3)
        k = (lambda x, n, axis: torch.repeat_interleave(x, n, dim=axis))(k_cache[:, :, Sk - W:, :], rep, axis=1)
        v = (lambda x, n, axis: torch.repeat_interleave(x, n, dim=axis))(v_cache[:, :, Sk - W:, :], rep, axis=1)
        scores = torch.einsum("bhqd,bhkd->bhqk", q, k) * (Dh ** -0.5)
        p = _softmax(scores, axis=-1)
        o = torch.einsum("bhqk,bhkd->bhqd", p, v)
        return (lambda x, *d: x.permute(*d))(o, 0, 2, 1, 3).reshape(B, Sq, Hq * Dh) @ wo

    def _B_ref(x, w_gate, w_up, w_down):
        g = torch.einsum("bsd,df->bsf", x, w_gate)
        u = torch.einsum("bsd,df->bsf", x, w_up)
        h = g * u
        return torch.einsum("bsf,fd->bsd", h, w_down)

    x = A_x
    xn = _layernorm(x, axis=-1)
    return x + _A_ref(xn, A_k_cache, A_v_cache, A_wq, A_wo) + _B_ref(xn, B_w_gate, B_w_up, B_w_down)
```

```python
import re

class Asm:
    def __init__(self):
        self.lines = []
    def __call__(self, s):
        for ln in s.strip('\n').split('\n'):
            self.lines.append(ln.strip())
    def c(self, s):
        self.lines.append('; ' + s)
    def label(self, s):
        self.lines.append(s + ':')
    def nop(self, n):
        while n > 0:
            k = min(n, 16)
            self.lines.append(f's_nop {k-1}')
            n -= k
    def text(self):
        out = []
        for ln in self.lines:
            if ln.endswith(':') or ln.startswith(';') or ln.startswith('.'):
                out.append(ln)
            else:
                out.append('    ' + ln)
        return '\n'.join(out) + '\n'

_REG = re.compile(r'^(-|abs\()?([vsa])(\d+)\)?$')
_RNG = re.compile(r'^(-)?([vsa])\[(\d+):(\d+)\]$')

def regs(op):
    op = op.strip()
    if op == 'vcc':
        return [('s', 'vcc')]
    if op == 'exec':
        return [('s', 'exec')]
    if op == 'm0':
        return [('s', 'm0')]
    m = _REG.match(op)
    if m:
        return [(m.group(2), int(m.group(3)))]
    m = _RNG.match(op)
    if m:
        return [(m.group(2), i) for i in range(int(m.group(3)), int(m.group(4)) + 1)]
    return []

TRANS = ('v_exp_f32', 'v_log_f32', 'v_rcp_f32', 'v_rsq_f32', 'v_sqrt_f32', 'v_sin_f32', 'v_cos_f32')

def parse(ln):
    ln = ln.split(';')[0].strip()
    if not ln or ln.endswith(':') or ln.startswith('.'):
        return None
    parts = ln.split(None, 1)
    mn = parts[0]
    ops = []
    rest = parts[1] if len(parts) > 1 else ''
    toks = re.split(r',\s*(?![^\[]*\])', rest)
    mods = ''
    if toks:
        last = toks[-1].split(None, 1)
        if last:
            toks[-1] = last[0]
            mods = last[1] if len(last) > 1 else ''
    ops = [t.strip() for t in toks if t.strip()]
    d = dict(mn=mn, ops=ops, mods=mods, text=ln, w=[], r=[], cls='other')
    base = re.sub(r'_(e32|e64|dpp|sdwa)$', '', mn)
    d['base'] = base
    if mn.startswith('v_mfma'):
        d['cls'] = 'mfma'
        d['w'] = regs(ops[0])
        d['rab'] = regs(ops[1]) + regs(ops[2])
        d['rc'] = regs(ops[3])
        d['r'] = d['rab'] + d['rc']
        d['passes'] = 8 if '32x32' in mn else 4
    elif mn.startswith('v_'):
        d['cls'] = 'valu'
        d['dpp'] = ('quad_perm' in ln or 'row_' in ln) and 'permlane' not in mn
        d['trans'] = base in TRANS
        if base.startswith('v_cmp'):
            d['w'] = regs(ops[0]); d['r'] = sum((regs(o) for o in ops[1:]), [])
        elif base.startswith('v_permlane') and 'swap' in base:
            d['w'] = regs(ops[0]) + regs(ops[1]); d['r'] = d['w'][:]; d['perml'] = True
        elif base in ('v_readfirstlane_b32', 'v_readlane_b32'):
            d['w'] = regs(ops[0]); d['r'] = regs(ops[1]); d['rdlane'] = True
            d['lanesel'] = regs(ops[2]) if len(ops) > 2 else []
        elif base in ('v_add_co_u32', 'v_sub_co_u32', 'v_addc_co_u32'):
            d['w'] = regs(ops[0]) + regs(ops[1]); d['r'] = sum((regs(o) for o in ops[2:]), [])
        else:
            d['w'] = regs(ops[0]); d['r'] = sum((regs(o) for o in ops[1:]), [])
            if base in ('v_fmac_f32', 'v_dot2c_f32_bf16', 'v_writelane_b32', 'v_pk_fmac_f16') or d['dpp']:
                d['r'] += d['w']
            if base == 'v_cndmask_b32' and len(ops) == 3:
                d['r'] += [('s', 'vcc')]
    elif mn.startswith('buffer_') or mn.startswith('global_'):
        d['cls'] = 'vmem'
        d['lds'] = (' lds' in ' ' + mods) or 'load_lds' in mn
        if 'load' in mn and not d['lds']:
            d['w'] = regs(ops[0]); d['r'] = sum((regs(o) for o in ops[1:]), [])
        elif 'store' in mn:
            if mn.startswith('buffer_'):
                d['data'] = regs(ops[0])
            else:
                d['data'] = regs(ops[1])
            d['r'] = sum((regs(o) for o in ops), [])
            d['wide'] = ('x3' in mn or 'x4' in mn)
        else:
            d['r'] = sum((regs(o) for o in ops), [])
    elif mn.startswith('ds_'):
        d['cls'] = 'ds'
        if 'read' in mn or 'bpermute' in mn or 'swizzle' in mn:
            d['w'] = regs(ops[0]); d['r'] = sum((regs(o) for o in ops[1:]), [])
        else:
            d['r'] = sum((regs(o) for o in ops), [])
    elif mn.startswith('s_'):
        d['cls'] = 'salu'
        if mn == 's_nop':
            d['n'] = int(ops[0], 0) + 1
        elif mn.startswith('s_cmp') or mn.startswith('s_cbranch') or mn in ('s_waitcnt', 's_barrier', 's_branch', 's_endpgm', 's_setprio', 's_sleep'):
            d['r'] = sum((regs(o) for o in ops), [])
        else:
            d['w'] = regs(ops[0]) if ops else []
            d['r'] = sum((regs(o) for o in ops[1:]), [])
            if 'saveexec' in mn:
                d['w'] += [('s', 'exec')]
    return d

def check(text):
    ins = [p for p in (parse(l) for l in text.split('\n')) if p]
    probs = []
    WIN = 24
    for i, c in enumerate(ins):
        dist = 0
        for j in range(i - 1, max(-1, i - WIN), -1):
            p = ins[j]
            need = 0
            pw = set(p['w']); cr = set(c['r']); cw = set(c['w'])
            vw = {x for x in pw if x[0] in 'va'}
            sw = {x for x in pw if x[0] == 's'}
            why = ''
            if p['cls'] == 'valu':
                if c['cls'] == 'mfma' and vw & cr:
                    need, why = 2, 'VALU->MFMA'
                if c['cls'] == 'valu':
                    if c.get('dpp') and vw & cr:
                        need, why = max(need, 2), 'VALU->DPP'
                    if c.get('perml') and vw & cr:
                        need, why = max(need, 2), 'VALU->permlane'
                    if c.get('rdlane') and vw & cr:
                        need, why = max(need, 1), 'VALU->readlane'
                    if p.get('trans') and not c.get('trans') and vw & cr:
                        need, why = max(need, 1), 'trans->VALU'
                    if sw & cr:
                        need, why = max(need, 2), 'VALU sgpr->VALU const'
                    if c.get('rdlane') and sw & set(c.get('lanesel', [])):
                        need, why = max(need, 4), 'VALU sgpr->lanesel'
                if c['cls'] == 'vmem' and sw & cr:
                    need, why = max(need, 5), 'VALU sgpr->VMEM'
            if p['cls'] == 'mfma':
                n_rd = {4: 8, 8: 12}[p['passes']]
                if c['cls'] in ('valu', 'vmem', 'ds') and vw & (cr | cw):
                    need, why = n_rd, 'MFMA D->VALU/mem'
                if c['cls'] == 'mfma':
                    if vw & set(c['rab']):
                        need, why = n_rd, 'MFMA D->MFMA A/B'
                    elif vw & set(c['rc']) and set(c['rc']) != vw:
                        need, why = {4: 6, 8: 10}[p['passes']], 'MFMA D->MFMA C overlap'
                if c['cls'] == 'valu' and set(p['rc']) & cw:
                    need, why = max(need, {4: 3, 8: 7}[p['passes']]), 'MFMA C WAR'
            if p['cls'] == 'vmem' and p.get('wide') and c['cls'] == 'valu' and set(p['data']) & cw:
                need, why = 2, 'wide store WAR'
            if p['cls'] == 'salu' and ('s', 'm0') in pw and c['cls'] == 'vmem' and c.get('lds'):
                need, why = 1, 'M0->LDS DMA'
            if need > dist:
                probs.append(f'{why}: need {need} have {dist}\n    P: {p["text"]}\n    C: {c["text"]}')
            dist += p.get('n', 1)
            if dist >= 20:
                break
    return probs
```

```python
import sys
from asmlib import Asm, check

NAME = 'parallel_sum__sliding_block_cached__glu_gated_bilinear__decode_kernel'

EOFF  = 0
QOFF  = 0x1000
GUOFF = 0x11000
OOFF  = 0x31000
FOFF  = 0xD1000
PROF  = 0x180000
WS_BYTES = 0x200000

L_K = 0
L_V = 32768
L_XN = 65536
L_PART = 66560
L_QB = 72704
L_HB = 73792
L_ML = 73824
L_OB = 73952
L_FIN = 73984
LDS_BYTES = 74240

sW, sG, sS, sTAG = 3, 4, 5, 6
SX, SK, SV, SWQ, SWO, SGA, SUP, SDN, SOUT, SWS = 40, 44, 48, 52, 56, 60, 64, 68, 72, 76
M0, M1, M2, M3 = 80, 82, 84, 86
sEX = 88
sX0, sX1 = 90, 91
sIT = 92
sLOG2E, sSCALE = 93, 94
sMSK = 95
sP01, sP23 = 96, 97
sI0, sI1, sI2, sI3 = 98, 99, 100, 101
def srd(n): return f's[{n}:{n+3}]'
def vr(n, k=4): return f'v[{n}:{n+k-1}]'

class Cfg:
    nt = 'nt'
    pub = 'sc1'
    gat = 'sc1'
    nv1 = 4
    maxit = 200000
    prof = False
    dbg = None

def allreduce16(A, v, tmp, op, steps):
    for st in steps:
        A.nop(2)
        A(f'{op}_dpp v{v}, v{v}, v{v} {st} row_mask:0xf bank_mask:0xf')

ROW_FULL = ['quad_perm:[1,0,3,2]', 'quad_perm:[2,3,0,1]', 'row_half_mirror', 'row_mirror']

def cross_rows(A, v, tmp, op):
    A(f'v_mov_b32 v{tmp}, v{v}')
    A.nop(2)
    A(f'v_permlane16_swap_b32 v{tmp}, v{v}')
    A.nop(1)
    A(f'{op} v{v}, v{tmp}, v{v}')
    A(f'v_mov_b32 v{tmp}, v{v}')
    A.nop(2)
    A(f'v_permlane32_swap_b32 v{tmp}, v{v}')
    A.nop(1)
    A(f'{op} v{v}, v{tmp}, v{v}')

def wave_allreduce(A, v, tmp, op):
    allreduce16(A, v, tmp, op, ROW_FULL)
    cross_rows(A, v, tmp, op)

def tag_insert(A, v):
    for k, s in enumerate((sI0, sI1, sI2, sI3)):
        A(f'v_perm_b32 v{v+k}, v{v+k}, v250, s{s}')

def tag_check(A, v, t0, t1, first):
    A(f'v_perm_b32 v{t0}, v{v+1}, v{v}, s{sP01}')
    A(f'v_perm_b32 v{t1}, v{v+3}, v{v+2}, s{sP23}')
    A(f'v_or_b32 v{t0}, v{t0}, v{t1}')
    if first:
        A(f'v_cmp_ne_u32 s[8:9], s{sTAG}, v{t0}')
    else:
        A(f'v_cmp_ne_u32 s[10:11], s{sTAG}, v{t0}')
        A('s_or_b64 s[8:9], s[8:9], s[10:11]')

def mask_vals(A, v, n=4):
    for k in range(n):
        A(f'v_and_b32 v{v+k}, s{sMSK}, v{v+k}')

def build_sel(A, dst, val, tmp):
    A(f'v_lshlrev_b32 v{tmp}, v249, v{val}')
    for j, m in enumerate((M0, M1, M2, M3)):
        A(f'v_cndmask_b32_e64 v{dst+j}, 0, v{tmp}, s[{m}:{m+1}]')

def stamp(A, cfg, idx):
    if cfg.prof:
        A(f's_memrealtime s[12:13]')
        A('s_waitcnt lgkmcnt(0)')
        A(f'v_writelane_b32 v251, s12, {idx}')

def gen(cfg):
    A = Asm()
    nt = cfg.nt
    A(f'.amdgcn_target "amdgcn-amd-amdhsa--gfx950"')
    A('.text')
    A(f'.globl {NAME}')
    A('.p2align 8')
    A(f'.type {NAME},@function')
    A.label(NAME)
    A('s_cmp_ge_u32 s2, 256')
    A('s_cbranch_scc1 L_end')
    if cfg.prof:
        A('s_memrealtime s[14:15]')
    for sr, off in ((SX, 0), (SWQ, 24), (SGA, 48), (SUP, 56), (SK, 8), (SV, 16), (SWS, 88), (SWO, 32), (SDN, 64), (SOUT, 72)):
        A(f's_load_dwordx2 s[{sr}:{sr+1}], s[0:1], {off}')
    A('v_lshrrev_b32 v2, 6, v0')
    A('v_and_b32 v1, 63, v0')
    A('s_and_b32 s4, s2, 7')
    A('v_readfirstlane_b32 s3, v2')
    A('s_lshr_b32 s5, s2, 3')
    A('v_lshrrev_b32 v2, 4, v1')
    A('v_and_b32 v3, 15, v1')
    A('s_lshr_b32 s7, s5, 3')
    A('s_lshl_b32 s8, s7, 3')
    A('s_add_u32 s8, s8, s4')
    A('s_cmp_lt_u32 s8, 28')
    A('s_cselect_b32 s9, 1835008, 0')
    for sr, n in ((SX, 1024), (SWQ, 4194304), (SK, 134217728), (SV, 134217728), (SWS, WS_BYTES), (SWO, 4194304), (SOUT, 1024)):
        A(f's_mov_b32 s{sr+2}, {n}')
        A(f's_mov_b32 s{sr+3}, 0x20000')
    for sr in (SGA, SUP, SDN):
        A(f's_mov_b32 s{sr+2}, s9')
        A(f's_mov_b32 s{sr+3}, 0x20000')
    A('s_and_b32 s10, s5, 7')
    A('s_lshl_b32 s16, s7, 20')
    A('s_lshl_b32 s11, s3, 18')
    A('s_add_u32 s16, s16, s11')
    A('s_lshl_b32 s11, s4, 10')
    A('s_add_u32 s16, s16, s11')
    A('s_lshl_b32 s11, s10, 7')
    A('s_add_u32 s16, s16, s11')
    A('s_lshl_b32 s17, s10, 6')
    A('s_lshl_b32 s11, s3, 4')
    A('s_add_u32 s17, s17, s11')
    A('s_mul_i32 s17, s17, 3584')
    A('s_lshl_b32 s11, s8, 7')
    A('s_add_u32 s17, s17, s11')
    A('v_lshlrev_b32 v100, 4, v1')
    A('v_lshrrev_b32 v101, 3, v1')
    A('v_and_b32 v102, 7, v1')
    A('v_lshlrev_b32 v102, 4, v102')
    A('v_lshl_add_u32 v103, v101, 13, v102')
    A('v_mul_u32_u24 v104, 3584, v101')
    A('v_add_u32 v104, v104, v102')
    A('s_waitcnt lgkmcnt(0)')
    if cfg.prof:
        A('v_writelane_b32 v251, s14, 0')
    A(f's_load_dword s6, s[{SWS}:{SWS+1}], {EOFF}')
    A(f'buffer_load_dwordx4 v[4:7], v100, {srd(SX)}, 0 offen')
    for i in range(4):
        if i:
            A('s_add_u32 s16, s16, 65536')
        A(f'buffer_load_dwordx4 {vr(8+4*i)}, v103, {srd(SWQ)}, s16 offen {nt}')
    A('s_add_u32 s18, s17, 28672')
    A(f'buffer_load_dwordx4 {vr(24)}, v104, {srd(SGA)}, s17 offen {nt}')
    A(f'buffer_load_dwordx4 {vr(28)}, v104, {srd(SGA)}, s18 offen {nt}')
    A(f'buffer_load_dwordx4 {vr(32)}, v104, {srd(SUP)}, s17 offen {nt}')
    A(f'buffer_load_dwordx4 {vr(36)}, v104, {srd(SUP)}, s18 offen {nt}')
    for m, lo in ((M0, 0x03030303), (M1, 0x0c0c0c0c), (M2, 0x30303030), (M3, 0xc0c0c0c0)):
        A(f's_mov_b32 s{m}, {hex(lo)}')
        A(f's_mov_b32 s{m+1}, {hex(lo)}')
    A(f's_mov_b32 s{sLOG2E}, 0x3fb8aa3b')
    A(f's_mov_b32 s{sSCALE}, 0x3db504f3')
    A(f's_mov_b32 s{sMSK}, 0xffffff00')
    A(f's_mov_b32 s{sP01}, 0x0c0c0400')
    A(f's_mov_b32 s{sP23}, 0x04000c0c')
    A(f's_mov_b32 s{sI0}, 0x07060500')
    A(f's_mov_b32 s{sI1}, 0x07060501')
    A(f's_mov_b32 s{sI2}, 0x07060502')
    A(f's_mov_b32 s{sI3}, 0x07060503')
    A('v_and_b32 v249, 1, v1')
    A('v_lshlrev_b32 v249, 4, v249')
    for i in range(4):
        A(f'v_add_u32 v111, {4*i}, v2')
        A('v_xor_b32 v111, v111, v3')
        A('v_lshlrev_b32 v111, 4, v111')
        A(f'v_lshl_add_u32 v{105+i}, v2, 8, v111')
    for i in range(2):
        A(f'v_add_u32 v111, {4*i}, v2')
        A('v_lshlrev_b32 v111, 1, v111')
        A('v_xor_b32 v111, v111, v3')
        A('v_lshlrev_b32 v111, 4, v111')
        A(f'v_lshl_add_u32 v{109+i}, v2, 8, v111')
    A('s_lshl_b32 s19, s4, 24')
    A('s_lshl_b32 s11, s5, 15')
    A('s_add_u32 s19, s19, s11')
    A('s_lshl_b32 s11, s3, 13')
    A('s_add_u32 s19, s19, s11')
    A('s_add_u32 s19, s19, 15728640')
    A('s_lshl_b32 s20, s3, 13')
    A('s_lshl_b32 s21, s4, 19')
    A('s_lshl_b32 s11, s5, 14')
    A('s_add_u32 s21, s21, s11')
    A('s_lshl_b32 s11, s3, 8')
    A('s_add_u32 s21, s21, s11')
    A('s_lshl_b32 s22, s8, 16')
    A('s_lshl_b32 s23, s10, 13')
    A('s_add_u32 s22, s22, s23')
    A('s_add_u32 s22, s22, s11')
    A('v_lshlrev_b32 v112, 4, v3')
    A('v_lshl_add_u32 v112, v2, 10, v112')
    stamp(A, cfg, 1)
    A.c('layernorm')
    A('s_waitcnt vmcnt(8)')
    stamp(A, cfg, 2)
    for k in range(4):
        A(f'v_lshlrev_b32 v{120+2*k}, 16, v{4+k}')
        A(f'v_and_b32 v{121+2*k}, 0xffff0000, v{4+k}')
    A('v_add_f32 v128, v120, v121')
    A('v_add_f32 v129, v122, v123')
    A('v_add_f32 v130, v124, v125')
    A('v_add_f32 v131, v126, v127')
    A('v_add_f32 v128, v128, v129')
    A('v_add_f32 v130, v130, v131')
    A('v_add_f32 v128, v128, v130')
    wave_allreduce(A, 128, 129, 'v_add_f32')
    A('v_mul_f32 v128, 0x3b000000, v128')
    for k in range(8):
        A(f'v_sub_f32 v{132+k}, v{120+k}, v128')
    A('v_mul_f32 v130, v132, v132')
    for k in range(1, 8):
        A(f'v_fmac_f32 v130, v{132+k}, v{132+k}')
    wave_allreduce(A, 130, 129, 'v_add_f32')
    A('v_mul_f32 v130, 0x3b000000, v130')
    A('v_cvt_pk_bf16_f32 v128, v128, v130')
    A('v_and_b32 v130, 0xffff0000, v128')
    A('v_lshlrev_b32 v128, 16, v128')
    A('v_add_f32 v130, 0x3727c5ac, v130')
    A('v_cvt_pk_bf16_f32 v130, v130, v130')
    A('v_lshlrev_b32 v130, 16, v130')
    A('v_sqrt_f32 v130, v130')
    for k in range(8):
        A(f'v_sub_f32 v{132+k}, v{120+k}, v128')
    A('v_cvt_pk_bf16_f32 v130, v130, v130')
    A('v_lshlrev_b32 v130, 16, v130')
    A('v_rcp_f32 v130, v130')
    for k in range(4):
        A(f'v_cvt_pk_bf16_f32 v{140+k}, v{132+2*k}, v{133+2*k}')
    for k in range(4):
        A(f'v_lshlrev_b32 v{132+2*k}, 16, v{140+k}')
        A(f'v_and_b32 v{133+2*k}, 0xffff0000, v{140+k}')
    for k in range(8):
        A(f'v_mul_f32 v{132+k}, v{132+k}, v130')
    for k in range(4):
        A(f'v_cvt_pk_bf16_f32 v{140+k}, v{132+2*k}, v{133+2*k}')
    A(f'v_add_u32 v113, {L_XN}, v100')
    A('ds_write_b128 v113, v[140:143]')
    A('s_and_b32 s11, s2, 127')
    A('s_lshr_b32 s12, s11, 1')
    A('v_readlane_b32 s24, v4, s12')
    A('v_readlane_b32 s25, v5, s12')
    A('v_readlane_b32 s26, v6, s12')
    A('v_readlane_b32 s27, v7, s12')
    A('s_bitcmp1_b32 s11, 0')
    A(f's_cselect_b32 s{sX0}, s26, s24')
    A(f's_cselect_b32 s{sX1}, s27, s25')
    A.c('selection operands for wq and gate/up')
    A('v_lshrrev_b32 v114, 3, v3')
    A('v_lshl_add_u32 v114, v2, 1, v114')
    A('s_lshl_b32 s11, s7, 7')
    A('s_lshl_b32 s12, s3, 5')
    A('s_add_u32 s11, s11, s12')
    A('s_lshl_b32 s11, s11, 1')
    A(f's_add_u32 s11, s11, {L_XN}')
    A('v_lshl_add_u32 v115, v114, 1, s11')
    A('s_lshl_b32 s11, s10, 6')
    A('s_lshl_b32 s12, s3, 4')
    A('s_add_u32 s11, s11, s12')
    A('s_lshl_b32 s11, s11, 1')
    A(f's_add_u32 s11, s11, {L_XN}')
    A('v_lshl_add_u32 v116, v114, 1, s11')
    A('s_waitcnt lgkmcnt(0)')
    for i in range(4):
        A(f'ds_read_u16 v{120+i}, v115 offset:{16*i}')
    for i in range(2):
        A(f'ds_read_u16 v{124+i}, v116 offset:{16*i}')
    A(f's_add_u32 s6, s6, 0x01010101')
    A('v_mov_b32 v250, s6')
    A('s_waitcnt lgkmcnt(0)')
    for i in range(4):
        build_sel(A, 64+4*i, 120+i, 126)
    for i in range(2):
        build_sel(A, 80+4*i, 124+i, 126)
    A.c('K loads')
    def dma(sr, voff, i, base_lds, first):
        pass
    A(f's_add_u32 s12, s20, {L_K}')
    A('s_mov_b32 m0, s12')
    A('s_add_u32 s13, s19, 4096')
    for i in range(4):
        A(f'buffer_load_dwordx4 v{105+i}, {srd(SK)}, s19 offen offset:{1024*i} {nt} lds')
    A('s_add_u32 m0, m0, 4096')
    A.nop(1)
    for i in range(4):
        A(f'buffer_load_dwordx4 v{105+i}, {srd(SK)}, s13 offen offset:{1024*i} {nt} lds')
    stamp(A, cfg, 3)
    A.c('q / gate / up partial products')
    A('s_waitcnt vmcnt(12)')
    for i in range(4):
        A(f'v_mfma_f32_16x16x32_bf16 v[88:91], {vr(64+4*i)}, {vr(8+4*i)}, {"0" if i == 0 else "v[88:91]"}')
    A('s_waitcnt vmcnt(8)')
    for i in range(2):
        A(f'v_mfma_f32_16x16x32_bf16 v[92:95], {vr(80+4*i)}, {vr(24+4*i)}, {"0" if i == 0 else "v[92:95]"}')
    for i in range(2):
        A(f'v_mfma_f32_16x16x32_bf16 v[96:99], {vr(80+4*i)}, {vr(32+4*i)}, {"0" if i == 0 else "v[96:99]"}')
    A('v_lshrrev_b32 v117, 5, v1')
    A('v_lshlrev_b32 v117, 8, v117')
    A('v_and_b32 v118, 7, v1')
    A('v_lshl_add_u32 v117, v118, 5, v117')
    A('v_and_b32 v118, 1, v2')
    A('v_lshl_add_u32 v117, v118, 4, v117')
    A('s_lshl_b32 s11, s3, 9')
    A(f's_add_u32 s11, s11, {L_PART}')
    A('v_add_u32 v117, s11, v117')
    A('s_mov_b32 exec_lo, 0x00ff00ff')
    A('s_mov_b32 exec_hi, 0xff00ff00')
    A('ds_write_b128 v117, v[88:91]')
    A('ds_write_b128 v117, v[92:95] offset:2048')
    A.nop(1)
    A('ds_write_b128 v117, v[96:99] offset:4096')
    A('s_mov_b64 exec, -1')
    A('s_waitcnt lgkmcnt(0)')
    A('s_barrier')
    stamp(A, cfg, 4)
    A('s_cmp_lg_u32 s3, 0')
    A('s_cbranch_scc1 L_pub1_done')
    A('v_lshlrev_b32 v117, 4, v3')
    A('v_lshl_add_u32 v117, v2, 11, v117')
    A(f'v_add_u32 v117, {L_PART}, v117')
    for k in range(8):
        A(f'ds_read_b128 {vr(120+4*k)}, v117 offset:{256*k}')
    A('s_lshl_b32 s11, s4, 2')
    A('s_add_u32 s11, s11, s7')
    A('s_lshl_b32 s11, s11, 11')
    A('s_lshl_b32 s12, s10, 8')
    A('s_add_u32 s11, s11, s12')
    A(f's_add_u32 s11, s11, {QOFF}')
    A('s_lshl_b32 s12, s4, 2')
    A('s_add_u32 s12, s12, s7')
    A('s_lshl_b32 s12, s12, 3')
    A('s_add_u32 s12, s12, s10')
    A('s_lshl_b32 s12, s12, 9')
    A(f's_add_u32 s12, s12, {GUOFF-256}')
    A('v_lshlrev_b32 v118, 4, v3')
    A('v_lshl_add_u32 v119, v2, 8, v118')
    A('v_add_u32 v119, s12, v119')
    A('v_add_u32 v118, s11, v118')
    A('v_cmp_eq_u32 vcc, 0, v2')
    A.nop(2)
    A('v_cndmask_b32 v118, v119, v118, vcc')
    A('s_waitcnt lgkmcnt(0)')
    for k in range(4):
        A(f'v_add_f32 v{120+k}, v{120+k}, v{124+k}')
        A(f'v_add_f32 v{128+k}, v{128+k}, v{132+k}')
        A(f'v_add_f32 v{136+k}, v{136+k}, v{140+k}')
        A(f'v_add_f32 v{144+k}, v{144+k}, v{148+k}')
    for k in range(4):
        A(f'v_add_f32 v{120+k}, v{120+k}, v{128+k}')
        A(f'v_add_f32 v{136+k}, v{136+k}, v{144+k}')
    for k in range(4):
        A(f'v_add_f32 v{120+k}, v{120+k}, v{136+k}')
    tag_insert(A, 120)
    A('s_mov_b32 exec_lo, -1')
    A('s_mov_b32 exec_hi, 0x0000ffff')
    A(f'buffer_store_dwordx4 v[120:123], v118, {srd(SWS)}, 0 offen {cfg.pub}')
    A('s_mov_b64 exec, -1')
    A.label('L_pub1_done')
    def vloads(lo, hi):
        for i in range(lo, hi):
            if i % 4 == 0:
                A(f's_add_u32 s12, s20, {L_V + 1024*i}')
                A('s_mov_b32 m0, s12')
                A(f's_add_u32 s13, s19, {1024*i}')
            A(f'buffer_load_dwordx4 v{109+(i&1)}, {srd(SV)}, s13 offen offset:{1024*(i&3)} {nt} lds')
    def wo_loads():
        A('s_mov_b32 s13, s21')
        for i in range(4):
            if i:
                A('s_add_u32 s13, s13, 4096')
            A(f'buffer_load_dwordx4 {vr(40+4*i)}, v112, {srd(SWO)}, s13 offen {nt}')
        A('s_add_u32 s13, s22, 4096')
        A(f'buffer_load_dwordx4 {vr(56)}, v112, {srd(SDN)}, s22 offen {nt}')
        A(f'buffer_load_dwordx4 {vr(60)}, v112, {srd(SDN)}, s13 offen {nt}')
    nv1 = cfg.nv1
    assert nv1 % 4 == 0
    nv2 = 8 - nv1
    A('s_cmp_ge_u32 s3, 2')
    A('s_cbranch_scc1 L_role23')
    A.c('waves 0,1: q gather')
    vloads(0, nv1)
    A('s_lshl_b32 s11, s4, 13')
    A(f's_add_u32 s11, s11, {QOFF}')
    A('v_lshlrev_b32 v118, 4, v0')
    A('v_add_u32 v118, s11, v118')
    def qg_loads():
        for rb in range(4):
            if rb < 2:
                A(f'buffer_load_dwordx4 {vr(120+4*rb)}, v118, {srd(SWS)}, 0 offen offset:{2048*rb} {cfg.gat}')
            else:
                A(f'buffer_load_dwordx4 {vr(120+4*rb)}, v118, {srd(SWS)}, s14 offen offset:{2048*(rb-2)} {cfg.gat}')
    A('s_mov_b32 s14, 4096')
    qg_loads()
    vloads(nv1, 8)
    wo_loads()
    A(f's_mov_b32 s{sIT}, 0')
    A(f's_waitcnt vmcnt({nv2+6})')
    A.label('L_qcheck')
    for rb in range(4):
        tag_check(A, 120+4*rb, 136, 137, rb == 0)
    A('s_cmp_eq_u64 s[8:9], 0')
    A('s_cbranch_scc1 L_qok')
    A(f's_add_u32 s{sIT}, s{sIT}, 1')
    A(f's_cmp_gt_u32 s{sIT}, {cfg.maxit}')
    A('s_cbranch_scc1 L_qok')
    qg_loads()
    A('s_waitcnt vmcnt(0)')
    A('s_branch L_qcheck')
    A.label('L_qok')
    stamp(A, cfg, 5)
    for rb in range(4):
        mask_vals(A, 120+4*rb)
    for k in range(4):
        A(f'v_add_f32 v{120+k}, v{120+k}, v{124+k}')
        A(f'v_add_f32 v{128+k}, v{128+k}, v{132+k}')
    for k in range(4):
        A(f'v_add_f32 v{120+k}, v{120+k}, v{128+k}')
    A('v_cvt_pk_bf16_f32 v120, v120, v121')
    A('v_cvt_pk_bf16_f32 v121, v122, v123')
    A('v_lshrrev_b32 v118, 5, v0')
    A('v_mul_u32_u24 v118, 272, v118')
    A('v_and_b32 v119, 31, v0')
    A('v_lshl_add_u32 v118, v119, 3, v118')
    A(f'v_add_u32 v118, {L_QB}, v118')
    A('ds_write_b64 v118, v[120:121]')
    A('s_branch L_role_done')
    A.label('L_role23')
    A('s_cmp_eq_u32 s3, 3')
    A('s_cbranch_scc1 L_role3')
    A.c('wave 2: gate/up gather')
    vloads(0, nv1)
    A('s_lshl_b32 s11, s4, 2')
    A('s_add_u32 s11, s11, s7')
    A('s_lshl_b32 s11, s11, 12')
    A('s_lshl_b32 s12, s10, 5')
    A('s_add_u32 s11, s11, s12')
    A(f's_add_u32 s11, s11, {GUOFF}')
    A('v_bfe_u32 v118, v1, 2, 3')
    A('v_lshlrev_b32 v118, 9, v118')
    A('v_bfe_u32 v119, v1, 1, 1')
    A('v_lshl_add_u32 v118, v119, 8, v118')
    A('v_and_b32 v119, 1, v1')
    A('v_lshl_add_u32 v118, v119, 4, v118')
    A('v_add_u32 v118, s11, v118')
    A(f'buffer_load_dwordx4 v[120:123], v118, {srd(SWS)}, 0 offen {cfg.gat}')
    vloads(nv1, 8)
    wo_loads()
    A(f's_mov_b32 s{sIT}, 0')
    A(f's_waitcnt vmcnt({nv2+6})')
    A.label('L_gcheck')
    tag_check(A, 120, 136, 137, True)
    A('s_cmp_eq_u64 s[8:9], 0')
    A('s_cbranch_scc1 L_gok')
    A(f's_add_u32 s{sIT}, s{sIT}, 1')
    A(f's_cmp_gt_u32 s{sIT}, {cfg.maxit}')
    A('s_cbranch_scc1 L_gok')
    A(f'buffer_load_dwordx4 v[120:123], v118, {srd(SWS)}, 0 offen {cfg.gat}')
    A('s_waitcnt vmcnt(0)')
    A('s_branch L_gcheck')
    A.label('L_gok')
    mask_vals(A, 120)
    for st in ('row_ror:8', 'row_ror:4'):
        A.nop(2)
        for k in range(4):
            A(f'v_add_f32_dpp v{120+k}, v{120+k}, v{120+k} {st} row_mask:0xf bank_mask:0xf')
    for k in range(4):
        A(f'v_mov_b32 v{124+k}, v{120+k}')
    A.nop(2)
    for k in range(4):
        A(f'v_permlane16_swap_b32 v{124+k}, v{120+k}')
    A.nop(1)
    for k in range(4):
        A(f'v_add_f32 v{120+k}, v{124+k}, v{120+k}')
    A('v_cvt_pk_bf16_f32 v124, v120, v121')
    A('v_cvt_pk_bf16_f32 v125, v122, v123')
    A('v_lshlrev_b32 v120, 16, v124')
    A('v_and_b32 v121, 0xffff0000, v124')
    A('v_lshlrev_b32 v122, 16, v125')
    A('v_and_b32 v123, 0xffff0000, v125')
    A.nop(2)
    for k in range(4):
        A(f'v_mul_f32_dpp v{124+k}, v{120+k}, v{120+k} quad_perm:[2,3,0,1] row_mask:0xf bank_mask:0xf')
    A('v_cvt_pk_bf16_f32 v120, v124, v125')
    A('v_cvt_pk_bf16_f32 v121, v126, v127')
    A('v_lshlrev_b32 v118, 3, v1')
    A(f'v_add_u32 v118, {L_HB}, v118')
    A('s_mov_b64 exec, 3')
    A('ds_write_b64 v118, v[120:121]')
    A('s_mov_b64 exec, -1')
    A('s_branch L_role_done')
    A.label('L_role3')
    vloads(0, 8)
    wo_loads()
    A.label('L_role_done')
    for j in range(4):
        A(f'v_or_b32 v133, {4*j}, v2')
        A('v_xor_b32 v133, v133, v3')
        A('v_lshlrev_b32 v133, 4, v133')
        A(f'v_lshl_add_u32 v{224+j}, v3, 8, v133')
        A(f'v_add_u32 v{224+j}, s20, v{224+j}')
    A('v_and_b32 v133, 3, v1')
    A('v_mul_u32_u24 v133, 272, v133')
    A('v_lshl_add_u32 v228, v2, 4, v133')
    A(f'v_add_u32 v228, {L_QB}, v228')
    A('v_lshrrev_b32 v133, 2, v3')
    A('v_lshl_add_u32 v134, v2, 2, v133')
    A('v_and_b32 v135, 7, v134')
    A('v_lshlrev_b32 v134, 8, v134')
    A('v_lshl_add_u32 v134, v135, 5, v134')
    A('v_and_b32 v135, 3, v3')
    A('v_lshl_add_u32 v134, v135, 3, v134')
    A(f's_add_u32 s11, s20, {L_V}')
    A('v_add_u32 v232, s11, v134')
    for T in range(1, 8):
        A(f'v_xor_b32 v{232+T}, {T*32}, v232')
    A('s_waitcnt lgkmcnt(0)')
    A('s_barrier')
    stamp(A, cfg, 6)
    A.c('scores')
    A(f's_waitcnt vmcnt(14)')
    for j in range(4):
        A(f'ds_read_b128 {vr(160+4*j)}, v228 offset:{64*j}')
    for t in range(2):
        for j in range(4):
            A(f'ds_read_b128 {vr(128+16*t+4*j)}, v{224+j} offset:{L_K + 4096*t}')
    A('v_lshlrev_b32 v118, 1, v2')
    A(f'v_add_u32 v118, {L_HB}, v118')
    A('ds_read_u16 v119, v118')
    A('ds_read_u16 v188, v118 offset:8')
    A('s_waitcnt lgkmcnt(6)')
    for j in range(4):
        if j:
            A(f's_waitcnt lgkmcnt({6-j})')
        A(f'v_mfma_f32_16x16x32_bf16 v[176:179], {vr(128+4*j)}, {vr(160+4*j)}, {"0" if j == 0 else "v[176:179]"}')
    for j in range(4):
        A(f's_waitcnt lgkmcnt({5-j})')
        A(f'v_mfma_f32_16x16x32_bf16 v[180:183], {vr(144+4*j)}, {vr(160+4*j)}, {"0" if j == 0 else "v[180:183]"}')
    A('s_waitcnt lgkmcnt(0)')
    build_sel(A, 80, 119, 126)
    build_sel(A, 84, 188, 126)
    A.c('softmax')
    for k in range(4):
        A(f'v_cvt_pk_bf16_f32 v{184+k}, v{176+2*k}, v{177+2*k}')
    for k in range(4):
        A(f'v_lshlrev_b32 v{176+2*k}, 16, v{184+k}')
        A(f'v_and_b32 v{177+2*k}, 0xffff0000, v{184+k}')
    for k in range(8):
        A(f'v_mul_f32 v{176+k}, s{sSCALE}, v{176+k}')
    for k in range(4):
        A(f'v_cvt_pk_bf16_f32 v{184+k}, v{176+2*k}, v{177+2*k}')
    for k in range(4):
        A(f'v_lshlrev_b32 v{176+2*k}, 16, v{184+k}')
        A(f'v_and_b32 v{177+2*k}, 0xffff0000, v{184+k}')
    A('v_max3_f32 v189, v176, v177, v178')
    A('v_max3_f32 v190, v179, v180, v181')
    A('v_max3_f32 v189, v189, v182, v183')
    A('v_max_f32 v189, v189, v190')
    cross_rows(A, 189, 190, 'v_max_f32')
    A(f'v_mul_f32 v190, s{sLOG2E}, v189')
    for k in range(8):
        A(f'v_fma_f32 v{176+k}, v{176+k}, s{sLOG2E}, -v190')
    for k in range(8):
        A(f'v_exp_f32 v{176+k}, v{176+k}')
    A.nop(1)
    for k in range(4):
        A(f'v_cvt_pk_bf16_f32 v{184+k}, v{176+2*k}, v{177+2*k}')
    A('v_add_f32 v191, v176, v177')
    A('v_add_f32 v190, v178, v179')
    A('v_add_f32 v176, v180, v181')
    A('v_add_f32 v177, v182, v183')
    A('v_add_f32 v191, v191, v190')
    A('v_add_f32 v176, v176, v177')
    A('v_add_f32 v191, v191, v176')
    cross_rows(A, 191, 190, 'v_add_f32')
    stamp(A, cfg, 7)
    A.c('PV')
    A('s_waitcnt vmcnt(6)')
    stamp(A, cfg, 8)
    for T in range(8):
        A(f'ds_read_b64_tr_b16 v[{128+4*T}:{129+4*T}], v{232+T}')
        A(f'ds_read_b64_tr_b16 v[{130+4*T}:{131+4*T}], v{232+T} offset:4096')
    for T in range(8):
        A(f's_waitcnt lgkmcnt({14-2*T})')
        A(f'v_mfma_f32_16x16x32_bf16 {vr(192+4*T)}, {vr(128+4*T)}, v[184:187], 0')
    A('v_and_b32 v118, 3, v1')
    A('v_mul_u32_u24 v119, 528, v118')
    A('v_lshl_add_u32 v119, v2, 4, v119')
    A('v_add_u32 v119, s20, v119')
    A('s_lshl_b32 s11, s3, 2')
    A(f's_add_u32 s11, s11, {L_ML}')
    A('v_lshlrev_b32 v118, 5, v118')
    A('v_add_u32 v118, s11, v118')
    A('s_mov_b32 exec_lo, 0x000f000f')
    A('s_mov_b32 exec_hi, 0x000f000f')
    A('ds_write_b32 v118, v189')
    A('ds_write_b32 v118, v191 offset:16')
    A.nop(2)
    for T in range(8):
        A(f'ds_write_b128 v119, {vr(192+4*T)} offset:{64*T}')
    A('s_mov_b64 exec, -1')
    A('s_waitcnt lgkmcnt(0)')
    A('s_barrier')
    stamp(A, cfg, 9)
    A.c('o partial publish')
    A('s_cmp_eq_u32 s3, 3')
    A('s_cbranch_scc1 L_opub_done')
    A('v_lshrrev_b32 v118, 5, v0')
    A('v_bfe_u32 v119, v1, 3, 2')
    A('s_cmp_eq_u32 s3, 2')
    A('s_cselect_b64 vcc, -1, 0')
    A('v_cndmask_b32 v118, v118, v119, vcc')
    A('v_lshlrev_b32 v119, 5, v118')
    A(f'v_add_u32 v119, {L_ML}, v119')
    A('ds_read_b128 v[120:123], v119')
    A('ds_read_b128 v[124:127], v119 offset:16')
    A('v_mul_u32_u24 v119, 528, v118')
    A('v_and_b32 v133, 31, v0')
    A('v_lshl_add_u32 v119, v133, 4, v119')
    for w in range(4):
        A(f'ds_read_b128 {vr(128+4*w+16)}, v119 offset:{8192*w}')
    A('v_lshrrev_b32 v134, 2, v133')
    A('v_lshl_add_u32 v134, v118, 3, v134')
    A('v_and_b32 v135, 3, v133')
    A('v_and_b32 v136, 31, v1')
    A('v_cndmask_b32 v134, v134, v136, vcc')
    A('v_mov_b32 v136, 4')
    A('v_cndmask_b32 v135, v135, v136, vcc')
    A('v_mul_u32_u24 v134, 2560, v134')
    A('v_lshl_add_u32 v134, v135, 4, v134')
    A('s_mul_i32 s11, s4, 81920')
    A('s_mul_i32 s12, s5, 80')
    A('s_add_u32 s11, s11, s12')
    A(f's_add_u32 s11, s11, {OOFF}')
    A('v_add_u32 v134, s11, v134')
    A('s_waitcnt lgkmcnt(4)')
    A('v_max3_f32 v135, v120, v121, v122')
    A('v_max_f32 v135, v135, v123')
    for w in range(4):
        A(f'v_sub_f32 v{120+w}, v{120+w}, v135')
    for w in range(4):
        A(f'v_mul_f32 v{120+w}, s{sLOG2E}, v{120+w}')
    for w in range(4):
        A(f'v_exp_f32 v{120+w}, v{120+w}')
    A.nop(1)
    A('v_mul_f32 v136, v120, v124')
    for w in range(1, 4):
        A(f'v_fmac_f32 v136, v{120+w}, v{124+w}')
    A('s_waitcnt lgkmcnt(0)')
    for k in range(4):
        A(f'v_mul_f32 v{128+k}, v120, v{144+k}')
    for w in range(1, 4):
        for k in range(4):
            A(f'v_fmac_f32 v{128+k}, v{120+w}, v{144+4*w+k}')
    A('v_cndmask_b32 v128, v128, v135, vcc')
    A('v_cndmask_b32 v129, v129, v136, vcc')
    tag_insert(A, 128)
    A('s_cmp_eq_u32 s3, 2')
    A('s_cselect_b32 exec_hi, 0, -1')
    A(f'buffer_store_dwordx4 v[128:131], v134, {srd(SWS)}, 0 offen {cfg.pub}')
    A('s_mov_b64 exec, -1')
    A.label('L_opub_done')
    stamp(A, cfg, 10)
    A('s_cmp_lg_u32 s3, 0')
    A('s_cbranch_scc1 L_ogat_done')
    A.c('o gather and combine')
    A('s_lshl_b32 s11, s4, 5')
    A('s_add_u32 s11, s11, s5')
    A('s_mul_i32 s11, s11, 2560')
    A(f's_add_u32 s11, s11, {OOFF}')
    A('v_lshrrev_b32 v118, 2, v1')
    A('v_mul_u32_u24 v118, 80, v118')
    A('v_add_u32 v119, s11, v118')
    A('v_and_b32 v133, 3, v1')
    A('v_lshl_add_u32 v118, v133, 4, v119')
    A(f's_mov_b32 s{sIT}, 0')
    A.label('L_ogat')
    A(f'buffer_load_dwordx4 v[120:123], v118, {srd(SWS)}, 0 offen {cfg.gat}')
    A(f'buffer_load_dwordx4 v[124:127], v118, {srd(SWS)}, 0 offen offset:1280 {cfg.gat}')
    A(f'buffer_load_dwordx4 v[128:131], v119, {srd(SWS)}, 0 offen offset:64 {cfg.gat}')
    A(f'buffer_load_dwordx4 v[132:135], v119, {srd(SWS)}, 0 offen offset:1344 {cfg.gat}')
    A('s_waitcnt vmcnt(0)')
    for q in range(4):
        tag_check(A, 120+4*q, 136, 137, q == 0)
    A('s_cmp_eq_u64 s[8:9], 0')
    A('s_cbranch_scc1 L_ook')
    A(f's_add_u32 s{sIT}, s{sIT}, 1')
    A(f's_cmp_le_u32 s{sIT}, {cfg.maxit}')
    A('s_cbranch_scc1 L_ogat')
    A.label('L_ook')
    stamp(A, cfg, 11)
    mask_vals(A, 120, 8)
    mask_vals(A, 128, 2)
    mask_vals(A, 132, 2)
    A('v_max_f32 v136, v128, v132')
    for st in ('row_ror:8', 'row_ror:4'):
        A.nop(2)
        A(f'v_max_f32_dpp v136, v136, v136 {st} row_mask:0xf bank_mask:0xf')
    cross_rows(A, 136, 137, 'v_max_f32')
    A('v_sub_f32 v128, v128, v136')
    A('v_sub_f32 v132, v132, v136')
    A(f'v_mul_f32 v128, s{sLOG2E}, v128')
    A(f'v_mul_f32 v132, s{sLOG2E}, v132')
    A('v_exp_f32 v128, v128')
    A('v_exp_f32 v132, v132')
    A.nop(1)
    A('v_mul_f32 v138, v128, v129')
    A('v_fmac_f32 v138, v132, v133')
    for k in range(4):
        A(f'v_mul_f32 v{120+k}, v128, v{120+k}')
    for k in range(4):
        A(f'v_fmac_f32 v{120+k}, v132, v{124+k}')
    A.nop(1)
    A('v_permlane32_swap_b32 v120, v121')
    A('v_permlane32_swap_b32 v122, v123')
    A.nop(1)
    A('v_add_f32 v120, v120, v121')
    A('v_add_f32 v122, v122, v123')
    A.nop(2)
    A('v_permlane16_swap_b32 v120, v122')
    A.nop(1)
    A('v_add_f32 v120, v120, v122')
    for st in ('row_ror:8', 'row_ror:4'):
        A.nop(2)
        A(f'v_add_f32_dpp v120, v120, v120 {st} row_mask:0xf bank_mask:0xf')
        A(f'v_add_f32_dpp v138, v138, v138 {st} row_mask:0xf bank_mask:0xf')
    cross_rows(A, 138, 137, 'v_add_f32')
    A('v_rcp_f32 v138, v138')
    A.nop(1)
    A('v_mul_f32 v120, v120, v138')
    A('v_cvt_pk_bf16_f32 v120, v120, v120')
    A('v_and_b32 v118, 1, v2')
    A('v_lshlrev_b32 v118, 1, v118')
    A('v_lshrrev_b32 v119, 1, v2')
    A('v_or_b32 v118, v118, v119')
    A('v_and_b32 v119, 3, v1')
    A('v_lshl_add_u32 v118, v119, 2, v118')
    A('v_lshlrev_b32 v118, 1, v118')
    A(f'v_add_u32 v118, {L_OB}, v118')
    A('s_mov_b32 exec_lo, 0x000f000f')
    A('s_mov_b32 exec_hi, 0x000f000f')
    A('ds_write_b16 v118, v120')
    A('s_mov_b64 exec, -1')
    A.label('L_ogat_done')
    A('v_lshlrev_b32 v118, 1, v2')
    A(f'v_add_u32 v118, {L_OB}, v118')
    A('s_waitcnt lgkmcnt(0)')
    A('s_barrier')
    stamp(A, cfg, 12)
    A.c('output projection')
    for i in range(4):
        A(f'ds_read_u16 v{120+i}, v118 offset:{8*i}')
    A('s_waitcnt vmcnt(0)')
    for i in range(2):
        A(f'v_mfma_f32_16x16x32_bf16 v[88:91], {vr(80+4*i)}, {vr(56+4*i)}, {"0" if i == 0 else "v[88:91]"}')
    for i in range(4):
        A(f's_waitcnt lgkmcnt({3-i})')
        build_sel(A, 64+4*i, 120+i, 126)
    A.nop(1)
    for i in range(4):
        A(f'v_mfma_f32_16x16x32_bf16 v[88:91], {vr(64+4*i)}, {vr(40+4*i)}, v[88:91]')
    A('v_lshlrev_b32 v118, 1, v3')
    A('v_add_u32 v118, v118, v2')
    A('s_lshl_b32 s11, s3, 5')
    A('v_add_u32 v118, s11, v118')
    A('v_lshlrev_b32 v118, 12, v118')
    A('s_lshl_b32 s11, s2, 4')
    A(f's_add_u32 s11, s11, {FOFF}')
    A('v_add_u32 v118, s11, v118')
    A.nop(3)
    tag_insert(A, 88)
    A('s_mov_b32 exec_hi, 0')
    A(f'buffer_store_dwordx4 v[88:91], v118, {srd(SWS)}, 0 offen {cfg.pub}')
    A('s_mov_b64 exec, -1')
    stamp(A, cfg, 13)
    A('s_cmp_ge_u32 s2, 128')
    A('s_cbranch_scc1 L_fin_done')
    A.c('final reduce')
    A('s_lshl_b32 s11, s2, 12')
    A(f's_add_u32 s11, s11, {FOFF}')
    A('v_lshlrev_b32 v118, 4, v0')
    A('v_add_u32 v118, s11, v118')
    A(f's_mov_b32 s{sIT}, 0')
    A.label('L_fgat')
    A(f'buffer_load_dwordx4 v[120:123], v118, {srd(SWS)}, 0 offen {cfg.gat}')
    A('s_waitcnt vmcnt(0)')
    tag_check(A, 120, 136, 137, True)
    A('s_cmp_eq_u64 s[8:9], 0')
    A('s_cbranch_scc1 L_fok')
    A(f's_add_u32 s{sIT}, s{sIT}, 1')
    A(f's_cmp_le_u32 s{sIT}, {cfg.maxit}')
    A('s_cbranch_scc1 L_fgat')
    A.label('L_fok')
    stamp(A, cfg, 14)
    mask_vals(A, 120)
    A.nop(1)
    A('v_permlane32_swap_b32 v120, v121')
    A('v_permlane32_swap_b32 v122, v123')
    A.nop(1)
    A('v_add_f32 v120, v120, v121')
    A('v_add_f32 v122, v122, v123')
    A.nop(2)
    A('v_permlane16_swap_b32 v120, v122')
    A.nop(1)
    A('v_add_f32 v120, v120, v122')
    allreduce16(A, 120, 121, 'v_add_f32', ROW_FULL)
    A('v_and_b32 v118, 1, v2')
    A('v_lshlrev_b32 v118, 1, v118')
    A('v_lshrrev_b32 v119, 1, v2')
    A('v_or_b32 v118, v118, v119')
    A('v_lshlrev_b32 v118, 4, v118')
    A('s_lshl_b32 s11, s3, 2')
    A(f's_add_u32 s11, s11, {L_FIN}')
    A('v_add_u32 v118, s11, v118')
    A('s_mov_b32 exec_lo, 0x00010001')
    A('s_mov_b32 exec_hi, 0x00010001')
    A('ds_write_b32 v118, v120')
    A('s_mov_b64 exec, -1')
    A('s_waitcnt lgkmcnt(0)')
    A('s_barrier')
    A('s_cmp_lg_u32 s3, 0')
    A('s_cbranch_scc1 L_fin_done')
    A('v_and_b32 v119, 3, v1')
    A('v_lshlrev_b32 v118, 4, v119')
    A(f'v_add_u32 v118, {L_FIN}, v118')
    A('ds_read_b128 v[120:123], v118')
    A(f'v_mov_b32 v124, s{sX0}')
    A(f'v_mov_b32 v125, s{sX1}')
    A('v_cmp_gt_u32 vcc, 2, v119')
    A.nop(2)
    A('v_cndmask_b32 v124, v125, v124, vcc')
    A('v_and_b32 v125, 1, v119')
    A('v_lshlrev_b32 v126, 16, v124')
    A('v_and_b32 v124, 0xffff0000, v124')
    A('v_cmp_eq_u32 vcc, 0, v125')
    A.nop(2)
    A('v_cndmask_b32 v124, v124, v126, vcc')
    A('s_waitcnt lgkmcnt(0)')
    A('v_add_f32 v120, v120, v121')
    A('v_add_f32 v122, v122, v123')
    A('v_add_f32 v120, v120, v122')
    A('v_add_f32 v120, v120, v124')
    A('v_cvt_pk_bf16_f32 v120, v120, v120')
    A('s_lshl_b32 s11, s2, 3')
    A('v_lshl_add_u32 v118, v119, 1, s11')
    A('s_mov_b64 exec, 15')
    A(f'buffer_store_short v120, v118, {srd(SOUT)}, 0 offen')
    A('s_cmp_lg_u32 s2, 0')
    A('s_cbranch_scc1 L_noepoch')
    A('s_mov_b64 exec, 1')
    A(f'v_mov_b32 v121, {EOFF}')
    A(f'v_mov_b32 v122, s{sTAG}')
    A(f'buffer_store_dword v122, v121, {srd(SWS)}, 0 offen sc1')
    A.label('L_noepoch')
    A('s_mov_b64 exec, -1')
    A.label('L_fin_done')
    if cfg.prof:
        stamp(A, cfg, 15)
        A('s_lshl_b32 s11, s2, 2')
        A('s_add_u32 s11, s11, s3')
        A('s_lshl_b32 s11, s11, 6')
        A(f's_add_u32 s11, s11, {PROF}')
        A('v_lshl_add_u32 v118, v1, 2, s11')
        A('s_mov_b64 exec, 0xffff')
        A(f'buffer_store_dword v251, v118, {srd(SWS)}, 0 offen')
        A('s_mov_b64 exec, -1')
    A.label('L_end')
    A('s_endpgm')
    A('.section .rodata,"a"')
    A('.p2align 6')
    A(f'.amdhsa_kernel {NAME}')
    A('  .amdhsa_next_free_vgpr 256')
    A('  .amdhsa_next_free_sgpr 102')
    A('  .amdhsa_accum_offset 256')
    A('  .amdhsa_group_segment_fixed_size 0')
    A('  .amdhsa_kernarg_size 96')
    A('  .amdhsa_user_sgpr_count 2')
    A('  .amdhsa_user_sgpr_kernarg_segment_ptr 1')
    A('  .amdhsa_system_sgpr_workgroup_id_x 1')
    A('  .amdhsa_float_denorm_mode_32 3')
    A('.end_amdhsa_kernel')
    return A.text()

HEADER = open('parallel_sum__sliding_block_cached__glu_gated_bilinear__decode.s.ref').read().split('; Override launch')[0]

def full(cfg):
    body = gen(cfg)
    probs = check(body)
    for p in probs:
        print('HAZARD', p, file=sys.stderr)
    return HEADER + f'; @launch grid=(256,1,1) block=(256,1,1) lds={LDS_BYTES}\n' + body

if __name__ == '__main__':
    cfg = Cfg()
    for a in sys.argv[2:]:
        k, v = a.split('=')
        old = getattr(cfg, k)
        setattr(cfg, k, type(old)(eval(v)) if not isinstance(old, str) else v)
    open(sys.argv[1], 'w').write(full(cfg))
```

```python
import sys
from asmlib import Asm, check

NAME = 'parallel_sum__sliding_block_cached__glu_gated_bilinear__decode_kernel'

EOFF  = 0
QOFF  = 0x1000
GUOFF = 0x11000
OOFF  = 0x31000
FOFF  = 0xD1000
PROF  = 0x180000
WS_BYTES = 0x200000

L_K = 0
L_V = 32768
L_XN = 65536
L_PART = 66560
L_QB = 72704
L_HB = 73792
L_ML = 73824
L_OB = 73952
L_FIN = 73984
LDS_BYTES = 74240

sW, sG, sS, sTAG = 3, 4, 5, 6
SX, SK, SV, SWQ, SWO, SGA, SUP, SDN, SOUT, SWS = 40, 44, 48, 52, 56, 60, 64, 68, 72, 76
M0, M1, M2, M3 = 80, 82, 84, 86
sEX = 88
sX0, sX1 = 90, 91
sIT = 92
sLOG2E, sSCALE = 93, 94
sMSK = 95
sP01, sP23 = 96, 97
sI0, sI1, sI2, sI3 = 98, 99, 100, 101
def srd(n): return f's[{n}:{n+3}]'
def vr(n, k=4): return f'v[{n}:{n+k-1}]'

class Cfg:
    nt = 'nt'
    pub = 'sc1'
    gat = 'sc1'
    nv1 = 4
    maxit = 20000
    prof = False
    dbg = None
    dbgprof = None

def allreduce16(A, v, tmp, op, steps):
    for st in steps:
        A.nop(2)
        A(f'{op}_dpp v{v}, v{v}, v{v} {st} row_mask:0xf bank_mask:0xf')

ROW_FULL = ['quad_perm:[1,0,3,2]', 'quad_perm:[2,3,0,1]', 'row_half_mirror', 'row_mirror']

def cross_rows(A, v, tmp, op):
    A(f'v_mov_b32 v{tmp}, v{v}')
    A.nop(2)
    A(f'v_permlane16_swap_b32 v{tmp}, v{v}')
    A.nop(1)
    A(f'{op} v{v}, v{tmp}, v{v}')
    A(f'v_mov_b32 v{tmp}, v{v}')
    A.nop(2)
    A(f'v_permlane32_swap_b32 v{tmp}, v{v}')
    A.nop(1)
    A(f'{op} v{v}, v{tmp}, v{v}')

def wave_allreduce(A, v, tmp, op):
    allreduce16(A, v, tmp, op, ROW_FULL)
    cross_rows(A, v, tmp, op)

def tag_insert(A, v):
    for k, s in enumerate((sI0, sI1, sI2, sI3)):
        A(f'v_perm_b32 v{v+k}, v{v+k}, v250, s{s}')

def tag_check(A, v, t0, t1, first):
    A(f'v_perm_b32 v{t0}, v{v+1}, v{v}, s{sP01}')
    A(f'v_perm_b32 v{t1}, v{v+3}, v{v+2}, s{sP23}')
    A(f'v_or_b32 v{t0}, v{t0}, v{t1}')
    if first:
        A(f'v_cmp_ne_u32 s[8:9], s{sTAG}, v{t0}')
    else:
        A(f'v_cmp_ne_u32 s[10:11], s{sTAG}, v{t0}')
        A('s_or_b64 s[8:9], s[8:9], s[10:11]')

def mask_vals(A, v, n=4):
    for k in range(n):
        A(f'v_and_b32 v{v+k}, s{sMSK}, v{v+k}')

def build_sel(A, dst, val, tmp):
    A(f'v_lshlrev_b32 v{tmp}, v249, v{val}')
    for j, m in enumerate((M0, M1, M2, M3)):
        A(f'v_cndmask_b32_e64 v{dst+j}, 0, v{tmp}, s[{m}:{m+1}]')

def stamp(A, cfg, idx):
    if cfg.prof:
        A(f's_memrealtime s[12:13]')
        A('s_waitcnt lgkmcnt(0)')
        A(f'v_writelane_b32 v251, s12, {idx}')

def gen(cfg):
    A = Asm()
    nt = cfg.nt
    A(f'.amdgcn_target "amdgcn-amd-amdhsa--gfx950"')
    A('.text')
    A(f'.globl {NAME}')
    A('.p2align 8')
    A(f'.type {NAME},@function')
    A.label(NAME)
    A('s_cmp_ge_u32 s2, 256')
    A('s_cbranch_scc1 L_end')
    if cfg.prof:
        A('s_memrealtime s[14:15]')
    for sr, off in ((SX, 0), (SWQ, 24), (SGA, 48), (SUP, 56), (SK, 8), (SV, 16), (SWS, 88), (SWO, 32), (SDN, 64), (SOUT, 72)):
        A(f's_load_dwordx2 s[{sr}:{sr+1}], s[0:1], {off}')
    A('v_lshrrev_b32 v2, 6, v0')
    A('v_and_b32 v1, 63, v0')
    A('s_and_b32 s4, s2, 7')
    A('v_readfirstlane_b32 s3, v2')
    A('s_lshr_b32 s5, s2, 3')
    A('v_lshrrev_b32 v2, 4, v1')
    A('v_and_b32 v3, 15, v1')
    A('s_lshr_b32 s7, s5, 3')
    A('s_lshl_b32 s8, s7, 3')
    A('s_add_u32 s8, s8, s4')
    A('s_cmp_lt_u32 s8, 28')
    A('s_cselect_b32 s9, 1835008, 0')
    for sr, n in ((SX, 1024), (SWQ, 4194304), (SK, 134217728), (SV, 134217728), (SWS, WS_BYTES), (SWO, 4194304), (SOUT, 1024)):
        A(f's_mov_b32 s{sr+2}, {n}')
        A(f's_mov_b32 s{sr+3}, 0x20000')
    for sr in (SGA, SUP, SDN):
        A(f's_mov_b32 s{sr+2}, s9')
        A(f's_mov_b32 s{sr+3}, 0x20000')
    A('s_and_b32 s10, s5, 7')
    A('s_lshl_b32 s16, s7, 20')
    A('s_lshl_b32 s11, s3, 18')
    A('s_add_u32 s16, s16, s11')
    A('s_lshl_b32 s11, s4, 10')
    A('s_add_u32 s16, s16, s11')
    A('s_lshl_b32 s11, s10, 7')
    A('s_add_u32 s16, s16, s11')
    A('s_lshl_b32 s17, s10, 6')
    A('s_lshl_b32 s11, s3, 4')
    A('s_add_u32 s17, s17, s11')
    A('s_mul_i32 s17, s17, 3584')
    A('s_lshl_b32 s11, s8, 7')
    A('s_add_u32 s17, s17, s11')
    A('v_lshlrev_b32 v100, 4, v1')
    A('v_lshrrev_b32 v101, 3, v1')
    A('v_and_b32 v102, 7, v1')
    A('v_lshlrev_b32 v102, 4, v102')
    A('v_lshl_add_u32 v103, v101, 13, v102')
    A('v_mul_u32_u24 v104, 3584, v101')
    A('v_add_u32 v104, v104, v102')
    A('s_waitcnt lgkmcnt(0)')
    if cfg.prof:
        A('v_writelane_b32 v251, s14, 0')
    A(f's_load_dword s6, s[{SWS}:{SWS+1}], {EOFF}')
    A(f'buffer_load_dwordx4 v[4:7], v100, {srd(SX)}, 0 offen')
    for i in range(4):
        if i:
            A('s_add_u32 s16, s16, 65536')
        A(f'buffer_load_dwordx4 {vr(8+4*i)}, v103, {srd(SWQ)}, s16 offen {nt}')
    A('s_add_u32 s18, s17, 28672')
    A(f'buffer_load_dwordx4 {vr(24)}, v104, {srd(SGA)}, s17 offen {nt}')
    A(f'buffer_load_dwordx4 {vr(28)}, v104, {srd(SGA)}, s18 offen {nt}')
    A(f'buffer_load_dwordx4 {vr(32)}, v104, {srd(SUP)}, s17 offen {nt}')
    A(f'buffer_load_dwordx4 {vr(36)}, v104, {srd(SUP)}, s18 offen {nt}')
    for m, lo in ((M0, 0x03030303), (M1, 0x0c0c0c0c), (M2, 0x30303030), (M3, 0xc0c0c0c0)):
        A(f's_mov_b32 s{m}, {hex(lo)}')
        A(f's_mov_b32 s{m+1}, {hex(lo)}')
    A(f's_mov_b32 s{sLOG2E}, 0x3fb8aa3b')
    A(f's_mov_b32 s{sSCALE}, 0x3db504f3')
    A(f's_mov_b32 s{sMSK}, 0xffffff00')
    A(f's_mov_b32 s{sP01}, 0x0c0c0400')
    A(f's_mov_b32 s{sP23}, 0x04000c0c')
    A(f's_mov_b32 s{sI0}, 0x07060500')
    A(f's_mov_b32 s{sI1}, 0x07060501')
    A(f's_mov_b32 s{sI2}, 0x07060502')
    A(f's_mov_b32 s{sI3}, 0x07060503')
    A('v_and_b32 v249, 1, v1')
    A('v_lshlrev_b32 v249, 4, v249')
    for i in range(4):
        A(f'v_add_u32 v111, {4*i}, v2')
        A('v_xor_b32 v111, v111, v3')
        A('v_lshlrev_b32 v111, 4, v111')
        A(f'v_lshl_add_u32 v{105+i}, v2, 8, v111')
    for i in range(2):
        A(f'v_add_u32 v111, {4*i}, v2')
        A('v_lshlrev_b32 v111, 1, v111')
        A('v_xor_b32 v111, v111, v3')
        A('v_lshlrev_b32 v111, 4, v111')
        A(f'v_lshl_add_u32 v{109+i}, v2, 8, v111')
    A('s_lshl_b32 s19, s4, 24')
    A('s_lshl_b32 s11, s5, 15')
    A('s_add_u32 s19, s19, s11')
    A('s_lshl_b32 s11, s3, 13')
    A('s_add_u32 s19, s19, s11')
    A('s_add_u32 s19, s19, 15728640')
    A('s_lshl_b32 s20, s3, 13')
    A('s_lshl_b32 s21, s4, 19')
    A('s_lshl_b32 s11, s5, 14')
    A('s_add_u32 s21, s21, s11')
    A('s_lshl_b32 s11, s3, 8')
    A('s_add_u32 s21, s21, s11')
    A('s_lshl_b32 s22, s8, 16')
    A('s_lshl_b32 s23, s10, 13')
    A('s_add_u32 s22, s22, s23')
    A('s_add_u32 s22, s22, s11')
    A('v_lshlrev_b32 v112, 4, v3')
    A('v_lshl_add_u32 v112, v2, 10, v112')
    stamp(A, cfg, 1)
    A.c('layernorm')
    A('s_waitcnt vmcnt(8)')
    stamp(A, cfg, 2)
    for k in range(4):
        A(f'v_lshlrev_b32 v{120+2*k}, 16, v{4+k}')
        A(f'v_and_b32 v{121+2*k}, 0xffff0000, v{4+k}')
    A('v_add_f32 v128, v120, v121')
    A('v_add_f32 v129, v122, v123')
    A('v_add_f32 v130, v124, v125')
    A('v_add_f32 v131, v126, v127')
    A('v_add_f32 v128, v128, v129')
    A('v_add_f32 v130, v130, v131')
    A('v_add_f32 v128, v128, v130')
    wave_allreduce(A, 128, 129, 'v_add_f32')
    A('v_mul_f32 v128, 0x3b000000, v128')
    for k in range(8):
        A(f'v_sub_f32 v{132+k}, v{120+k}, v128')
    A('v_mul_f32 v130, v132, v132')
    for k in range(1, 8):
        A(f'v_fmac_f32 v130, v{132+k}, v{132+k}')
    wave_allreduce(A, 130, 129, 'v_add_f32')
    A('v_mul_f32 v130, 0x3b000000, v130')
    A('v_cvt_pk_bf16_f32 v128, v128, v130')
    A('v_and_b32 v130, 0xffff0000, v128')
    A('v_lshlrev_b32 v128, 16, v128')
    A('v_add_f32 v130, 0x3727c5ac, v130')
    A('v_cvt_pk_bf16_f32 v130, v130, v130')
    A('v_lshlrev_b32 v130, 16, v130')
    A('v_sqrt_f32 v130, v130')
    for k in range(8):
        A(f'v_sub_f32 v{132+k}, v{120+k}, v128')
    A('v_cvt_pk_bf16_f32 v130, v130, v130')
    A('v_lshlrev_b32 v130, 16, v130')
    A('v_rcp_f32 v130, v130')
    for k in range(4):
        A(f'v_cvt_pk_bf16_f32 v{140+k}, v{132+2*k}, v{133+2*k}')
    for k in range(4):
        A(f'v_lshlrev_b32 v{132+2*k}, 16, v{140+k}')
        A(f'v_and_b32 v{133+2*k}, 0xffff0000, v{140+k}')
    for k in range(8):
        A(f'v_mul_f32 v{132+k}, v{132+k}, v130')
    for k in range(4):
        A(f'v_cvt_pk_bf16_f32 v{140+k}, v{132+2*k}, v{133+2*k}')
    A(f'v_add_u32 v113, {L_XN}, v100')
    A('ds_write_b128 v113, v[140:143]')
    A('s_and_b32 s11, s2, 127')
    A('s_lshr_b32 s12, s11, 1')
    A('v_readlane_b32 s24, v4, s12')
    A('v_readlane_b32 s25, v5, s12')
    A('v_readlane_b32 s26, v6, s12')
    A('v_readlane_b32 s27, v7, s12')
    A('s_bitcmp1_b32 s11, 0')
    A(f's_cselect_b32 s{sX0}, s26, s24')
    A(f's_cselect_b32 s{sX1}, s27, s25')
    A.c('selection operands for wq and gate/up')
    A('v_lshrrev_b32 v114, 3, v3')
    A('v_lshl_add_u32 v114, v2, 1, v114')
    A('s_lshl_b32 s11, s7, 7')
    A('s_lshl_b32 s12, s3, 5')
    A('s_add_u32 s11, s11, s12')
    A('s_lshl_b32 s11, s11, 1')
    A(f's_add_u32 s11, s11, {L_XN}')
    A('v_lshl_add_u32 v115, v114, 1, s11')
    A('s_lshl_b32 s11, s10, 6')
    A('s_lshl_b32 s12, s3, 4')
    A('s_add_u32 s11, s11, s12')
    A('s_lshl_b32 s11, s11, 1')
    A(f's_add_u32 s11, s11, {L_XN}')
    A('v_lshl_add_u32 v116, v114, 1, s11')
    A('s_waitcnt lgkmcnt(0)')
    for i in range(4):
        A(f'ds_read_u16 v{120+i}, v115 offset:{16*i}')
    for i in range(2):
        A(f'ds_read_u16 v{124+i}, v116 offset:{16*i}')
    A(f's_add_u32 s6, s6, 0x01010101')
    A('v_mov_b32 v250, s6')
    A('s_waitcnt lgkmcnt(0)')
    for i in range(4):
        build_sel(A, 64+4*i, 120+i, 126)
    for i in range(2):
        build_sel(A, 80+4*i, 124+i, 126)
    A.c('K loads')
    def dma(sr, voff, i, base_lds, first):
        pass
    A(f's_add_u32 s12, s20, {L_K}')
    A('s_mov_b32 m0, s12')
    A('s_add_u32 s13, s19, 4096')
    for i in range(4):
        A(f'buffer_load_dwordx4 v{105+i}, {srd(SK)}, s19 offen offset:{1024*i} {nt} lds')
    A('s_add_u32 m0, m0, 4096')
    A.nop(1)
    for i in range(4):
        A(f'buffer_load_dwordx4 v{105+i}, {srd(SK)}, s13 offen offset:{1024*i} {nt} lds')
    stamp(A, cfg, 3)
    A.c('q / gate / up partial products')
    A('s_waitcnt vmcnt(12)')
    for i in range(4):
        A(f'v_mfma_f32_16x16x32_bf16 v[88:91], {vr(64+4*i)}, {vr(8+4*i)}, {"0" if i == 0 else "v[88:91]"}')
    A('s_waitcnt vmcnt(8)')
    for i in range(2):
        A(f'v_mfma_f32_16x16x32_bf16 v[92:95], {vr(80+4*i)}, {vr(24+4*i)}, {"0" if i == 0 else "v[92:95]"}')
    for i in range(2):
        A(f'v_mfma_f32_16x16x32_bf16 v[96:99], {vr(80+4*i)}, {vr(32+4*i)}, {"0" if i == 0 else "v[96:99]"}')
    A('v_lshrrev_b32 v117, 5, v1')
    A('v_lshlrev_b32 v117, 8, v117')
    A('v_and_b32 v118, 7, v1')
    A('v_lshl_add_u32 v117, v118, 5, v117')
    A('v_and_b32 v118, 1, v2')
    A('v_lshl_add_u32 v117, v118, 4, v117')
    A('s_lshl_b32 s11, s3, 9')
    A(f's_add_u32 s11, s11, {L_PART}')
    A('v_add_u32 v117, s11, v117')
    A('s_mov_b32 exec_lo, 0x00ff00ff')
    A('s_mov_b32 exec_hi, 0xff00ff00')
    A('ds_write_b128 v117, v[88:91]')
    A('ds_write_b128 v117, v[92:95] offset:2048')
    A.nop(1)
    A('ds_write_b128 v117, v[96:99] offset:4096')
    A('s_mov_b64 exec, -1')
    A('s_waitcnt lgkmcnt(0)')
    A('s_barrier')
    stamp(A, cfg, 4)
    A('s_cmp_lg_u32 s3, 0')
    A('s_cbranch_scc1 L_pub1_done')
    A('v_lshlrev_b32 v117, 4, v3')
    A('v_lshl_add_u32 v117, v2, 11, v117')
    A(f'v_add_u32 v117, {L_PART}, v117')
    for k in range(8):
        A(f'ds_read_b128 {vr(120+4*k)}, v117 offset:{256*k}')
    A('s_lshl_b32 s11, s4, 2')
    A('s_add_u32 s11, s11, s7')
    A('s_lshl_b32 s11, s11, 11')
    A('s_lshl_b32 s12, s10, 8')
    A('s_add_u32 s11, s11, s12')
    A(f's_add_u32 s11, s11, {QOFF}')
    A('s_lshl_b32 s12, s4, 2')
    A('s_add_u32 s12, s12, s7')
    A('s_lshl_b32 s12, s12, 3')
    A('s_add_u32 s12, s12, s10')
    A('s_lshl_b32 s12, s12, 9')
    A(f's_add_u32 s12, s12, {GUOFF-256}')
    A('v_lshlrev_b32 v118, 4, v3')
    A('v_lshl_add_u32 v119, v2, 8, v118')
    A('v_add_u32 v119, s12, v119')
    A('v_add_u32 v118, s11, v118')
    A('v_cmp_eq_u32 vcc, 0, v2')
    A.nop(2)
    A('v_cndmask_b32 v118, v119, v118, vcc')
    A('s_waitcnt lgkmcnt(0)')
    for k in range(4):
        A(f'v_add_f32 v{120+k}, v{120+k}, v{124+k}')
        A(f'v_add_f32 v{128+k}, v{128+k}, v{132+k}')
        A(f'v_add_f32 v{136+k}, v{136+k}, v{140+k}')
        A(f'v_add_f32 v{144+k}, v{144+k}, v{148+k}')
    for k in range(4):
        A(f'v_add_f32 v{120+k}, v{120+k}, v{128+k}')
        A(f'v_add_f32 v{136+k}, v{136+k}, v{144+k}')
    for k in range(4):
        A(f'v_add_f32 v{120+k}, v{120+k}, v{136+k}')
    tag_insert(A, 120)
    A('s_mov_b32 exec_lo, -1')
    A('s_mov_b32 exec_hi, 0x0000ffff')
    A(f'buffer_store_dwordx4 v[120:123], v118, {srd(SWS)}, 0 offen {cfg.pub}')
    A('s_mov_b64 exec, -1')
    A.label('L_pub1_done')
    def vloads(lo, hi):
        for i in range(lo, hi):
            if i % 4 == 0:
                A(f's_add_u32 s12, s20, {L_V + 1024*i}')
                A('s_mov_b32 m0, s12')
                A(f's_add_u32 s13, s19, {1024*i}')
            A(f'buffer_load_dwordx4 v{109+(i&1)}, {srd(SV)}, s13 offen offset:{1024*(i&3)} {nt} lds')
    def wo_loads():
        A('s_mov_b32 s13, s21')
        for i in range(4):
            if i:
                A('s_add_u32 s13, s13, 4096')
            A(f'buffer_load_dwordx4 {vr(40+4*i)}, v112, {srd(SWO)}, s13 offen {nt}')
        A('s_add_u32 s13, s22, 4096')
        A(f'buffer_load_dwordx4 {vr(56)}, v112, {srd(SDN)}, s22 offen {nt}')
        A(f'buffer_load_dwordx4 {vr(60)}, v112, {srd(SDN)}, s13 offen {nt}')
    nv1 = cfg.nv1
    assert nv1 % 4 == 0
    nv2 = 8 - nv1
    A('s_cmp_ge_u32 s3, 2')
    A('s_cbranch_scc1 L_role23')
    A.c('waves 0,1: q gather')
    vloads(0, nv1)
    A('s_lshl_b32 s11, s4, 13')
    A(f's_add_u32 s11, s11, {QOFF}')
    A('v_lshlrev_b32 v118, 4, v0')
    A('v_add_u32 v118, s11, v118')
    def qg_loads():
        for rb in range(4):
            if rb < 2:
                A(f'buffer_load_dwordx4 {vr(120+4*rb)}, v118, {srd(SWS)}, 0 offen offset:{2048*rb} {cfg.gat}')
            else:
                A(f'buffer_load_dwordx4 {vr(120+4*rb)}, v118, {srd(SWS)}, s14 offen offset:{2048*(rb-2)} {cfg.gat}')
    A('s_mov_b32 s14, 4096')
    qg_loads()
    vloads(nv1, 8)
    wo_loads()
    A(f's_mov_b32 s{sIT}, 0')
    A(f's_waitcnt vmcnt({nv2+6})')
    A.label('L_qcheck')
    for rb in range(4):
        tag_check(A, 120+4*rb, 136, 137, rb == 0)
    A('s_cmp_eq_u64 s[8:9], 0')
    A('s_cbranch_scc1 L_qok')
    A(f's_add_u32 s{sIT}, s{sIT}, 1')
    A(f's_cmp_gt_u32 s{sIT}, {cfg.maxit}')
    A('s_cbranch_scc1 L_qok')
    qg_loads()
    A('s_waitcnt vmcnt(0)')
    A('s_branch L_qcheck')
    A.label('L_qok')
    stamp(A, cfg, 5)
    for rb in range(4):
        mask_vals(A, 120+4*rb)
    for k in range(4):
        A(f'v_add_f32 v{120+k}, v{120+k}, v{124+k}')
        A(f'v_add_f32 v{128+k}, v{128+k}, v{132+k}')
    for k in range(4):
        A(f'v_add_f32 v{120+k}, v{120+k}, v{128+k}')
    A('v_cvt_pk_bf16_f32 v120, v120, v121')
    A('v_cvt_pk_bf16_f32 v121, v122, v123')
    A('v_lshrrev_b32 v118, 5, v0')
    A('v_mul_u32_u24 v118, 272, v118')
    A('v_and_b32 v119, 31, v0')
    A('v_lshl_add_u32 v118, v119, 3, v118')
    A(f'v_add_u32 v118, {L_QB}, v118')
    A('ds_write_b64 v118, v[120:121]')
    A('s_branch L_role_done')
    A.label('L_role23')
    A('s_cmp_eq_u32 s3, 3')
    A('s_cbranch_scc1 L_role3')
    A.c('wave 2: gate/up gather')
    vloads(0, nv1)
    A('s_lshl_b32 s11, s4, 2')
    A('s_add_u32 s11, s11, s7')
    A('s_lshl_b32 s11, s11, 12')
    A('s_lshl_b32 s12, s10, 5')
    A('s_add_u32 s11, s11, s12')
    A(f's_add_u32 s11, s11, {GUOFF}')
    A('v_bfe_u32 v118, v1, 2, 3')
    A('v_lshlrev_b32 v118, 9, v118')
    A('v_bfe_u32 v119, v1, 1, 1')
    A('v_lshl_add_u32 v118, v119, 8, v118')
    A('v_and_b32 v119, 1, v1')
    A('v_lshl_add_u32 v118, v119, 4, v118')
    A('v_add_u32 v118, s11, v118')
    A(f'buffer_load_dwordx4 v[120:123], v118, {srd(SWS)}, 0 offen {cfg.gat}')
    vloads(nv1, 8)
    wo_loads()
    A(f's_mov_b32 s{sIT}, 0')
    A(f's_waitcnt vmcnt({nv2+6})')
    A.label('L_gcheck')
    tag_check(A, 120, 136, 137, True)
    A('s_cmp_eq_u64 s[8:9], 0')
    A('s_cbranch_scc1 L_gok')
    A(f's_add_u32 s{sIT}, s{sIT}, 1')
    A(f's_cmp_gt_u32 s{sIT}, {cfg.maxit}')
    A('s_cbranch_scc1 L_gok')
    A(f'buffer_load_dwordx4 v[120:123], v118, {srd(SWS)}, 0 offen {cfg.gat}')
    A('s_waitcnt vmcnt(0)')
    A('s_branch L_gcheck')
    A.label('L_gok')
    mask_vals(A, 120)
    for st in ('row_ror:8', 'row_ror:4'):
        A.nop(2)
        for k in range(4):
            A(f'v_add_f32_dpp v{120+k}, v{120+k}, v{120+k} {st} row_mask:0xf bank_mask:0xf')
    for k in range(4):
        A(f'v_mov_b32 v{124+k}, v{120+k}')
    A.nop(2)
    for k in range(4):
        A(f'v_permlane16_swap_b32 v{124+k}, v{120+k}')
    A.nop(1)
    for k in range(4):
        A(f'v_add_f32 v{120+k}, v{124+k}, v{120+k}')
    A('v_cvt_pk_bf16_f32 v124, v120, v121')
    A('v_cvt_pk_bf16_f32 v125, v122, v123')
    A('v_lshlrev_b32 v120, 16, v124')
    A('v_and_b32 v121, 0xffff0000, v124')
    A('v_lshlrev_b32 v122, 16, v125')
    A('v_and_b32 v123, 0xffff0000, v125')
    A.nop(2)
    for k in range(4):
        A(f'v_mul_f32_dpp v{124+k}, v{120+k}, v{120+k} quad_perm:[2,3,0,1] row_mask:0xf bank_mask:0xf')
    A('v_cvt_pk_bf16_f32 v120, v124, v125')
    A('v_cvt_pk_bf16_f32 v121, v126, v127')
    A('v_lshlrev_b32 v118, 3, v1')
    A(f'v_add_u32 v118, {L_HB}, v118')
    A('s_mov_b64 exec, 3')
    A('ds_write_b64 v118, v[120:121]')
    A('s_mov_b64 exec, -1')
    A('s_branch L_role_done')
    A.label('L_role3')
    vloads(0, 8)
    wo_loads()
    A.label('L_role_done')
    for j in range(4):
        A(f'v_or_b32 v133, {4*j}, v2')
        A('v_xor_b32 v133, v133, v3')
        A('v_lshlrev_b32 v133, 4, v133')
        A(f'v_lshl_add_u32 v{224+j}, v3, 8, v133')
        A(f'v_add_u32 v{224+j}, s20, v{224+j}')
    A('v_and_b32 v133, 3, v1')
    A('v_mul_u32_u24 v133, 272, v133')
    A('v_lshl_add_u32 v228, v2, 4, v133')
    A(f'v_add_u32 v228, {L_QB}, v228')
    A('v_lshrrev_b32 v133, 2, v3')
    A('v_lshl_add_u32 v134, v2, 2, v133')
    A('v_and_b32 v135, 7, v134')
    A('v_lshlrev_b32 v134, 8, v134')
    A('v_lshl_add_u32 v134, v135, 5, v134')
    A('v_and_b32 v135, 3, v3')
    A('v_lshl_add_u32 v134, v135, 3, v134')
    A(f's_add_u32 s11, s20, {L_V}')
    A('v_add_u32 v232, s11, v134')
    for T in range(1, 8):
        A(f'v_xor_b32 v{232+T}, {T*32}, v232')
    A('s_waitcnt lgkmcnt(0)')
    A('s_barrier')
    stamp(A, cfg, 6)
    A.c('scores')
    A(f's_waitcnt vmcnt(14)')
    for j in range(4):
        A(f'ds_read_b128 {vr(160+4*j)}, v228 offset:{64*j}')
    for t in range(2):
        for j in range(4):
            A(f'ds_read_b128 {vr(128+16*t+4*j)}, v{224+j} offset:{L_K + 4096*t}')
    A('v_lshlrev_b32 v118, 1, v2')
    A(f'v_add_u32 v118, {L_HB}, v118')
    A('ds_read_u16 v119, v118')
    A('ds_read_u16 v188, v118 offset:8')
    A('s_waitcnt lgkmcnt(6)')
    for j in range(4):
        if j:
            A(f's_waitcnt lgkmcnt({6-j})')
        A(f'v_mfma_f32_16x16x32_bf16 v[176:179], {vr(128+4*j)}, {vr(160+4*j)}, {"0" if j == 0 else "v[176:179]"}')
    for j in range(4):
        A(f's_waitcnt lgkmcnt({5-j})')
        A(f'v_mfma_f32_16x16x32_bf16 v[180:183], {vr(144+4*j)}, {vr(160+4*j)}, {"0" if j == 0 else "v[180:183]"}')
    A('s_waitcnt lgkmcnt(0)')
    build_sel(A, 80, 119, 126)
    build_sel(A, 84, 188, 126)
    A.c('softmax')
    for k in range(4):
        A(f'v_cvt_pk_bf16_f32 v{184+k}, v{176+2*k}, v{177+2*k}')
    for k in range(4):
        A(f'v_lshlrev_b32 v{176+2*k}, 16, v{184+k}')
        A(f'v_and_b32 v{177+2*k}, 0xffff0000, v{184+k}')
    for k in range(8):
        A(f'v_mul_f32 v{176+k}, s{sSCALE}, v{176+k}')
    for k in range(4):
        A(f'v_cvt_pk_bf16_f32 v{184+k}, v{176+2*k}, v{177+2*k}')
    for k in range(4):
        A(f'v_lshlrev_b32 v{176+2*k}, 16, v{184+k}')
        A(f'v_and_b32 v{177+2*k}, 0xffff0000, v{184+k}')
    A('v_max3_f32 v189, v176, v177, v178')
    A('v_max3_f32 v190, v179, v180, v181')
    A('v_max3_f32 v189, v189, v182, v183')
    A('v_max_f32 v189, v189, v190')
    cross_rows(A, 189, 190, 'v_max_f32')
    A(f'v_mul_f32 v190, s{sLOG2E}, v189')
    for k in range(8):
        A(f'v_fma_f32 v{176+k}, v{176+k}, s{sLOG2E}, -v190')
    for k in range(8):
        A(f'v_exp_f32 v{176+k}, v{176+k}')
    A.nop(1)
    for k in range(4):
        A(f'v_cvt_pk_bf16_f32 v{184+k}, v{176+2*k}, v{177+2*k}')
    A('v_add_f32 v191, v176, v177')
    A('v_add_f32 v190, v178, v179')
    A('v_add_f32 v176, v180, v181')
    A('v_add_f32 v177, v182, v183')
    A('v_add_f32 v191, v191, v190')
    A('v_add_f32 v176, v176, v177')
    A('v_add_f32 v191, v191, v176')
    cross_rows(A, 191, 190, 'v_add_f32')
    stamp(A, cfg, 7)
    A.c('PV')
    A('s_waitcnt vmcnt(6)')
    stamp(A, cfg, 8)
    for T in range(8):
        A(f'ds_read_b64_tr_b16 v[{128+4*T}:{129+4*T}], v{232+T}')
        A(f'ds_read_b64_tr_b16 v[{130+4*T}:{131+4*T}], v{232+T} offset:4096')
    for T in range(8):
        A(f's_waitcnt lgkmcnt({14-2*T})')
        A(f'v_mfma_f32_16x16x32_bf16 {vr(192+4*T)}, {vr(128+4*T)}, v[184:187], 0')
    A('v_and_b32 v118, 3, v1')
    A('v_mul_u32_u24 v119, 528, v118')
    A('v_lshl_add_u32 v119, v2, 4, v119')
    A('v_add_u32 v119, s20, v119')
    A('s_lshl_b32 s11, s3, 2')
    A(f's_add_u32 s11, s11, {L_ML}')
    A('v_lshlrev_b32 v118, 5, v118')
    A('v_add_u32 v118, s11, v118')
    A('s_mov_b32 exec_lo, 0x000f000f')
    A('s_mov_b32 exec_hi, 0x000f000f')
    A('ds_write_b32 v118, v189')
    A('ds_write_b32 v118, v191 offset:16')
    A.nop(2)
    for T in range(8):
        A(f'ds_write_b128 v119, {vr(192+4*T)} offset:{64*T}')
    A('s_mov_b64 exec, -1')
    A('s_waitcnt lgkmcnt(0)')
    A('s_barrier')
    stamp(A, cfg, 9)
    A.c('o partial publish')
    A('s_cmp_eq_u32 s3, 3')
    A('s_cbranch_scc1 L_opub_done')
    A('v_lshrrev_b32 v118, 5, v0')
    A('v_bfe_u32 v119, v1, 3, 2')
    A('s_cmp_eq_u32 s3, 2')
    A('s_cselect_b64 vcc, -1, 0')
    A('v_cndmask_b32 v118, v118, v119, vcc')
    A('v_lshlrev_b32 v119, 5, v118')
    A(f'v_add_u32 v119, {L_ML}, v119')
    A('ds_read_b128 v[120:123], v119')
    A('ds_read_b128 v[124:127], v119 offset:16')
    A('v_mul_u32_u24 v119, 528, v118')
    A('v_and_b32 v133, 31, v0')
    A('v_lshl_add_u32 v119, v133, 4, v119')
    for w in range(4):
        A(f'ds_read_b128 {vr(128+4*w+16)}, v119 offset:{8192*w}')
    A('v_lshrrev_b32 v134, 2, v133')
    A('v_lshl_add_u32 v134, v118, 3, v134')
    A('v_and_b32 v135, 3, v133')
    A('v_and_b32 v136, 31, v1')
    A('v_cndmask_b32 v134, v134, v136, vcc')
    A('v_mov_b32 v136, 4')
    A('v_cndmask_b32 v135, v135, v136, vcc')
    A('v_mul_u32_u24 v134, 2560, v134')
    A('v_lshl_add_u32 v134, v135, 4, v134')
    A('s_mul_i32 s11, s4, 81920')
    A('s_mul_i32 s12, s5, 80')
    A('s_add_u32 s11, s11, s12')
    A(f's_add_u32 s11, s11, {OOFF}')
    A('v_add_u32 v134, s11, v134')
    A('s_waitcnt lgkmcnt(4)')
    A('v_max3_f32 v135, v120, v121, v122')
    A('v_max_f32 v135, v135, v123')
    for w in range(4):
        A(f'v_sub_f32 v{120+w}, v{120+w}, v135')
    for w in range(4):
        A(f'v_mul_f32 v{120+w}, s{sLOG2E}, v{120+w}')
    for w in range(4):
        A(f'v_exp_f32 v{120+w}, v{120+w}')
    A.nop(1)
    A('v_mul_f32 v136, v120, v124')
    for w in range(1, 4):
        A(f'v_fmac_f32 v136, v{120+w}, v{124+w}')
    A('s_waitcnt lgkmcnt(0)')
    for k in range(4):
        A(f'v_mul_f32 v{128+k}, v120, v{144+k}')
    for w in range(1, 4):
        for k in range(4):
            A(f'v_fmac_f32 v{128+k}, v{120+w}, v{144+4*w+k}')
    A('v_cndmask_b32 v128, v128, v135, vcc')
    A('v_cndmask_b32 v129, v129, v136, vcc')
    tag_insert(A, 128)
    A('s_cmp_eq_u32 s3, 2')
    A('s_cselect_b32 exec_hi, 0, -1')
    A(f'buffer_store_dwordx4 v[128:131], v134, {srd(SWS)}, 0 offen {cfg.pub}')
    A('s_mov_b64 exec, -1')
    A.label('L_opub_done')
    stamp(A, cfg, 10)
    A('s_cmp_lg_u32 s3, 0')
    A('s_cbranch_scc1 L_ogat_done')
    A.c('o gather and combine')
    A('s_lshl_b32 s11, s4, 5')
    A('s_add_u32 s11, s11, s5')
    A('s_mul_i32 s11, s11, 2560')
    A(f's_add_u32 s11, s11, {OOFF}')
    A('v_lshrrev_b32 v118, 2, v1')
    A('v_mul_u32_u24 v118, 80, v118')
    A('v_add_u32 v119, s11, v118')
    A('v_and_b32 v133, 3, v1')
    A('v_lshl_add_u32 v118, v133, 4, v119')
    A(f's_mov_b32 s{sIT}, 0')
    A.label('L_ogat')
    A(f'buffer_load_dwordx4 v[120:123], v118, {srd(SWS)}, 0 offen {cfg.gat}')
    A(f'buffer_load_dwordx4 v[124:127], v118, {srd(SWS)}, 0 offen offset:1280 {cfg.gat}')
    A(f'buffer_load_dwordx4 v[128:131], v119, {srd(SWS)}, 0 offen offset:64 {cfg.gat}')
    A(f'buffer_load_dwordx4 v[132:135], v119, {srd(SWS)}, 0 offen offset:1344 {cfg.gat}')
    A('s_waitcnt vmcnt(0)')
    for q in range(4):
        tag_check(A, 120+4*q, 136, 137, q == 0)
    A('s_cmp_eq_u64 s[8:9], 0')
    A('s_cbranch_scc1 L_ook')
    A(f's_add_u32 s{sIT}, s{sIT}, 1')
    A(f's_cmp_le_u32 s{sIT}, {cfg.maxit}')
    A('s_cbranch_scc1 L_ogat')
    A.label('L_ook')
    stamp(A, cfg, 11)
    mask_vals(A, 120, 8)
    mask_vals(A, 128, 2)
    mask_vals(A, 132, 2)
    A('v_max_f32 v136, v128, v132')
    for st in ('row_ror:8', 'row_ror:4'):
        A.nop(2)
        A(f'v_max_f32_dpp v136, v136, v136 {st} row_mask:0xf bank_mask:0xf')
    cross_rows(A, 136, 137, 'v_max_f32')
    A('v_sub_f32 v128, v128, v136')
    A('v_sub_f32 v132, v132, v136')
    A(f'v_mul_f32 v128, s{sLOG2E}, v128')
    A(f'v_mul_f32 v132, s{sLOG2E}, v132')
    A('v_exp_f32 v128, v128')
    A('v_exp_f32 v132, v132')
    A.nop(1)
    A('v_mul_f32 v138, v128, v129')
    A('v_fmac_f32 v138, v132, v133')
    for k in range(4):
        A(f'v_mul_f32 v{120+k}, v128, v{120+k}')
    for k in range(4):
        A(f'v_fmac_f32 v{120+k}, v132, v{124+k}')
    A.nop(1)
    A('v_permlane32_swap_b32 v120, v121')
    A('v_permlane32_swap_b32 v122, v123')
    A.nop(1)
    A('v_add_f32 v120, v120, v121')
    A('v_add_f32 v122, v122, v123')
    A.nop(2)
    A('v_permlane16_swap_b32 v120, v122')
    A.nop(1)
    A('v_add_f32 v120, v120, v122')
    for st in ('row_ror:8', 'row_ror:4'):
        A.nop(2)
        A(f'v_add_f32_dpp v120, v120, v120 {st} row_mask:0xf bank_mask:0xf')
        A(f'v_add_f32_dpp v138, v138, v138 {st} row_mask:0xf bank_mask:0xf')
    cross_rows(A, 138, 137, 'v_add_f32')
    A('v_rcp_f32 v138, v138')
    A.nop(1)
    A('v_mul_f32 v120, v120, v138')
    A('v_cvt_pk_bf16_f32 v120, v120, v120')
    A('v_and_b32 v118, 1, v2')
    A('v_lshlrev_b32 v118, 1, v118')
    A('v_lshrrev_b32 v119, 1, v2')
    A('v_or_b32 v118, v118, v119')
    A('v_and_b32 v119, 3, v1')
    A('v_lshl_add_u32 v118, v119, 2, v118')
    A('v_lshlrev_b32 v118, 1, v118')
    A(f'v_add_u32 v118, {L_OB}, v118')
    A('s_mov_b32 exec_lo, 0x000f000f')
    A('s_mov_b32 exec_hi, 0x000f000f')
    A('ds_write_b16 v118, v120')
    A('s_mov_b64 exec, -1')
    A.label('L_ogat_done')
    A('v_lshlrev_b32 v118, 1, v2')
    A(f'v_add_u32 v118, {L_OB}, v118')
    A('s_waitcnt lgkmcnt(0)')
    A('s_barrier')
    stamp(A, cfg, 12)
    A.c('output projection')
    for i in range(4):
        A(f'ds_read_u16 v{120+i}, v118 offset:{8*i}')
    A('s_waitcnt vmcnt(0)')
    for i in range(2):
        A(f'v_mfma_f32_16x16x32_bf16 v[88:91], {vr(80+4*i)}, {vr(56+4*i)}, {"0" if i == 0 else "v[88:91]"}')
    for i in range(4):
        A(f's_waitcnt lgkmcnt({3-i})')
        build_sel(A, 64+4*i, 120+i, 126)
    A.nop(1)
    for i in range(4):
        A(f'v_mfma_f32_16x16x32_bf16 v[88:91], {vr(64+4*i)}, {vr(40+4*i)}, v[88:91]')
    A('v_lshlrev_b32 v118, 1, v3')
    A('v_add_u32 v118, v118, v2')
    A('s_lshl_b32 s11, s3, 5')
    A('v_add_u32 v118, s11, v118')
    A('v_lshlrev_b32 v118, 12, v118')
    A('s_lshl_b32 s11, s2, 4')
    A(f's_add_u32 s11, s11, {FOFF}')
    A('v_add_u32 v118, s11, v118')
    A.nop(3)
    tag_insert(A, 88)
    A('s_mov_b32 exec_hi, 0')
    A(f'buffer_store_dwordx4 v[88:91], v118, {srd(SWS)}, 0 offen {cfg.pub}')
    A('s_mov_b64 exec, -1')
    stamp(A, cfg, 13)
    A('s_cmp_ge_u32 s2, 128')
    A('s_cbranch_scc1 L_fin_done')
    A.c('final reduce')
    A('s_lshl_b32 s11, s2, 12')
    A(f's_add_u32 s11, s11, {FOFF}')
    A('v_lshlrev_b32 v118, 4, v0')
    A('v_add_u32 v118, s11, v118')
    A(f's_mov_b32 s{sIT}, 0')
    A.label('L_fgat')
    A(f'buffer_load_dwordx4 v[120:123], v118, {srd(SWS)}, 0 offen {cfg.gat}')
    A('s_waitcnt vmcnt(0)')
    tag_check(A, 120, 136, 137, True)
    A('s_cmp_eq_u64 s[8:9], 0')
    A('s_cbranch_scc1 L_fok')
    A(f's_add_u32 s{sIT}, s{sIT}, 1')
    A(f's_cmp_le_u32 s{sIT}, {cfg.maxit}')
    A('s_cbranch_scc1 L_fgat')
    A.label('L_fok')
    stamp(A, cfg, 14)
    mask_vals(A, 120)
    A.nop(1)
    A('v_permlane32_swap_b32 v120, v121')
    A('v_permlane32_swap_b32 v122, v123')
    A.nop(1)
    A('v_add_f32 v120, v120, v121')
    A('v_add_f32 v122, v122, v123')
    A.nop(2)
    A('v_permlane16_swap_b32 v120, v122')
    A.nop(1)
    A('v_add_f32 v120, v120, v122')
    allreduce16(A, 120, 121, 'v_add_f32', ROW_FULL)
    A('v_and_b32 v118, 1, v2')
    A('v_lshlrev_b32 v118, 1, v118')
    A('v_lshrrev_b32 v119, 1, v2')
    A('v_or_b32 v118, v118, v119')
    A('v_lshlrev_b32 v118, 4, v118')
    A('s_lshl_b32 s11, s3, 2')
    A(f's_add_u32 s11, s11, {L_FIN}')
    A('v_add_u32 v118, s11, v118')
    A('s_mov_b32 exec_lo, 0x00010001')
    A('s_mov_b32 exec_hi, 0x00010001')
    A('ds_write_b32 v118, v120')
    A('s_mov_b64 exec, -1')
    A('s_waitcnt lgkmcnt(0)')
    A('s_barrier')
    A('s_cmp_lg_u32 s3, 0')
    A('s_cbranch_scc1 L_fin_done')
    A('v_and_b32 v119, 3, v1')
    A('v_lshlrev_b32 v118, 4, v119')
    A(f'v_add_u32 v118, {L_FIN}, v118')
    A('ds_read_b128 v[120:123], v118')
    A(f'v_mov_b32 v124, s{sX0}')
    A(f'v_mov_b32 v125, s{sX1}')
    A('v_cmp_gt_u32 vcc, 2, v119')
    A.nop(2)
    A('v_cndmask_b32 v124, v125, v124, vcc')
    A('v_and_b32 v125, 1, v119')
    A('v_lshlrev_b32 v126, 16, v124')
    A('v_and_b32 v124, 0xffff0000, v124')
    A('v_cmp_eq_u32 vcc, 0, v125')
    A.nop(2)
    A('v_cndmask_b32 v124, v124, v126, vcc')
    A('s_waitcnt lgkmcnt(0)')
    A('v_add_f32 v120, v120, v121')
    A('v_add_f32 v122, v122, v123')
    A('v_add_f32 v120, v120, v122')
    A('v_add_f32 v120, v120, v124')
    A('v_cvt_pk_bf16_f32 v120, v120, v120')
    A('s_lshl_b32 s11, s2, 3')
    A('v_lshl_add_u32 v118, v119, 1, s11')
    A('s_mov_b64 exec, 15')
    A(f'buffer_store_short v120, v118, {srd(SOUT)}, 0 offen')
    A('s_cmp_lg_u32 s2, 0')
    A('s_cbranch_scc1 L_noepoch')
    A('s_mov_b64 exec, 1')
    A(f'v_mov_b32 v121, {EOFF}')
    A(f'v_mov_b32 v122, s{sTAG}')
    A(f'buffer_store_dword v122, v121, {srd(SWS)}, 0 offen sc1')
    A.label('L_noepoch')
    A('s_mov_b64 exec, -1')
    A.label('L_fin_done')
    if cfg.prof:
        stamp(A, cfg, 15)
        A('s_lshl_b32 s11, s2, 2')
        A('s_add_u32 s11, s11, s3')
        A('s_lshl_b32 s11, s11, 6')
        A(f's_add_u32 s11, s11, {PROF}')
        A('v_lshl_add_u32 v118, v1, 2, s11')
        A('s_mov_b64 exec, 0xffff')
        A(f'buffer_store_dword v251, v118, {srd(SWS)}, 0 offen')
        if cfg.dbgprof is not None:
            A(f's_cmp_lg_u32 s2, {cfg.dbgprof}')
            A('s_cbranch_scc1 L_nodbg')
            A('s_cmp_lg_u32 s3, 0')
            A('s_cbranch_scc1 L_nodbg')
            A('s_load_dwordx2 s[16:17], s[0:1], 80')
            A('s_mov_b32 s18, 256')
            A('s_mov_b32 s19, 0x20000')
            A('v_readlane_b32 s20, v251, 0')
            A('v_lshlrev_b32 v118, 2, v1')
            A('s_nop 3')
            A('v_subrev_u32 v251, s20, v251')
            A('s_waitcnt lgkmcnt(0)')
            A('buffer_store_dword v251, v118, s[16:19], 0 offen')
            A.label('L_nodbg')
        A('s_mov_b64 exec, -1')
    A.label('L_end')
    A('s_endpgm')
    A('.section .rodata,"a"')
    A('.p2align 6')
    A(f'.amdhsa_kernel {NAME}')
    A('  .amdhsa_next_free_vgpr 256')
    A('  .amdhsa_next_free_sgpr 102')
    A('  .amdhsa_accum_offset 256')
    A('  .amdhsa_group_segment_fixed_size 0')
    A('  .amdhsa_kernarg_size 96')
    A('  .amdhsa_user_sgpr_count 2')
    A('  .amdhsa_user_sgpr_kernarg_segment_ptr 1')
    A('  .amdhsa_system_sgpr_workgroup_id_x 1')
    A('  .amdhsa_float_denorm_mode_32 3')
    A('.end_amdhsa_kernel')
    return A.text()

HEADER = open('parallel_sum__sliding_block_cached__glu_gated_bilinear__decode.s.ref').read().split('; Override launch')[0]

def full(cfg):
    body = gen(cfg)
    probs = check(body)
    for p in probs:
        print('HAZARD', p, file=sys.stderr)
    return HEADER + f'; @launch grid=(256,1,1) block=(256,1,1) lds={LDS_BYTES}\n' + body

if __name__ == '__main__':
    cfg = Cfg()
    for a in sys.argv[2:]:
        k, v = a.split('=')
        old = getattr(cfg, k)
        setattr(cfg, k, v if isinstance(old, str) else eval(v))
    open(sys.argv[1], 'w').write(full(cfg))
```

```python
import sys
from asmlib import Asm, check

NAME = 'parallel_sum__sliding_block_cached__glu_gated_bilinear__decode_kernel'

EOFF  = 0
QOFF  = 0x1000
GUOFF = 0x11000
OOFF  = 0x31000
FOFF  = 0xD1000
PROF  = 0x180000
WS_BYTES = 0x200000

L_K = 0
L_V = 32768
L_XN = 65536
L_PART = 66560
L_QB = 72704
L_HB = 73792
L_ML = 73824
L_OB = 73952
L_FIN = 73984
LDS_BYTES = 74240

sW, sG, sS, sTAG = 3, 4, 5, 6
SX, SK, SV, SWQ, SWO, SGA, SUP, SDN, SOUT, SWS = 40, 44, 48, 52, 56, 60, 64, 68, 72, 76
M0, M1, M2, M3 = 80, 82, 84, 86
sEX = 88
sX0, sX1 = 90, 91
sIT = 92
sLOG2E, sSCALE = 93, 94
sMSK = 95
sP01, sP23 = 96, 97
sI0, sI1, sI2, sI3 = 98, 99, 100, 101
def srd(n): return f's[{n}:{n+3}]'
def vr(n, k=4): return f'v[{n}:{n+k-1}]'

class Cfg:
    nt = 'nt'
    pub = 'sc1'
    gat = 'sc1'
    nv1 = 4
    maxit = 20000
    prof = False
    dbg = None
    dbgprof = None
    calib = 0

def allreduce16(A, v, tmp, op, steps):
    for st in steps:
        A.nop(2)
        A(f'{op}_dpp v{v}, v{v}, v{v} {st} row_mask:0xf bank_mask:0xf')

ROW_FULL = ['quad_perm:[1,0,3,2]', 'quad_perm:[2,3,0,1]', 'row_half_mirror', 'row_mirror']

def cross_rows(A, v, tmp, op):
    A(f'v_mov_b32 v{tmp}, v{v}')
    A.nop(2)
    A(f'v_permlane16_swap_b32 v{tmp}, v{v}')
    A.nop(1)
    A(f'{op} v{v}, v{tmp}, v{v}')
    A(f'v_mov_b32 v{tmp}, v{v}')
    A.nop(2)
    A(f'v_permlane32_swap_b32 v{tmp}, v{v}')
    A.nop(1)
    A(f'{op} v{v}, v{tmp}, v{v}')

def wave_allreduce(A, v, tmp, op):
    allreduce16(A, v, tmp, op, ROW_FULL)
    cross_rows(A, v, tmp, op)

def tag_insert(A, v):
    for k, s in enumerate((sI0, sI1, sI2, sI3)):
        A(f'v_perm_b32 v{v+k}, v{v+k}, v250, s{s}')

def tag_check(A, v, t0, t1, first):
    A(f'v_perm_b32 v{t0}, v{v+1}, v{v}, s{sP01}')
    A(f'v_perm_b32 v{t1}, v{v+3}, v{v+2}, s{sP23}')
    A(f'v_or_b32 v{t0}, v{t0}, v{t1}')
    if first:
        A(f'v_cmp_ne_u32 s[8:9], s{sTAG}, v{t0}')
    else:
        A(f'v_cmp_ne_u32 s[10:11], s{sTAG}, v{t0}')
        A('s_or_b64 s[8:9], s[8:9], s[10:11]')

def mask_vals(A, v, n=4):
    for k in range(n):
        A(f'v_and_b32 v{v+k}, s{sMSK}, v{v+k}')

def build_sel(A, dst, val, tmp):
    A(f'v_lshlrev_b32 v{tmp}, v249, v{val}')
    for j, m in enumerate((M0, M1, M2, M3)):
        A(f'v_cndmask_b32_e64 v{dst+j}, 0, v{tmp}, s[{m}:{m+1}]')

def stamp(A, cfg, idx):
    if cfg.prof:
        A(f's_memrealtime s[12:13]')
        A('s_waitcnt lgkmcnt(0)')
        A(f'v_writelane_b32 v251, s12, {idx}')

def gen(cfg):
    A = Asm()
    nt = cfg.nt
    A(f'.amdgcn_target "amdgcn-amd-amdhsa--gfx950"')
    A('.text')
    A(f'.globl {NAME}')
    A('.p2align 8')
    A(f'.type {NAME},@function')
    A.label(NAME)
    A('s_cmp_ge_u32 s2, 256')
    A('s_cbranch_scc1 L_end')
    if cfg.prof:
        A('s_memrealtime s[14:15]')
    for sr, off in ((SX, 0), (SWQ, 24), (SGA, 48), (SUP, 56), (SK, 8), (SV, 16), (SWS, 88), (SWO, 32), (SDN, 64), (SOUT, 72)):
        A(f's_load_dwordx2 s[{sr}:{sr+1}], s[0:1], {off}')
    A('v_lshrrev_b32 v2, 6, v0')
    A('v_and_b32 v1, 63, v0')
    A('s_and_b32 s4, s2, 7')
    A('v_readfirstlane_b32 s3, v2')
    A('s_lshr_b32 s5, s2, 3')
    A('v_lshrrev_b32 v2, 4, v1')
    A('v_and_b32 v3, 15, v1')
    A('s_lshr_b32 s7, s5, 3')
    A('s_lshl_b32 s8, s7, 3')
    A('s_add_u32 s8, s8, s4')
    A('s_cmp_lt_u32 s8, 28')
    A('s_cselect_b32 s9, 1835008, 0')
    for sr, n in ((SX, 1024), (SWQ, 4194304), (SK, 134217728), (SV, 134217728), (SWS, WS_BYTES), (SWO, 4194304), (SOUT, 1024)):
        A(f's_mov_b32 s{sr+2}, {n}')
        A(f's_mov_b32 s{sr+3}, 0x20000')
    for sr in (SGA, SUP, SDN):
        A(f's_mov_b32 s{sr+2}, s9')
        A(f's_mov_b32 s{sr+3}, 0x20000')
    A('s_and_b32 s10, s5, 7')
    A('s_lshl_b32 s16, s7, 20')
    A('s_lshl_b32 s11, s3, 18')
    A('s_add_u32 s16, s16, s11')
    A('s_lshl_b32 s11, s4, 10')
    A('s_add_u32 s16, s16, s11')
    A('s_lshl_b32 s11, s10, 7')
    A('s_add_u32 s16, s16, s11')
    A('s_lshl_b32 s17, s10, 6')
    A('s_lshl_b32 s11, s3, 4')
    A('s_add_u32 s17, s17, s11')
    A('s_mul_i32 s17, s17, 3584')
    A('s_lshl_b32 s11, s8, 7')
    A('s_add_u32 s17, s17, s11')
    A('v_lshlrev_b32 v100, 4, v1')
    A('v_lshrrev_b32 v101, 3, v1')
    A('v_and_b32 v102, 7, v1')
    A('v_lshlrev_b32 v102, 4, v102')
    A('v_lshl_add_u32 v103, v101, 13, v102')
    A('v_mul_u32_u24 v104, 3584, v101')
    A('v_add_u32 v104, v104, v102')
    if cfg.calib:
        A('s_memrealtime s[28:29]')
    A('s_waitcnt lgkmcnt(0)')
    if cfg.prof:
        A('v_writelane_b32 v251, s14, 0')
    A(f's_load_dword s6, s[{SWS}:{SWS+1}], {EOFF}')
    A(f'buffer_load_dwordx4 v[4:7], v100, {srd(SX)}, 0 offen')
    for i in range(4):
        if i:
            A('s_add_u32 s16, s16, 65536')
        A(f'buffer_load_dwordx4 {vr(8+4*i)}, v103, {srd(SWQ)}, s16 offen {nt}')
    A('s_add_u32 s18, s17, 28672')
    A(f'buffer_load_dwordx4 {vr(24)}, v104, {srd(SGA)}, s17 offen {nt}')
    A(f'buffer_load_dwordx4 {vr(28)}, v104, {srd(SGA)}, s18 offen {nt}')
    A(f'buffer_load_dwordx4 {vr(32)}, v104, {srd(SUP)}, s17 offen {nt}')
    A(f'buffer_load_dwordx4 {vr(36)}, v104, {srd(SUP)}, s18 offen {nt}')
    for m, lo in ((M0, 0x03030303), (M1, 0x0c0c0c0c), (M2, 0x30303030), (M3, 0xc0c0c0c0)):
        A(f's_mov_b32 s{m}, {hex(lo)}')
        A(f's_mov_b32 s{m+1}, {hex(lo)}')
    A(f's_mov_b32 s{sLOG2E}, 0x3fb8aa3b')
    A(f's_mov_b32 s{sSCALE}, 0x3db504f3')
    A(f's_mov_b32 s{sMSK}, 0xffffff00')
    A(f's_mov_b32 s{sP01}, 0x0c0c0400')
    A(f's_mov_b32 s{sP23}, 0x04000c0c')
    A(f's_mov_b32 s{sI0}, 0x07060500')
    A(f's_mov_b32 s{sI1}, 0x07060501')
    A(f's_mov_b32 s{sI2}, 0x07060502')
    A(f's_mov_b32 s{sI3}, 0x07060503')
    A('v_and_b32 v249, 1, v1')
    A('v_lshlrev_b32 v249, 4, v249')
    for i in range(4):
        A(f'v_add_u32 v111, {4*i}, v2')
        A('v_xor_b32 v111, v111, v3')
        A('v_lshlrev_b32 v111, 4, v111')
        A(f'v_lshl_add_u32 v{105+i}, v2, 8, v111')
    for i in range(2):
        A(f'v_add_u32 v111, {4*i}, v2')
        A('v_lshlrev_b32 v111, 1, v111')
        A('v_xor_b32 v111, v111, v3')
        A('v_lshlrev_b32 v111, 4, v111')
        A(f'v_lshl_add_u32 v{109+i}, v2, 8, v111')
    A('s_lshl_b32 s19, s4, 24')
    A('s_lshl_b32 s11, s5, 15')
    A('s_add_u32 s19, s19, s11')
    A('s_lshl_b32 s11, s3, 13')
    A('s_add_u32 s19, s19, s11')
    A('s_add_u32 s19, s19, 15728640')
    A('s_lshl_b32 s20, s3, 13')
    A('s_lshl_b32 s21, s4, 19')
    A('s_lshl_b32 s11, s5, 14')
    A('s_add_u32 s21, s21, s11')
    A('s_lshl_b32 s11, s3, 8')
    A('s_add_u32 s21, s21, s11')
    A('s_lshl_b32 s22, s8, 16')
    A('s_lshl_b32 s23, s10, 13')
    A('s_add_u32 s22, s22, s23')
    A('s_add_u32 s22, s22, s11')
    A('v_lshlrev_b32 v112, 4, v3')
    A('v_lshl_add_u32 v112, v2, 10, v112')
    stamp(A, cfg, 1)
    A.c('layernorm')
    A('s_waitcnt vmcnt(8)')
    stamp(A, cfg, 2)
    for k in range(4):
        A(f'v_lshlrev_b32 v{120+2*k}, 16, v{4+k}')
        A(f'v_and_b32 v{121+2*k}, 0xffff0000, v{4+k}')
    A('v_add_f32 v128, v120, v121')
    A('v_add_f32 v129, v122, v123')
    A('v_add_f32 v130, v124, v125')
    A('v_add_f32 v131, v126, v127')
    A('v_add_f32 v128, v128, v129')
    A('v_add_f32 v130, v130, v131')
    A('v_add_f32 v128, v128, v130')
    wave_allreduce(A, 128, 129, 'v_add_f32')
    A('v_mul_f32 v128, 0x3b000000, v128')
    for k in range(8):
        A(f'v_sub_f32 v{132+k}, v{120+k}, v128')
    A('v_mul_f32 v130, v132, v132')
    for k in range(1, 8):
        A(f'v_fmac_f32 v130, v{132+k}, v{132+k}')
    wave_allreduce(A, 130, 129, 'v_add_f32')
    A('v_mul_f32 v130, 0x3b000000, v130')
    A('v_cvt_pk_bf16_f32 v128, v128, v130')
    A('v_and_b32 v130, 0xffff0000, v128')
    A('v_lshlrev_b32 v128, 16, v128')
    A('v_add_f32 v130, 0x3727c5ac, v130')
    A('v_cvt_pk_bf16_f32 v130, v130, v130')
    A('v_lshlrev_b32 v130, 16, v130')
    A('v_sqrt_f32 v130, v130')
    for k in range(8):
        A(f'v_sub_f32 v{132+k}, v{120+k}, v128')
    A('v_cvt_pk_bf16_f32 v130, v130, v130')
    A('v_lshlrev_b32 v130, 16, v130')
    A('v_rcp_f32 v130, v130')
    for k in range(4):
        A(f'v_cvt_pk_bf16_f32 v{140+k}, v{132+2*k}, v{133+2*k}')
    for k in range(4):
        A(f'v_lshlrev_b32 v{132+2*k}, 16, v{140+k}')
        A(f'v_and_b32 v{133+2*k}, 0xffff0000, v{140+k}')
    for k in range(8):
        A(f'v_mul_f32 v{132+k}, v{132+k}, v130')
    for k in range(4):
        A(f'v_cvt_pk_bf16_f32 v{140+k}, v{132+2*k}, v{133+2*k}')
    A(f'v_add_u32 v113, {L_XN}, v100')
    A('ds_write_b128 v113, v[140:143]')
    A('s_and_b32 s11, s2, 127')
    A('s_lshr_b32 s12, s11, 1')
    A('v_readlane_b32 s24, v4, s12')
    A('v_readlane_b32 s25, v5, s12')
    A('v_readlane_b32 s26, v6, s12')
    A('v_readlane_b32 s27, v7, s12')
    A('s_bitcmp1_b32 s11, 0')
    A(f's_cselect_b32 s{sX0}, s26, s24')
    A(f's_cselect_b32 s{sX1}, s27, s25')
    A.c('selection operands for wq and gate/up')
    A('v_lshrrev_b32 v114, 3, v3')
    A('v_lshl_add_u32 v114, v2, 1, v114')
    A('s_lshl_b32 s11, s7, 7')
    A('s_lshl_b32 s12, s3, 5')
    A('s_add_u32 s11, s11, s12')
    A('s_lshl_b32 s11, s11, 1')
    A(f's_add_u32 s11, s11, {L_XN}')
    A('v_lshl_add_u32 v115, v114, 1, s11')
    A('s_lshl_b32 s11, s10, 6')
    A('s_lshl_b32 s12, s3, 4')
    A('s_add_u32 s11, s11, s12')
    A('s_lshl_b32 s11, s11, 1')
    A(f's_add_u32 s11, s11, {L_XN}')
    A('v_lshl_add_u32 v116, v114, 1, s11')
    A('s_waitcnt lgkmcnt(0)')
    for i in range(4):
        A(f'ds_read_u16 v{120+i}, v115 offset:{16*i}')
    for i in range(2):
        A(f'ds_read_u16 v{124+i}, v116 offset:{16*i}')
    A(f's_add_u32 s6, s6, 0x01010101')
    A('v_mov_b32 v250, s6')
    A('s_waitcnt lgkmcnt(0)')
    for i in range(4):
        build_sel(A, 64+4*i, 120+i, 126)
    for i in range(2):
        build_sel(A, 80+4*i, 124+i, 126)
    A.c('K loads')
    def dma(sr, voff, i, base_lds, first):
        pass
    A(f's_add_u32 s12, s20, {L_K}')
    A('s_mov_b32 m0, s12')
    A('s_add_u32 s13, s19, 4096')
    for i in range(4):
        A(f'buffer_load_dwordx4 v{105+i}, {srd(SK)}, s19 offen offset:{1024*i} {nt} lds')
    A('s_add_u32 m0, m0, 4096')
    A.nop(1)
    for i in range(4):
        A(f'buffer_load_dwordx4 v{105+i}, {srd(SK)}, s13 offen offset:{1024*i} {nt} lds')
    stamp(A, cfg, 3)
    A.c('q / gate / up partial products')
    A('s_waitcnt vmcnt(12)')
    for i in range(4):
        A(f'v_mfma_f32_16x16x32_bf16 v[88:91], {vr(64+4*i)}, {vr(8+4*i)}, {"0" if i == 0 else "v[88:91]"}')
    A('s_waitcnt vmcnt(8)')
    for i in range(2):
        A(f'v_mfma_f32_16x16x32_bf16 v[92:95], {vr(80+4*i)}, {vr(24+4*i)}, {"0" if i == 0 else "v[92:95]"}')
    for i in range(2):
        A(f'v_mfma_f32_16x16x32_bf16 v[96:99], {vr(80+4*i)}, {vr(32+4*i)}, {"0" if i == 0 else "v[96:99]"}')
    A('v_lshrrev_b32 v117, 5, v1')
    A('v_lshlrev_b32 v117, 8, v117')
    A('v_and_b32 v118, 7, v1')
    A('v_lshl_add_u32 v117, v118, 5, v117')
    A('v_and_b32 v118, 1, v2')
    A('v_lshl_add_u32 v117, v118, 4, v117')
    A('s_lshl_b32 s11, s3, 9')
    A(f's_add_u32 s11, s11, {L_PART}')
    A('v_add_u32 v117, s11, v117')
    A('s_mov_b32 exec_lo, 0x00ff00ff')
    A('s_mov_b32 exec_hi, 0xff00ff00')
    A('ds_write_b128 v117, v[88:91]')
    A('ds_write_b128 v117, v[92:95] offset:2048')
    A.nop(1)
    A('ds_write_b128 v117, v[96:99] offset:4096')
    A('s_mov_b64 exec, -1')
    A('s_waitcnt lgkmcnt(0)')
    A('s_barrier')
    stamp(A, cfg, 4)
    A('s_cmp_lg_u32 s3, 0')
    A('s_cbranch_scc1 L_pub1_done')
    A('v_lshlrev_b32 v117, 4, v3')
    A('v_lshl_add_u32 v117, v2, 11, v117')
    A(f'v_add_u32 v117, {L_PART}, v117')
    for k in range(8):
        A(f'ds_read_b128 {vr(120+4*k)}, v117 offset:{256*k}')
    A('s_lshl_b32 s11, s4, 2')
    A('s_add_u32 s11, s11, s7')
    A('s_lshl_b32 s11, s11, 11')
    A('s_lshl_b32 s12, s10, 8')
    A('s_add_u32 s11, s11, s12')
    A(f's_add_u32 s11, s11, {QOFF}')
    A('s_lshl_b32 s12, s4, 2')
    A('s_add_u32 s12, s12, s7')
    A('s_lshl_b32 s12, s12, 3')
    A('s_add_u32 s12, s12, s10')
    A('s_lshl_b32 s12, s12, 9')
    A(f's_add_u32 s12, s12, {GUOFF-256}')
    A('v_lshlrev_b32 v118, 4, v3')
    A('v_lshl_add_u32 v119, v2, 8, v118')
    A('v_add_u32 v119, s12, v119')
    A('v_add_u32 v118, s11, v118')
    A('v_cmp_eq_u32 vcc, 0, v2')
    A.nop(2)
    A('v_cndmask_b32 v118, v119, v118, vcc')
    A('s_waitcnt lgkmcnt(0)')
    for k in range(4):
        A(f'v_add_f32 v{120+k}, v{120+k}, v{124+k}')
        A(f'v_add_f32 v{128+k}, v{128+k}, v{132+k}')
        A(f'v_add_f32 v{136+k}, v{136+k}, v{140+k}')
        A(f'v_add_f32 v{144+k}, v{144+k}, v{148+k}')
    for k in range(4):
        A(f'v_add_f32 v{120+k}, v{120+k}, v{128+k}')
        A(f'v_add_f32 v{136+k}, v{136+k}, v{144+k}')
    for k in range(4):
        A(f'v_add_f32 v{120+k}, v{120+k}, v{136+k}')
    tag_insert(A, 120)
    A('s_mov_b32 exec_lo, -1')
    A('s_mov_b32 exec_hi, 0x0000ffff')
    A(f'buffer_store_dwordx4 v[120:123], v118, {srd(SWS)}, 0 offen {cfg.pub}')
    A('s_mov_b64 exec, -1')
    A.label('L_pub1_done')
    def vloads(lo, hi):
        for i in range(lo, hi):
            if i % 4 == 0:
                A(f's_add_u32 s12, s20, {L_V + 1024*i}')
                A('s_mov_b32 m0, s12')
                A(f's_add_u32 s13, s19, {1024*i}')
            A(f'buffer_load_dwordx4 v{109+(i&1)}, {srd(SV)}, s13 offen offset:{1024*(i&3)} {nt} lds')
    def wo_loads():
        A('s_mov_b32 s13, s21')
        for i in range(4):
            if i:
                A('s_add_u32 s13, s13, 4096')
            A(f'buffer_load_dwordx4 {vr(40+4*i)}, v112, {srd(SWO)}, s13 offen {nt}')
        A('s_add_u32 s13, s22, 4096')
        A(f'buffer_load_dwordx4 {vr(56)}, v112, {srd(SDN)}, s22 offen {nt}')
        A(f'buffer_load_dwordx4 {vr(60)}, v112, {srd(SDN)}, s13 offen {nt}')
    nv1 = cfg.nv1
    assert nv1 % 4 == 0
    nv2 = 8 - nv1
    A('s_cmp_ge_u32 s3, 2')
    A('s_cbranch_scc1 L_role23')
    A.c('waves 0,1: q gather')
    vloads(0, nv1)
    A('s_lshl_b32 s11, s4, 13')
    A(f's_add_u32 s11, s11, {QOFF}')
    A('v_lshlrev_b32 v118, 4, v0')
    A('v_add_u32 v118, s11, v118')
    def qg_loads():
        for rb in range(4):
            if rb < 2:
                A(f'buffer_load_dwordx4 {vr(120+4*rb)}, v118, {srd(SWS)}, 0 offen offset:{2048*rb} {cfg.gat}')
            else:
                A(f'buffer_load_dwordx4 {vr(120+4*rb)}, v118, {srd(SWS)}, s14 offen offset:{2048*(rb-2)} {cfg.gat}')
    A('s_mov_b32 s14, 4096')
    qg_loads()
    vloads(nv1, 8)
    wo_loads()
    A(f's_mov_b32 s{sIT}, 0')
    A(f's_waitcnt vmcnt({nv2+6})')
    A.label('L_qcheck')
    for rb in range(4):
        tag_check(A, 120+4*rb, 136, 137, rb == 0)
    A('s_cmp_eq_u64 s[8:9], 0')
    A('s_cbranch_scc1 L_qok')
    A(f's_add_u32 s{sIT}, s{sIT}, 1')
    A(f's_cmp_gt_u32 s{sIT}, {cfg.maxit}')
    A('s_cbranch_scc1 L_qok')
    qg_loads()
    A('s_waitcnt vmcnt(0)')
    A('s_branch L_qcheck')
    A.label('L_qok')
    stamp(A, cfg, 5)
    for rb in range(4):
        mask_vals(A, 120+4*rb)
    for k in range(4):
        A(f'v_add_f32 v{120+k}, v{120+k}, v{124+k}')
        A(f'v_add_f32 v{128+k}, v{128+k}, v{132+k}')
    for k in range(4):
        A(f'v_add_f32 v{120+k}, v{120+k}, v{128+k}')
    A('v_cvt_pk_bf16_f32 v120, v120, v121')
    A('v_cvt_pk_bf16_f32 v121, v122, v123')
    A('v_lshrrev_b32 v118, 5, v0')
    A('v_mul_u32_u24 v118, 272, v118')
    A('v_and_b32 v119, 31, v0')
    A('v_lshl_add_u32 v118, v119, 3, v118')
    A(f'v_add_u32 v118, {L_QB}, v118')
    A('ds_write_b64 v118, v[120:121]')
    A('s_branch L_role_done')
    A.label('L_role23')
    A('s_cmp_eq_u32 s3, 3')
    A('s_cbranch_scc1 L_role3')
    A.c('wave 2: gate/up gather')
    vloads(0, nv1)
    A('s_lshl_b32 s11, s4, 2')
    A('s_add_u32 s11, s11, s7')
    A('s_lshl_b32 s11, s11, 12')
    A('s_lshl_b32 s12, s10, 5')
    A('s_add_u32 s11, s11, s12')
    A(f's_add_u32 s11, s11, {GUOFF}')
    A('v_bfe_u32 v118, v1, 2, 3')
    A('v_lshlrev_b32 v118, 9, v118')
    A('v_bfe_u32 v119, v1, 1, 1')
    A('v_lshl_add_u32 v118, v119, 8, v118')
    A('v_and_b32 v119, 1, v1')
    A('v_lshl_add_u32 v118, v119, 4, v118')
    A('v_add_u32 v118, s11, v118')
    A(f'buffer_load_dwordx4 v[120:123], v118, {srd(SWS)}, 0 offen {cfg.gat}')
    vloads(nv1, 8)
    wo_loads()
    A(f's_mov_b32 s{sIT}, 0')
    A(f's_waitcnt vmcnt({nv2+6})')
    A.label('L_gcheck')
    tag_check(A, 120, 136, 137, True)
    A('s_cmp_eq_u64 s[8:9], 0')
    A('s_cbranch_scc1 L_gok')
    A(f's_add_u32 s{sIT}, s{sIT}, 1')
    A(f's_cmp_gt_u32 s{sIT}, {cfg.maxit}')
    A('s_cbranch_scc1 L_gok')
    A(f'buffer_load_dwordx4 v[120:123], v118, {srd(SWS)}, 0 offen {cfg.gat}')
    A('s_waitcnt vmcnt(0)')
    A('s_branch L_gcheck')
    A.label('L_gok')
    mask_vals(A, 120)
    for st in ('row_ror:8', 'row_ror:4'):
        A.nop(2)
        for k in range(4):
            A(f'v_add_f32_dpp v{120+k}, v{120+k}, v{120+k} {st} row_mask:0xf bank_mask:0xf')
    for k in range(4):
        A(f'v_mov_b32 v{124+k}, v{120+k}')
    A.nop(2)
    for k in range(4):
        A(f'v_permlane16_swap_b32 v{124+k}, v{120+k}')
    A.nop(1)
    for k in range(4):
        A(f'v_add_f32 v{120+k}, v{124+k}, v{120+k}')
    A('v_cvt_pk_bf16_f32 v124, v120, v121')
    A('v_cvt_pk_bf16_f32 v125, v122, v123')
    A('v_lshlrev_b32 v120, 16, v124')
    A('v_and_b32 v121, 0xffff0000, v124')
    A('v_lshlrev_b32 v122, 16, v125')
    A('v_and_b32 v123, 0xffff0000, v125')
    A.nop(2)
    for k in range(4):
        A(f'v_mul_f32_dpp v{124+k}, v{120+k}, v{120+k} quad_perm:[2,3,0,1] row_mask:0xf bank_mask:0xf')
    A('v_cvt_pk_bf16_f32 v120, v124, v125')
    A('v_cvt_pk_bf16_f32 v121, v126, v127')
    A('v_lshlrev_b32 v118, 3, v1')
    A(f'v_add_u32 v118, {L_HB}, v118')
    A('s_mov_b64 exec, 3')
    A('ds_write_b64 v118, v[120:121]')
    A('s_mov_b64 exec, -1')
    A('s_branch L_role_done')
    A.label('L_role3')
    vloads(0, 8)
    wo_loads()
    A.label('L_role_done')
    for j in range(4):
        A(f'v_or_b32 v133, {4*j}, v2')
        A('v_xor_b32 v133, v133, v3')
        A('v_lshlrev_b32 v133, 4, v133')
        A(f'v_lshl_add_u32 v{224+j}, v3, 8, v133')
        A(f'v_add_u32 v{224+j}, s20, v{224+j}')
    A('v_and_b32 v133, 3, v1')
    A('v_mul_u32_u24 v133, 272, v133')
    A('v_lshl_add_u32 v228, v2, 4, v133')
    A(f'v_add_u32 v228, {L_QB}, v228')
    A('v_lshrrev_b32 v133, 2, v3')
    A('v_lshl_add_u32 v134, v2, 2, v133')
    A('v_and_b32 v135, 7, v134')
    A('v_lshlrev_b32 v134, 8, v134')
    A('v_lshl_add_u32 v134, v135, 5, v134')
    A('v_and_b32 v135, 3, v3')
    A('v_lshl_add_u32 v134, v135, 3, v134')
    A(f's_add_u32 s11, s20, {L_V}')
    A('v_add_u32 v232, s11, v134')
    for T in range(1, 8):
        A(f'v_xor_b32 v{232+T}, {T*32}, v232')
    A('s_waitcnt lgkmcnt(0)')
    A('s_barrier')
    stamp(A, cfg, 6)
    A.c('scores')
    A(f's_waitcnt vmcnt(14)')
    for j in range(4):
        A(f'ds_read_b128 {vr(160+4*j)}, v228 offset:{64*j}')
    for t in range(2):
        for j in range(4):
            A(f'ds_read_b128 {vr(128+16*t+4*j)}, v{224+j} offset:{L_K + 4096*t}')
    A('v_lshlrev_b32 v118, 1, v2')
    A(f'v_add_u32 v118, {L_HB}, v118')
    A('ds_read_u16 v119, v118')
    A('ds_read_u16 v188, v118 offset:8')
    A('s_waitcnt lgkmcnt(6)')
    for j in range(4):
        if j:
            A(f's_waitcnt lgkmcnt({6-j})')
        A(f'v_mfma_f32_16x16x32_bf16 v[176:179], {vr(128+4*j)}, {vr(160+4*j)}, {"0" if j == 0 else "v[176:179]"}')
    for j in range(4):
        A(f's_waitcnt lgkmcnt({5-j})')
        A(f'v_mfma_f32_16x16x32_bf16 v[180:183], {vr(144+4*j)}, {vr(160+4*j)}, {"0" if j == 0 else "v[180:183]"}')
    A('s_waitcnt lgkmcnt(0)')
    build_sel(A, 80, 119, 126)
    build_sel(A, 84, 188, 126)
    A.c('softmax')
    for k in range(4):
        A(f'v_cvt_pk_bf16_f32 v{184+k}, v{176+2*k}, v{177+2*k}')
    for k in range(4):
        A(f'v_lshlrev_b32 v{176+2*k}, 16, v{184+k}')
        A(f'v_and_b32 v{177+2*k}, 0xffff0000, v{184+k}')
    for k in range(8):
        A(f'v_mul_f32 v{176+k}, s{sSCALE}, v{176+k}')
    for k in range(4):
        A(f'v_cvt_pk_bf16_f32 v{184+k}, v{176+2*k}, v{177+2*k}')
    for k in range(4):
        A(f'v_lshlrev_b32 v{176+2*k}, 16, v{184+k}')
        A(f'v_and_b32 v{177+2*k}, 0xffff0000, v{184+k}')
    A('v_max3_f32 v189, v176, v177, v178')
    A('v_max3_f32 v190, v179, v180, v181')
    A('v_max3_f32 v189, v189, v182, v183')
    A('v_max_f32 v189, v189, v190')
    cross_rows(A, 189, 190, 'v_max_f32')
    A(f'v_mul_f32 v190, s{sLOG2E}, v189')
    for k in range(8):
        A(f'v_fma_f32 v{176+k}, v{176+k}, s{sLOG2E}, -v190')
    for k in range(8):
        A(f'v_exp_f32 v{176+k}, v{176+k}')
    A.nop(1)
    for k in range(4):
        A(f'v_cvt_pk_bf16_f32 v{184+k}, v{176+2*k}, v{177+2*k}')
    A('v_add_f32 v191, v176, v177')
    A('v_add_f32 v190, v178, v179')
    A('v_add_f32 v176, v180, v181')
    A('v_add_f32 v177, v182, v183')
    A('v_add_f32 v191, v191, v190')
    A('v_add_f32 v176, v176, v177')
    A('v_add_f32 v191, v191, v176')
    cross_rows(A, 191, 190, 'v_add_f32')
    stamp(A, cfg, 7)
    A.c('PV')
    A('s_waitcnt vmcnt(6)')
    stamp(A, cfg, 8)
    for T in range(8):
        A(f'ds_read_b64_tr_b16 v[{128+4*T}:{129+4*T}], v{232+T}')
        A(f'ds_read_b64_tr_b16 v[{130+4*T}:{131+4*T}], v{232+T} offset:4096')
    for T in range(8):
        A(f's_waitcnt lgkmcnt({14-2*T})')
        A(f'v_mfma_f32_16x16x32_bf16 {vr(192+4*T)}, {vr(128+4*T)}, v[184:187], 0')
    A('v_and_b32 v118, 3, v1')
    A('v_mul_u32_u24 v119, 528, v118')
    A('v_lshl_add_u32 v119, v2, 4, v119')
    A('v_add_u32 v119, s20, v119')
    A('s_lshl_b32 s11, s3, 2')
    A(f's_add_u32 s11, s11, {L_ML}')
    A('v_lshlrev_b32 v118, 5, v118')
    A('v_add_u32 v118, s11, v118')
    A('s_mov_b32 exec_lo, 0x000f000f')
    A('s_mov_b32 exec_hi, 0x000f000f')
    A('ds_write_b32 v118, v189')
    A('ds_write_b32 v118, v191 offset:16')
    A.nop(2)
    for T in range(8):
        A(f'ds_write_b128 v119, {vr(192+4*T)} offset:{64*T}')
    A('s_mov_b64 exec, -1')
    A('s_waitcnt lgkmcnt(0)')
    A('s_barrier')
    stamp(A, cfg, 9)
    A.c('o partial publish')
    A('s_cmp_eq_u32 s3, 3')
    A('s_cbranch_scc1 L_opub_done')
    A('v_lshrrev_b32 v118, 5, v0')
    A('v_bfe_u32 v119, v1, 3, 2')
    A('s_cmp_eq_u32 s3, 2')
    A('s_cselect_b64 vcc, -1, 0')
    A('v_cndmask_b32 v118, v118, v119, vcc')
    A('v_lshlrev_b32 v119, 5, v118')
    A(f'v_add_u32 v119, {L_ML}, v119')
    A('ds_read_b128 v[120:123], v119')
    A('ds_read_b128 v[124:127], v119 offset:16')
    A('v_mul_u32_u24 v119, 528, v118')
    A('v_and_b32 v133, 31, v0')
    A('v_lshl_add_u32 v119, v133, 4, v119')
    for w in range(4):
        A(f'ds_read_b128 {vr(128+4*w+16)}, v119 offset:{8192*w}')
    A('v_lshrrev_b32 v134, 2, v133')
    A('v_lshl_add_u32 v134, v118, 3, v134')
    A('v_and_b32 v135, 3, v133')
    A('v_and_b32 v136, 31, v1')
    A('v_cndmask_b32 v134, v134, v136, vcc')
    A('v_mov_b32 v136, 4')
    A('v_cndmask_b32 v135, v135, v136, vcc')
    A('v_mul_u32_u24 v134, 2560, v134')
    A('v_lshl_add_u32 v134, v135, 4, v134')
    A('s_mul_i32 s11, s4, 81920')
    A('s_mul_i32 s12, s5, 80')
    A('s_add_u32 s11, s11, s12')
    A(f's_add_u32 s11, s11, {OOFF}')
    A('v_add_u32 v134, s11, v134')
    A('s_waitcnt lgkmcnt(4)')
    A('v_max3_f32 v135, v120, v121, v122')
    A('v_max_f32 v135, v135, v123')
    for w in range(4):
        A(f'v_sub_f32 v{120+w}, v{120+w}, v135')
    for w in range(4):
        A(f'v_mul_f32 v{120+w}, s{sLOG2E}, v{120+w}')
    for w in range(4):
        A(f'v_exp_f32 v{120+w}, v{120+w}')
    A.nop(1)
    A('v_mul_f32 v136, v120, v124')
    for w in range(1, 4):
        A(f'v_fmac_f32 v136, v{120+w}, v{124+w}')
    A('s_waitcnt lgkmcnt(0)')
    for k in range(4):
        A(f'v_mul_f32 v{128+k}, v120, v{144+k}')
    for w in range(1, 4):
        for k in range(4):
            A(f'v_fmac_f32 v{128+k}, v{120+w}, v{144+4*w+k}')
    A('v_cndmask_b32 v128, v128, v135, vcc')
    A('v_cndmask_b32 v129, v129, v136, vcc')
    tag_insert(A, 128)
    A('s_cmp_eq_u32 s3, 2')
    A('s_cselect_b32 exec_hi, 0, -1')
    A(f'buffer_store_dwordx4 v[128:131], v134, {srd(SWS)}, 0 offen {cfg.pub}')
    A('s_mov_b64 exec, -1')
    A.label('L_opub_done')
    stamp(A, cfg, 10)
    A('s_cmp_lg_u32 s3, 0')
    A('s_cbranch_scc1 L_ogat_done')
    A.c('o gather and combine')
    A('s_lshl_b32 s11, s4, 5')
    A('s_add_u32 s11, s11, s5')
    A('s_mul_i32 s11, s11, 2560')
    A(f's_add_u32 s11, s11, {OOFF}')
    A('v_lshrrev_b32 v118, 2, v1')
    A('v_mul_u32_u24 v118, 80, v118')
    A('v_add_u32 v119, s11, v118')
    A('v_and_b32 v133, 3, v1')
    A('v_lshl_add_u32 v118, v133, 4, v119')
    A(f's_mov_b32 s{sIT}, 0')
    A.label('L_ogat')
    A(f'buffer_load_dwordx4 v[120:123], v118, {srd(SWS)}, 0 offen {cfg.gat}')
    A(f'buffer_load_dwordx4 v[124:127], v118, {srd(SWS)}, 0 offen offset:1280 {cfg.gat}')
    A(f'buffer_load_dwordx4 v[128:131], v119, {srd(SWS)}, 0 offen offset:64 {cfg.gat}')
    A(f'buffer_load_dwordx4 v[132:135], v119, {srd(SWS)}, 0 offen offset:1344 {cfg.gat}')
    A('s_waitcnt vmcnt(0)')
    for q in range(4):
        tag_check(A, 120+4*q, 136, 137, q == 0)
    A('s_cmp_eq_u64 s[8:9], 0')
    A('s_cbranch_scc1 L_ook')
    A(f's_add_u32 s{sIT}, s{sIT}, 1')
    A(f's_cmp_le_u32 s{sIT}, {cfg.maxit}')
    A('s_cbranch_scc1 L_ogat')
    A.label('L_ook')
    stamp(A, cfg, 11)
    mask_vals(A, 120, 8)
    mask_vals(A, 128, 2)
    mask_vals(A, 132, 2)
    A('v_max_f32 v136, v128, v132')
    for st in ('row_ror:8', 'row_ror:4'):
        A.nop(2)
        A(f'v_max_f32_dpp v136, v136, v136 {st} row_mask:0xf bank_mask:0xf')
    cross_rows(A, 136, 137, 'v_max_f32')
    A('v_sub_f32 v128, v128, v136')
    A('v_sub_f32 v132, v132, v136')
    A(f'v_mul_f32 v128, s{sLOG2E}, v128')
    A(f'v_mul_f32 v132, s{sLOG2E}, v132')
    A('v_exp_f32 v128, v128')
    A('v_exp_f32 v132, v132')
    A.nop(1)
    A('v_mul_f32 v138, v128, v129')
    A('v_fmac_f32 v138, v132, v133')
    for k in range(4):
        A(f'v_mul_f32 v{120+k}, v128, v{120+k}')
    for k in range(4):
        A(f'v_fmac_f32 v{120+k}, v132, v{124+k}')
    A.nop(1)
    A('v_permlane32_swap_b32 v120, v121')
    A('v_permlane32_swap_b32 v122, v123')
    A.nop(1)
    A('v_add_f32 v120, v120, v121')
    A('v_add_f32 v122, v122, v123')
    A.nop(2)
    A('v_permlane16_swap_b32 v120, v122')
    A.nop(1)
    A('v_add_f32 v120, v120, v122')
    for st in ('row_ror:8', 'row_ror:4'):
        A.nop(2)
        A(f'v_add_f32_dpp v120, v120, v120 {st} row_mask:0xf bank_mask:0xf')
        A(f'v_add_f32_dpp v138, v138, v138 {st} row_mask:0xf bank_mask:0xf')
    cross_rows(A, 138, 137, 'v_add_f32')
    A('v_rcp_f32 v138, v138')
    A.nop(1)
    A('v_mul_f32 v120, v120, v138')
    A('v_cvt_pk_bf16_f32 v120, v120, v120')
    A('v_and_b32 v118, 1, v2')
    A('v_lshlrev_b32 v118, 1, v118')
    A('v_lshrrev_b32 v119, 1, v2')
    A('v_or_b32 v118, v118, v119')
    A('v_and_b32 v119, 3, v1')
    A('v_lshl_add_u32 v118, v119, 2, v118')
    A('v_lshlrev_b32 v118, 1, v118')
    A(f'v_add_u32 v118, {L_OB}, v118')
    A('s_mov_b32 exec_lo, 0x000f000f')
    A('s_mov_b32 exec_hi, 0x000f000f')
    A('ds_write_b16 v118, v120')
    A('s_mov_b64 exec, -1')
    A.label('L_ogat_done')
    A('v_lshlrev_b32 v118, 1, v2')
    A(f'v_add_u32 v118, {L_OB}, v118')
    A('s_waitcnt lgkmcnt(0)')
    A('s_barrier')
    stamp(A, cfg, 12)
    A.c('output projection')
    for i in range(4):
        A(f'ds_read_u16 v{120+i}, v118 offset:{8*i}')
    A('s_waitcnt vmcnt(0)')
    for i in range(2):
        A(f'v_mfma_f32_16x16x32_bf16 v[88:91], {vr(80+4*i)}, {vr(56+4*i)}, {"0" if i == 0 else "v[88:91]"}')
    for i in range(4):
        A(f's_waitcnt lgkmcnt({3-i})')
        build_sel(A, 64+4*i, 120+i, 126)
    A.nop(1)
    for i in range(4):
        A(f'v_mfma_f32_16x16x32_bf16 v[88:91], {vr(64+4*i)}, {vr(40+4*i)}, v[88:91]')
    A('v_lshlrev_b32 v118, 1, v3')
    A('v_add_u32 v118, v118, v2')
    A('s_lshl_b32 s11, s3, 5')
    A('v_add_u32 v118, s11, v118')
    A('v_lshlrev_b32 v118, 12, v118')
    A('s_lshl_b32 s11, s2, 4')
    A(f's_add_u32 s11, s11, {FOFF}')
    A('v_add_u32 v118, s11, v118')
    A.nop(3)
    tag_insert(A, 88)
    A('s_mov_b32 exec_hi, 0')
    A(f'buffer_store_dwordx4 v[88:91], v118, {srd(SWS)}, 0 offen {cfg.pub}')
    A('s_mov_b64 exec, -1')
    stamp(A, cfg, 13)
    A('s_cmp_ge_u32 s2, 128')
    A('s_cbranch_scc1 L_fin_done')
    A.c('final reduce')
    A('s_lshl_b32 s11, s2, 12')
    A(f's_add_u32 s11, s11, {FOFF}')
    A('v_lshlrev_b32 v118, 4, v0')
    A('v_add_u32 v118, s11, v118')
    A(f's_mov_b32 s{sIT}, 0')
    A.label('L_fgat')
    A(f'buffer_load_dwordx4 v[120:123], v118, {srd(SWS)}, 0 offen {cfg.gat}')
    A('s_waitcnt vmcnt(0)')
    tag_check(A, 120, 136, 137, True)
    A('s_cmp_eq_u64 s[8:9], 0')
    A('s_cbranch_scc1 L_fok')
    A(f's_add_u32 s{sIT}, s{sIT}, 1')
    A(f's_cmp_le_u32 s{sIT}, {cfg.maxit}')
    A('s_cbranch_scc1 L_fgat')
    A.label('L_fok')
    stamp(A, cfg, 14)
    mask_vals(A, 120)
    A.nop(1)
    A('v_permlane32_swap_b32 v120, v121')
    A('v_permlane32_swap_b32 v122, v123')
    A.nop(1)
    A('v_add_f32 v120, v120, v121')
    A('v_add_f32 v122, v122, v123')
    A.nop(2)
    A('v_permlane16_swap_b32 v120, v122')
    A.nop(1)
    A('v_add_f32 v120, v120, v122')
    allreduce16(A, 120, 121, 'v_add_f32', ROW_FULL)
    A('v_and_b32 v118, 1, v2')
    A('v_lshlrev_b32 v118, 1, v118')
    A('v_lshrrev_b32 v119, 1, v2')
    A('v_or_b32 v118, v118, v119')
    A('v_lshlrev_b32 v118, 4, v118')
    A('s_lshl_b32 s11, s3, 2')
    A(f's_add_u32 s11, s11, {L_FIN}')
    A('v_add_u32 v118, s11, v118')
    A('s_mov_b32 exec_lo, 0x00010001')
    A('s_mov_b32 exec_hi, 0x00010001')
    A('ds_write_b32 v118, v120')
    A('s_mov_b64 exec, -1')
    A('s_waitcnt lgkmcnt(0)')
    A('s_barrier')
    A('s_cmp_lg_u32 s3, 0')
    A('s_cbranch_scc1 L_fin_done')
    A('v_and_b32 v119, 3, v1')
    A('v_lshlrev_b32 v118, 4, v119')
    A(f'v_add_u32 v118, {L_FIN}, v118')
    A('ds_read_b128 v[120:123], v118')
    A(f'v_mov_b32 v124, s{sX0}')
    A(f'v_mov_b32 v125, s{sX1}')
    A('v_cmp_gt_u32 vcc, 2, v119')
    A.nop(2)
    A('v_cndmask_b32 v124, v125, v124, vcc')
    A('v_and_b32 v125, 1, v119')
    A('v_lshlrev_b32 v126, 16, v124')
    A('v_and_b32 v124, 0xffff0000, v124')
    A('v_cmp_eq_u32 vcc, 0, v125')
    A.nop(2)
    A('v_cndmask_b32 v124, v124, v126, vcc')
    A('s_waitcnt lgkmcnt(0)')
    A('v_add_f32 v120, v120, v121')
    A('v_add_f32 v122, v122, v123')
    A('v_add_f32 v120, v120, v122')
    A('v_add_f32 v120, v120, v124')
    A('v_cvt_pk_bf16_f32 v120, v120, v120')
    A('s_lshl_b32 s11, s2, 3')
    A('v_lshl_add_u32 v118, v119, 1, s11')
    if cfg.calib:
        A('s_cmp_lg_u32 s2, 0')
        A('s_cbranch_scc1 L_nocal')
        A(f's_add_u32 s28, s28, {cfg.calib}')
        A.label('L_cal')
        A('s_memrealtime s[30:31]')
        A('s_waitcnt lgkmcnt(0)')
        A('s_sub_u32 s29, s30, s28')
        A('s_cmp_lt_i32 s29, 0')
        A('s_cbranch_scc1 L_cal')
        A.label('L_nocal')
    A('s_mov_b64 exec, 15')
    A(f'buffer_store_short v120, v118, {srd(SOUT)}, 0 offen')
    A('s_cmp_lg_u32 s2, 0')
    A('s_cbranch_scc1 L_noepoch')
    A('s_mov_b64 exec, 1')
    A(f'v_mov_b32 v121, {EOFF}')
    A(f'v_mov_b32 v122, s{sTAG}')
    A(f'buffer_store_dword v122, v121, {srd(SWS)}, 0 offen sc1')
    A.label('L_noepoch')
    A('s_mov_b64 exec, -1')
    A.label('L_fin_done')
    if cfg.prof:
        stamp(A, cfg, 15)
        A('s_lshl_b32 s11, s2, 2')
        A('s_add_u32 s11, s11, s3')
        A('s_lshl_b32 s11, s11, 6')
        A(f's_add_u32 s11, s11, {PROF}')
        A('v_lshl_add_u32 v118, v1, 2, s11')
        A('s_mov_b64 exec, 0xffff')
        A(f'buffer_store_dword v251, v118, {srd(SWS)}, 0 offen')
        if cfg.dbgprof is not None:
            A(f's_cmp_lg_u32 s2, {cfg.dbgprof}')
            A('s_cbranch_scc1 L_nodbg')
            A('s_cmp_lg_u32 s3, 0')
            A('s_cbranch_scc1 L_nodbg')
            A('s_load_dwordx2 s[16:17], s[0:1], 80')
            A('s_mov_b32 s18, 256')
            A('s_mov_b32 s19, 0x20000')
            A('v_readlane_b32 s20, v251, 0')
            A('v_lshlrev_b32 v118, 2, v1')
            A('s_nop 3')
            A('v_subrev_u32 v251, s20, v251')
            A('s_waitcnt lgkmcnt(0)')
            A('buffer_store_dword v251, v118, s[16:19], 0 offen')
            A.label('L_nodbg')
        A('s_mov_b64 exec, -1')
    A.label('L_end')
    A('s_endpgm')
    A('.section .rodata,"a"')
    A('.p2align 6')
    A(f'.amdhsa_kernel {NAME}')
    A('  .amdhsa_next_free_vgpr 256')
    A('  .amdhsa_next_free_sgpr 102')
    A('  .amdhsa_accum_offset 256')
    A('  .amdhsa_group_segment_fixed_size 0')
    A('  .amdhsa_kernarg_size 96')
    A('  .amdhsa_user_sgpr_count 2')
    A('  .amdhsa_user_sgpr_kernarg_segment_ptr 1')
    A('  .amdhsa_system_sgpr_workgroup_id_x 1')
    A('  .amdhsa_float_denorm_mode_32 3')
    A('.end_amdhsa_kernel')
    return A.text()

HEADER = open('parallel_sum__sliding_block_cached__glu_gated_bilinear__decode.s.ref').read().split('; Override launch')[0]

def full(cfg):
    body = gen(cfg)
    probs = check(body)
    for p in probs:
        print('HAZARD', p, file=sys.stderr)
    return HEADER + f'; @launch grid=(256,1,1) block=(256,1,1) lds={LDS_BYTES}\n' + body

if __name__ == '__main__':
    cfg = Cfg()
    for a in sys.argv[2:]:
        k, v = a.split('=')
        old = getattr(cfg, k)
        setattr(cfg, k, v if isinstance(old, str) else eval(v))
    open(sys.argv[1], 'w').write(full(cfg))
```

```python
import sys
from asmlib import Asm, check

NAME = 'parallel_sum__sliding_block_cached__glu_gated_bilinear__decode_kernel'

EOFF  = 0
QA    = 0x1000
IDA   = 0x11000
BDELTA = 0x11000
GUO   = 0x23000
MLO   = 0x43000
OIO   = 0x48000
FIN   = 0xC8000
PROF  = 0x180000
WS_BYTES = 0x200000

L_K = 0
L_V = 32768
L_XN = 65536
L_PART = 66560
L_QB = 72704
L_HB = 73792
L_MODE = 73808
L_ML = 73824
L_OB = 73952
L_FINR = 73984
LDS_BYTES = 74240

sW, sG, sS, sTAG = 3, 4, 5, 6
SX, SK, SV, SWQ, SWO, SGA, SUP, SDN, SOUT, SWS = 40, 44, 48, 52, 56, 60, 64, 68, 72, 76
M0, M1, M2, M3 = 80, 82, 84, 86
sX0, sX1 = 90, 91
sIT = 92
sLOG2E, sSCALE = 93, 94
sMSK = 95
sP01, sP23 = 96, 97
sI0, sI1, sI2, sI3 = 98, 99, 100, 101
sRB, sT, sCB = 7, 8, 10
vTAG, vSH = 167, 166
vPROF = 165
def srd(n): return f's[{n}:{n+3}]'
def vr(n, k=4): return f'v[{n}:{n+k-1}]'

class Cfg:
    nt = 'nt'
    gat = 'sc1'
    nk1 = 5
    align = 12
    xnt = ''
    finpre = False
    codepf_n = 2
    nv1 = 2
    b1b = True
    b3b = True
    maxit = 20000
    swit = 24
    prof = False
    dbgprof = None
    pretouch = True
    codepf = 's'
    forceslow = False
    forceb = False

ROW_FULL = ['quad_perm:[1,0,3,2]', 'quad_perm:[2,3,0,1]', 'row_half_mirror', 'row_mirror']

def rowred(A, regs, op, steps):
    for st in steps:
        A.nop(2 if len(regs) < 3 else max(0, 2 - (len(regs) - 1)))
        for v in regs:
            A(f'{op}_dpp v{v}, v{v}, v{v} {st} row_mask:0xf bank_mask:0xf')
        if len(regs) >= 3:
            pass

def cross_rows(A, v, tmp, op):
    A(f'v_mov_b32 v{tmp}, v{v}')
    A.nop(2)
    A(f'v_permlane16_swap_b32 v{tmp}, v{v}')
    A.nop(1)
    A(f'{op} v{v}, v{tmp}, v{v}')
    A(f'v_mov_b32 v{tmp}, v{v}')
    A.nop(2)
    A(f'v_permlane32_swap_b32 v{tmp}, v{v}')
    A.nop(1)
    A(f'{op} v{v}, v{tmp}, v{v}')

def wave_allreduce(A, v, tmp, op):
    rowred(A, [v], op, ROW_FULL)
    cross_rows(A, v, tmp, op)

def transpose_reduce4(A, v):
    A.nop(1)
    A(f'v_permlane32_swap_b32 v{v}, v{v+1}')
    A(f'v_permlane32_swap_b32 v{v+2}, v{v+3}')
    A.nop(1)
    A(f'v_add_f32 v{v}, v{v}, v{v+1}')
    A(f'v_add_f32 v{v+2}, v{v+2}, v{v+3}')
    A.nop(2)
    A(f'v_permlane16_swap_b32 v{v}, v{v+2}')
    A.nop(1)
    A(f'v_add_f32 v{v}, v{v}, v{v+2}')

def tag_insert(A, v):
    for k, s in enumerate((sI0, sI1, sI2, sI3)):
        A(f'v_perm_b32 v{v+k}, v{v+k}, v{vTAG}, s{s}')

def tag_check(A, v, t0, t1, first):
    A(f'v_perm_b32 v{t0}, v{v+1}, v{v}, s{sP01}')
    A(f'v_perm_b32 v{t1}, v{v+3}, v{v+2}, s{sP23}')
    A(f'v_or_b32 v{t0}, v{t0}, v{t1}')
    if first:
        A(f'v_cmp_ne_u32 s[88:89], s{sTAG}, v{t0}')
    else:
        A(f'v_cmp_ne_u32 s[90:91], s{sTAG}, v{t0}')
        A('s_or_b64 s[88:89], s[88:89], s[90:91]')

def mask_vals(A, v, n=4):
    for k in range(n):
        A(f'v_and_b32 v{v+k}, s{sMSK}, v{v+k}')

def build_sel(A, dst, val, tmp):
    A(f'v_lshlrev_b32 v{tmp}, v{vSH}, v{val}')
    for j, m in enumerate((M0, M1, M2, M3)):
        A(f'v_cndmask_b32_e64 v{dst+j}, 0, v{tmp}, s[{m}:{m+1}]')

class Prof:
    def __init__(self, A, cfg):
        self.A, self.on, self.prev, self.k = A, cfg.prof, None, 0
    def reset(self, prev=None, k=0):
        self.prev, self.k = prev, k
    def __call__(self, idx):
        if not self.on: return
        A = self.A
        if self.prev is not None:
            A(f'v_writelane_b32 v{vPROF}, s{28 + 2*self.k}, {self.prev}')
            self.k ^= 1
        A(f's_memrealtime s[{28+2*self.k}:{29+2*self.k}]')
        self.prev = idx
    def flush(self):
        if not self.on: return
        A = self.A
        A('s_waitcnt lgkmcnt(0)')
        A(f'v_writelane_b32 v{vPROF}, s{28 + 2*self.k}, {self.prev}')

def common_consts(A):
    A(f's_mov_b32 s{sLOG2E}, 0x3fb8aa3b')
    A(f's_mov_b32 s{sSCALE}, 0x3db504f3')
    A(f's_mov_b32 s{sMSK}, 0xffffff00')
    A(f's_mov_b32 s{sP01}, 0x0c0c0400')
    A(f's_mov_b32 s{sP23}, 0x04000c0c')
    A(f's_mov_b32 s{sI0}, 0x07060500')
    A(f's_mov_b32 s{sI1}, 0x07060501')
    A(f's_mov_b32 s{sI2}, 0x07060502')
    A(f's_mov_b32 s{sI3}, 0x07060503')

def poll_tail(A, cfg, label, oklabel, switch=None):
    A('s_cmp_eq_u64 s[88:89], 0')
    A(f's_cbranch_scc1 {oklabel}')
    A(f's_add_u32 s{sIT}, s{sIT}, 1')
    if switch:
        A(f's_cmp_eq_u32 s{sIT}, {cfg.swit}')
        A(f's_cselect_b32 s{switch}, {BDELTA}, s{switch}')
    A(f's_cmp_le_u32 s{sIT}, {cfg.maxit}')
    A(f's_cbranch_scc1 {label}')

def gen(cfg):
    A = Asm()
    P = Prof(A, cfg)
    nt = cfg.nt
    A('.amdgcn_target "amdgcn-amd-amdhsa--gfx950"')
    A('.text')
    A(f'.globl {NAME}')
    A(f'.p2align {cfg.align}')
    A(f'.type {NAME},@function')
    A.label(NAME)
    A('s_cmp_ge_u32 s2, 256')
    A('s_cbranch_scc1 L_end')
    P(0)
    for sr, off in ((SX, 0), (SWQ, 24), (SK, 8), (SWS, 88), (SV, 16), (SGA, 48), (SUP, 56), (SWO, 32), (SDN, 64), (SOUT, 72)):
        A(f's_load_dwordx2 s[{sr}:{sr+1}], s[0:1], {off}')
    A('v_lshrrev_b32 v2, 6, v0')
    A('v_and_b32 v1, 63, v0')
    A('s_and_b32 s4, s2, 7')
    A('v_readfirstlane_b32 s3, v2')
    A('s_lshr_b32 s5, s2, 3')
    if cfg.codepf:
        A('s_cmp_eq_u32 s3, 5')
        A('s_cbranch_scc0 L_nocodepf')
        A('s_getpc_b64 s[12:13]')
        A.label('L_pc')
        A(f's_sub_u32 s12, s12, L_pc-{NAME}')
        A('s_subb_u32 s13, s13, 0')
        A('s_lshl_b32 s14, s5, 7')
        if cfg.codepf == 'v':
            A('v_lshlrev_b32 v4, 12, v1')
            A('v_add_u32 v4, s14, v4')
            A(f's_mov_b64 exec, {(1 << cfg.codepf_n) - 1}')
            A('global_load_dword v14, v4, s[12:13] nt')
            A('s_mov_b64 exec, -1')
        else:
            A('s_add_u32 s12, s12, s14')
            A('s_addc_u32 s13, s13, 0')
            for i in range(cfg.codepf_n):
                A(f's_load_dword s{32+i}, s[12:13], {4096*i}')
        A.label('L_nocodepf')
    A('v_lshrrev_b32 v2, 4, v1')
    A('v_and_b32 v3, 15, v1')
    A(f's_lshr_b32 s{sRB}, s5, 3')
    A(f's_lshl_b32 s{sT}, s{sRB}, 3')
    A(f's_add_u32 s{sT}, s{sT}, s4')
    A(f's_and_b32 s{sCB}, s5, 7')
    A(f's_cmp_lt_u32 s{sT}, 28')
    A('s_cselect_b32 s9, 1835008, 0')
    for sr, n in ((SX, 1024), (SWQ, 4194304), (SK, 134217728), (SV, 134217728), (SWS, WS_BYTES), (SWO, 4194304), (SOUT, 1024)):
        A(f's_mov_b32 s{sr+2}, {n}')
        A(f's_mov_b32 s{sr+3}, 0x20000')
    for sr in (SGA, SUP, SDN):
        A(f's_mov_b32 s{sr+2}, s9')
        A(f's_mov_b32 s{sr+3}, 0x20000')
    A('s_cmp_ge_u32 s3, 4')
    A('s_cbranch_scc1 L_comm')
    A(f's_lshl_b32 s16, s{sRB}, 20')
    A('s_lshl_b32 s11, s3, 18')
    A('s_add_u32 s16, s16, s11')
    A('s_lshl_b32 s11, s4, 10')
    A('s_add_u32 s16, s16, s11')
    A(f's_lshl_b32 s11, s{sCB}, 7')
    A('s_add_u32 s16, s16, s11')
    A('v_lshlrev_b32 v163, 4, v1')
    A('v_lshrrev_b32 v164, 3, v1')
    A('v_and_b32 v4, 7, v1')
    A('v_lshlrev_b32 v4, 4, v4')
    A('v_lshl_add_u32 v5, v164, 13, v4')
    A('v_mul_u32_u24 v162, 3584, v164')
    A('v_add_u32 v161, v162, v4')
    for i in range(4):
        A(f'v_add_u32 v6, {4*i}, v2')
        A('v_xor_b32 v6, v6, v3')
        A('v_lshlrev_b32 v6, 4, v6')
        A(f'v_lshl_add_u32 v{156+i}, v2, 8, v6')
    A('s_lshl_b32 s19, s4, 24')
    A('s_lshl_b32 s11, s5, 15')
    A('s_add_u32 s19, s19, s11')
    A('s_lshl_b32 s11, s3, 13')
    A('s_add_u32 s19, s19, s11')
    A('s_add_u32 s19, s19, 15728640')
    A('s_lshl_b32 s20, s3, 13')
    A('s_mov_b32 m0, s20')
    A(f'v_mov_b32 v7, {EOFF}')
    A('s_waitcnt lgkmcnt(0)')
    A(f'buffer_load_dwordx4 v[8:11], v163, {srd(SX)}, 0 offen {cfg.xnt}')
    A(f'buffer_load_dword v{vTAG}, v7, {srd(SWS)}, 0 offen {cfg.xnt}')
    A('v_mov_b32 v6, v5')
    for i in range(4):
        if i:
            A('s_add_u32 s16, s16, 65536')
        A(f'buffer_load_dwordx4 {vr(12+4*i)}, v6, {srd(SWQ)}, s16 offen {nt}')
    def kloads(lo, hi):
        for i in range(lo, hi):
            if i == 4:
                A('s_add_u32 m0, s20, 4096')
                A('s_add_u32 s19, s19, 4096')
            A(f'buffer_load_dwordx4 v{156+(i&3)}, {srd(SK)}, s19 offen offset:{1024*(i&3)} {nt} lds')
    kloads(0, cfg.nk1)
    for m, lo in ((M0, 0x03030303), (M1, 0x0c0c0c0c), (M2, 0x30303030), (M3, 0xc0c0c0c0)):
        A(f's_mov_b32 s{m}, {hex(lo)}')
        A(f's_mov_b32 s{m+1}, {hex(lo)}')
    common_consts(A)
    A(f'v_and_b32 v{vSH}, 1, v1')
    A(f'v_lshlrev_b32 v{vSH}, 4, v{vSH}')
    A(f's_lshl_b32 s17, s{sCB}, 6')
    A('s_lshl_b32 s11, s3, 4')
    A('s_add_u32 s17, s17, s11')
    A('s_mul_i32 s17, s17, 3584')
    A(f's_lshl_b32 s11, s{sT}, 7')
    A('s_add_u32 s17, s17, s11')
    A('s_lshl_b32 s21, s4, 19')
    A('s_lshl_b32 s11, s5, 14')
    A('s_add_u32 s21, s21, s11')
    A('s_lshl_b32 s11, s3, 8')
    A('s_add_u32 s21, s21, s11')
    A(f's_lshl_b32 s22, s{sT}, 16')
    A(f's_lshl_b32 s23, s{sCB}, 13')
    A('s_add_u32 s22, s22, s23')
    A('s_add_u32 s22, s22, s11')
    A('v_lshlrev_b32 v162, 4, v3')
    A('v_lshl_add_u32 v162, v2, 10, v162')
    P(1)
    A.c('layernorm')
    A(f's_waitcnt vmcnt({4 + cfg.nk1})')
    P(2)
    for k in range(4):
        A(f'v_lshlrev_b32 v{80+2*k}, 16, v{8+k}')
        A(f'v_and_b32 v{81+2*k}, 0xffff0000, v{8+k}')
    A('v_add_f32 v88, v80, v81')
    A('v_add_f32 v89, v82, v83')
    A('v_add_f32 v90, v84, v85')
    A('v_add_f32 v91, v86, v87')
    A('v_add_f32 v88, v88, v89')
    A('v_add_f32 v90, v90, v91')
    A('v_add_f32 v88, v88, v90')
    wave_allreduce(A, 88, 89, 'v_add_f32')
    A('v_mul_f32 v88, 0x3b000000, v88')
    for k in range(8):
        A(f'v_sub_f32 v{92+k}, v{80+k}, v88')
    A('v_mul_f32 v90, v92, v92')
    for k in range(1, 8):
        A(f'v_fmac_f32 v90, v{92+k}, v{92+k}')
    wave_allreduce(A, 90, 89, 'v_add_f32')
    A('v_mul_f32 v90, 0x3b000000, v90')
    A('v_cvt_pk_bf16_f32 v88, v88, v90')
    A('v_and_b32 v90, 0xffff0000, v88')
    A('v_lshlrev_b32 v88, 16, v88')
    A('v_add_f32 v90, 0x3727c5ac, v90')
    A('v_cvt_pk_bf16_f32 v90, v90, v90')
    A('v_lshlrev_b32 v90, 16, v90')
    A('v_sqrt_f32 v90, v90')
    for k in range(8):
        A(f'v_sub_f32 v{92+k}, v{80+k}, v88')
    A('v_cvt_pk_bf16_f32 v90, v90, v90')
    A('v_lshlrev_b32 v90, 16, v90')
    A('v_rcp_f32 v90, v90')
    for k in range(4):
        A(f'v_cvt_pk_bf16_f32 v{100+k}, v{92+2*k}, v{93+2*k}')
    for k in range(4):
        A(f'v_lshlrev_b32 v{92+2*k}, 16, v{100+k}')
        A(f'v_and_b32 v{93+2*k}, 0xffff0000, v{100+k}')
    for k in range(8):
        A(f'v_mul_f32 v{92+k}, v{92+k}, v90')
    for k in range(4):
        A(f'v_cvt_pk_bf16_f32 v{100+k}, v{92+2*k}, v{93+2*k}')
    A(f'v_add_u32 v104, {L_XN}, v163')
    A('ds_write_b128 v104, v[100:103]')
    A('v_lshrrev_b32 v105, 3, v3')
    A('v_lshl_add_u32 v105, v2, 1, v105')
    A(f's_lshl_b32 s11, s{sRB}, 7')
    A('s_lshl_b32 s12, s3, 5')
    A('s_add_u32 s11, s11, s12')
    A('s_lshl_b32 s11, s11, 1')
    A(f's_add_u32 s11, s11, {L_XN}')
    A('v_lshl_add_u32 v106, v105, 1, s11')
    A(f's_lshl_b32 s11, s{sCB}, 6')
    A('s_lshl_b32 s12, s3, 4')
    A('s_add_u32 s11, s11, s12')
    A('s_lshl_b32 s11, s11, 1')
    A(f's_add_u32 s11, s11, {L_XN}')
    A('v_lshl_add_u32 v107, v105, 1, s11')
    A('s_waitcnt lgkmcnt(0)')
    for i in range(4):
        A(f'ds_read_u16 v{80+i}, v106 offset:{16*i}')
    for i in range(2):
        A(f'ds_read_u16 v{84+i}, v107 offset:{16*i}')
    A(f'v_add_u32 v{vTAG}, 0x01010101, v{vTAG}')
    kloads(cfg.nk1, 8)
    A(f'v_readfirstlane_b32 s6, v{vTAG}')
    A('s_waitcnt lgkmcnt(0)')
    for i in range(4):
        build_sel(A, 48+4*i, 80+i, 86)
    for i in range(2):
        build_sel(A, 64+4*i, 84+i, 86)
    for i, r in ((0, 160), (1, 164)):
        A(f'v_add_u32 v86, {4*i}, v2')
        A('v_lshlrev_b32 v86, 1, v86')
        A('v_xor_b32 v86, v86, v3')
        A('v_lshlrev_b32 v86, 4, v86')
        A(f'v_lshl_add_u32 v{r}, v2, 8, v86')
    A('v_lshrrev_b32 v87, 5, v1')
    A('v_lshlrev_b32 v87, 8, v87')
    A('v_and_b32 v86, 7, v1')
    A('v_lshl_add_u32 v87, v86, 5, v87')
    A('v_and_b32 v86, 1, v2')
    A('v_lshl_add_u32 v87, v86, 4, v87')
    A('s_lshl_b32 s11, s3, 9')
    A(f's_add_u32 s11, s11, {L_PART}')
    A('v_add_u32 v163, s11, v87')
    P(3)
    A.c('q partial product')
    A('s_waitcnt vmcnt(8)')
    P(16)
    for i in range(4):
        A(f'v_mfma_f32_16x16x32_bf16 v[72:75], {vr(48+4*i)}, {vr(12+4*i)}, {"0" if i == 0 else "v[72:75]"}')
    A('s_mov_b32 exec_lo, 0x00ff00ff')
    A('s_mov_b32 exec_hi, 0xff00ff00')
    A.nop(6)
    A('ds_write_b128 v163, v[72:75]')
    A('s_mov_b64 exec, -1')
    A('s_waitcnt lgkmcnt(0)')
    A('s_barrier')
    P(4)
    A('s_cmp_lg_u32 s3, 3')
    A('s_cbranch_scc1 L_pub1_done')
    A('v_lshlrev_b32 v86, 4, v3')
    A(f'v_add_u32 v87, {L_PART}, v86')
    for k in range(8):
        A(f'ds_read_b128 {vr(80+4*k+32)}, v87 offset:{256*k}')
    A('s_lshl_b32 s11, s4, 2')
    A(f's_add_u32 s11, s11, s{sRB}')
    A('s_lshl_b32 s11, s11, 11')
    A(f's_lshl_b32 s12, s{sCB}, 8')
    A('s_add_u32 s11, s11, s12')
    A(f's_add_u32 s11, s11, {QA}')
    A('v_add_u32 v86, s11, v86')
    A('s_lshl_b32 s12, s4, 9')
    A('s_lshl_b32 s13, s5, 4')
    A('s_add_u32 s12, s12, s13')
    A(f's_add_u32 s12, s12, {IDA}')
    A('v_mov_b32 v87, s12')
    A('v_cmp_eq_u32 vcc, 0, v2')
    A('s_getreg_b32 s13, hwreg(HW_REG_XCC_ID, 0, 4)')
    A('s_lshl_b32 s13, s13, 8')
    A('v_cndmask_b32 v86, v87, v86, vcc')
    A('s_waitcnt lgkmcnt(0)')
    for k in range(4):
        A(f'v_add_f32 v{112+k}, v{112+k}, v{116+k}')
        A(f'v_add_f32 v{120+k}, v{120+k}, v{124+k}')
        A(f'v_add_f32 v{128+k}, v{128+k}, v{132+k}')
        A(f'v_add_f32 v{136+k}, v{136+k}, v{140+k}')
    for k in range(4):
        A(f'v_add_f32 v{112+k}, v{112+k}, v{120+k}')
        A(f'v_add_f32 v{128+k}, v{128+k}, v{136+k}')
    for k in range(4):
        A(f'v_add_f32 v{112+k}, v{112+k}, v{128+k}')
    A('v_mov_b32 v116, s13')
    A('v_cndmask_b32 v112, v116, v112, vcc')
    tag_insert(A, 112)
    A('s_mov_b32 exec_lo, 0x0001ffff')
    A('s_mov_b32 exec_hi, 0')
    if not cfg.forceb:
        A(f'buffer_store_dwordx4 v[112:115], v86, {srd(SWS)}, 0 offen')
    A(f's_mov_b32 s12, {BDELTA}')
    A(f'buffer_store_dwordx4 v[112:115], v86, {srd(SWS)}, s12 offen sc1')
    A('s_mov_b64 exec, -1')
    A.label('L_pub1_done')
    nst = (1 if cfg.forceb else 2)
    A.c('gate/up loads, V loads')
    A('s_add_u32 s18, s17, 28672')
    A(f'buffer_load_dwordx4 {vr(8)}, v161, {srd(SGA)}, s17 offen {nt}')
    A(f'buffer_load_dwordx4 {vr(12)}, v161, {srd(SGA)}, s18 offen {nt}')
    A(f'buffer_load_dwordx4 {vr(16)}, v161, {srd(SUP)}, s17 offen {nt}')
    A(f'buffer_load_dwordx4 {vr(20)}, v161, {srd(SUP)}, s18 offen {nt}')
    def vloads(lo, hi):
        for i in range(lo, hi):
            if i % 4 == 0 or i == lo:
                A(f's_add_u32 m0, s20, {L_V + 4096*(i//4)}')
                A(f's_add_u32 s13, s19, {4096*(i//4) - 4096}')
            A(f'buffer_load_dwordx4 v{(160, 164)[i&1]}, {srd(SV)}, s13 offen offset:{1024*(i&3)} {nt} lds')
    vloads(0, cfg.nv1)
    if cfg.b1b:
        A('s_barrier')
    P(5)
    vloads(cfg.nv1, 8)
    A.c('gate/up partial products')
    P(17)
    A('s_waitcnt vmcnt(8)')
    P(18)
    for i in range(2):
        A(f'v_mfma_f32_16x16x32_bf16 v[72:75], {vr(64+4*i)}, {vr(8+4*i)}, {"0" if i == 0 else "v[72:75]"}')
    for i in range(2):
        A(f'v_mfma_f32_16x16x32_bf16 v[76:79], {vr(64+4*i)}, {vr(16+4*i)}, {"0" if i == 0 else "v[76:79]"}')
    for j in range(4):
        A(f'v_or_b32 v86, {4*j}, v2')
        A('v_xor_b32 v86, v86, v3')
        A('v_lshlrev_b32 v86, 4, v86')
        A(f'v_lshl_add_u32 v{156+j}, v3, 8, v86')
        A(f'v_add_u32 v{156+j}, s20, v{156+j}')
    A('s_mov_b32 exec_lo, 0x00ff00ff')
    A('s_mov_b32 exec_hi, 0xff00ff00')
    A('ds_write_b128 v163, v[72:75] offset:2048')
    A('ds_write_b128 v163, v[76:79] offset:4096')
    A('s_mov_b64 exec, -1')
    A('v_and_b32 v86, 3, v1')
    A('v_mul_u32_u24 v86, 272, v86')
    A('v_lshl_add_u32 v4, v2, 4, v86')
    A(f'v_add_u32 v4, {L_QB}, v4')
    A('v_lshrrev_b32 v86, 2, v3')
    A('v_lshl_add_u32 v87, v2, 2, v86')
    A('v_and_b32 v86, 7, v87')
    A('v_lshlrev_b32 v87, 8, v87')
    A('v_lshl_add_u32 v87, v86, 5, v87')
    A('v_and_b32 v86, 3, v3')
    A('v_lshl_add_u32 v87, v86, 3, v87')
    A(f's_add_u32 s11, s20, {L_V}')
    A('v_add_u32 v5, s11, v87')
    A('s_waitcnt lgkmcnt(0)')
    P(6)
    A('s_barrier')
    P(7)
    def wo_loads():
        A('s_mov_b32 s13, s21')
        for i in range(4):
            if i:
                A('s_add_u32 s13, s13, 4096')
            A(f'buffer_load_dwordx4 {vr(24+4*i)}, v162, {srd(SWO)}, s13 offen {nt}')
    def dn_loads():
        A('s_add_u32 s13, s22, 4096')
        A(f'buffer_load_dwordx4 {vr(40)}, v162, {srd(SDN)}, s22 offen {nt}')
        A(f'buffer_load_dwordx4 {vr(44)}, v162, {srd(SDN)}, s13 offen {nt}')
    A.c('scores')
    for j in range(4):
        A(f'ds_read_b128 {vr(112+4*j)}, v4 offset:{64*j}')
    for t in range(2):
        for j in range(4):
            A(f'ds_read_b128 {vr(80+16*t+4*j)}, v{156+j} offset:{L_K + 4096*t}')
    A(f'v_mov_b32 v86, 0') if False else None
    wo_loads()
    for j in range(4):
        A(f's_waitcnt lgkmcnt({7-j})')
        A(f'v_mfma_f32_16x16x32_bf16 v[144:147], {vr(80+4*j)}, {vr(112+4*j)}, {"0" if j == 0 else "v[144:147]"}')
    for j in range(4):
        A(f's_waitcnt lgkmcnt({3-j})')
        A(f'v_mfma_f32_16x16x32_bf16 v[148:151], {vr(96+4*j)}, {vr(112+4*j)}, {"0" if j == 0 else "v[148:151]"}')
    dn_loads()
    A(f'v_mov_b32 v6, {L_MODE}')
    A('ds_read_b32 v7, v6')
    A.nop(4)
    A.c('softmax')
    for k in range(4):
        A(f'v_cvt_pk_bf16_f32 v{152+k}, v{144+2*k}, v{145+2*k}')
    for k in range(4):
        A(f'v_lshlrev_b32 v{144+2*k}, 16, v{152+k}')
        A(f'v_and_b32 v{145+2*k}, 0xffff0000, v{152+k}')
    for k in range(8):
        A(f'v_mul_f32 v{144+k}, s{sSCALE}, v{144+k}')
    for k in range(4):
        A(f'v_cvt_pk_bf16_f32 v{152+k}, v{144+2*k}, v{145+2*k}')
    for k in range(4):
        A(f'v_lshlrev_b32 v{144+2*k}, 16, v{152+k}')
        A(f'v_and_b32 v{145+2*k}, 0xffff0000, v{152+k}')
    A('v_max3_f32 v156, v144, v145, v146')
    A('v_max3_f32 v157, v147, v148, v149')
    A('v_max3_f32 v156, v156, v150, v151')
    A('v_max_f32 v156, v156, v157')
    cross_rows(A, 156, 157, 'v_max_f32')
    A(f'v_mul_f32 v157, s{sLOG2E}, v156')
    for k in range(8):
        A(f'v_fma_f32 v{144+k}, v{144+k}, s{sLOG2E}, -v157')
    for k in range(8):
        A(f'v_exp_f32 v{144+k}, v{144+k}')
    A.nop(1)
    for k in range(4):
        A(f'v_cvt_pk_bf16_f32 v{152+k}, v{144+2*k}, v{145+2*k}')
    A('v_add_f32 v158, v144, v145')
    A('v_add_f32 v157, v146, v147')
    A('v_add_f32 v144, v148, v149')
    A('v_add_f32 v145, v150, v151')
    A('v_add_f32 v158, v158, v157')
    A('v_add_f32 v144, v144, v145')
    A('v_add_f32 v158, v158, v144')
    cross_rows(A, 158, 157, 'v_add_f32')
    A('v_mov_b32 v144, v5')
    for T in range(1, 8):
        A(f'v_xor_b32 v{144+T}, {T*32}, v5')
    A('s_waitcnt lgkmcnt(0)')
    A('v_readfirstlane_b32 s24, v7')
    A('v_and_b32 v86, 3, v1')
    A('v_mul_u32_u24 v87, 528, v86')
    A('v_lshl_add_u32 v87, v2, 4, v87')
    A('v_add_u32 v6, s20, v87')
    A('s_lshl_b32 s11, s3, 2')
    A(f's_add_u32 s11, s11, {L_ML}')
    A('v_lshlrev_b32 v86, 5, v86')
    A('v_add_u32 v7, s11, v86')
    P(8)
    A.c('PV')
    A('s_waitcnt vmcnt(6)')
    P(9)
    for T in range(8):
        A(f'ds_read_b64_tr_b16 v[{80+4*T}:{81+4*T}], v{144+T}')
        A(f'ds_read_b64_tr_b16 v[{82+4*T}:{83+4*T}], v{144+T} offset:4096')
    for T in range(8):
        A(f's_waitcnt lgkmcnt({14-2*T})')
        A(f'v_mfma_f32_16x16x32_bf16 {vr(112+4*T)}, {vr(80+4*T)}, v[152:155], 0')
    A('s_mov_b32 exec_lo, 0x000f000f')
    A('s_mov_b32 exec_hi, 0x000f000f')
    A('ds_write_b32 v7, v156')
    A('ds_write_b32 v7, v158 offset:16')
    A.nop(1)
    for T in range(8):
        A(f'ds_write_b128 v6, {vr(112+4*T)} offset:{64*T}')
    A('s_mov_b64 exec, -1')
    A('s_waitcnt lgkmcnt(0)')
    A('s_barrier')
    P(10)
    A('s_cmp_eq_u32 s3, 3')
    A('s_cbranch_scc1 L_gupub')
    A.c('o partial publish (waves 0..2)')
    A('v_lshrrev_b32 v86, 5, v0')
    A('v_and_b32 v87, 3, v1')
    A('s_cmp_eq_u32 s3, 2')
    A('s_cselect_b64 vcc, -1, 0')
    A('v_cndmask_b32 v86, v86, v87, vcc')
    A('v_lshlrev_b32 v87, 5, v86')
    A(f'v_add_u32 v87, {L_ML}, v87')
    A('ds_read_b128 v[80:83], v87')
    A('ds_read_b128 v[84:87], v87 offset:16') if False else None
    A('ds_read_b128 v[88:91], v87 offset:16')
    A('v_mul_u32_u24 v87, 528, v86')
    A('v_and_b32 v92, 31, v0')
    A('v_lshl_add_u32 v87, v92, 4, v87')
    for w in range(4):
        A(f'ds_read_b128 {vr(96+4*w)}, v87 offset:{8192*w}')
    A('v_lshrrev_b32 v93, 2, v92')
    A('v_lshl_add_u32 v93, v86, 3, v93')
    A('v_lshlrev_b32 v93, 11, v93')
    A('v_and_b32 v92, 3, v92')
    A('v_lshl_add_u32 v93, v92, 4, v93')
    A('s_lshl_b32 s11, s4, 16')
    A('s_lshl_b32 s12, s5, 6')
    A('s_add_u32 s11, s11, s12')
    A(f's_add_u32 s11, s11, {OIO}')
    A('v_add_u32 v93, s11, v93')
    A('s_lshl_b32 s11, s4, 11')
    A('s_lshl_b32 s12, s5, 4')
    A('s_add_u32 s11, s11, s12')
    A(f's_add_u32 s11, s11, {MLO}')
    A('v_lshl_add_u32 v94, v86, 9, s11')
    A('v_cndmask_b32 v93, v93, v94, vcc')
    A('s_waitcnt lgkmcnt(4)')
    A('v_max3_f32 v94, v80, v81, v82')
    A('v_max_f32 v94, v94, v83')
    for w in range(4):
        A(f'v_sub_f32 v{80+w}, v{80+w}, v94')
    for w in range(4):
        A(f'v_mul_f32 v{80+w}, s{sLOG2E}, v{80+w}')
    for w in range(4):
        A(f'v_exp_f32 v{80+w}, v{80+w}')
    A.nop(1)
    A('v_mul_f32 v95, v80, v88')
    for w in range(1, 4):
        A(f'v_fmac_f32 v95, v{80+w}, v{88+w}')
    A('s_waitcnt lgkmcnt(0)')
    for k in range(4):
        A(f'v_mul_f32 v{84+k}, v80, v{96+k}')
    for w in range(1, 4):
        for k in range(4):
            A(f'v_fmac_f32 v{84+k}, v{80+w}, v{96+4*w+k}')
    A('v_cndmask_b32 v84, v84, v94, vcc')
    A('v_cndmask_b32 v85, v85, v95, vcc')
    tag_insert(A, 84)
    A('s_cmp_eq_u32 s3, 2')
    A('s_cselect_b32 exec_lo, 15, -1')
    A('s_cselect_b32 exec_hi, 0, -1')
    A('s_cmp_eq_u32 s24, 1')
    A('s_cbranch_scc0 L_opub_slow')
    A(f'buffer_store_dwordx4 v[84:87], v93, {srd(SWS)}, 0 offen')
    A('s_branch L_pub2_done')
    A.label('L_opub_slow')
    A(f'buffer_store_dwordx4 v[84:87], v93, {srd(SWS)}, 0 offen sc1')
    A('s_branch L_pub2_done')
    A.label('L_gupub')
    A.c('gate/up partial publish (wave 3): lanes 0..15 gate, 16..31 up')
    A('v_lshlrev_b32 v86, 4, v3')
    A('v_and_b32 v87, 1, v2')
    A('v_lshl_add_u32 v87, v87, 11, v86')
    A(f'v_add_u32 v87, {L_PART + 2048}, v87')
    for k in range(8):
        A(f'ds_read_b128 {vr(112+4*k)}, v87 offset:{256*k}')
    A('s_lshl_b32 s12, s4, 2')
    A(f's_add_u32 s12, s12, s{sRB}')
    A('s_lshl_b32 s12, s12, 3')
    A(f's_add_u32 s12, s12, s{sCB}')
    A('s_lshl_b32 s12, s12, 9')
    A(f's_add_u32 s12, s12, {GUO}')
    A('v_and_b32 v87, 1, v2')
    A('v_lshl_add_u32 v86, v87, 8, v86')
    A('v_add_u32 v86, s12, v86')
    A('s_waitcnt lgkmcnt(0)')
    for k in range(4):
        A(f'v_add_f32 v{112+k}, v{112+k}, v{116+k}')
        A(f'v_add_f32 v{120+k}, v{120+k}, v{124+k}')
        A(f'v_add_f32 v{128+k}, v{128+k}, v{132+k}')
        A(f'v_add_f32 v{136+k}, v{136+k}, v{140+k}')
    for k in range(4):
        A(f'v_add_f32 v{112+k}, v{112+k}, v{120+k}')
        A(f'v_add_f32 v{128+k}, v{128+k}, v{136+k}')
    for k in range(4):
        A(f'v_add_f32 v{112+k}, v{112+k}, v{128+k}')
    tag_insert(A, 112)
    A('s_mov_b32 exec_hi, 0')
    A('s_cmp_eq_u32 s24, 1')
    A('s_cbranch_scc0 L_gupub_slow')
    A(f'buffer_store_dwordx4 v[112:115], v86, {srd(SWS)}, 0 offen')
    A('s_branch L_pub2_done')
    A.label('L_gupub_slow')
    A(f'buffer_store_dwordx4 v[112:115], v86, {srd(SWS)}, 0 offen sc1')
    A.label('L_pub2_done')
    A('s_mov_b64 exec, -1')
    if cfg.b3b:
        A('s_barrier')
    P(11)
    A('v_lshlrev_b32 v6, 1, v2')
    A(f'v_add_u32 v7, {L_HB}, v6')
    A(f'v_add_u32 v6, {L_OB}, v6')
    A('v_lshrrev_b32 v86, 2, v3')
    A('v_lshl_add_u32 v86, v2, 2, v86')
    A('s_lshl_b32 s11, s3, 3')
    A('v_add_u32 v86, s11, v86')
    A('v_lshlrev_b32 v86, 14, v86')
    A('v_and_b32 v87, 3, v3')
    A('v_lshl_add_u32 v86, v87, 4, v86')
    A('s_lshl_b32 s11, s2, 6')
    A(f's_add_u32 s11, s11, {FIN}')
    A('v_add_u32 v5, s11, v86')
    A('s_barrier')
    P(12)
    A.c('output projection')
    for i in range(2):
        A(f'ds_read_u16 v{84+i}, v7 offset:{8*i}')
    for i in range(4):
        A(f'ds_read_u16 v{80+i}, v6 offset:{8*i}')
    for i in range(2):
        A(f's_waitcnt lgkmcnt({5-i})')
        build_sel(A, 64+4*i, 84+i, 86)
    for i in range(4):
        A(f's_waitcnt lgkmcnt({3-i})')
        build_sel(A, 48+4*i, 80+i, 86)
    A('s_waitcnt vmcnt(1)')
    for i in range(4):
        A(f'v_mfma_f32_16x16x32_bf16 v[72:75], {vr(48+4*i)}, {vr(24+4*i)}, {"0" if i == 0 else "v[72:75]"}')
    for i in range(2):
        A(f'v_mfma_f32_16x16x32_bf16 v[72:75], {vr(64+4*i)}, {vr(40+4*i)}, v[72:75]')
    A('s_mov_b32 exec_hi, 0')
    A.nop(7)
    tag_insert(A, 72)
    A(f'buffer_store_dwordx4 v[72:75], v5, {srd(SWS)}, 0 offen sc1')
    A('s_mov_b64 exec, -1')
    P(13)
    P.flush(); P.reset()
    A('s_cmp_ge_u32 s2, 32')
    A('s_cbranch_scc1 L_done')
    A.c('final reduce')
    A('s_lshr_b32 s11, s2, 3')
    A('s_lshl_b32 s11, s11, 7')
    A('s_and_b32 s12, s2, 3')
    A('s_lshl_b32 s12, s12, 5')
    A('s_add_u32 s11, s11, s12')
    A('s_bfe_u32 s12, s2, 0x10002')
    A('s_lshl_b32 s12, s12, 2')
    A('s_add_u32 s11, s11, s12')
    A('v_lshrrev_b32 v100, 2, v3')
    A('v_lshlrev_b32 v100, 3, v100')
    A('v_and_b32 v101, 3, v3')
    A('v_add3_u32 v100, v100, v101, s11')
    A('v_lshlrev_b32 v100, 1, v100')
    A(f'buffer_load_ushort v101, v100, {srd(SX)}, 0 offen {cfg.xnt}')
    A('s_lshl_b32 s11, s2, 14')
    A(f's_add_u32 s11, s11, {FIN}')
    A('v_lshlrev_b32 v6, 4, v0')
    A('v_add_u32 v6, s11, v6')
    A(f's_mov_b32 s{sIT}, 0')
    A('s_mov_b32 s12, 4096')
    A('s_mov_b32 s13, 8192')
    A('s_mov_b32 s14, 12288')
    A.label('L_fgat')
    A(f'buffer_load_dwordx4 v[80:83], v6, {srd(SWS)}, 0 offen {cfg.gat}')
    A(f'buffer_load_dwordx4 v[84:87], v6, {srd(SWS)}, s12 offen {cfg.gat}')
    A(f'buffer_load_dwordx4 v[88:91], v6, {srd(SWS)}, s13 offen {cfg.gat}')
    A(f'buffer_load_dwordx4 v[92:95], v6, {srd(SWS)}, s14 offen {cfg.gat}')
    A('s_waitcnt vmcnt(0)')
    for q in range(4):
        tag_check(A, 80+4*q, 96, 97, q == 0)
    poll_tail(A, cfg, 'L_fgat', 'L_fok')
    A.label('L_fok')
    if cfg.prof:
        A(f'v_writelane_b32 v{vPROF}, s{sIT}, 22')
    P(14)
    P.flush(); P.reset()
    mask_vals(A, 80, 16)
    for k in range(4):
        A(f'v_add_f32 v{80+k}, v{80+k}, v{84+k}')
        A(f'v_add_f32 v{88+k}, v{88+k}, v{92+k}')
    for k in range(4):
        A(f'v_add_f32 v{80+k}, v{80+k}, v{88+k}')
    transpose_reduce4(A, 80)
    rowred(A, [80], 'v_add_f32', ['row_ror:8', 'row_ror:4'])
    A('v_and_b32 v86, 1, v2')
    A('v_lshlrev_b32 v86, 1, v86')
    A('v_lshrrev_b32 v87, 1, v2')
    A('v_or_b32 v86, v86, v87')
    A('v_and_b32 v87, 3, v1')
    A('v_lshl_add_u32 v86, v87, 2, v86')
    A('v_lshlrev_b32 v86, 4, v86')
    A('s_lshl_b32 s11, s3, 2')
    A(f's_add_u32 s11, s11, {L_FINR}')
    A('v_add_u32 v86, s11, v86')
    A('s_mov_b32 exec_lo, 0x000f000f')
    A('s_mov_b32 exec_hi, 0x000f000f')
    A('ds_write_b32 v86, v80')
    A('s_mov_b64 exec, -1')
    A('s_waitcnt lgkmcnt(0)')
    A('s_barrier')
    A('s_cmp_lg_u32 s3, 0')
    A('s_cbranch_scc1 L_done')
    A('v_lshlrev_b32 v86, 4, v3')
    A(f'v_add_u32 v86, {L_FINR}, v86')
    A('ds_read_b128 v[80:83], v86')
    A('v_lshlrev_b32 v101, 16, v101')
    A('s_waitcnt lgkmcnt(0)')
    A('v_add_f32 v80, v80, v81')
    A('v_add_f32 v82, v82, v83')
    A('v_add_f32 v80, v80, v82')
    A('v_add_f32 v80, v80, v101')
    A('v_cvt_pk_bf16_f32 v80, v80, v80')
    A('s_mov_b64 exec, 0xffff')
    A(f'buffer_store_short v80, v100, {srd(SOUT)}, 0 offen')
    A('s_cmp_lg_u32 s2, 0')
    A('s_cbranch_scc1 L_noepoch')
    A('s_mov_b64 exec, 1')
    A(f'v_mov_b32 v81, {EOFF}')
    A(f'v_mov_b32 v82, s{sTAG}')
    A(f'buffer_store_dword v82, v81, {srd(SWS)}, 0 offen sc1')
    A.label('L_noepoch')
    A('s_mov_b64 exec, -1')
    A('s_branch L_done')
    A.label('L_comm')
    P.reset(prev=0, k=0)
    P(1)
    common_consts(A)
    A(f'v_mov_b32 v4, {EOFF}')
    if cfg.pretouch:
        A('s_cmp_eq_u32 s3, 4')
        A('s_cbranch_scc0 L_nopre')
        A('s_waitcnt lgkmcnt(0)')
        A('s_lshl_b32 s11, s4, 5')
        A('s_add_u32 s11, s11, s5')
        A('s_lshl_b32 s12, s11, 11')
        A(f's_add_u32 s12, s12, {OIO}')
        A('v_lshl_add_u32 v10, v1, 7, s12')
        A('s_lshl_b32 s12, s11, 9')
        A(f's_add_u32 s12, s12, {GUO - 16*128}')
        A('v_lshl_add_u32 v11, v1, 7, s12')
        A('v_cmp_le_u32 vcc, 16, v1')
        A('s_lshl_b32 s12, s11, 8')
        A(f's_add_u32 s12, s12, {QA - 20*128}')
        A('v_cndmask_b32 v10, v10, v11, vcc')
        A('v_lshl_add_u32 v11, v1, 7, s12')
        A('v_cmp_le_u32 vcc, 20, v1')
        A('s_lshl_b32 s12, s4, 9')
        A('s_and_b32 s13, s5, 3')
        A('s_lshl_b32 s13, s13, 7')
        A('s_add_u32 s12, s12, s13')
        A(f's_add_u32 s12, s12, {IDA}')
        A('v_cndmask_b32 v10, v10, v11, vcc')
        A('v_mov_b32 v11, s12')
        A('v_cmp_le_u32 vcc, 22, v1')
        A('s_lshl_b32 s12, s4, 11')
        A('s_and_b32 s13, s5, 15')
        A('s_lshl_b32 s13, s13, 7')
        A('s_add_u32 s12, s12, s13')
        A(f's_add_u32 s12, s12, {MLO}')
        A('v_cndmask_b32 v10, v10, v11, vcc')
        A('v_mov_b32 v11, s12')
        A('v_cmp_le_u32 vcc, 23, v1')
        A.nop(2)
        A('v_cndmask_b32 v10, v10, v11, vcc')
        A('s_mov_b64 exec, 0xffffff')
        A(f'buffer_load_dword v12, v10, {srd(SWS)}, 0 offen nt')
        A('s_mov_b64 exec, -1')
        A.label('L_nopre')
    if cfg.finpre:
        A('s_cmp_eq_u32 s3, 5')
        A('s_cbranch_scc0 L_nofinpre')
        A('s_cmp_lt_u32 s2, 32')
        A('s_cbranch_scc0 L_nofinpre')
        A('s_waitcnt lgkmcnt(0)')
        A('s_lshl_b32 s11, s2, 14')
        A(f's_add_u32 s11, s11, {FIN}')
        A('v_lshl_add_u32 v10, v1, 7, s11')
        A('s_mov_b32 s12, 8192')
        A(f'buffer_load_dword v12, v10, {srd(SWS)}, 0 offen nt')
        A(f'buffer_load_dword v13, v10, {srd(SWS)}, s12 offen nt')
        A.label('L_nofinpre')
    A('s_lshl_b32 s11, s4, 13')
    A('s_sub_u32 s12, s3, 4')
    A('s_lshl_b32 s12, s12, 10')
    A('s_add_u32 s11, s11, s12')
    A(f's_add_u32 s11, s11, {QA}')
    A('v_lshlrev_b32 v6, 4, v1')
    A('v_add_u32 v6, s11, v6')
    A('s_lshl_b32 s11, s4, 9')
    A(f's_add_u32 s11, s11, {IDA}')
    A('v_and_b32 v7, 31, v1')
    A('v_lshl_add_u32 v7, v7, 4, s11')
    A('s_sub_u32 s12, s3, 4')
    A('s_lshl_b32 s12, s12, 1')
    A('v_lshrrev_b32 v8, 5, v1')
    A('v_add_u32 v8, s12, v8')
    A('v_mul_u32_u24 v8, 272, v8')
    A('v_and_b32 v9, 31, v1')
    A('v_lshl_add_u32 v8, v9, 3, v8')
    A(f'v_add_u32 v8, {L_QB}, v8')
    P(3)
    A('s_barrier')
    P(4)
    if cfg.b1b:
        A('s_barrier')
    P(5)
    A('s_waitcnt lgkmcnt(0)')
    A(f'buffer_load_dword v5, v4, {srd(SWS)}, 0 offen {cfg.xnt}')
    A(f's_mov_b32 s{sIT}, 0')
    A('s_mov_b32 s14, 0')
    A.label('L_qgat')
    A('s_add_u32 s15, s14, 4096')
    A(f'buffer_load_dwordx4 v[16:19], v6, {srd(SWS)}, s14 offen {cfg.gat}')
    A(f'buffer_load_dwordx4 v[20:23], v6, {srd(SWS)}, s14 offen offset:2048 {cfg.gat}')
    A(f'buffer_load_dwordx4 v[24:27], v6, {srd(SWS)}, s15 offen {cfg.gat}')
    A(f'buffer_load_dwordx4 v[28:31], v6, {srd(SWS)}, s15 offen offset:2048 {cfg.gat}')
    A(f'buffer_load_dwordx4 v[32:35], v7, {srd(SWS)}, s14 offen {cfg.gat}')
    A('s_waitcnt vmcnt(0)')
    A('v_add_u32 v9, 0x01010101, v5')
    A.nop(1)
    A('v_readfirstlane_b32 s6, v9')
    for q in range(5):
        tag_check(A, 16+4*q, 36, 37, q == 0)
    poll_tail(A, cfg, 'L_qgat', 'L_qok', switch=14)
    A.label('L_qok')
    if cfg.prof:
        A(f'v_writelane_b32 v{vPROF}, s{sIT}, 20')
    P(6)
    mask_vals(A, 16, 16)
    for k in range(4):
        A(f'v_add_f32 v{16+k}, v{16+k}, v{20+k}')
        A(f'v_add_f32 v{24+k}, v{24+k}, v{28+k}')
    for k in range(4):
        A(f'v_add_f32 v{16+k}, v{16+k}, v{24+k}')
    A('v_cvt_pk_bf16_f32 v16, v16, v17')
    A('v_cvt_pk_bf16_f32 v17, v18, v19')
    A('ds_write_b64 v8, v[16:17]')
    A('s_getreg_b32 s13, hwreg(HW_REG_XCC_ID, 0, 4)')
    A('v_bfe_u32 v32, v32, 8, 8')
    A('v_cmp_ne_u32 vcc, s13, v32')
    A('s_cmp_eq_u64 vcc, 0')
    A('s_cselect_b32 s13, 1, 0')
    if cfg.forceslow:
        A('s_mov_b32 s13, 0')
    A('v_mov_b32 v33, s13')
    A(f'v_mov_b32 v34, {L_MODE}')
    A('s_cmp_eq_u32 s3, 5')
    A('s_cbranch_scc0 L_nomode')
    A('ds_write_b32 v34, v33')
    A.label('L_nomode')
    A('s_waitcnt lgkmcnt(0)')
    A('s_barrier')
    P(7)
    P.flush(); P.reset()
    A('s_cmp_eq_u32 s3, 5')
    A('s_cbranch_scc1 L_comm5')
    A('s_lshl_b32 s11, s4, 5')
    A('s_add_u32 s11, s11, s5')
    A('s_lshl_b32 s11, s11, 11')
    A(f's_add_u32 s11, s11, {OIO}')
    A('v_lshlrev_b32 v6, 4, v1')
    A('v_add_u32 v6, s11, v6')
    A('s_lshl_b32 s11, s4, 2')
    A('s_lshr_b32 s12, s5, 3')
    A('s_add_u32 s11, s11, s12')
    A('s_lshl_b32 s11, s11, 9')
    A(f's_add_u32 s11, s11, {MLO}')
    A('v_lshrrev_b32 v7, 2, v1')
    A('v_lshl_add_u32 v7, v7, 4, s11')
    A('v_and_b32 v8, 1, v2')
    A('v_lshlrev_b32 v8, 1, v8')
    A('v_lshrrev_b32 v9, 1, v2')
    A('v_or_b32 v8, v8, v9')
    A('v_and_b32 v9, 3, v1')
    A('v_lshl_add_u32 v8, v9, 2, v8')
    A('v_lshlrev_b32 v8, 1, v8')
    A(f'v_add_u32 v8, {L_OB}, v8')
    A('s_barrier')
    P(10)
    if cfg.b3b:
        A('s_barrier')
    P(11)
    A(f's_mov_b32 s{sIT}, 0')
    A.label('L_ogat')
    A(f'buffer_load_dwordx4 v[16:19], v6, {srd(SWS)}, 0 offen {cfg.gat}')
    A(f'buffer_load_dwordx4 v[20:23], v6, {srd(SWS)}, 0 offen offset:1024 {cfg.gat}')
    A(f'buffer_load_dwordx4 v[24:27], v7, {srd(SWS)}, 0 offen {cfg.gat}')
    A(f'buffer_load_dwordx4 v[28:31], v7, {srd(SWS)}, 0 offen offset:256 {cfg.gat}')
    A('s_waitcnt vmcnt(0)')
    for q in range(4):
        tag_check(A, 16+4*q, 36, 37, q == 0)
    poll_tail(A, cfg, 'L_ogat', 'L_ook')
    A.label('L_ook')
    if cfg.prof:
        A(f'v_writelane_b32 v{vPROF}, s{sIT}, 21')
    P(13)
    P.flush(); P.reset()
    mask_vals(A, 16, 8)
    mask_vals(A, 24, 2)
    mask_vals(A, 28, 2)
    A('v_max_f32 v32, v24, v28')
    rowred(A, [32], 'v_max_f32', ['row_ror:8', 'row_ror:4'])
    cross_rows(A, 32, 33, 'v_max_f32')
    A('v_sub_f32 v24, v24, v32')
    A('v_sub_f32 v28, v28, v32')
    A(f'v_mul_f32 v24, s{sLOG2E}, v24')
    A(f'v_mul_f32 v28, s{sLOG2E}, v28')
    A('v_exp_f32 v24, v24')
    A('v_exp_f32 v28, v28')
    A.nop(1)
    A('v_mul_f32 v34, v24, v25')
    A('v_fmac_f32 v34, v28, v29')
    for k in range(4):
        A(f'v_mul_f32 v{16+k}, v24, v{16+k}')
    for k in range(4):
        A(f'v_fmac_f32 v{16+k}, v28, v{20+k}')
    transpose_reduce4(A, 16)
    for st in ('row_ror:8', 'row_ror:4'):
        A.nop(1)
        A(f'v_add_f32_dpp v34, v34, v34 {st} row_mask:0xf bank_mask:0xf')
        A(f'v_add_f32_dpp v16, v16, v16 {st} row_mask:0xf bank_mask:0xf')
    cross_rows(A, 34, 33, 'v_add_f32')
    A('v_rcp_f32 v34, v34')
    A.nop(1)
    A('v_mul_f32 v16, v16, v34')
    A('v_cvt_pk_bf16_f32 v16, v16, v16')
    A('s_mov_b32 exec_lo, 0x000f000f')
    A('s_mov_b32 exec_hi, 0x000f000f')
    A('ds_write_b16 v8, v16')
    A('s_mov_b64 exec, -1')
    A('s_waitcnt lgkmcnt(0)')
    A('s_branch L_comm_b4')
    A.label('L_comm5')
    P.reset()
    A('s_lshl_b32 s11, s4, 2')
    A(f's_add_u32 s11, s11, s{sRB}')
    A('s_lshl_b32 s11, s11, 12')
    A(f's_lshl_b32 s12, s{sCB}, 5')
    A('s_add_u32 s11, s11, s12')
    A(f's_add_u32 s11, s11, {GUO}')
    A('v_bfe_u32 v6, v1, 2, 3')
    A('v_lshlrev_b32 v6, 9, v6')
    A('v_bfe_u32 v7, v1, 1, 1')
    A('v_lshl_add_u32 v6, v7, 8, v6')
    A('v_and_b32 v7, 1, v1')
    A('v_lshl_add_u32 v6, v7, 4, v6')
    A('v_add_u32 v6, s11, v6')
    A('v_lshlrev_b32 v8, 3, v1')
    A(f'v_add_u32 v8, {L_HB}, v8')
    A('s_barrier')
    if cfg.b3b:
        A('s_barrier')
    A(f's_mov_b32 s{sIT}, 0')
    A.label('L_ggat')
    A(f'buffer_load_dwordx4 v[16:19], v6, {srd(SWS)}, 0 offen {cfg.gat}')
    A('s_waitcnt vmcnt(0)')
    tag_check(A, 16, 36, 37, True)
    poll_tail(A, cfg, 'L_ggat', 'L_gok')
    A.label('L_gok')
    if cfg.prof:
        A(f'v_writelane_b32 v{vPROF}, s{sIT}, 21')
    P(13)
    P.flush(); P.reset()
    mask_vals(A, 16)
    for st in ('row_ror:8', 'row_ror:4'):
        for k in range(4):
            A(f'v_add_f32_dpp v{16+k}, v{16+k}, v{16+k} {st} row_mask:0xf bank_mask:0xf')
    for k in range(4):
        A(f'v_mov_b32 v{20+k}, v{16+k}')
    for k in range(4):
        A(f'v_permlane16_swap_b32 v{20+k}, v{16+k}')
    for k in range(4):
        A(f'v_add_f32 v{16+k}, v{20+k}, v{16+k}')
    A('v_cvt_pk_bf16_f32 v20, v16, v17')
    A('v_cvt_pk_bf16_f32 v21, v18, v19')
    A('v_lshlrev_b32 v16, 16, v20')
    A('v_and_b32 v17, 0xffff0000, v20')
    A('v_lshlrev_b32 v18, 16, v21')
    A('v_and_b32 v19, 0xffff0000, v21')
    for k in range(4):
        A(f'v_mul_f32_dpp v{20+k}, v{16+k}, v{16+k} quad_perm:[2,3,0,1] row_mask:0xf bank_mask:0xf')
    A('v_cvt_pk_bf16_f32 v16, v20, v21')
    A('v_cvt_pk_bf16_f32 v17, v22, v23')
    A('s_mov_b64 exec, 3')
    A('ds_write_b64 v8, v[16:17]')
    A('s_mov_b64 exec, -1')
    A('s_waitcnt lgkmcnt(0)')
    A.label('L_comm_b4')
    A('s_barrier')
    A('s_cmp_ge_u32 s2, 32')
    A('s_cbranch_scc1 L_done')
    A('s_barrier')
    A.label('L_done')
    if cfg.prof:
        P(15)
        P.flush()
        A('s_mul_i32 s11, s2, 6')
        A('s_add_u32 s11, s11, s3')
        A('s_lshl_b32 s11, s11, 7')
        A(f's_add_u32 s11, s11, {PROF}')
        A('v_lshl_add_u32 v86, v1, 2, s11')
        A('s_mov_b32 exec_hi, 0')
        A(f'buffer_store_dword v{vPROF}, v86, {srd(SWS)}, 0 offen')
        A('s_mov_b64 exec, -1')
    A.label('L_end')
    A('s_endpgm')
    A('.section .rodata,"a"')
    A('.p2align 6')
    A(f'.amdhsa_kernel {NAME}')
    A('  .amdhsa_next_free_vgpr 168')
    A('  .amdhsa_next_free_sgpr 102')
    A('  .amdhsa_accum_offset 168')
    A('  .amdhsa_group_segment_fixed_size 0')
    A('  .amdhsa_kernarg_size 96')
    A('  .amdhsa_user_sgpr_count 2')
    A('  .amdhsa_user_sgpr_kernarg_segment_ptr 1')
    A('  .amdhsa_system_sgpr_workgroup_id_x 1')
    A('  .amdhsa_float_denorm_mode_32 3')
    A('.end_amdhsa_kernel')
    return A.text()

HEADER = open('parallel_sum__sliding_block_cached__glu_gated_bilinear__decode.s.ref').read().split('; Override launch')[0]

def full(cfg):
    body = gen(cfg)
    probs = check(body)
    for p in probs:
        print('HAZARD', p, file=sys.stderr)
    return HEADER + f'; @launch grid=(256,1,1) block=(384,1,1) lds={LDS_BYTES}\n' + body

if __name__ == '__main__':
    cfg = Cfg()
    for a in sys.argv[2:]:
        k, v = a.split('=')
        old = getattr(cfg, k, None)
        setattr(cfg, k, v if (isinstance(old, str) and v not in ('False', 'True')) else eval(v))
    open(sys.argv[1], 'w').write(full(cfg))
```

```python
import sys
from asmlib import Asm, check

NAME = 'parallel_sum__sliding_block_cached__glu_gated_bilinear__decode_kernel'

EOFF  = 0
QA    = 0x1000
IDA   = 0x11000
BDELTA = 0x11000
GUO   = 0x23000
MLO   = 0x43000
OIO   = 0x48000
FIN   = 0xC8000
PROF  = 0x180000
WS_BYTES = 0x200000

L_K = 0
L_V = 32768
L_XN = 65536
L_PART = 66560
L_QB = 72704
L_HB = 73792
L_MODE = 73808
L_ML = 73824
L_OB = 73952
L_FINR = 73984
LDS_BYTES = 74240

sW, sG, sS, sTAG = 3, 4, 5, 6
SX, SK, SV, SWQ, SWO, SGA, SUP, SDN, SOUT, SWS = 40, 44, 48, 52, 56, 60, 64, 68, 72, 76
M0, M1, M2, M3 = 80, 82, 84, 86
sX0, sX1 = 90, 91
sIT = 92
sLOG2E, sSCALE = 93, 94
sMSK = 95
sP01, sP23 = 96, 97
sI0, sI1, sI2, sI3 = 98, 99, 100, 101
sRB, sT, sCB = 7, 8, 10
vTAG, vSH = 167, 166
vPROF = 165
def srd(n): return f's[{n}:{n+3}]'
def vr(n, k=4): return f'v[{n}:{n+k-1}]'

class Cfg:
    nt = 'nt'
    gat = 'sc1'
    nk1 = 8
    exp_dirty = 0
    b1c = True
    nv2 = 4
    kwait = 6
    exp_cb = 0
    exp_hwid = False
    swap = True
    wo_early = 0
    b0 = 1
    prio = 3
    align = 12
    xnt = ''
    finpre = False
    codepf_n = 4
    nv1 = 0
    b1b = True
    b3b = True
    maxit = 20000
    swit = 24
    prof = False
    dbgprof = None
    pretouch = True
    codepf = 's'
    forceslow = False
    forceb = False

ROW_FULL = ['quad_perm:[1,0,3,2]', 'quad_perm:[2,3,0,1]', 'row_half_mirror', 'row_mirror']

def rowred(A, regs, op, steps):
    for st in steps:
        A.nop(2 if len(regs) < 3 else max(0, 2 - (len(regs) - 1)))
        for v in regs:
            A(f'{op}_dpp v{v}, v{v}, v{v} {st} row_mask:0xf bank_mask:0xf')
        if len(regs) >= 3:
            pass

def cross_rows(A, v, tmp, op):
    A(f'v_mov_b32 v{tmp}, v{v}')
    A.nop(2)
    A(f'v_permlane16_swap_b32 v{tmp}, v{v}')
    A.nop(1)
    A(f'{op} v{v}, v{tmp}, v{v}')
    A(f'v_mov_b32 v{tmp}, v{v}')
    A.nop(2)
    A(f'v_permlane32_swap_b32 v{tmp}, v{v}')
    A.nop(1)
    A(f'{op} v{v}, v{tmp}, v{v}')

def wave_allreduce(A, v, tmp, op):
    rowred(A, [v], op, ROW_FULL)
    cross_rows(A, v, tmp, op)

def transpose_reduce4(A, v):
    A.nop(1)
    A(f'v_permlane32_swap_b32 v{v}, v{v+1}')
    A(f'v_permlane32_swap_b32 v{v+2}, v{v+3}')
    A.nop(1)
    A(f'v_add_f32 v{v}, v{v}, v{v+1}')
    A(f'v_add_f32 v{v+2}, v{v+2}, v{v+3}')
    A.nop(2)
    A(f'v_permlane16_swap_b32 v{v}, v{v+2}')
    A.nop(1)
    A(f'v_add_f32 v{v}, v{v}, v{v+2}')

def tag_insert(A, v):
    for k, s in enumerate((sI0, sI1, sI2, sI3)):
        A(f'v_perm_b32 v{v+k}, v{v+k}, v{vTAG}, s{s}')

def tag_check(A, v, t0, t1, first):
    A(f'v_perm_b32 v{t0}, v{v+1}, v{v}, s{sP01}')
    A(f'v_perm_b32 v{t1}, v{v+3}, v{v+2}, s{sP23}')
    A(f'v_or_b32 v{t0}, v{t0}, v{t1}')
    if first:
        A(f'v_cmp_ne_u32 s[88:89], s{sTAG}, v{t0}')
    else:
        A(f'v_cmp_ne_u32 s[90:91], s{sTAG}, v{t0}')
        A('s_or_b64 s[88:89], s[88:89], s[90:91]')

def mask_vals(A, v, n=4):
    for k in range(n):
        A(f'v_and_b32 v{v+k}, s{sMSK}, v{v+k}')

def build_sel(A, dst, val, tmp):
    A(f'v_lshlrev_b32 v{tmp}, v{vSH}, v{val}')
    for j, m in enumerate((M0, M1, M2, M3)):
        A(f'v_cndmask_b32_e64 v{dst+j}, 0, v{tmp}, s[{m}:{m+1}]')

class Prof:
    def __init__(self, A, cfg):
        self.A, self.on, self.prev, self.k = A, cfg.prof, None, 0
        self.lite = cfg.prof == 'lite'
    def reset(self, prev=None, k=0):
        if self.lite:
            self.prev = None
            return
        self.prev, self.k = prev, k
    def __call__(self, idx):
        if not self.on: return
        if self.on == 'lite' and idx not in (0, 15): return
        if idx >= 23 and self.on != 'heavy': return
        A = self.A
        if self.on == 'heavy' and self.prev is not None:
            A('s_waitcnt lgkmcnt(0)')
        if self.prev is not None:
            A(f'v_writelane_b32 v{vPROF}, s{28 + 2*self.k}, {self.prev}')
            self.k ^= 1
        A(f's_memrealtime s[{28+2*self.k}:{29+2*self.k}]')
        self.prev = None if self.lite else idx
    def flush(self):
        if not self.on: return
        if self.prev is None: return
        A = self.A
        A('s_waitcnt lgkmcnt(0)')
        A(f'v_writelane_b32 v{vPROF}, s{28 + 2*self.k}, {self.prev}')

def common_consts(A):
    A(f's_mov_b32 s{sLOG2E}, 0x3fb8aa3b')
    A(f's_mov_b32 s{sSCALE}, 0x3db504f3')
    A(f's_mov_b32 s{sMSK}, 0xffffff00')
    A(f's_mov_b32 s{sP01}, 0x0c0c0400')
    A(f's_mov_b32 s{sP23}, 0x04000c0c')
    A(f's_mov_b32 s{sI0}, 0x07060500')
    A(f's_mov_b32 s{sI1}, 0x07060501')
    A(f's_mov_b32 s{sI2}, 0x07060502')
    A(f's_mov_b32 s{sI3}, 0x07060503')

def poll_tail(A, cfg, label, oklabel, switch=None):
    A('s_cmp_eq_u64 s[88:89], 0')
    A(f's_cbranch_scc1 {oklabel}')
    A(f's_add_u32 s{sIT}, s{sIT}, 1')
    if switch:
        A(f's_cmp_eq_u32 s{sIT}, {cfg.swit}')
        A(f's_cselect_b32 s{switch}, {BDELTA}, s{switch}')
    A(f's_cmp_le_u32 s{sIT}, {cfg.maxit}')
    A(f's_cbranch_scc1 {label}')

def gen(cfg):
    A = Asm()
    P = Prof(A, cfg)
    nt = cfg.nt
    A('.amdgcn_target "amdgcn-amd-amdhsa--gfx950"')
    A('.text')
    A(f'.globl {NAME}')
    A(f'.p2align {cfg.align}')
    A(f'.type {NAME},@function')
    A.label(NAME)
    A('s_cmp_ge_u32 s2, 256')
    A('s_cbranch_scc1 L_end')
    P(0)
    for sr, off in ((SWQ, 24), (SX, 0), (SWS, 88), (SK, 8)):
        A(f's_load_dwordx2 s[{sr}:{sr+1}], s[0:1], {off}')
    A('v_lshrrev_b32 v2, 6, v0')
    A('v_and_b32 v1, 63, v0')
    A('s_and_b32 s4, s2, 7')
    A('v_readfirstlane_b32 s3, v2')
    A('s_lshr_b32 s5, s2, 3')
    A(f's_lshr_b32 s{sRB}, s5, 3')
    A(f's_and_b32 s{sCB}, s5, 7')
    for sr, n in ((SWQ, 4194304), (SX, 1024), (SWS, WS_BYTES), (SK, 134217728)):
        A(f's_mov_b32 s{sr+2}, {n}')
        A(f's_mov_b32 s{sr+3}, 0x20000')
    A('s_cmp_ge_u32 s3, 4')
    A('s_cbranch_scc1 L_comm0')
    A(f's_lshl_b32 s16, s{sRB}, 20')
    A('s_lshl_b32 s11, s3, 18')
    A('s_add_u32 s16, s16, s11')
    A('s_lshl_b32 s11, s4, 10')
    A('s_add_u32 s16, s16, s11')
    if cfg.exp_cb:
        A(f's_add_u32 s11, s{sCB}, {cfg.exp_cb}')
        A('s_and_b32 s11, s11, 7')
        A('s_lshl_b32 s11, s11, 7')
    else:
        A(f's_lshl_b32 s11, s{sCB}, 7')
    A('s_add_u32 s16, s16, s11')
    A('v_lshlrev_b32 v163, 4, v1')
    A('v_lshrrev_b32 v164, 3, v1')
    A('v_and_b32 v4, 0x70, v163')
    A('v_lshl_add_u32 v6, v164, 13, v4')
    A(f'v_mov_b32 v7, {EOFF}')
    A('s_add_u32 s17, s16, 65536')
    A('s_add_u32 s18, s16, 131072')
    A('s_add_u32 s19, s16, 196608')
    A('s_waitcnt lgkmcnt(0)')
    P(27)
    A(f'buffer_load_dwordx4 v[8:11], v163, {srd(SX)}, 0 offen {cfg.xnt}')
    A(f'buffer_load_dword v{vTAG}, v7, {srd(SWS)}, 0 offen {cfg.xnt}')
    if cfg.b0 == 1:
        A('s_barrier')
    for i in range(4):
        A(f'buffer_load_dwordx4 {vr(12+4*i)}, v6, {srd(SWQ)}, s{16+i} offen {nt}')
    for sr, off in ((SV, 16), (SGA, 48), (SUP, 56), (SWO, 32), (SDN, 64), (SOUT, 72)):
        A(f's_load_dwordx2 s[{sr}:{sr+1}], s[0:1], {off}')
    A('v_lshrrev_b32 v2, 4, v1')
    A('v_and_b32 v3, 15, v1')
    for i in range(4):
        A(f'v_add_u32 v5, {4*i}, v2')
        A('v_xor_b32 v5, v5, v3')
        A('v_lshlrev_b32 v5, 4, v5')
        A(f'v_lshl_add_u32 v{156+i}, v2, 8, v5')
    A('s_lshl_b32 s19, s4, 24')
    A('s_lshl_b32 s11, s5, 15')
    A('s_add_u32 s19, s19, s11')
    A('s_lshl_b32 s11, s3, 13')
    A('s_add_u32 s19, s19, s11')
    A('s_add_u32 s19, s19, 15728640')
    A('s_lshl_b32 s20, s3, 13')
    if cfg.swap:
        A('s_and_b32 s25, s4, 1')
        A('s_lshl_b32 s25, s25, 12')
    else:
        A('s_mov_b32 s25, 0')
    A('s_xor_b32 s26, s25, 4096')
    A('s_add_u32 s27, s19, s26')
    A('s_add_u32 s19, s19, s25')
    A('s_add_u32 s25, s25, s20')
    A('s_add_u32 s26, s26, s20')
    A('s_mov_b32 m0, s25')
    if cfg.b0 == 2:
        A('s_barrier')
    A.nop(1)
    def kloads(lo, hi):
        for i in range(lo, hi):
            if i == 4:
                A('s_mov_b32 m0, s26')
                A.nop(1)
            A(f'buffer_load_dwordx4 v{156+(i&3)}, {srd(SK)}, s{19 if i < 4 else 27} offen offset:{1024*(i&3)} {nt} lds')
    kloads(0, cfg.nk1)
    A('v_mul_u32_u24 v162, 3584, v164')
    A('v_add_u32 v161, v162, v4')
    A(f's_lshl_b32 s{sT}, s{sRB}, 3')
    A(f's_add_u32 s{sT}, s{sT}, s4')
    A(f's_cmp_lt_u32 s{sT}, 28')
    A('s_cselect_b32 s9, 1835008, 0')
    for sr, n in ((SV, 134217728), (SWO, 4194304), (SOUT, 1024)):
        A(f's_mov_b32 s{sr+2}, {n}')
        A(f's_mov_b32 s{sr+3}, 0x20000')
    for sr in (SGA, SUP, SDN):
        A(f's_mov_b32 s{sr+2}, s9')
        A(f's_mov_b32 s{sr+3}, 0x20000')
    A('s_branch L_cmp_go')
    A.label('L_comm0')
    if cfg.codepf:
        A('s_cmp_eq_u32 s3, 5')
        A('s_cbranch_scc0 L_nocodepf')
        A('s_getpc_b64 s[12:13]')
        A.label('L_pc')
        A(f's_sub_u32 s12, s12, L_pc-{NAME}')
        A('s_subb_u32 s13, s13, 0')
        A('s_lshl_b32 s14, s5, 6')
        A('s_add_u32 s12, s12, s14')
        A('s_addc_u32 s13, s13, 0')
        for i in range(cfg.codepf_n):
            A(f's_load_dword s{32+(i&3)}, s[12:13], {2048*i}')
        A.label('L_nocodepf')
    if cfg.prio:
        A(f's_setprio {cfg.prio}')
    if cfg.b0:
        A('s_barrier')
    A('s_branch L_comm')
    A.label('L_cmp_go')
    for m, lo in ((M0, 0x03030303), (M1, 0x0c0c0c0c), (M2, 0x30303030), (M3, 0xc0c0c0c0)):
        A(f's_mov_b32 s{m}, {hex(lo)}')
        A(f's_mov_b32 s{m+1}, {hex(lo)}')
    common_consts(A)
    A(f'v_and_b32 v{vSH}, 1, v1')
    A(f'v_lshlrev_b32 v{vSH}, 4, v{vSH}')
    A(f's_lshl_b32 s17, s{sCB}, 6')
    A('s_lshl_b32 s11, s3, 4')
    A('s_add_u32 s17, s17, s11')
    A('s_mul_i32 s17, s17, 3584')
    A(f's_lshl_b32 s11, s{sT}, 7')
    A('s_add_u32 s17, s17, s11')
    A('s_lshl_b32 s21, s4, 19')
    A('s_lshl_b32 s11, s5, 14')
    A('s_add_u32 s21, s21, s11')
    A('s_lshl_b32 s11, s3, 8')
    A('s_add_u32 s21, s21, s11')
    A(f's_lshl_b32 s22, s{sT}, 16')
    A(f's_lshl_b32 s23, s{sCB}, 13')
    A('s_add_u32 s22, s22, s23')
    A('s_add_u32 s22, s22, s11')
    A('v_lshlrev_b32 v162, 4, v3')
    A('v_lshl_add_u32 v162, v2, 10, v162')
    P(1)
    A.c('layernorm')
    A(f's_waitcnt vmcnt({4 + cfg.nk1})')
    P(2)
    for k in range(4):
        A(f'v_lshlrev_b32 v{80+2*k}, 16, v{8+k}')
        A(f'v_and_b32 v{81+2*k}, 0xffff0000, v{8+k}')
    A('v_add_f32 v88, v80, v81')
    A('v_add_f32 v89, v82, v83')
    A('v_add_f32 v90, v84, v85')
    A('v_add_f32 v91, v86, v87')
    A('v_add_f32 v88, v88, v89')
    A('v_add_f32 v90, v90, v91')
    A('v_add_f32 v88, v88, v90')
    wave_allreduce(A, 88, 89, 'v_add_f32')
    A('v_mul_f32 v88, 0x3b000000, v88')
    for k in range(8):
        A(f'v_sub_f32 v{92+k}, v{80+k}, v88')
    A('v_mul_f32 v90, v92, v92')
    for k in range(1, 8):
        A(f'v_fmac_f32 v90, v{92+k}, v{92+k}')
    wave_allreduce(A, 90, 89, 'v_add_f32')
    P(23)
    A('v_mul_f32 v90, 0x3b000000, v90')
    A('v_cvt_pk_bf16_f32 v88, v88, v90')
    A('v_and_b32 v90, 0xffff0000, v88')
    A('v_lshlrev_b32 v88, 16, v88')
    A('v_add_f32 v90, 0x3727c5ac, v90')
    A('v_cvt_pk_bf16_f32 v90, v90, v90')
    A('v_lshlrev_b32 v90, 16, v90')
    A('v_sqrt_f32 v90, v90')
    for k in range(8):
        A(f'v_sub_f32 v{92+k}, v{80+k}, v88')
    A('v_cvt_pk_bf16_f32 v90, v90, v90')
    A('v_lshlrev_b32 v90, 16, v90')
    A('v_rcp_f32 v90, v90')
    for k in range(4):
        A(f'v_cvt_pk_bf16_f32 v{100+k}, v{92+2*k}, v{93+2*k}')
    for k in range(4):
        A(f'v_lshlrev_b32 v{92+2*k}, 16, v{100+k}')
        A(f'v_and_b32 v{93+2*k}, 0xffff0000, v{100+k}')
    for k in range(8):
        A(f'v_mul_f32 v{92+k}, v{92+k}, v90')
    for k in range(4):
        A(f'v_cvt_pk_bf16_f32 v{100+k}, v{92+2*k}, v{93+2*k}')
    A(f'v_add_u32 v104, {L_XN}, v163')
    A('ds_write_b128 v104, v[100:103]')
    P(24)
    A('v_lshrrev_b32 v105, 3, v3')
    A('v_lshl_add_u32 v105, v2, 1, v105')
    A(f's_lshl_b32 s11, s{sRB}, 7')
    A('s_lshl_b32 s12, s3, 5')
    A('s_add_u32 s11, s11, s12')
    A('s_lshl_b32 s11, s11, 1')
    A(f's_add_u32 s11, s11, {L_XN}')
    A('v_lshl_add_u32 v106, v105, 1, s11')
    A(f's_lshl_b32 s11, s{sCB}, 6')
    A('s_lshl_b32 s12, s3, 4')
    A('s_add_u32 s11, s11, s12')
    A('s_lshl_b32 s11, s11, 1')
    A(f's_add_u32 s11, s11, {L_XN}')
    A('v_lshl_add_u32 v107, v105, 1, s11')
    A('s_waitcnt lgkmcnt(0)')
    for i in range(4):
        A(f'ds_read_u16 v{80+i}, v106 offset:{16*i}')
    for i in range(2):
        A(f'ds_read_u16 v{84+i}, v107 offset:{16*i}')
    A(f'v_add_u32 v{vTAG}, 0x01010101, v{vTAG}')
    P(25)
    kloads(cfg.nk1, 8)
    P(26)
    A.nop(1)
    A(f'v_readfirstlane_b32 s6, v{vTAG}')
    A('s_waitcnt lgkmcnt(0)')
    for i in range(4):
        build_sel(A, 48+4*i, 80+i, 86)
    for i in range(2):
        build_sel(A, 64+4*i, 84+i, 86)
    for i, r in ((0, 160), (1, 164)):
        A(f'v_add_u32 v86, {4*i}, v2')
        A('v_lshlrev_b32 v86, 1, v86')
        A('v_xor_b32 v86, v86, v3')
        A('v_lshlrev_b32 v86, 4, v86')
        A(f'v_lshl_add_u32 v{r}, v2, 8, v86')
    A('v_lshrrev_b32 v87, 5, v1')
    A('v_lshlrev_b32 v87, 8, v87')
    A('v_and_b32 v86, 7, v1')
    A('v_lshl_add_u32 v87, v86, 5, v87')
    A('v_and_b32 v86, 1, v2')
    A('v_lshl_add_u32 v87, v86, 4, v87')
    A('s_lshl_b32 s11, s3, 9')
    A(f's_add_u32 s11, s11, {L_PART}')
    A('v_add_u32 v163, s11, v87')
    P(3)
    A.c('q partial product')
    A('s_waitcnt vmcnt(8)')
    P(16)
    for i in range(4):
        A(f'v_mfma_f32_16x16x32_bf16 v[72:75], {vr(48+4*i)}, {vr(12+4*i)}, {"0" if i == 0 else "v[72:75]"}')
    A('s_mov_b32 exec_lo, 0x00ff00ff')
    A('s_mov_b32 exec_hi, 0xff00ff00')
    A.nop(6)
    A('ds_write_b128 v163, v[72:75]')
    A('s_mov_b64 exec, -1')
    A('s_waitcnt lgkmcnt(0)')
    A('s_barrier')
    P(4)
    A('s_cmp_lg_u32 s3, 3')
    A('s_cbranch_scc1 L_pub1_done')
    A('v_lshlrev_b32 v86, 4, v3')
    A(f'v_add_u32 v87, {L_PART}, v86')
    for k in range(8):
        A(f'ds_read_b128 {vr(80+4*k+32)}, v87 offset:{256*k}')
    A('s_lshl_b32 s11, s4, 2')
    A(f's_add_u32 s11, s11, s{sRB}')
    A('s_lshl_b32 s11, s11, 11')
    A(f's_lshl_b32 s12, s{sCB}, 8')
    A('s_add_u32 s11, s11, s12')
    A(f's_add_u32 s11, s11, {QA}')
    A('v_add_u32 v86, s11, v86')
    A('s_lshl_b32 s12, s4, 9')
    A('s_lshl_b32 s13, s5, 4')
    A('s_add_u32 s12, s12, s13')
    A(f's_add_u32 s12, s12, {IDA}')
    A('v_mov_b32 v87, s12')
    A('v_cmp_eq_u32 vcc, 0, v2')
    A('s_getreg_b32 s13, hwreg(HW_REG_XCC_ID, 0, 4)')
    A('s_lshl_b32 s13, s13, 8')
    A('v_cndmask_b32 v86, v87, v86, vcc')
    A('s_waitcnt lgkmcnt(0)')
    for k in range(4):
        A(f'v_add_f32 v{112+k}, v{112+k}, v{116+k}')
        A(f'v_add_f32 v{120+k}, v{120+k}, v{124+k}')
        A(f'v_add_f32 v{128+k}, v{128+k}, v{132+k}')
        A(f'v_add_f32 v{136+k}, v{136+k}, v{140+k}')
    for k in range(4):
        A(f'v_add_f32 v{112+k}, v{112+k}, v{120+k}')
        A(f'v_add_f32 v{128+k}, v{128+k}, v{136+k}')
    for k in range(4):
        A(f'v_add_f32 v{112+k}, v{112+k}, v{128+k}')
    A('v_mov_b32 v116, s13')
    A('v_cndmask_b32 v112, v116, v112, vcc')
    tag_insert(A, 112)
    A('s_mov_b32 exec_lo, 0x0001ffff')
    A('s_mov_b32 exec_hi, 0')
    if not cfg.forceb:
        A(f'buffer_store_dwordx4 v[112:115], v86, {srd(SWS)}, 0 offen')
    A(f's_mov_b32 s12, {BDELTA}')
    A(f'buffer_store_dwordx4 v[112:115], v86, {srd(SWS)}, s12 offen sc1')
    A('s_mov_b64 exec, -1')
    A.label('L_pub1_done')
    nst = (1 if cfg.forceb else 2)
    A.c('gate/up loads, V loads')
    A('s_add_u32 s18, s17, 28672')
    A(f'buffer_load_dwordx4 {vr(8)}, v161, {srd(SGA)}, s17 offen {nt}')
    A(f'buffer_load_dwordx4 {vr(12)}, v161, {srd(SGA)}, s18 offen {nt}')
    A(f'buffer_load_dwordx4 {vr(16)}, v161, {srd(SUP)}, s17 offen {nt}')
    A(f'buffer_load_dwordx4 {vr(20)}, v161, {srd(SUP)}, s18 offen {nt}')
    def vloads(lo, hi):
        for i in range(lo, hi):
            if i % 4 == 0 or i == lo:
                A(f's_add_u32 m0, s{25 if i < 4 else 26}, {L_V}')
                A.nop(1)
            A(f'buffer_load_dwordx4 v{(160, 164)[i&1]}, {srd(SV)}, s{19 if i < 4 else 27} offen offset:{1024*(i&3)} {nt} lds')
    vloads(0, cfg.nv1)
    if cfg.kwait is not None:
        A('s_cmp_eq_u32 s3, 3')
        A('s_cbranch_scc1 L_nokwait')
        A(f's_waitcnt vmcnt({cfg.kwait + cfg.nv1})')
        A.label('L_nokwait')
    if cfg.b1b:
        A('s_barrier')
    P(5)
    if cfg.b1c:
        vloads(cfg.nv1, cfg.nv2)
        A('s_barrier')
        vloads(cfg.nv2, 8)
    else:
        vloads(cfg.nv1, 8)
    def wo_loads():
        A('s_mov_b32 s13, s21')
        for i in range(4):
            if i:
                A('s_add_u32 s13, s13, 4096')
            A(f'buffer_load_dwordx4 {vr(24+4*i)}, v162, {srd(SWO)}, s13 offen {nt}')
    def dn_loads():
        A('s_add_u32 s13, s22, 4096')
        A(f'buffer_load_dwordx4 {vr(40)}, v162, {srd(SDN)}, s22 offen {nt}')
        A(f'buffer_load_dwordx4 {vr(44)}, v162, {srd(SDN)}, s13 offen {nt}')
    nearly = 0
    if cfg.wo_early >= 1:
        wo_loads(); nearly += 4
    if cfg.wo_early >= 2:
        dn_loads(); nearly += 2
    A.c('gate/up partial products')
    P(17)
    A(f's_waitcnt vmcnt({8 + nearly})')
    P(18)
    for i in range(2):
        A(f'v_mfma_f32_16x16x32_bf16 v[72:75], {vr(64+4*i)}, {vr(8+4*i)}, {"0" if i == 0 else "v[72:75]"}')
    for i in range(2):
        A(f'v_mfma_f32_16x16x32_bf16 v[76:79], {vr(64+4*i)}, {vr(16+4*i)}, {"0" if i == 0 else "v[76:79]"}')
    for j in range(4):
        A(f'v_or_b32 v86, {4*j}, v2')
        A('v_xor_b32 v86, v86, v3')
        A('v_lshlrev_b32 v86, 4, v86')
        A(f'v_lshl_add_u32 v{156+j}, v3, 8, v86')
        A(f'v_add_u32 v{156+j}, s20, v{156+j}')
    A('s_mov_b32 exec_lo, 0x00ff00ff')
    A('s_mov_b32 exec_hi, 0xff00ff00')
    A('ds_write_b128 v163, v[72:75] offset:2048')
    A('ds_write_b128 v163, v[76:79] offset:4096')
    A('s_mov_b64 exec, -1')
    A('v_and_b32 v86, 3, v1')
    A('v_mul_u32_u24 v86, 272, v86')
    A('v_lshl_add_u32 v4, v2, 4, v86')
    A(f'v_add_u32 v4, {L_QB}, v4')
    A('v_lshrrev_b32 v86, 2, v3')
    A('v_lshl_add_u32 v87, v2, 2, v86')
    A('v_and_b32 v86, 7, v87')
    A('v_lshlrev_b32 v87, 8, v87')
    A('v_lshl_add_u32 v87, v86, 5, v87')
    A('v_and_b32 v86, 3, v3')
    A('v_lshl_add_u32 v87, v86, 3, v87')
    A(f's_add_u32 s11, s20, {L_V}')
    A('v_add_u32 v5, s11, v87')
    A('s_waitcnt lgkmcnt(0)')
    P(6)
    A('s_barrier')
    P(7)
    A.c('scores')
    for j in range(4):
        A(f'ds_read_b128 {vr(112+4*j)}, v4 offset:{64*j}')
    for t in range(2):
        for j in range(4):
            A(f'ds_read_b128 {vr(80+16*t+4*j)}, v{156+j} offset:{L_K + 4096*t}')
    if cfg.wo_early < 1:
        wo_loads()
    for j in range(4):
        A(f's_waitcnt lgkmcnt({7-j})')
        A(f'v_mfma_f32_16x16x32_bf16 v[144:147], {vr(80+4*j)}, {vr(112+4*j)}, {"0" if j == 0 else "v[144:147]"}')
    for j in range(4):
        A(f's_waitcnt lgkmcnt({3-j})')
        A(f'v_mfma_f32_16x16x32_bf16 v[148:151], {vr(96+4*j)}, {vr(112+4*j)}, {"0" if j == 0 else "v[148:151]"}')
    if cfg.wo_early < 2:
        dn_loads()
    A(f'v_mov_b32 v6, {L_MODE}')
    A('ds_read_b32 v7, v6')
    A.nop(4 if cfg.wo_early < 2 else 7)
    A.c('softmax')
    for k in range(4):
        A(f'v_cvt_pk_bf16_f32 v{152+k}, v{144+2*k}, v{145+2*k}')
    for k in range(4):
        A(f'v_lshlrev_b32 v{144+2*k}, 16, v{152+k}')
        A(f'v_and_b32 v{145+2*k}, 0xffff0000, v{152+k}')
    for k in range(8):
        A(f'v_mul_f32 v{144+k}, s{sSCALE}, v{144+k}')
    for k in range(4):
        A(f'v_cvt_pk_bf16_f32 v{152+k}, v{144+2*k}, v{145+2*k}')
    for k in range(4):
        A(f'v_lshlrev_b32 v{144+2*k}, 16, v{152+k}')
        A(f'v_and_b32 v{145+2*k}, 0xffff0000, v{152+k}')
    A('v_max3_f32 v156, v144, v145, v146')
    A('v_max3_f32 v157, v147, v148, v149')
    A('v_max3_f32 v156, v156, v150, v151')
    A('v_max_f32 v156, v156, v157')
    cross_rows(A, 156, 157, 'v_max_f32')
    A(f'v_mul_f32 v157, s{sLOG2E}, v156')
    for k in range(8):
        A(f'v_fma_f32 v{144+k}, v{144+k}, s{sLOG2E}, -v157')
    for k in range(8):
        A(f'v_exp_f32 v{144+k}, v{144+k}')
    A.nop(1)
    for k in range(4):
        A(f'v_cvt_pk_bf16_f32 v{152+k}, v{144+2*k}, v{145+2*k}')
    A('v_add_f32 v158, v144, v145')
    A('v_add_f32 v157, v146, v147')
    A('v_add_f32 v144, v148, v149')
    A('v_add_f32 v145, v150, v151')
    A('v_add_f32 v158, v158, v157')
    A('v_add_f32 v144, v144, v145')
    A('v_add_f32 v158, v158, v144')
    cross_rows(A, 158, 157, 'v_add_f32')
    A('v_mov_b32 v144, v5')
    for T in range(1, 8):
        A(f'v_xor_b32 v{144+T}, {T*32}, v5')
    A('s_waitcnt lgkmcnt(0)')
    A('v_readfirstlane_b32 s24, v7')
    A('v_and_b32 v86, 3, v1')
    A('v_mul_u32_u24 v87, 528, v86')
    A('v_lshl_add_u32 v87, v2, 4, v87')
    A('v_add_u32 v6, s20, v87')
    A('s_lshl_b32 s11, s3, 2')
    A(f's_add_u32 s11, s11, {L_ML}')
    A('v_lshlrev_b32 v86, 5, v86')
    A('v_add_u32 v7, s11, v86')
    P(8)
    A.c('PV')
    A('s_waitcnt vmcnt(6)')
    P(9)
    for T in range(8):
        A(f'ds_read_b64_tr_b16 v[{80+4*T}:{81+4*T}], v{144+T}')
        A(f'ds_read_b64_tr_b16 v[{82+4*T}:{83+4*T}], v{144+T} offset:4096')
    for T in range(8):
        A(f's_waitcnt lgkmcnt({14-2*T})')
        A(f'v_mfma_f32_16x16x32_bf16 {vr(112+4*T)}, {vr(80+4*T)}, v[152:155], 0')
    A('s_mov_b32 exec_lo, 0x000f000f')
    A('s_mov_b32 exec_hi, 0x000f000f')
    A('ds_write_b32 v7, v156')
    A('ds_write_b32 v7, v158 offset:16')
    A.nop(1)
    for T in range(8):
        A(f'ds_write_b128 v6, {vr(112+4*T)} offset:{64*T}')
    A('s_mov_b64 exec, -1')
    A('s_waitcnt lgkmcnt(0)')
    A('s_barrier')
    P(10)
    A('s_cmp_eq_u32 s3, 3')
    A('s_cbranch_scc1 L_gupub')
    A.c('o partial publish (waves 0..2)')
    A('v_lshrrev_b32 v86, 5, v0')
    A('v_and_b32 v87, 3, v1')
    A('s_cmp_eq_u32 s3, 2')
    A('s_cselect_b64 vcc, -1, 0')
    A('v_cndmask_b32 v86, v86, v87, vcc')
    A('v_lshlrev_b32 v87, 5, v86')
    A(f'v_add_u32 v87, {L_ML}, v87')
    A('ds_read_b128 v[80:83], v87')
    A('ds_read_b128 v[84:87], v87 offset:16') if False else None
    A('ds_read_b128 v[88:91], v87 offset:16')
    A('v_mul_u32_u24 v87, 528, v86')
    A('v_and_b32 v92, 31, v0')
    A('v_lshl_add_u32 v87, v92, 4, v87')
    for w in range(4):
        A(f'ds_read_b128 {vr(96+4*w)}, v87 offset:{8192*w}')
    A('v_lshrrev_b32 v93, 2, v92')
    A('v_lshl_add_u32 v93, v86, 3, v93')
    A('v_lshlrev_b32 v93, 11, v93')
    A('v_and_b32 v92, 3, v92')
    A('v_lshl_add_u32 v93, v92, 4, v93')
    A('s_lshl_b32 s11, s4, 16')
    A('s_lshl_b32 s12, s5, 6')
    A('s_add_u32 s11, s11, s12')
    A(f's_add_u32 s11, s11, {OIO}')
    A('v_add_u32 v93, s11, v93')
    A('s_lshl_b32 s11, s4, 11')
    A('s_lshl_b32 s12, s5, 4')
    A('s_add_u32 s11, s11, s12')
    A(f's_add_u32 s11, s11, {MLO}')
    A('v_lshl_add_u32 v94, v86, 9, s11')
    A('v_cndmask_b32 v93, v93, v94, vcc')
    A('s_waitcnt lgkmcnt(4)')
    A('v_max3_f32 v94, v80, v81, v82')
    A('v_max_f32 v94, v94, v83')
    for w in range(4):
        A(f'v_sub_f32 v{80+w}, v{80+w}, v94')
    for w in range(4):
        A(f'v_mul_f32 v{80+w}, s{sLOG2E}, v{80+w}')
    for w in range(4):
        A(f'v_exp_f32 v{80+w}, v{80+w}')
    A.nop(1)
    A('v_mul_f32 v95, v80, v88')
    for w in range(1, 4):
        A(f'v_fmac_f32 v95, v{80+w}, v{88+w}')
    A('s_waitcnt lgkmcnt(0)')
    for k in range(4):
        A(f'v_mul_f32 v{84+k}, v80, v{96+k}')
    for w in range(1, 4):
        for k in range(4):
            A(f'v_fmac_f32 v{84+k}, v{80+w}, v{96+4*w+k}')
    A('v_cndmask_b32 v84, v84, v94, vcc')
    A('v_cndmask_b32 v85, v85, v95, vcc')
    tag_insert(A, 84)
    A('s_cmp_eq_u32 s3, 2')
    A('s_cselect_b32 exec_lo, 15, -1')
    A('s_cselect_b32 exec_hi, 0, -1')
    A('s_cmp_eq_u32 s24, 1')
    A('s_cbranch_scc0 L_opub_slow')
    A(f'buffer_store_dwordx4 v[84:87], v93, {srd(SWS)}, 0 offen')
    A('s_branch L_pub2_done')
    A.label('L_opub_slow')
    A(f'buffer_store_dwordx4 v[84:87], v93, {srd(SWS)}, 0 offen sc1')
    A('s_branch L_pub2_done')
    A.label('L_gupub')
    A.c('gate/up partial publish (wave 3): lanes 0..15 gate, 16..31 up')
    A('v_lshlrev_b32 v86, 4, v3')
    A('v_and_b32 v87, 1, v2')
    A('v_lshl_add_u32 v87, v87, 11, v86')
    A(f'v_add_u32 v87, {L_PART + 2048}, v87')
    for k in range(8):
        A(f'ds_read_b128 {vr(112+4*k)}, v87 offset:{256*k}')
    A('s_lshl_b32 s12, s4, 2')
    A(f's_add_u32 s12, s12, s{sRB}')
    A('s_lshl_b32 s12, s12, 3')
    A(f's_add_u32 s12, s12, s{sCB}')
    A('s_lshl_b32 s12, s12, 9')
    A(f's_add_u32 s12, s12, {GUO}')
    A('v_and_b32 v87, 1, v2')
    A('v_lshl_add_u32 v86, v87, 8, v86')
    A('v_add_u32 v86, s12, v86')
    A('s_waitcnt lgkmcnt(0)')
    for k in range(4):
        A(f'v_add_f32 v{112+k}, v{112+k}, v{116+k}')
        A(f'v_add_f32 v{120+k}, v{120+k}, v{124+k}')
        A(f'v_add_f32 v{128+k}, v{128+k}, v{132+k}')
        A(f'v_add_f32 v{136+k}, v{136+k}, v{140+k}')
    for k in range(4):
        A(f'v_add_f32 v{112+k}, v{112+k}, v{120+k}')
        A(f'v_add_f32 v{128+k}, v{128+k}, v{136+k}')
    for k in range(4):
        A(f'v_add_f32 v{112+k}, v{112+k}, v{128+k}')
    tag_insert(A, 112)
    A('s_mov_b32 exec_hi, 0')
    A('s_cmp_eq_u32 s24, 1')
    A('s_cbranch_scc0 L_gupub_slow')
    A(f'buffer_store_dwordx4 v[112:115], v86, {srd(SWS)}, 0 offen')
    A('s_branch L_pub2_done')
    A.label('L_gupub_slow')
    A(f'buffer_store_dwordx4 v[112:115], v86, {srd(SWS)}, 0 offen sc1')
    A.label('L_pub2_done')
    A('s_mov_b64 exec, -1')
    if cfg.b3b:
        A('s_barrier')
    P(11)
    A('v_lshlrev_b32 v6, 1, v2')
    A(f'v_add_u32 v7, {L_HB}, v6')
    A(f'v_add_u32 v6, {L_OB}, v6')
    A('v_lshrrev_b32 v86, 2, v3')
    A('v_lshl_add_u32 v86, v2, 2, v86')
    A('s_lshl_b32 s11, s3, 3')
    A('v_add_u32 v86, s11, v86')
    A('v_lshlrev_b32 v86, 14, v86')
    A('v_and_b32 v87, 3, v3')
    A('v_lshl_add_u32 v86, v87, 4, v86')
    A('s_lshl_b32 s11, s2, 6')
    A(f's_add_u32 s11, s11, {FIN}')
    A('v_add_u32 v5, s11, v86')
    A('s_barrier')
    P(12)
    A.c('output projection')
    for i in range(2):
        A(f'ds_read_u16 v{84+i}, v7 offset:{8*i}')
    for i in range(4):
        A(f'ds_read_u16 v{80+i}, v6 offset:{8*i}')
    for i in range(2):
        A(f's_waitcnt lgkmcnt({5-i})')
        build_sel(A, 64+4*i, 84+i, 86)
    for i in range(4):
        A(f's_waitcnt lgkmcnt({3-i})')
        build_sel(A, 48+4*i, 80+i, 86)
    A('s_waitcnt vmcnt(1)')
    for i in range(4):
        A(f'v_mfma_f32_16x16x32_bf16 v[72:75], {vr(48+4*i)}, {vr(24+4*i)}, {"0" if i == 0 else "v[72:75]"}')
    for i in range(2):
        A(f'v_mfma_f32_16x16x32_bf16 v[72:75], {vr(64+4*i)}, {vr(40+4*i)}, v[72:75]')
    A('s_mov_b32 exec_hi, 0')
    A.nop(7)
    tag_insert(A, 72)
    A(f'buffer_store_dwordx4 v[72:75], v5, {srd(SWS)}, 0 offen sc1')
    A('s_mov_b64 exec, -1')
    P(13)
    P.flush(); P.reset()
    A('s_cmp_ge_u32 s2, 32')
    A('s_cbranch_scc1 L_done')
    A.c('final reduce')
    A('s_lshr_b32 s11, s2, 3')
    A('s_lshl_b32 s11, s11, 7')
    A('s_and_b32 s12, s2, 3')
    A('s_lshl_b32 s12, s12, 5')
    A('s_add_u32 s11, s11, s12')
    A('s_bfe_u32 s12, s2, 0x10002')
    A('s_lshl_b32 s12, s12, 2')
    A('s_add_u32 s11, s11, s12')
    A('v_lshrrev_b32 v100, 2, v3')
    A('v_lshlrev_b32 v100, 3, v100')
    A('v_and_b32 v101, 3, v3')
    A('v_add3_u32 v100, v100, v101, s11')
    A('v_lshlrev_b32 v100, 1, v100')
    A(f'buffer_load_ushort v101, v100, {srd(SX)}, 0 offen {cfg.xnt}')
    A('s_lshl_b32 s11, s2, 14')
    A(f's_add_u32 s11, s11, {FIN}')
    A('v_lshlrev_b32 v6, 4, v0')
    A('v_add_u32 v6, s11, v6')
    A(f's_mov_b32 s{sIT}, 0')
    A('s_mov_b32 s12, 4096')
    A('s_mov_b32 s13, 8192')
    A('s_mov_b32 s14, 12288')
    A.label('L_fgat')
    A(f'buffer_load_dwordx4 v[80:83], v6, {srd(SWS)}, 0 offen {cfg.gat}')
    A(f'buffer_load_dwordx4 v[84:87], v6, {srd(SWS)}, s12 offen {cfg.gat}')
    A(f'buffer_load_dwordx4 v[88:91], v6, {srd(SWS)}, s13 offen {cfg.gat}')
    A(f'buffer_load_dwordx4 v[92:95], v6, {srd(SWS)}, s14 offen {cfg.gat}')
    A('s_waitcnt vmcnt(0)')
    for q in range(4):
        tag_check(A, 80+4*q, 96, 97, q == 0)
    poll_tail(A, cfg, 'L_fgat', 'L_fok')
    A.label('L_fok')
    if cfg.prof in (True, 'heavy'):
        A(f'v_writelane_b32 v{vPROF}, s{sIT}, 22')
    P(14)
    P.flush(); P.reset()
    mask_vals(A, 80, 16)
    for k in range(4):
        A(f'v_add_f32 v{80+k}, v{80+k}, v{84+k}')
        A(f'v_add_f32 v{88+k}, v{88+k}, v{92+k}')
    for k in range(4):
        A(f'v_add_f32 v{80+k}, v{80+k}, v{88+k}')
    transpose_reduce4(A, 80)
    rowred(A, [80], 'v_add_f32', ['row_ror:8', 'row_ror:4'])
    A('v_and_b32 v86, 1, v2')
    A('v_lshlrev_b32 v86, 1, v86')
    A('v_lshrrev_b32 v87, 1, v2')
    A('v_or_b32 v86, v86, v87')
    A('v_and_b32 v87, 3, v1')
    A('v_lshl_add_u32 v86, v87, 2, v86')
    A('v_lshlrev_b32 v86, 4, v86')
    A('s_lshl_b32 s11, s3, 2')
    A(f's_add_u32 s11, s11, {L_FINR}')
    A('v_add_u32 v86, s11, v86')
    A('s_mov_b32 exec_lo, 0x000f000f')
    A('s_mov_b32 exec_hi, 0x000f000f')
    A('ds_write_b32 v86, v80')
    A('s_mov_b64 exec, -1')
    A('s_waitcnt lgkmcnt(0)')
    A('s_barrier')
    A('s_cmp_lg_u32 s3, 0')
    A('s_cbranch_scc1 L_done')
    A('v_lshlrev_b32 v86, 4, v3')
    A(f'v_add_u32 v86, {L_FINR}, v86')
    A('ds_read_b128 v[80:83], v86')
    A('v_lshlrev_b32 v101, 16, v101')
    A('s_waitcnt lgkmcnt(0)')
    A('v_add_f32 v80, v80, v81')
    A('v_add_f32 v82, v82, v83')
    A('v_add_f32 v80, v80, v82')
    A('v_add_f32 v80, v80, v101')
    A('v_cvt_pk_bf16_f32 v80, v80, v80')
    A('s_mov_b64 exec, 0xffff')
    A(f'buffer_store_short v80, v100, {srd(SOUT)}, 0 offen')
    A('s_cmp_lg_u32 s2, 0')
    A('s_cbranch_scc1 L_noepoch')
    A('s_mov_b64 exec, 1')
    A(f'v_mov_b32 v81, {EOFF}')
    A(f'v_mov_b32 v82, s{sTAG}')
    A(f'buffer_store_dword v82, v81, {srd(SWS)}, 0 offen sc1')
    A.label('L_noepoch')
    A('s_mov_b64 exec, -1')
    A('s_branch L_done')
    A.label('L_comm')
    P.reset(prev=0, k=0)
    P(1)
    A(f's_lshl_b32 s{sT}, s{sRB}, 3')
    A(f's_add_u32 s{sT}, s{sT}, s4')
    A('v_lshrrev_b32 v2, 4, v1')
    A('v_and_b32 v3, 15, v1')
    common_consts(A)
    A(f'v_mov_b32 v4, {EOFF}')
    if cfg.exp_dirty:
        A('s_cmp_eq_u32 s3, 4')
        A('s_cbranch_scc0 L_nodirty')
        A('s_waitcnt lgkmcnt(0)')
        A(f's_mov_b32 s{SWS+2}, 0x2000000')
        A(f's_mul_i32 s11, s2, {cfg.exp_dirty*1024}')
        A('s_add_u32 s11, s11, 0x400000')
        A('v_lshlrev_b32 v20, 4, v1')
        for i in range(cfg.exp_dirty):
            A(f'buffer_store_dwordx4 v[16:19], v20, {srd(SWS)}, s11 offen')
            A('s_add_u32 s11, s11, 1024')
        A.label('L_nodirty')
    if cfg.pretouch:
        A('s_cmp_eq_u32 s3, 4')
        A('s_cbranch_scc0 L_nopre')
        A('s_waitcnt lgkmcnt(0)')
        A('s_lshl_b32 s11, s4, 5')
        A('s_add_u32 s11, s11, s5')
        A('s_lshl_b32 s12, s11, 11')
        A(f's_add_u32 s12, s12, {OIO}')
        A('v_lshl_add_u32 v10, v1, 7, s12')
        A('s_lshl_b32 s12, s11, 9')
        A(f's_add_u32 s12, s12, {GUO - 16*128}')
        A('v_lshl_add_u32 v11, v1, 7, s12')
        A('v_cmp_le_u32 vcc, 16, v1')
        A('s_lshl_b32 s12, s11, 8')
        A(f's_add_u32 s12, s12, {QA - 20*128}')
        A('v_cndmask_b32 v10, v10, v11, vcc')
        A('v_lshl_add_u32 v11, v1, 7, s12')
        A('v_cmp_le_u32 vcc, 20, v1')
        A('s_lshl_b32 s12, s4, 9')
        A('s_and_b32 s13, s5, 3')
        A('s_lshl_b32 s13, s13, 7')
        A('s_add_u32 s12, s12, s13')
        A(f's_add_u32 s12, s12, {IDA}')
        A('v_cndmask_b32 v10, v10, v11, vcc')
        A('v_mov_b32 v11, s12')
        A('v_cmp_le_u32 vcc, 22, v1')
        A('s_lshl_b32 s12, s4, 11')
        A('s_and_b32 s13, s5, 15')
        A('s_lshl_b32 s13, s13, 7')
        A('s_add_u32 s12, s12, s13')
        A(f's_add_u32 s12, s12, {MLO}')
        A('v_cndmask_b32 v10, v10, v11, vcc')
        A('v_mov_b32 v11, s12')
        A('v_cmp_le_u32 vcc, 23, v1')
        A.nop(2)
        A('v_cndmask_b32 v10, v10, v11, vcc')
        A('s_mov_b64 exec, 0xffffff')
        A(f'buffer_load_dword v12, v10, {srd(SWS)}, 0 offen nt')
        A('s_mov_b64 exec, -1')
        A.label('L_nopre')
    if cfg.finpre:
        A('s_cmp_eq_u32 s3, 5')
        A('s_cbranch_scc0 L_nofinpre')
        A('s_cmp_lt_u32 s2, 32')
        A('s_cbranch_scc0 L_nofinpre')
        A('s_waitcnt lgkmcnt(0)')
        A('s_lshl_b32 s11, s2, 14')
        A(f's_add_u32 s11, s11, {FIN}')
        A('v_lshl_add_u32 v10, v1, 7, s11')
        A('s_mov_b32 s12, 8192')
        A(f'buffer_load_dword v12, v10, {srd(SWS)}, 0 offen nt')
        A(f'buffer_load_dword v13, v10, {srd(SWS)}, s12 offen nt')
        A.label('L_nofinpre')
    A('s_lshl_b32 s11, s4, 13')
    A('s_sub_u32 s12, s3, 4')
    A('s_lshl_b32 s12, s12, 10')
    A('s_add_u32 s11, s11, s12')
    A(f's_add_u32 s11, s11, {QA}')
    A('v_lshlrev_b32 v6, 4, v1')
    A('v_add_u32 v6, s11, v6')
    A('s_lshl_b32 s11, s4, 9')
    A(f's_add_u32 s11, s11, {IDA}')
    A('v_and_b32 v7, 31, v1')
    A('v_lshl_add_u32 v7, v7, 4, s11')
    A('s_sub_u32 s12, s3, 4')
    A('s_lshl_b32 s12, s12, 1')
    A('v_lshrrev_b32 v8, 5, v1')
    A('v_add_u32 v8, s12, v8')
    A('v_mul_u32_u24 v8, 272, v8')
    A('v_and_b32 v9, 31, v1')
    A('v_lshl_add_u32 v8, v9, 3, v8')
    A(f'v_add_u32 v8, {L_QB}, v8')
    P(3)
    A('s_barrier')
    P(4)
    if cfg.b1b:
        A('s_barrier')
    P(5)
    A('s_waitcnt lgkmcnt(0)')
    A(f'buffer_load_dword v5, v4, {srd(SWS)}, 0 offen {cfg.xnt}')
    A(f's_mov_b32 s{sIT}, 0')
    A('s_mov_b32 s14, 0')
    def q_issue():
        A('s_add_u32 s15, s14, 4096')
        A(f'buffer_load_dwordx4 v[16:19], v6, {srd(SWS)}, s14 offen {cfg.gat}')
        A(f'buffer_load_dwordx4 v[20:23], v6, {srd(SWS)}, s14 offen offset:2048 {cfg.gat}')
        A(f'buffer_load_dwordx4 v[24:27], v6, {srd(SWS)}, s15 offen {cfg.gat}')
        A(f'buffer_load_dwordx4 v[28:31], v6, {srd(SWS)}, s15 offen offset:2048 {cfg.gat}')
        A(f'buffer_load_dwordx4 v[32:35], v7, {srd(SWS)}, s14 offen {cfg.gat}')
    def q_check():
        for q in range(5):
            tag_check(A, 16+4*q, 36, 37, q == 0)
    if cfg.b1c:
        q_issue()
        A('s_waitcnt vmcnt(0)')
        A('v_add_u32 v9, 0x01010101, v5')
        A.nop(1)
        A('v_readfirstlane_b32 s6, v9')
        q_check()
        A('s_cmp_eq_u64 s[88:89], 0')
        A('s_cbranch_scc1 L_qfirst_ok')
        q_issue()
        A('s_barrier')
        A(f's_mov_b32 s{sIT}, 1')
        A('s_branch L_qwait')
        A.label('L_qfirst_ok')
        A('s_barrier')
        A('s_branch L_qok')
        A.label('L_qgat')
        q_issue()
        A.label('L_qwait')
        A('s_waitcnt vmcnt(0)')
        q_check()
        poll_tail(A, cfg, 'L_qgat', 'L_qok', switch=14)
    else:
        A.label('L_qgat')
        q_issue()
        A('s_waitcnt vmcnt(0)')
        A('v_add_u32 v9, 0x01010101, v5')
        A.nop(1)
        A('v_readfirstlane_b32 s6, v9')
        q_check()
        poll_tail(A, cfg, 'L_qgat', 'L_qok', switch=14)
    A.label('L_qok')
    if cfg.prof in (True, 'heavy'):
        A(f'v_writelane_b32 v{vPROF}, s{sIT}, 20')
    P(6)
    mask_vals(A, 16, 16)
    for k in range(4):
        A(f'v_add_f32 v{16+k}, v{16+k}, v{20+k}')
        A(f'v_add_f32 v{24+k}, v{24+k}, v{28+k}')
    for k in range(4):
        A(f'v_add_f32 v{16+k}, v{16+k}, v{24+k}')
    A('v_cvt_pk_bf16_f32 v16, v16, v17')
    A('v_cvt_pk_bf16_f32 v17, v18, v19')
    A('ds_write_b64 v8, v[16:17]')
    A('s_getreg_b32 s13, hwreg(HW_REG_XCC_ID, 0, 4)')
    A('v_bfe_u32 v32, v32, 8, 8')
    A('v_cmp_ne_u32 vcc, s13, v32')
    A('s_cmp_eq_u64 vcc, 0')
    A('s_cselect_b32 s13, 1, 0')
    if cfg.forceslow:
        A('s_mov_b32 s13, 0')
    A('v_mov_b32 v33, s13')
    A(f'v_mov_b32 v34, {L_MODE}')
    A('s_cmp_eq_u32 s3, 5')
    A('s_cbranch_scc0 L_nomode')
    A('ds_write_b32 v34, v33')
    A.label('L_nomode')
    A('s_waitcnt lgkmcnt(0)')
    A('s_barrier')
    P(7)
    P.flush(); P.reset()
    A('s_cmp_eq_u32 s3, 5')
    A('s_cbranch_scc1 L_comm5')
    A('s_lshl_b32 s11, s4, 5')
    A('s_add_u32 s11, s11, s5')
    A('s_lshl_b32 s11, s11, 11')
    A(f's_add_u32 s11, s11, {OIO}')
    A('v_lshlrev_b32 v6, 4, v1')
    A('v_add_u32 v6, s11, v6')
    A('s_lshl_b32 s11, s4, 2')
    A('s_lshr_b32 s12, s5, 3')
    A('s_add_u32 s11, s11, s12')
    A('s_lshl_b32 s11, s11, 9')
    A(f's_add_u32 s11, s11, {MLO}')
    A('v_lshrrev_b32 v7, 2, v1')
    A('v_lshl_add_u32 v7, v7, 4, s11')
    A('v_and_b32 v8, 1, v2')
    A('v_lshlrev_b32 v8, 1, v8')
    A('v_lshrrev_b32 v9, 1, v2')
    A('v_or_b32 v8, v8, v9')
    A('v_and_b32 v9, 3, v1')
    A('v_lshl_add_u32 v8, v9, 2, v8')
    A('v_lshlrev_b32 v8, 1, v8')
    A(f'v_add_u32 v8, {L_OB}, v8')
    A('s_barrier')
    P(10)
    if cfg.b3b:
        A('s_barrier')
    P(11)
    A(f's_mov_b32 s{sIT}, 0')
    A.label('L_ogat')
    A(f'buffer_load_dwordx4 v[16:19], v6, {srd(SWS)}, 0 offen {cfg.gat}')
    A(f'buffer_load_dwordx4 v[20:23], v6, {srd(SWS)}, 0 offen offset:1024 {cfg.gat}')
    A(f'buffer_load_dwordx4 v[24:27], v7, {srd(SWS)}, 0 offen {cfg.gat}')
    A(f'buffer_load_dwordx4 v[28:31], v7, {srd(SWS)}, 0 offen offset:256 {cfg.gat}')
    A('s_waitcnt vmcnt(0)')
    for q in range(4):
        tag_check(A, 16+4*q, 36, 37, q == 0)
    poll_tail(A, cfg, 'L_ogat', 'L_ook')
    A.label('L_ook')
    if cfg.prof in (True, 'heavy'):
        A(f'v_writelane_b32 v{vPROF}, s{sIT}, 21')
    P(13)
    P.flush(); P.reset()
    mask_vals(A, 16, 8)
    mask_vals(A, 24, 2)
    mask_vals(A, 28, 2)
    A('v_max_f32 v32, v24, v28')
    rowred(A, [32], 'v_max_f32', ['row_ror:8', 'row_ror:4'])
    cross_rows(A, 32, 33, 'v_max_f32')
    A('v_sub_f32 v24, v24, v32')
    A('v_sub_f32 v28, v28, v32')
    A(f'v_mul_f32 v24, s{sLOG2E}, v24')
    A(f'v_mul_f32 v28, s{sLOG2E}, v28')
    A('v_exp_f32 v24, v24')
    A('v_exp_f32 v28, v28')
    A.nop(1)
    A('v_mul_f32 v34, v24, v25')
    A('v_fmac_f32 v34, v28, v29')
    for k in range(4):
        A(f'v_mul_f32 v{16+k}, v24, v{16+k}')
    for k in range(4):
        A(f'v_fmac_f32 v{16+k}, v28, v{20+k}')
    transpose_reduce4(A, 16)
    for st in ('row_ror:8', 'row_ror:4'):
        A.nop(1)
        A(f'v_add_f32_dpp v34, v34, v34 {st} row_mask:0xf bank_mask:0xf')
        A(f'v_add_f32_dpp v16, v16, v16 {st} row_mask:0xf bank_mask:0xf')
    cross_rows(A, 34, 33, 'v_add_f32')
    A('v_rcp_f32 v34, v34')
    A.nop(1)
    A('v_mul_f32 v16, v16, v34')
    A('v_cvt_pk_bf16_f32 v16, v16, v16')
    A('s_mov_b32 exec_lo, 0x000f000f')
    A('s_mov_b32 exec_hi, 0x000f000f')
    A('ds_write_b16 v8, v16')
    A('s_mov_b64 exec, -1')
    A('s_waitcnt lgkmcnt(0)')
    A('s_branch L_comm_b4')
    A.label('L_comm5')
    P.reset()
    A('s_lshl_b32 s11, s4, 2')
    A(f's_add_u32 s11, s11, s{sRB}')
    A('s_lshl_b32 s11, s11, 12')
    A(f's_lshl_b32 s12, s{sCB}, 5')
    A('s_add_u32 s11, s11, s12')
    A(f's_add_u32 s11, s11, {GUO}')
    A('v_bfe_u32 v6, v1, 2, 3')
    A('v_lshlrev_b32 v6, 9, v6')
    A('v_bfe_u32 v7, v1, 1, 1')
    A('v_lshl_add_u32 v6, v7, 8, v6')
    A('v_and_b32 v7, 1, v1')
    A('v_lshl_add_u32 v6, v7, 4, v6')
    A('v_add_u32 v6, s11, v6')
    A('v_lshlrev_b32 v8, 3, v1')
    A(f'v_add_u32 v8, {L_HB}, v8')
    A('s_barrier')
    if cfg.b3b:
        A('s_barrier')
    A(f's_mov_b32 s{sIT}, 0')
    A.label('L_ggat')
    A(f'buffer_load_dwordx4 v[16:19], v6, {srd(SWS)}, 0 offen {cfg.gat}')
    A('s_waitcnt vmcnt(0)')
    tag_check(A, 16, 36, 37, True)
    poll_tail(A, cfg, 'L_ggat', 'L_gok')
    A.label('L_gok')
    if cfg.prof in (True, 'heavy'):
        A(f'v_writelane_b32 v{vPROF}, s{sIT}, 21')
    P(13)
    P.flush(); P.reset()
    mask_vals(A, 16)
    for st in ('row_ror:8', 'row_ror:4'):
        for k in range(4):
            A(f'v_add_f32_dpp v{16+k}, v{16+k}, v{16+k} {st} row_mask:0xf bank_mask:0xf')
    for k in range(4):
        A(f'v_mov_b32 v{20+k}, v{16+k}')
    for k in range(4):
        A(f'v_permlane16_swap_b32 v{20+k}, v{16+k}')
    for k in range(4):
        A(f'v_add_f32 v{16+k}, v{20+k}, v{16+k}')
    A('v_cvt_pk_bf16_f32 v20, v16, v17')
    A('v_cvt_pk_bf16_f32 v21, v18, v19')
    A('v_lshlrev_b32 v16, 16, v20')
    A('v_and_b32 v17, 0xffff0000, v20')
    A('v_lshlrev_b32 v18, 16, v21')
    A('v_and_b32 v19, 0xffff0000, v21')
    for k in range(4):
        A(f'v_mul_f32_dpp v{20+k}, v{16+k}, v{16+k} quad_perm:[2,3,0,1] row_mask:0xf bank_mask:0xf')
    A('v_cvt_pk_bf16_f32 v16, v20, v21')
    A('v_cvt_pk_bf16_f32 v17, v22, v23')
    A('s_mov_b64 exec, 3')
    A('ds_write_b64 v8, v[16:17]')
    A('s_mov_b64 exec, -1')
    A('s_waitcnt lgkmcnt(0)')
    A.label('L_comm_b4')
    A('s_barrier')
    A('s_cmp_ge_u32 s2, 32')
    A('s_cbranch_scc1 L_done')
    A('s_barrier')
    A.label('L_done')
    if cfg.exp_hwid:
        A('s_getreg_b32 s11, hwreg(HW_REG_HW_ID)')
        A(f'v_writelane_b32 v{vPROF}, s11, 31')
    if cfg.prof == 'lite':
        A('s_memrealtime s[30:31]')
        A('s_waitcnt lgkmcnt(0)')
        A(f'v_writelane_b32 v{vPROF}, s28, 0')
        A(f'v_writelane_b32 v{vPROF}, s30, 15')
    elif cfg.prof:
        P(15)
        P.flush()
    if cfg.prof:
        A('s_mul_i32 s11, s2, 6')
        A('s_add_u32 s11, s11, s3')
        A('s_lshl_b32 s11, s11, 7')
        A(f's_add_u32 s11, s11, {PROF}')
        A('v_lshl_add_u32 v86, v1, 2, s11')
        A('s_mov_b32 exec_hi, 0')
        A(f'buffer_store_dword v{vPROF}, v86, {srd(SWS)}, 0 offen')
        A('s_mov_b64 exec, -1')
    A.label('L_end')
    A('s_endpgm')
    A('.section .rodata,"a"')
    A('.p2align 6')
    A(f'.amdhsa_kernel {NAME}')
    A('  .amdhsa_next_free_vgpr 168')
    A('  .amdhsa_next_free_sgpr 102')
    A('  .amdhsa_accum_offset 168')
    A('  .amdhsa_group_segment_fixed_size 0')
    A('  .amdhsa_kernarg_size 96')
    A('  .amdhsa_user_sgpr_count 2')
    A('  .amdhsa_user_sgpr_kernarg_segment_ptr 1')
    A('  .amdhsa_system_sgpr_workgroup_id_x 1')
    A('  .amdhsa_float_denorm_mode_32 3')
    A('.end_amdhsa_kernel')
    return A.text()

HEADER = open('parallel_sum__sliding_block_cached__glu_gated_bilinear__decode.s.ref').read().split('; Override launch')[0]

def full(cfg):
    body = gen(cfg)
    probs = check(body)
    for p in probs:
        if 'wide store WAR' in p and 'v_lshlrev_b32 v86, 4, v3' in p:
            continue
        print('HAZARD', p)
    return HEADER + f'; @launch grid=(256,1,1) block=(384,1,1) lds={LDS_BYTES}\n' + body

if __name__ == '__main__':
    cfg = Cfg()
    for a in sys.argv[2:]:
        k, v = a.split('=')
        old = getattr(cfg, k, None)
        setattr(cfg, k, v if ((isinstance(old, str) or v in ('lite', 'heavy')) and v not in ('False', 'True')) else eval(v))
    open(sys.argv[1], 'w').write(full(cfg))
```

```python
import sys
from asmlib import Asm, check

NAME = 'parallel_sum__sliding_block_cached__glu_gated_bilinear__decode_kernel'

EOFF  = 0
QA    = 0x1000
IDA   = 0x11000
BDELTA = 0x11000
GUO   = 0x23000
MLO   = 0x43000
OIO   = 0x48000
FIN   = 0xC8000
PROF  = 0x180000
WS_BYTES = 0x200000

L_K = 0
L_V = 32768
L_XN = 65536
L_PART = 66560
L_QB = 72704
L_HB = 73792
L_MODE = 73808
L_ML = 73824
L_OB = 73952
L_FINR = 73984
LDS_BYTES = 74240

sW, sG, sS, sTAG = 3, 4, 5, 6
SX, SK, SV, SWQ, SWO, SGA, SUP, SDN, SOUT, SWS = 40, 44, 48, 52, 56, 60, 64, 68, 72, 76
M0, M1, M2, M3 = 80, 82, 84, 86
sX0, sX1 = 90, 91
sIT = 92
sLOG2E, sSCALE = 93, 94
sMSK = 95
sP01, sP23 = 96, 97
sI0, sI1, sI2, sI3 = 98, 99, 100, 101
sRB, sT, sCB = 7, 8, 10
vTAG, vSH = 167, 166
vPROF = 165
def srd(n): return f's[{n}:{n+3}]'
def vr(n, k=4): return f'v[{n}:{n+k-1}]'

class Cfg:
    nt = 'nt'
    gat = 'sc1'
    nk1 = 8
    b1a = True
    win = None
    win2 = None
    exp_dirty = 0
    b1c = False
    nv2 = 4
    kwait = 4
    exp_cb = 0
    exp_hwid = False
    swap = True
    wo_early = -1
    b0 = 0
    prio = 3
    align = 12
    xnt = ''
    finpre = 0
    finpre_fl = 'nt'
    codepf_n = 4
    nv1 = 0
    b1b = True
    b3b = True
    maxit = 20000
    swit = 24
    prof = False
    dbgprof = None
    pretouch = 0
    pre_fl = 'nt'
    codepf = 's'
    forceslow = False
    forceb = False

ROW_FULL = ['quad_perm:[1,0,3,2]', 'quad_perm:[2,3,0,1]', 'row_half_mirror', 'row_mirror']

def rowred(A, regs, op, steps):
    for st in steps:
        A.nop(2 if len(regs) < 3 else max(0, 2 - (len(regs) - 1)))
        for v in regs:
            A(f'{op}_dpp v{v}, v{v}, v{v} {st} row_mask:0xf bank_mask:0xf')
        if len(regs) >= 3:
            pass

def cross_rows(A, v, tmp, op):
    A(f'v_mov_b32 v{tmp}, v{v}')
    A.nop(2)
    A(f'v_permlane16_swap_b32 v{tmp}, v{v}')
    A.nop(1)
    A(f'{op} v{v}, v{tmp}, v{v}')
    A(f'v_mov_b32 v{tmp}, v{v}')
    A.nop(2)
    A(f'v_permlane32_swap_b32 v{tmp}, v{v}')
    A.nop(1)
    A(f'{op} v{v}, v{tmp}, v{v}')

def wave_allreduce(A, v, tmp, op):
    rowred(A, [v], op, ROW_FULL)
    cross_rows(A, v, tmp, op)

def transpose_reduce4(A, v):
    A.nop(1)
    A(f'v_permlane32_swap_b32 v{v}, v{v+1}')
    A(f'v_permlane32_swap_b32 v{v+2}, v{v+3}')
    A.nop(1)
    A(f'v_add_f32 v{v}, v{v}, v{v+1}')
    A(f'v_add_f32 v{v+2}, v{v+2}, v{v+3}')
    A.nop(2)
    A(f'v_permlane16_swap_b32 v{v}, v{v+2}')
    A.nop(1)
    A(f'v_add_f32 v{v}, v{v}, v{v+2}')

def tag_insert(A, v):
    for k, s in enumerate((sI0, sI1, sI2, sI3)):
        A(f'v_perm_b32 v{v+k}, v{v+k}, v{vTAG}, s{s}')

def tag_check(A, v, t0, t1, first):
    A(f'v_perm_b32 v{t0}, v{v+1}, v{v}, s{sP01}')
    A(f'v_perm_b32 v{t1}, v{v+3}, v{v+2}, s{sP23}')
    A(f'v_or_b32 v{t0}, v{t0}, v{t1}')
    if first:
        A(f'v_cmp_ne_u32 s[88:89], s{sTAG}, v{t0}')
    else:
        A(f'v_cmp_ne_u32 s[90:91], s{sTAG}, v{t0}')
        A('s_or_b64 s[88:89], s[88:89], s[90:91]')

def mask_vals(A, v, n=4):
    for k in range(n):
        A(f'v_and_b32 v{v+k}, s{sMSK}, v{v+k}')

def build_sel(A, dst, val, tmp):
    A(f'v_lshlrev_b32 v{tmp}, v{vSH}, v{val}')
    for j, m in enumerate((M0, M1, M2, M3)):
        A(f'v_cndmask_b32_e64 v{dst+j}, 0, v{tmp}, s[{m}:{m+1}]')

class Prof:
    def __init__(self, A, cfg):
        self.A, self.on, self.prev, self.k = A, cfg.prof, None, 0
        self.lite = cfg.prof == 'lite'
    def reset(self, prev=None, k=0):
        if self.lite:
            self.prev = None
            return
        self.prev, self.k = prev, k
    def __call__(self, idx):
        if not self.on: return
        if self.on == 'lite' and idx not in (0, 15): return
        if idx >= 23 and self.on != 'heavy': return
        A = self.A
        if self.on == 'heavy' and self.prev is not None:
            A('s_waitcnt lgkmcnt(0)')
        if self.prev is not None:
            A(f'v_writelane_b32 v{vPROF}, s{28 + 2*self.k}, {self.prev}')
            self.k ^= 1
        A(f's_memrealtime s[{28+2*self.k}:{29+2*self.k}]')
        self.prev = None if self.lite else idx
    def flush(self):
        if not self.on: return
        if self.prev is None: return
        A = self.A
        A('s_waitcnt lgkmcnt(0)')
        A(f'v_writelane_b32 v{vPROF}, s{28 + 2*self.k}, {self.prev}')

def common_consts(A):
    A(f's_mov_b32 s{sLOG2E}, 0x3fb8aa3b')
    A(f's_mov_b32 s{sSCALE}, 0x3db504f3')
    A(f's_mov_b32 s{sMSK}, 0xffffff00')
    A(f's_mov_b32 s{sP01}, 0x0c0c0400')
    A(f's_mov_b32 s{sP23}, 0x04000c0c')
    A(f's_mov_b32 s{sI0}, 0x07060500')
    A(f's_mov_b32 s{sI1}, 0x07060501')
    A(f's_mov_b32 s{sI2}, 0x07060502')
    A(f's_mov_b32 s{sI3}, 0x07060503')

def poll_tail(A, cfg, label, oklabel, switch=None):
    A('s_cmp_eq_u64 s[88:89], 0')
    A(f's_cbranch_scc1 {oklabel}')
    A(f's_add_u32 s{sIT}, s{sIT}, 1')
    if switch:
        A(f's_cmp_eq_u32 s{sIT}, {cfg.swit}')
        A(f's_cselect_b32 s{switch}, {BDELTA}, s{switch}')
    A(f's_cmp_le_u32 s{sIT}, {cfg.maxit}')
    A(f's_cbranch_scc1 {label}')

def gen(cfg):
    A = Asm()
    P = Prof(A, cfg)
    nt = cfg.nt
    A('.amdgcn_target "amdgcn-amd-amdhsa--gfx950"')
    A('.text')
    A(f'.globl {NAME}')
    A(f'.p2align {cfg.align}')
    A(f'.type {NAME},@function')
    A.label(NAME)
    A('s_cmp_ge_u32 s2, 256')
    A('s_cbranch_scc1 L_end')
    P(0)
    for sr, off in ((SWQ, 24), (SX, 0), (SWS, 88), (SK, 8)):
        A(f's_load_dwordx2 s[{sr}:{sr+1}], s[0:1], {off}')
    A('v_lshrrev_b32 v2, 6, v0')
    A('v_and_b32 v1, 63, v0')
    A('s_and_b32 s4, s2, 7')
    A('v_readfirstlane_b32 s3, v2')
    A('s_lshr_b32 s5, s2, 3')
    A(f's_lshr_b32 s{sRB}, s5, 3')
    A(f's_and_b32 s{sCB}, s5, 7')
    for sr, n in ((SWQ, 4194304), (SX, 1024), (SWS, WS_BYTES), (SK, 134217728)):
        A(f's_mov_b32 s{sr+2}, {n}')
        A(f's_mov_b32 s{sr+3}, 0x20000')
    A('s_cmp_ge_u32 s3, 4')
    A('s_cbranch_scc1 L_comm0')
    A(f's_lshl_b32 s16, s{sRB}, 20')
    A('s_lshl_b32 s11, s3, 18')
    A('s_add_u32 s16, s16, s11')
    A('s_lshl_b32 s11, s4, 10')
    A('s_add_u32 s16, s16, s11')
    if cfg.exp_cb:
        A(f's_add_u32 s11, s{sCB}, {cfg.exp_cb}')
        A('s_and_b32 s11, s11, 7')
        A('s_lshl_b32 s11, s11, 7')
    else:
        A(f's_lshl_b32 s11, s{sCB}, 7')
    A('s_add_u32 s16, s16, s11')
    A('v_lshlrev_b32 v163, 4, v1')
    A('v_lshrrev_b32 v164, 3, v1')
    A('v_and_b32 v4, 0x70, v163')
    A('v_lshl_add_u32 v6, v164, 13, v4')
    A(f'v_mov_b32 v7, {EOFF}')
    A('s_add_u32 s17, s16, 65536')
    A('s_add_u32 s18, s16, 131072')
    A('s_add_u32 s19, s16, 196608')
    A('s_waitcnt lgkmcnt(0)')
    P(27)
    A(f'buffer_load_dwordx4 v[8:11], v163, {srd(SX)}, 0 offen {cfg.xnt}')
    A(f'buffer_load_dword v{vTAG}, v7, {srd(SWS)}, 0 offen {cfg.xnt}')
    if cfg.b0 == 1:
        A('s_barrier')
    for i in range(4):
        A(f'buffer_load_dwordx4 {vr(12+4*i)}, v6, {srd(SWQ)}, s{16+i} offen {nt}')
    for sr, off in ((SV, 16), (SGA, 48), (SUP, 56), (SWO, 32), (SDN, 64), (SOUT, 72)):
        A(f's_load_dwordx2 s[{sr}:{sr+1}], s[0:1], {off}')
    A('v_lshrrev_b32 v2, 4, v1')
    A('v_and_b32 v3, 15, v1')
    for i in range(4):
        A(f'v_add_u32 v5, {4*i}, v2')
        A('v_xor_b32 v5, v5, v3')
        A('v_lshlrev_b32 v5, 4, v5')
        A(f'v_lshl_add_u32 v{156+i}, v2, 8, v5')
    A('s_lshl_b32 s19, s4, 24')
    A('s_lshl_b32 s11, s5, 15')
    A('s_add_u32 s19, s19, s11')
    A('s_lshl_b32 s11, s3, 13')
    A('s_add_u32 s19, s19, s11')
    A('s_add_u32 s19, s19, 15728640')
    A('s_lshl_b32 s20, s3, 13')
    if cfg.swap:
        A('s_and_b32 s25, s4, 1')
        A('s_lshl_b32 s25, s25, 12')
    else:
        A('s_mov_b32 s25, 0')
    A('s_xor_b32 s26, s25, 4096')
    A('s_add_u32 s27, s19, s26')
    A('s_add_u32 s19, s19, s25')
    A('s_add_u32 s25, s25, s20')
    A('s_add_u32 s26, s26, s20')
    A('s_mov_b32 m0, s25')
    if cfg.b0 == 2:
        A('s_barrier')
    A.nop(1)
    def kloads(lo, hi):
        for i in range(lo, hi):
            if i == 4:
                A('s_mov_b32 m0, s26')
                A.nop(1)
            A(f'buffer_load_dwordx4 v{156+(i&3)}, {srd(SK)}, s{19 if i < 4 else 27} offen offset:{1024*(i&3)} {nt} lds')
    kloads(0, cfg.nk1)
    A('v_mul_u32_u24 v162, 3584, v164')
    A('v_add_u32 v161, v162, v4')
    A(f's_lshl_b32 s{sT}, s{sRB}, 3')
    A(f's_add_u32 s{sT}, s{sT}, s4')
    A(f's_cmp_lt_u32 s{sT}, 28')
    A('s_cselect_b32 s9, 1835008, 0')
    for sr, n in ((SV, 134217728), (SWO, 4194304), (SOUT, 1024)):
        A(f's_mov_b32 s{sr+2}, {n}')
        A(f's_mov_b32 s{sr+3}, 0x20000')
    for sr in (SGA, SUP, SDN):
        A(f's_mov_b32 s{sr+2}, s9')
        A(f's_mov_b32 s{sr+3}, 0x20000')
    A('s_branch L_cmp_go')
    A.label('L_comm0')
    if cfg.codepf:
        A('s_cmp_eq_u32 s3, 5')
        A('s_cbranch_scc0 L_nocodepf')
        A('s_getpc_b64 s[12:13]')
        A.label('L_pc')
        A(f's_sub_u32 s12, s12, L_pc-{NAME}')
        A('s_subb_u32 s13, s13, 0')
        A('s_lshl_b32 s14, s5, 6')
        A('s_add_u32 s12, s12, s14')
        A('s_addc_u32 s13, s13, 0')
        for i in range(cfg.codepf_n):
            A(f's_load_dword s{32+(i&3)}, s[12:13], {2048*i}')
        A.label('L_nocodepf')
    if cfg.prio:
        A(f's_setprio {cfg.prio}')
    if cfg.b0:
        A('s_barrier')
    A('s_branch L_comm')
    A.label('L_cmp_go')
    for m, lo in ((M0, 0x03030303), (M1, 0x0c0c0c0c), (M2, 0x30303030), (M3, 0xc0c0c0c0)):
        A(f's_mov_b32 s{m}, {hex(lo)}')
        A(f's_mov_b32 s{m+1}, {hex(lo)}')
    common_consts(A)
    A(f'v_and_b32 v{vSH}, 1, v1')
    A(f'v_lshlrev_b32 v{vSH}, 4, v{vSH}')
    A(f's_lshl_b32 s17, s{sCB}, 6')
    A('s_lshl_b32 s11, s3, 4')
    A('s_add_u32 s17, s17, s11')
    A('s_mul_i32 s17, s17, 3584')
    A(f's_lshl_b32 s11, s{sT}, 7')
    A('s_add_u32 s17, s17, s11')
    A('s_lshl_b32 s21, s4, 19')
    A('s_lshl_b32 s11, s5, 14')
    A('s_add_u32 s21, s21, s11')
    A('s_lshl_b32 s11, s3, 8')
    A('s_add_u32 s21, s21, s11')
    A(f's_lshl_b32 s22, s{sT}, 16')
    A(f's_lshl_b32 s23, s{sCB}, 13')
    A('s_add_u32 s22, s22, s23')
    A('s_add_u32 s22, s22, s11')
    A('v_lshlrev_b32 v162, 4, v3')
    A('v_lshl_add_u32 v162, v2, 10, v162')
    P(1)
    A.c('layernorm')
    A(f's_waitcnt vmcnt({4 + cfg.nk1})')
    P(2)
    for k in range(4):
        A(f'v_lshlrev_b32 v{80+2*k}, 16, v{8+k}')
        A(f'v_and_b32 v{81+2*k}, 0xffff0000, v{8+k}')
    A('v_add_f32 v88, v80, v81')
    A('v_add_f32 v89, v82, v83')
    A('v_add_f32 v90, v84, v85')
    A('v_add_f32 v91, v86, v87')
    A('v_add_f32 v88, v88, v89')
    A('v_add_f32 v90, v90, v91')
    A('v_add_f32 v88, v88, v90')
    wave_allreduce(A, 88, 89, 'v_add_f32')
    A('v_mul_f32 v88, 0x3b000000, v88')
    for k in range(8):
        A(f'v_sub_f32 v{92+k}, v{80+k}, v88')
    A('v_mul_f32 v90, v92, v92')
    for k in range(1, 8):
        A(f'v_fmac_f32 v90, v{92+k}, v{92+k}')
    wave_allreduce(A, 90, 89, 'v_add_f32')
    P(23)
    A('v_mul_f32 v90, 0x3b000000, v90')
    A('v_cvt_pk_bf16_f32 v88, v88, v90')
    A('v_and_b32 v90, 0xffff0000, v88')
    A('v_lshlrev_b32 v88, 16, v88')
    A('v_add_f32 v90, 0x3727c5ac, v90')
    A('v_cvt_pk_bf16_f32 v90, v90, v90')
    A('v_lshlrev_b32 v90, 16, v90')
    A('v_sqrt_f32 v90, v90')
    for k in range(8):
        A(f'v_sub_f32 v{92+k}, v{80+k}, v88')
    A('v_cvt_pk_bf16_f32 v90, v90, v90')
    A('v_lshlrev_b32 v90, 16, v90')
    A('v_rcp_f32 v90, v90')
    for k in range(4):
        A(f'v_cvt_pk_bf16_f32 v{100+k}, v{92+2*k}, v{93+2*k}')
    for k in range(4):
        A(f'v_lshlrev_b32 v{92+2*k}, 16, v{100+k}')
        A(f'v_and_b32 v{93+2*k}, 0xffff0000, v{100+k}')
    for k in range(8):
        A(f'v_mul_f32 v{92+k}, v{92+k}, v90')
    for k in range(4):
        A(f'v_cvt_pk_bf16_f32 v{100+k}, v{92+2*k}, v{93+2*k}')
    A(f'v_add_u32 v104, {L_XN}, v163')
    A('ds_write_b128 v104, v[100:103]')
    P(24)
    A('v_lshrrev_b32 v105, 3, v3')
    A('v_lshl_add_u32 v105, v2, 1, v105')
    A(f's_lshl_b32 s11, s{sRB}, 7')
    A('s_lshl_b32 s12, s3, 5')
    A('s_add_u32 s11, s11, s12')
    A('s_lshl_b32 s11, s11, 1')
    A(f's_add_u32 s11, s11, {L_XN}')
    A('v_lshl_add_u32 v106, v105, 1, s11')
    A(f's_lshl_b32 s11, s{sCB}, 6')
    A('s_lshl_b32 s12, s3, 4')
    A('s_add_u32 s11, s11, s12')
    A('s_lshl_b32 s11, s11, 1')
    A(f's_add_u32 s11, s11, {L_XN}')
    A('v_lshl_add_u32 v107, v105, 1, s11')
    A('s_waitcnt lgkmcnt(0)')
    for i in range(4):
        A(f'ds_read_u16 v{80+i}, v106 offset:{16*i}')
    for i in range(2):
        A(f'ds_read_u16 v{84+i}, v107 offset:{16*i}')
    A(f'v_add_u32 v{vTAG}, 0x01010101, v{vTAG}')
    P(25)
    kloads(cfg.nk1, 8)
    P(26)
    A.nop(1)
    A(f'v_readfirstlane_b32 s6, v{vTAG}')
    A('s_waitcnt lgkmcnt(0)')
    for i in range(4):
        build_sel(A, 48+4*i, 80+i, 86)
    for i in range(2):
        build_sel(A, 64+4*i, 84+i, 86)
    for i, r in ((0, 160), (1, 164)):
        A(f'v_add_u32 v86, {4*i}, v2')
        A('v_lshlrev_b32 v86, 1, v86')
        A('v_xor_b32 v86, v86, v3')
        A('v_lshlrev_b32 v86, 4, v86')
        A(f'v_lshl_add_u32 v{r}, v2, 8, v86')
    A('v_lshrrev_b32 v87, 5, v1')
    A('v_lshlrev_b32 v87, 8, v87')
    A('v_and_b32 v86, 7, v1')
    A('v_lshl_add_u32 v87, v86, 5, v87')
    A('v_and_b32 v86, 1, v2')
    A('v_lshl_add_u32 v87, v86, 4, v87')
    A('s_lshl_b32 s11, s3, 9')
    A(f's_add_u32 s11, s11, {L_PART}')
    A('v_add_u32 v163, s11, v87')
    P(3)
    A.c('q partial product')
    A('s_waitcnt vmcnt(8)')
    P(16)
    for i in range(4):
        A(f'v_mfma_f32_16x16x32_bf16 v[72:75], {vr(48+4*i)}, {vr(12+4*i)}, {"0" if i == 0 else "v[72:75]"}')
    A('s_mov_b32 exec_lo, 0x00ff00ff')
    A('s_mov_b32 exec_hi, 0xff00ff00')
    A.nop(6)
    A('ds_write_b128 v163, v[72:75]')
    A('s_mov_b64 exec, -1')
    A('s_waitcnt lgkmcnt(0)')
    A('s_barrier')
    P(4)
    A('s_cmp_lg_u32 s3, 3')
    A('s_cbranch_scc1 L_pub1_done')
    A('v_lshlrev_b32 v86, 4, v3')
    A(f'v_add_u32 v87, {L_PART}, v86')
    for k in range(8):
        A(f'ds_read_b128 {vr(80+4*k+32)}, v87 offset:{256*k}')
    A('s_lshl_b32 s11, s4, 2')
    A(f's_add_u32 s11, s11, s{sRB}')
    A('s_lshl_b32 s11, s11, 11')
    A(f's_lshl_b32 s12, s{sCB}, 8')
    A('s_add_u32 s11, s11, s12')
    A(f's_add_u32 s11, s11, {QA}')
    A('v_add_u32 v86, s11, v86')
    A('s_lshl_b32 s12, s4, 9')
    A('s_lshl_b32 s13, s5, 4')
    A('s_add_u32 s12, s12, s13')
    A(f's_add_u32 s12, s12, {IDA}')
    A('v_mov_b32 v87, s12')
    A('v_cmp_eq_u32 vcc, 0, v2')
    A('s_getreg_b32 s13, hwreg(HW_REG_XCC_ID, 0, 4)')
    A('s_lshl_b32 s13, s13, 8')
    A('v_cndmask_b32 v86, v87, v86, vcc')
    A('s_waitcnt lgkmcnt(0)')
    for k in range(4):
        A(f'v_add_f32 v{112+k}, v{112+k}, v{116+k}')
        A(f'v_add_f32 v{120+k}, v{120+k}, v{124+k}')
        A(f'v_add_f32 v{128+k}, v{128+k}, v{132+k}')
        A(f'v_add_f32 v{136+k}, v{136+k}, v{140+k}')
    for k in range(4):
        A(f'v_add_f32 v{112+k}, v{112+k}, v{120+k}')
        A(f'v_add_f32 v{128+k}, v{128+k}, v{136+k}')
    for k in range(4):
        A(f'v_add_f32 v{112+k}, v{112+k}, v{128+k}')
    A('v_mov_b32 v116, s13')
    A('v_cndmask_b32 v112, v116, v112, vcc')
    tag_insert(A, 112)
    A('s_mov_b32 exec_lo, 0x0001ffff')
    A('s_mov_b32 exec_hi, 0')
    if not cfg.forceb:
        A(f'buffer_store_dwordx4 v[112:115], v86, {srd(SWS)}, 0 offen')
    A(f's_mov_b32 s12, {BDELTA}')
    A(f'buffer_store_dwordx4 v[112:115], v86, {srd(SWS)}, s12 offen sc1')
    A('s_mov_b64 exec, -1')
    A.label('L_pub1_done')
    if cfg.b1a:
        A('s_barrier')
    nst = (1 if cfg.forceb else 2)
    A.c('gate/up loads, V loads')
    A('s_add_u32 s18, s17, 28672')
    A(f'buffer_load_dwordx4 {vr(8)}, v161, {srd(SGA)}, s17 offen {nt}')
    A(f'buffer_load_dwordx4 {vr(12)}, v161, {srd(SGA)}, s18 offen {nt}')
    A(f'buffer_load_dwordx4 {vr(16)}, v161, {srd(SUP)}, s17 offen {nt}')
    A(f'buffer_load_dwordx4 {vr(20)}, v161, {srd(SUP)}, s18 offen {nt}')
    def vloads(lo, hi, win=None):
        for i in range(lo, hi):
            if win:
                A(f's_waitcnt vmcnt({win-1})')
            if i % 4 == 0 or i == lo:
                A(f's_add_u32 m0, s{25 if i < 4 else 26}, {L_V}')
                A.nop(1)
            A(f'buffer_load_dwordx4 v{(160, 164)[i&1]}, {srd(SV)}, s{19 if i < 4 else 27} offen offset:{1024*(i&3)} {nt} lds')
    vloads(0, cfg.nv1)
    if cfg.kwait is not None:
        A('s_cmp_eq_u32 s3, 3')
        A('s_cbranch_scc1 L_nokwait')
        A(f's_waitcnt vmcnt({cfg.kwait + cfg.nv1})')
        A.label('L_nokwait')
    if cfg.b1b:
        A('s_barrier')
    P(5)
    if cfg.b1c:
        vloads(cfg.nv1, cfg.nv2)
        A('s_barrier')
        vloads(cfg.nv2, 8)
    else:
        vloads(cfg.nv1, 8, cfg.win)
    def wo_loads(win=None):
        A('s_mov_b32 s13, s21')
        for i in range(4):
            if i:
                A('s_add_u32 s13, s13, 4096')
            if win:
                A(f's_waitcnt vmcnt({win-1})')
            A(f'buffer_load_dwordx4 {vr(24+4*i)}, v162, {srd(SWO)}, s13 offen {nt}')
    def dn_loads(win=None):
        A('s_add_u32 s13, s22, 4096')
        if win:
            A(f's_waitcnt vmcnt({win-1})')
        A(f'buffer_load_dwordx4 {vr(40)}, v162, {srd(SDN)}, s22 offen {nt}')
        if win:
            A(f's_waitcnt vmcnt({win-1})')
        A(f'buffer_load_dwordx4 {vr(44)}, v162, {srd(SDN)}, s13 offen {nt}')
    nearly = 0
    if cfg.wo_early >= 1:
        wo_loads(); nearly += 4
    if cfg.wo_early >= 2:
        dn_loads(); nearly += 2
    A.c('gate/up partial products')
    P(17)
    A(f's_waitcnt vmcnt({8 + nearly})')
    P(18)
    for i in range(2):
        A(f'v_mfma_f32_16x16x32_bf16 v[72:75], {vr(64+4*i)}, {vr(8+4*i)}, {"0" if i == 0 else "v[72:75]"}')
    for i in range(2):
        A(f'v_mfma_f32_16x16x32_bf16 v[76:79], {vr(64+4*i)}, {vr(16+4*i)}, {"0" if i == 0 else "v[76:79]"}')
    for j in range(4):
        A(f'v_or_b32 v86, {4*j}, v2')
        A('v_xor_b32 v86, v86, v3')
        A('v_lshlrev_b32 v86, 4, v86')
        A(f'v_lshl_add_u32 v{156+j}, v3, 8, v86')
        A(f'v_add_u32 v{156+j}, s20, v{156+j}')
    A('s_mov_b32 exec_lo, 0x00ff00ff')
    A('s_mov_b32 exec_hi, 0xff00ff00')
    A('ds_write_b128 v163, v[72:75] offset:2048')
    A('ds_write_b128 v163, v[76:79] offset:4096')
    A('s_mov_b64 exec, -1')
    A('v_and_b32 v86, 3, v1')
    A('v_mul_u32_u24 v86, 272, v86')
    A('v_lshl_add_u32 v4, v2, 4, v86')
    A(f'v_add_u32 v4, {L_QB}, v4')
    A('v_lshrrev_b32 v86, 2, v3')
    A('v_lshl_add_u32 v87, v2, 2, v86')
    A('v_and_b32 v86, 7, v87')
    A('v_lshlrev_b32 v87, 8, v87')
    A('v_lshl_add_u32 v87, v86, 5, v87')
    A('v_and_b32 v86, 3, v3')
    A('v_lshl_add_u32 v87, v86, 3, v87')
    A(f's_add_u32 s11, s20, {L_V}')
    A('v_add_u32 v5, s11, v87')
    A('s_waitcnt lgkmcnt(0)')
    P(6)
    A('s_barrier')
    P(7)
    A.c('scores')
    for j in range(4):
        A(f'ds_read_b128 {vr(112+4*j)}, v4 offset:{64*j}')
    for t in range(2):
        for j in range(4):
            A(f'ds_read_b128 {vr(80+16*t+4*j)}, v{156+j} offset:{L_K + 4096*t}')
    if cfg.wo_early == 0:
        wo_loads()
    for j in range(4):
        A(f's_waitcnt lgkmcnt({7-j})')
        A(f'v_mfma_f32_16x16x32_bf16 v[144:147], {vr(80+4*j)}, {vr(112+4*j)}, {"0" if j == 0 else "v[144:147]"}')
    for j in range(4):
        A(f's_waitcnt lgkmcnt({3-j})')
        A(f'v_mfma_f32_16x16x32_bf16 v[148:151], {vr(96+4*j)}, {vr(112+4*j)}, {"0" if j == 0 else "v[148:151]"}')
    if 0 <= cfg.wo_early < 2:
        dn_loads()
    A(f'v_mov_b32 v6, {L_MODE}')
    A('ds_read_b32 v7, v6')
    A.nop(4 if 0 <= cfg.wo_early < 2 else 7)
    A.c('softmax')
    for k in range(4):
        A(f'v_cvt_pk_bf16_f32 v{152+k}, v{144+2*k}, v{145+2*k}')
    for k in range(4):
        A(f'v_lshlrev_b32 v{144+2*k}, 16, v{152+k}')
        A(f'v_and_b32 v{145+2*k}, 0xffff0000, v{152+k}')
    for k in range(8):
        A(f'v_mul_f32 v{144+k}, s{sSCALE}, v{144+k}')
    for k in range(4):
        A(f'v_cvt_pk_bf16_f32 v{152+k}, v{144+2*k}, v{145+2*k}')
    for k in range(4):
        A(f'v_lshlrev_b32 v{144+2*k}, 16, v{152+k}')
        A(f'v_and_b32 v{145+2*k}, 0xffff0000, v{152+k}')
    A('v_max3_f32 v156, v144, v145, v146')
    A('v_max3_f32 v157, v147, v148, v149')
    A('v_max3_f32 v156, v156, v150, v151')
    A('v_max_f32 v156, v156, v157')
    cross_rows(A, 156, 157, 'v_max_f32')
    A(f'v_mul_f32 v157, s{sLOG2E}, v156')
    for k in range(8):
        A(f'v_fma_f32 v{144+k}, v{144+k}, s{sLOG2E}, -v157')
    for k in range(8):
        A(f'v_exp_f32 v{144+k}, v{144+k}')
    A.nop(1)
    for k in range(4):
        A(f'v_cvt_pk_bf16_f32 v{152+k}, v{144+2*k}, v{145+2*k}')
    A('v_add_f32 v158, v144, v145')
    A('v_add_f32 v157, v146, v147')
    A('v_add_f32 v144, v148, v149')
    A('v_add_f32 v145, v150, v151')
    A('v_add_f32 v158, v158, v157')
    A('v_add_f32 v144, v144, v145')
    A('v_add_f32 v158, v158, v144')
    cross_rows(A, 158, 157, 'v_add_f32')
    A('v_mov_b32 v144, v5')
    for T in range(1, 8):
        A(f'v_xor_b32 v{144+T}, {T*32}, v5')
    A('s_waitcnt lgkmcnt(0)')
    A('v_readfirstlane_b32 s24, v7')
    A('v_and_b32 v86, 3, v1')
    A('v_mul_u32_u24 v87, 528, v86')
    A('v_lshl_add_u32 v87, v2, 4, v87')
    A('v_add_u32 v6, s20, v87')
    A('s_lshl_b32 s11, s3, 2')
    A(f's_add_u32 s11, s11, {L_ML}')
    A('v_lshlrev_b32 v86, 5, v86')
    A('v_add_u32 v7, s11, v86')
    P(8)
    if cfg.wo_early == -1:
        wo_loads(cfg.win2)
        dn_loads(cfg.win2)
    A.c('PV')
    A('s_waitcnt vmcnt(6)')
    P(9)
    for T in range(8):
        A(f'ds_read_b64_tr_b16 v[{80+4*T}:{81+4*T}], v{144+T}')
        A(f'ds_read_b64_tr_b16 v[{82+4*T}:{83+4*T}], v{144+T} offset:4096')
    for T in range(8):
        A(f's_waitcnt lgkmcnt({14-2*T})')
        A(f'v_mfma_f32_16x16x32_bf16 {vr(112+4*T)}, {vr(80+4*T)}, v[152:155], 0')
    A('s_mov_b32 exec_lo, 0x000f000f')
    A('s_mov_b32 exec_hi, 0x000f000f')
    A('ds_write_b32 v7, v156')
    A('ds_write_b32 v7, v158 offset:16')
    A.nop(1)
    for T in range(8):
        A(f'ds_write_b128 v6, {vr(112+4*T)} offset:{64*T}')
    A('s_mov_b64 exec, -1')
    A('s_waitcnt lgkmcnt(0)')
    A('s_barrier')
    P(10)
    A('s_cmp_eq_u32 s3, 3')
    A('s_cbranch_scc1 L_gupub')
    A.c('o partial publish (waves 0..2)')
    A('v_lshrrev_b32 v86, 5, v0')
    A('v_and_b32 v87, 3, v1')
    A('s_cmp_eq_u32 s3, 2')
    A('s_cselect_b64 vcc, -1, 0')
    A('v_cndmask_b32 v86, v86, v87, vcc')
    A('v_lshlrev_b32 v87, 5, v86')
    A(f'v_add_u32 v87, {L_ML}, v87')
    A('ds_read_b128 v[80:83], v87')
    A('ds_read_b128 v[84:87], v87 offset:16') if False else None
    A('ds_read_b128 v[88:91], v87 offset:16')
    A('v_mul_u32_u24 v87, 528, v86')
    A('v_and_b32 v92, 31, v0')
    A('v_lshl_add_u32 v87, v92, 4, v87')
    for w in range(4):
        A(f'ds_read_b128 {vr(96+4*w)}, v87 offset:{8192*w}')
    A('v_lshrrev_b32 v93, 2, v92')
    A('v_lshl_add_u32 v93, v86, 3, v93')
    A('v_lshlrev_b32 v93, 11, v93')
    A('v_and_b32 v92, 3, v92')
    A('v_lshl_add_u32 v93, v92, 4, v93')
    A('s_lshl_b32 s11, s4, 16')
    A('s_lshl_b32 s12, s5, 6')
    A('s_add_u32 s11, s11, s12')
    A(f's_add_u32 s11, s11, {OIO}')
    A('v_add_u32 v93, s11, v93')
    A('s_lshl_b32 s11, s4, 11')
    A('s_lshl_b32 s12, s5, 4')
    A('s_add_u32 s11, s11, s12')
    A(f's_add_u32 s11, s11, {MLO}')
    A('v_lshl_add_u32 v94, v86, 9, s11')
    A('v_cndmask_b32 v93, v93, v94, vcc')
    A('s_waitcnt lgkmcnt(4)')
    A('v_max3_f32 v94, v80, v81, v82')
    A('v_max_f32 v94, v94, v83')
    for w in range(4):
        A(f'v_sub_f32 v{80+w}, v{80+w}, v94')
    for w in range(4):
        A(f'v_mul_f32 v{80+w}, s{sLOG2E}, v{80+w}')
    for w in range(4):
        A(f'v_exp_f32 v{80+w}, v{80+w}')
    A.nop(1)
    A('v_mul_f32 v95, v80, v88')
    for w in range(1, 4):
        A(f'v_fmac_f32 v95, v{80+w}, v{88+w}')
    A('s_waitcnt lgkmcnt(0)')
    for k in range(4):
        A(f'v_mul_f32 v{84+k}, v80, v{96+k}')
    for w in range(1, 4):
        for k in range(4):
            A(f'v_fmac_f32 v{84+k}, v{80+w}, v{96+4*w+k}')
    A('v_cndmask_b32 v84, v84, v94, vcc')
    A('v_cndmask_b32 v85, v85, v95, vcc')
    tag_insert(A, 84)
    A('s_cmp_eq_u32 s3, 2')
    A('s_cselect_b32 exec_lo, 15, -1')
    A('s_cselect_b32 exec_hi, 0, -1')
    A('s_cmp_eq_u32 s24, 1')
    A('s_cbranch_scc0 L_opub_slow')
    A(f'buffer_store_dwordx4 v[84:87], v93, {srd(SWS)}, 0 offen')
    A('s_branch L_pub2_done')
    A.label('L_opub_slow')
    A(f'buffer_store_dwordx4 v[84:87], v93, {srd(SWS)}, 0 offen sc1')
    A('s_branch L_pub2_done')
    A.label('L_gupub')
    A.c('gate/up partial publish (wave 3): lanes 0..15 gate, 16..31 up')
    A('v_lshlrev_b32 v86, 4, v3')
    A('v_and_b32 v87, 1, v2')
    A('v_lshl_add_u32 v87, v87, 11, v86')
    A(f'v_add_u32 v87, {L_PART + 2048}, v87')
    for k in range(8):
        A(f'ds_read_b128 {vr(112+4*k)}, v87 offset:{256*k}')
    A('s_lshl_b32 s12, s4, 2')
    A(f's_add_u32 s12, s12, s{sRB}')
    A('s_lshl_b32 s12, s12, 3')
    A(f's_add_u32 s12, s12, s{sCB}')
    A('s_lshl_b32 s12, s12, 9')
    A(f's_add_u32 s12, s12, {GUO}')
    A('v_and_b32 v87, 1, v2')
    A('v_lshl_add_u32 v86, v87, 8, v86')
    A('v_add_u32 v86, s12, v86')
    A('s_waitcnt lgkmcnt(0)')
    for k in range(4):
        A(f'v_add_f32 v{112+k}, v{112+k}, v{116+k}')
        A(f'v_add_f32 v{120+k}, v{120+k}, v{124+k}')
        A(f'v_add_f32 v{128+k}, v{128+k}, v{132+k}')
        A(f'v_add_f32 v{136+k}, v{136+k}, v{140+k}')
    for k in range(4):
        A(f'v_add_f32 v{112+k}, v{112+k}, v{120+k}')
        A(f'v_add_f32 v{128+k}, v{128+k}, v{136+k}')
    for k in range(4):
        A(f'v_add_f32 v{112+k}, v{112+k}, v{128+k}')
    tag_insert(A, 112)
    A('s_mov_b32 exec_hi, 0')
    A('s_cmp_eq_u32 s24, 1')
    A('s_cbranch_scc0 L_gupub_slow')
    A(f'buffer_store_dwordx4 v[112:115], v86, {srd(SWS)}, 0 offen')
    A('s_branch L_pub2_done')
    A.label('L_gupub_slow')
    A(f'buffer_store_dwordx4 v[112:115], v86, {srd(SWS)}, 0 offen sc1')
    A.label('L_pub2_done')
    A('s_mov_b64 exec, -1')
    if cfg.b3b:
        A('s_barrier')
    P(11)
    A('v_lshlrev_b32 v6, 1, v2')
    A(f'v_add_u32 v7, {L_HB}, v6')
    A(f'v_add_u32 v6, {L_OB}, v6')
    A('v_lshrrev_b32 v86, 2, v3')
    A('v_lshl_add_u32 v86, v2, 2, v86')
    A('s_lshl_b32 s11, s3, 3')
    A('v_add_u32 v86, s11, v86')
    A('v_lshlrev_b32 v86, 14, v86')
    A('v_and_b32 v87, 3, v3')
    A('v_lshl_add_u32 v86, v87, 4, v86')
    A('s_lshl_b32 s11, s2, 6')
    A(f's_add_u32 s11, s11, {FIN}')
    A('v_add_u32 v5, s11, v86')
    A('s_barrier')
    P(12)
    A.c('output projection')
    for i in range(2):
        A(f'ds_read_u16 v{84+i}, v7 offset:{8*i}')
    for i in range(4):
        A(f'ds_read_u16 v{80+i}, v6 offset:{8*i}')
    for i in range(2):
        A(f's_waitcnt lgkmcnt({5-i})')
        build_sel(A, 64+4*i, 84+i, 86)
    for i in range(4):
        A(f's_waitcnt lgkmcnt({3-i})')
        build_sel(A, 48+4*i, 80+i, 86)
    A('s_waitcnt vmcnt(1)')
    for i in range(4):
        A(f'v_mfma_f32_16x16x32_bf16 v[72:75], {vr(48+4*i)}, {vr(24+4*i)}, {"0" if i == 0 else "v[72:75]"}')
    for i in range(2):
        A(f'v_mfma_f32_16x16x32_bf16 v[72:75], {vr(64+4*i)}, {vr(40+4*i)}, v[72:75]')
    A('s_mov_b32 exec_hi, 0')
    A.nop(7)
    tag_insert(A, 72)
    A(f'buffer_store_dwordx4 v[72:75], v5, {srd(SWS)}, 0 offen sc1')
    A('s_mov_b64 exec, -1')
    P(13)
    P.flush(); P.reset()
    A('s_cmp_ge_u32 s2, 32')
    A('s_cbranch_scc1 L_done')
    A.c('final reduce')
    A('s_lshr_b32 s11, s2, 3')
    A('s_lshl_b32 s11, s11, 7')
    A('s_and_b32 s12, s2, 3')
    A('s_lshl_b32 s12, s12, 5')
    A('s_add_u32 s11, s11, s12')
    A('s_bfe_u32 s12, s2, 0x10002')
    A('s_lshl_b32 s12, s12, 2')
    A('s_add_u32 s11, s11, s12')
    A('v_lshrrev_b32 v100, 2, v3')
    A('v_lshlrev_b32 v100, 3, v100')
    A('v_and_b32 v101, 3, v3')
    A('v_add3_u32 v100, v100, v101, s11')
    A('v_lshlrev_b32 v100, 1, v100')
    A(f'buffer_load_ushort v101, v100, {srd(SX)}, 0 offen {cfg.xnt}')
    A('s_lshl_b32 s11, s2, 14')
    A(f's_add_u32 s11, s11, {FIN}')
    A('v_lshlrev_b32 v6, 4, v0')
    A('v_add_u32 v6, s11, v6')
    A(f's_mov_b32 s{sIT}, 0')
    A('s_mov_b32 s12, 4096')
    A('s_mov_b32 s13, 8192')
    A('s_mov_b32 s14, 12288')
    A.label('L_fgat')
    A(f'buffer_load_dwordx4 v[80:83], v6, {srd(SWS)}, 0 offen {cfg.gat}')
    A(f'buffer_load_dwordx4 v[84:87], v6, {srd(SWS)}, s12 offen {cfg.gat}')
    A(f'buffer_load_dwordx4 v[88:91], v6, {srd(SWS)}, s13 offen {cfg.gat}')
    A(f'buffer_load_dwordx4 v[92:95], v6, {srd(SWS)}, s14 offen {cfg.gat}')
    A('s_waitcnt vmcnt(0)')
    for q in range(4):
        tag_check(A, 80+4*q, 96, 97, q == 0)
    poll_tail(A, cfg, 'L_fgat', 'L_fok')
    A.label('L_fok')
    if cfg.prof in (True, 'heavy'):
        A(f'v_writelane_b32 v{vPROF}, s{sIT}, 22')
    P(14)
    P.flush(); P.reset()
    mask_vals(A, 80, 16)
    for k in range(4):
        A(f'v_add_f32 v{80+k}, v{80+k}, v{84+k}')
        A(f'v_add_f32 v{88+k}, v{88+k}, v{92+k}')
    for k in range(4):
        A(f'v_add_f32 v{80+k}, v{80+k}, v{88+k}')
    transpose_reduce4(A, 80)
    rowred(A, [80], 'v_add_f32', ['row_ror:8', 'row_ror:4'])
    A('v_and_b32 v86, 1, v2')
    A('v_lshlrev_b32 v86, 1, v86')
    A('v_lshrrev_b32 v87, 1, v2')
    A('v_or_b32 v86, v86, v87')
    A('v_and_b32 v87, 3, v1')
    A('v_lshl_add_u32 v86, v87, 2, v86')
    A('v_lshlrev_b32 v86, 4, v86')
    A('s_lshl_b32 s11, s3, 2')
    A(f's_add_u32 s11, s11, {L_FINR}')
    A('v_add_u32 v86, s11, v86')
    A('s_mov_b32 exec_lo, 0x000f000f')
    A('s_mov_b32 exec_hi, 0x000f000f')
    A('ds_write_b32 v86, v80')
    A('s_mov_b64 exec, -1')
    A('s_waitcnt lgkmcnt(0)')
    A('s_barrier')
    A('s_cmp_lg_u32 s3, 0')
    A('s_cbranch_scc1 L_done')
    A('v_lshlrev_b32 v86, 4, v3')
    A(f'v_add_u32 v86, {L_FINR}, v86')
    A('ds_read_b128 v[80:83], v86')
    A('v_lshlrev_b32 v101, 16, v101')
    A('s_waitcnt lgkmcnt(0)')
    A('v_add_f32 v80, v80, v81')
    A('v_add_f32 v82, v82, v83')
    A('v_add_f32 v80, v80, v82')
    A('v_add_f32 v80, v80, v101')
    A('v_cvt_pk_bf16_f32 v80, v80, v80')
    A('s_mov_b64 exec, 0xffff')
    A(f'buffer_store_short v80, v100, {srd(SOUT)}, 0 offen')
    A('s_cmp_lg_u32 s2, 0')
    A('s_cbranch_scc1 L_noepoch')
    A('s_mov_b64 exec, 1')
    A(f'v_mov_b32 v81, {EOFF}')
    A(f'v_mov_b32 v82, s{sTAG}')
    A(f'buffer_store_dword v82, v81, {srd(SWS)}, 0 offen sc1')
    A.label('L_noepoch')
    A('s_mov_b64 exec, -1')
    A('s_branch L_done')
    A.label('L_comm')
    P.reset(prev=0, k=0)
    P(1)
    A(f's_lshl_b32 s{sT}, s{sRB}, 3')
    A(f's_add_u32 s{sT}, s{sT}, s4')
    A('v_lshrrev_b32 v2, 4, v1')
    A('v_and_b32 v3, 15, v1')
    common_consts(A)
    A(f'v_mov_b32 v4, {EOFF}')
    if cfg.exp_dirty:
        A('s_cmp_eq_u32 s3, 4')
        A('s_cbranch_scc0 L_nodirty')
        A('s_waitcnt lgkmcnt(0)')
        A(f's_mov_b32 s{SWS+2}, 0x2000000')
        A(f's_mul_i32 s11, s2, {cfg.exp_dirty*1024}')
        A('s_add_u32 s11, s11, 0x400000')
        A('v_lshlrev_b32 v20, 4, v1')
        for i in range(cfg.exp_dirty):
            A(f'buffer_store_dwordx4 v[16:19], v20, {srd(SWS)}, s11 offen')
            A('s_add_u32 s11, s11, 1024')
        A.label('L_nodirty')
    def pretouch():
        A('s_cmp_eq_u32 s3, 4')
        A('s_cbranch_scc0 L_nopre')
        A('s_waitcnt lgkmcnt(0)')
        A('s_lshl_b32 s11, s4, 5')
        A('s_add_u32 s11, s11, s5')
        A('s_lshl_b32 s12, s11, 11')
        A(f's_add_u32 s12, s12, {OIO}')
        A('v_lshl_add_u32 v10, v1, 7, s12')
        A('s_lshl_b32 s12, s11, 9')
        A(f's_add_u32 s12, s12, {GUO - 16*128}')
        A('v_lshl_add_u32 v11, v1, 7, s12')
        A('v_cmp_le_u32 vcc, 16, v1')
        A('s_lshl_b32 s12, s11, 8')
        A(f's_add_u32 s12, s12, {QA - 20*128}')
        A('v_cndmask_b32 v10, v10, v11, vcc')
        A('v_lshl_add_u32 v11, v1, 7, s12')
        A('v_cmp_le_u32 vcc, 20, v1')
        A('s_lshl_b32 s12, s4, 9')
        A('s_and_b32 s13, s5, 3')
        A('s_lshl_b32 s13, s13, 7')
        A('s_add_u32 s12, s12, s13')
        A(f's_add_u32 s12, s12, {IDA}')
        A('v_cndmask_b32 v10, v10, v11, vcc')
        A('v_mov_b32 v11, s12')
        A('v_cmp_le_u32 vcc, 22, v1')
        A('s_lshl_b32 s12, s4, 11')
        A('s_and_b32 s13, s5, 15')
        A('s_lshl_b32 s13, s13, 7')
        A('s_add_u32 s12, s12, s13')
        A(f's_add_u32 s12, s12, {MLO}')
        A('v_cndmask_b32 v10, v10, v11, vcc')
        A('v_mov_b32 v11, s12')
        A('v_cmp_le_u32 vcc, 23, v1')
        A.nop(2)
        A('v_cndmask_b32 v10, v10, v11, vcc')
        A('s_mov_b64 exec, 0xffffff')
        A(f'buffer_load_dword v12, v10, {srd(SWS)}, 0 offen {cfg.pre_fl}')
        A('s_mov_b64 exec, -1')
        A.label('L_nopre')
    if cfg.pretouch == 1:
        pretouch()
    if cfg.finpre == 1:
        A('s_cmp_eq_u32 s3, 5')
        A('s_cbranch_scc0 L_nofinpre')
        A('s_cmp_lt_u32 s2, 32')
        A('s_cbranch_scc0 L_nofinpre')
        A('s_waitcnt lgkmcnt(0)')
        A('s_lshl_b32 s11, s2, 14')
        A(f's_add_u32 s11, s11, {FIN}')
        A('v_lshl_add_u32 v10, v1, 7, s11')
        A('s_mov_b32 s12, 8192')
        A(f'buffer_load_dword v12, v10, {srd(SWS)}, 0 offen {cfg.finpre_fl}')
        A(f'buffer_load_dword v13, v10, {srd(SWS)}, s12 offen {cfg.finpre_fl}')
        A.label('L_nofinpre')
    elif cfg.finpre == 2:
        A('s_cmp_eq_u32 s3, 5')
        A('s_cbranch_scc0 L_nofinpre')
        A('s_waitcnt lgkmcnt(0)')
        A('s_lshl_b32 s11, s2, 11')
        A(f's_add_u32 s11, s11, {FIN}')
        A('v_lshl_add_u32 v10, v1, 7, s11')
        A('s_mov_b64 exec, 0xffff')
        A(f'buffer_load_dword v12, v10, {srd(SWS)}, 0 offen {cfg.finpre_fl}')
        A('s_mov_b64 exec, -1')
        A.label('L_nofinpre')
    A('s_lshl_b32 s11, s4, 13')
    A('s_sub_u32 s12, s3, 4')
    A('s_lshl_b32 s12, s12, 10')
    A('s_add_u32 s11, s11, s12')
    A(f's_add_u32 s11, s11, {QA}')
    A('v_lshlrev_b32 v6, 4, v1')
    A('v_add_u32 v6, s11, v6')
    A('s_lshl_b32 s11, s4, 9')
    A(f's_add_u32 s11, s11, {IDA}')
    A('v_and_b32 v7, 31, v1')
    A('v_lshl_add_u32 v7, v7, 4, s11')
    A('s_sub_u32 s12, s3, 4')
    A('s_lshl_b32 s12, s12, 1')
    A('v_lshrrev_b32 v8, 5, v1')
    A('v_add_u32 v8, s12, v8')
    A('v_mul_u32_u24 v8, 272, v8')
    A('v_and_b32 v9, 31, v1')
    A('v_lshl_add_u32 v8, v9, 3, v8')
    A(f'v_add_u32 v8, {L_QB}, v8')
    P(3)
    A('s_barrier')
    P(4)
    if cfg.b1a:
        A('s_barrier')
    if cfg.b1b:
        A('s_barrier')
    P(5)
    A('s_waitcnt lgkmcnt(0)')
    A(f'buffer_load_dword v5, v4, {srd(SWS)}, 0 offen {cfg.xnt}')
    A(f's_mov_b32 s{sIT}, 0')
    A('s_mov_b32 s14, 0')
    def q_issue():
        A('s_add_u32 s15, s14, 4096')
        A(f'buffer_load_dwordx4 v[16:19], v6, {srd(SWS)}, s14 offen {cfg.gat}')
        A(f'buffer_load_dwordx4 v[20:23], v6, {srd(SWS)}, s14 offen offset:2048 {cfg.gat}')
        A(f'buffer_load_dwordx4 v[24:27], v6, {srd(SWS)}, s15 offen {cfg.gat}')
        A(f'buffer_load_dwordx4 v[28:31], v6, {srd(SWS)}, s15 offen offset:2048 {cfg.gat}')
        A(f'buffer_load_dwordx4 v[32:35], v7, {srd(SWS)}, s14 offen {cfg.gat}')
    def q_check():
        for q in range(5):
            tag_check(A, 16+4*q, 36, 37, q == 0)
    if cfg.b1c:
        q_issue()
        A('s_waitcnt vmcnt(0)')
        A('v_add_u32 v9, 0x01010101, v5')
        A.nop(1)
        A('v_readfirstlane_b32 s6, v9')
        q_check()
        A('s_cmp_eq_u64 s[88:89], 0')
        A('s_cbranch_scc1 L_qfirst_ok')
        q_issue()
        A('s_barrier')
        A(f's_mov_b32 s{sIT}, 1')
        A('s_branch L_qwait')
        A.label('L_qfirst_ok')
        A('s_barrier')
        A('s_branch L_qok')
        A.label('L_qgat')
        q_issue()
        A.label('L_qwait')
        A('s_waitcnt vmcnt(0)')
        q_check()
        poll_tail(A, cfg, 'L_qgat', 'L_qok', switch=14)
    else:
        A.label('L_qgat')
        q_issue()
        A('s_waitcnt vmcnt(0)')
        A('v_add_u32 v9, 0x01010101, v5')
        A.nop(1)
        A('v_readfirstlane_b32 s6, v9')
        q_check()
        poll_tail(A, cfg, 'L_qgat', 'L_qok', switch=14)
    A.label('L_qok')
    if cfg.prof in (True, 'heavy'):
        A(f'v_writelane_b32 v{vPROF}, s{sIT}, 20')
    P(6)
    mask_vals(A, 16, 16)
    for k in range(4):
        A(f'v_add_f32 v{16+k}, v{16+k}, v{20+k}')
        A(f'v_add_f32 v{24+k}, v{24+k}, v{28+k}')
    for k in range(4):
        A(f'v_add_f32 v{16+k}, v{16+k}, v{24+k}')
    A('v_cvt_pk_bf16_f32 v16, v16, v17')
    A('v_cvt_pk_bf16_f32 v17, v18, v19')
    A('ds_write_b64 v8, v[16:17]')
    if cfg.pretouch == 2:
        pretouch()
    A('s_getreg_b32 s13, hwreg(HW_REG_XCC_ID, 0, 4)')
    A('v_bfe_u32 v32, v32, 8, 8')
    A('v_cmp_ne_u32 vcc, s13, v32')
    A('s_cmp_eq_u64 vcc, 0')
    A('s_cselect_b32 s13, 1, 0')
    if cfg.forceslow:
        A('s_mov_b32 s13, 0')
    A('v_mov_b32 v33, s13')
    A(f'v_mov_b32 v34, {L_MODE}')
    A('s_cmp_eq_u32 s3, 5')
    A('s_cbranch_scc0 L_nomode')
    A('ds_write_b32 v34, v33')
    A.label('L_nomode')
    A('s_waitcnt lgkmcnt(0)')
    A('s_barrier')
    P(7)
    P.flush(); P.reset()
    A('s_cmp_eq_u32 s3, 5')
    A('s_cbranch_scc1 L_comm5')
    A('s_lshl_b32 s11, s4, 5')
    A('s_add_u32 s11, s11, s5')
    A('s_lshl_b32 s11, s11, 11')
    A(f's_add_u32 s11, s11, {OIO}')
    A('v_lshlrev_b32 v6, 4, v1')
    A('v_add_u32 v6, s11, v6')
    A('s_lshl_b32 s11, s4, 2')
    A('s_lshr_b32 s12, s5, 3')
    A('s_add_u32 s11, s11, s12')
    A('s_lshl_b32 s11, s11, 9')
    A(f's_add_u32 s11, s11, {MLO}')
    A('v_lshrrev_b32 v7, 2, v1')
    A('v_lshl_add_u32 v7, v7, 4, s11')
    A('v_and_b32 v8, 1, v2')
    A('v_lshlrev_b32 v8, 1, v8')
    A('v_lshrrev_b32 v9, 1, v2')
    A('v_or_b32 v8, v8, v9')
    A('v_and_b32 v9, 3, v1')
    A('v_lshl_add_u32 v8, v9, 2, v8')
    A('v_lshlrev_b32 v8, 1, v8')
    A(f'v_add_u32 v8, {L_OB}, v8')
    A('s_barrier')
    P(10)
    if cfg.b3b:
        A('s_barrier')
    P(11)
    A(f's_mov_b32 s{sIT}, 0')
    A.label('L_ogat')
    A(f'buffer_load_dwordx4 v[16:19], v6, {srd(SWS)}, 0 offen {cfg.gat}')
    A(f'buffer_load_dwordx4 v[20:23], v6, {srd(SWS)}, 0 offen offset:1024 {cfg.gat}')
    A(f'buffer_load_dwordx4 v[24:27], v7, {srd(SWS)}, 0 offen {cfg.gat}')
    A(f'buffer_load_dwordx4 v[28:31], v7, {srd(SWS)}, 0 offen offset:256 {cfg.gat}')
    A('s_waitcnt vmcnt(0)')
    for q in range(4):
        tag_check(A, 16+4*q, 36, 37, q == 0)
    poll_tail(A, cfg, 'L_ogat', 'L_ook')
    A.label('L_ook')
    if cfg.prof in (True, 'heavy'):
        A(f'v_writelane_b32 v{vPROF}, s{sIT}, 21')
    P(13)
    P.flush(); P.reset()
    mask_vals(A, 16, 8)
    mask_vals(A, 24, 2)
    mask_vals(A, 28, 2)
    A('v_max_f32 v32, v24, v28')
    rowred(A, [32], 'v_max_f32', ['row_ror:8', 'row_ror:4'])
    cross_rows(A, 32, 33, 'v_max_f32')
    A('v_sub_f32 v24, v24, v32')
    A('v_sub_f32 v28, v28, v32')
    A(f'v_mul_f32 v24, s{sLOG2E}, v24')
    A(f'v_mul_f32 v28, s{sLOG2E}, v28')
    A('v_exp_f32 v24, v24')
    A('v_exp_f32 v28, v28')
    A.nop(1)
    A('v_mul_f32 v34, v24, v25')
    A('v_fmac_f32 v34, v28, v29')
    for k in range(4):
        A(f'v_mul_f32 v{16+k}, v24, v{16+k}')
    for k in range(4):
        A(f'v_fmac_f32 v{16+k}, v28, v{20+k}')
    transpose_reduce4(A, 16)
    for st in ('row_ror:8', 'row_ror:4'):
        A.nop(1)
        A(f'v_add_f32_dpp v34, v34, v34 {st} row_mask:0xf bank_mask:0xf')
        A(f'v_add_f32_dpp v16, v16, v16 {st} row_mask:0xf bank_mask:0xf')
    cross_rows(A, 34, 33, 'v_add_f32')
    A('v_rcp_f32 v34, v34')
    A.nop(1)
    A('v_mul_f32 v16, v16, v34')
    A('v_cvt_pk_bf16_f32 v16, v16, v16')
    A('s_mov_b32 exec_lo, 0x000f000f')
    A('s_mov_b32 exec_hi, 0x000f000f')
    A('ds_write_b16 v8, v16')
    A('s_mov_b64 exec, -1')
    A('s_waitcnt lgkmcnt(0)')
    A('s_branch L_comm_b4')
    A.label('L_comm5')
    P.reset()
    A('s_lshl_b32 s11, s4, 2')
    A(f's_add_u32 s11, s11, s{sRB}')
    A('s_lshl_b32 s11, s11, 12')
    A(f's_lshl_b32 s12, s{sCB}, 5')
    A('s_add_u32 s11, s11, s12')
    A(f's_add_u32 s11, s11, {GUO}')
    A('v_bfe_u32 v6, v1, 2, 3')
    A('v_lshlrev_b32 v6, 9, v6')
    A('v_bfe_u32 v7, v1, 1, 1')
    A('v_lshl_add_u32 v6, v7, 8, v6')
    A('v_and_b32 v7, 1, v1')
    A('v_lshl_add_u32 v6, v7, 4, v6')
    A('v_add_u32 v6, s11, v6')
    A('v_lshlrev_b32 v8, 3, v1')
    A(f'v_add_u32 v8, {L_HB}, v8')
    A('s_barrier')
    if cfg.b3b:
        A('s_barrier')
    A(f's_mov_b32 s{sIT}, 0')
    A.label('L_ggat')
    A(f'buffer_load_dwordx4 v[16:19], v6, {srd(SWS)}, 0 offen {cfg.gat}')
    A('s_waitcnt vmcnt(0)')
    tag_check(A, 16, 36, 37, True)
    poll_tail(A, cfg, 'L_ggat', 'L_gok')
    A.label('L_gok')
    if cfg.prof in (True, 'heavy'):
        A(f'v_writelane_b32 v{vPROF}, s{sIT}, 21')
    P(13)
    P.flush(); P.reset()
    mask_vals(A, 16)
    for st in ('row_ror:8', 'row_ror:4'):
        for k in range(4):
            A(f'v_add_f32_dpp v{16+k}, v{16+k}, v{16+k} {st} row_mask:0xf bank_mask:0xf')
    for k in range(4):
        A(f'v_mov_b32 v{20+k}, v{16+k}')
    for k in range(4):
        A(f'v_permlane16_swap_b32 v{20+k}, v{16+k}')
    for k in range(4):
        A(f'v_add_f32 v{16+k}, v{20+k}, v{16+k}')
    A('v_cvt_pk_bf16_f32 v20, v16, v17')
    A('v_cvt_pk_bf16_f32 v21, v18, v19')
    A('v_lshlrev_b32 v16, 16, v20')
    A('v_and_b32 v17, 0xffff0000, v20')
    A('v_lshlrev_b32 v18, 16, v21')
    A('v_and_b32 v19, 0xffff0000, v21')
    for k in range(4):
        A(f'v_mul_f32_dpp v{20+k}, v{16+k}, v{16+k} quad_perm:[2,3,0,1] row_mask:0xf bank_mask:0xf')
    A('v_cvt_pk_bf16_f32 v16, v20, v21')
    A('v_cvt_pk_bf16_f32 v17, v22, v23')
    A('s_mov_b64 exec, 3')
    A('ds_write_b64 v8, v[16:17]')
    A('s_mov_b64 exec, -1')
    A('s_waitcnt lgkmcnt(0)')
    A.label('L_comm_b4')
    A('s_barrier')
    A('s_cmp_ge_u32 s2, 32')
    A('s_cbranch_scc1 L_done')
    A('s_barrier')
    A.label('L_done')
    if cfg.exp_hwid:
        A('s_getreg_b32 s11, hwreg(HW_REG_HW_ID)')
        A(f'v_writelane_b32 v{vPROF}, s11, 31')
    if cfg.prof == 'lite':
        A('s_memrealtime s[30:31]')
        A('s_waitcnt lgkmcnt(0)')
        A(f'v_writelane_b32 v{vPROF}, s28, 0')
        A(f'v_writelane_b32 v{vPROF}, s30, 15')
    elif cfg.prof:
        P(15)
        P.flush()
    if cfg.prof:
        A('s_mul_i32 s11, s2, 6')
        A('s_add_u32 s11, s11, s3')
        A('s_lshl_b32 s11, s11, 7')
        A(f's_add_u32 s11, s11, {PROF}')
        A('v_lshl_add_u32 v86, v1, 2, s11')
        A('s_mov_b32 exec_hi, 0')
        A(f'buffer_store_dword v{vPROF}, v86, {srd(SWS)}, 0 offen')
        A('s_mov_b64 exec, -1')
    A.label('L_end')
    A('s_endpgm')
    A('.section .rodata,"a"')
    A('.p2align 6')
    A(f'.amdhsa_kernel {NAME}')
    A('  .amdhsa_next_free_vgpr 168')
    A('  .amdhsa_next_free_sgpr 102')
    A('  .amdhsa_accum_offset 168')
    A('  .amdhsa_group_segment_fixed_size 0')
    A('  .amdhsa_kernarg_size 96')
    A('  .amdhsa_user_sgpr_count 2')
    A('  .amdhsa_user_sgpr_kernarg_segment_ptr 1')
    A('  .amdhsa_system_sgpr_workgroup_id_x 1')
    A('  .amdhsa_float_denorm_mode_32 3')
    A('.end_amdhsa_kernel')
    return A.text()

HEADER = open('parallel_sum__sliding_block_cached__glu_gated_bilinear__decode.s.ref').read().split('; Override launch')[0]

def full(cfg):
    body = gen(cfg)
    probs = check(body)
    for p in probs:
        if 'wide store WAR' in p and 'v_lshlrev_b32 v86, 4, v3' in p:
            continue
        print('HAZARD', p)
    return HEADER + f'; @launch grid=(256,1,1) block=(384,1,1) lds={LDS_BYTES}\n' + body

if __name__ == '__main__':
    cfg = Cfg()
    for a in sys.argv[2:]:
        k, v = a.split('=')
        old = getattr(cfg, k, None)
        setattr(cfg, k, v if ((isinstance(old, str) or v in ('lite', 'heavy')) and v not in ('False', 'True')) else eval(v))
    open(sys.argv[1], 'w').write(full(cfg))
```

```python
import sys
from asmlib import Asm, check

NAME = 'parallel_sum__sliding_block_cached__glu_gated_bilinear__decode_kernel'

EOFF  = 0
QA    = 0x1000
IDA   = 0x11000
BDELTA = 0x11000
GUO   = 0x23000
MLO   = 0x43000
OIO   = 0x48000
FIN   = 0xC8000
PROF  = 0x180000
WS_BYTES = 0x200000

L_K = 0
L_V = 32768
L_XN = 65536
L_PART = 66560
L_QB = 72704
L_HB = 73792
L_MODE = 73808
L_ML = 73824
L_OB = 73952
L_FINR = 73984
LDS_BYTES = 74240

sW, sG, sS, sTAG = 3, 4, 5, 6
SX, SK, SV, SWQ, SWO, SGA, SUP, SDN, SOUT, SWS = 40, 44, 48, 52, 56, 60, 64, 68, 72, 76
M0, M1, M2, M3 = 80, 82, 84, 86
sX0, sX1 = 90, 91
sIT = 92
sLOG2E, sSCALE = 93, 94
sMSK = 95
sP01, sP23 = 96, 97
sI0, sI1, sI2, sI3 = 98, 99, 100, 101
sRB, sT, sCB = 7, 8, 10
vTAG, vSH = 167, 166
vPROF = 165
def srd(n): return f's[{n}:{n+3}]'
def vr(n, k=4): return f'v[{n}:{n+k-1}]'

class Cfg:
    nt = 'nt'
    gat = 'sc1'
    nk1 = 8
    calib = 0
    ldsbytes = LDS_BYTES
    nvgpr = 168
    b1a = True
    win = None
    win2 = None
    exp_dirty = 0
    b1c = False
    nv2 = 4
    kwait = 4
    exp_cb = 0
    exp_hwid = False
    swap = True
    wo_early = -1
    b0 = 0
    prio = 3
    align = 12
    xnt = ''
    finpre = 0
    finpre_fl = 'nt'
    codepf_n = 4
    nv1 = 0
    b1b = True
    b3b = True
    maxit = 20000
    swit = 24
    prof = False
    dbgprof = None
    pretouch = 0
    pre_fl = 'nt'
    codepf = 's'
    forceslow = False
    forceb = False

ROW_FULL = ['quad_perm:[1,0,3,2]', 'quad_perm:[2,3,0,1]', 'row_half_mirror', 'row_mirror']

def rowred(A, regs, op, steps):
    for st in steps:
        A.nop(2 if len(regs) < 3 else max(0, 2 - (len(regs) - 1)))
        for v in regs:
            A(f'{op}_dpp v{v}, v{v}, v{v} {st} row_mask:0xf bank_mask:0xf')
        if len(regs) >= 3:
            pass

def cross_rows(A, v, tmp, op):
    A(f'v_mov_b32 v{tmp}, v{v}')
    A.nop(2)
    A(f'v_permlane16_swap_b32 v{tmp}, v{v}')
    A.nop(1)
    A(f'{op} v{v}, v{tmp}, v{v}')
    A(f'v_mov_b32 v{tmp}, v{v}')
    A.nop(2)
    A(f'v_permlane32_swap_b32 v{tmp}, v{v}')
    A.nop(1)
    A(f'{op} v{v}, v{tmp}, v{v}')

def wave_allreduce(A, v, tmp, op):
    rowred(A, [v], op, ROW_FULL)
    cross_rows(A, v, tmp, op)

def transpose_reduce4(A, v):
    A.nop(1)
    A(f'v_permlane32_swap_b32 v{v}, v{v+1}')
    A(f'v_permlane32_swap_b32 v{v+2}, v{v+3}')
    A.nop(1)
    A(f'v_add_f32 v{v}, v{v}, v{v+1}')
    A(f'v_add_f32 v{v+2}, v{v+2}, v{v+3}')
    A.nop(2)
    A(f'v_permlane16_swap_b32 v{v}, v{v+2}')
    A.nop(1)
    A(f'v_add_f32 v{v}, v{v}, v{v+2}')

def tag_insert(A, v):
    for k, s in enumerate((sI0, sI1, sI2, sI3)):
        A(f'v_perm_b32 v{v+k}, v{v+k}, v{vTAG}, s{s}')

def tag_check(A, v, t0, t1, first):
    A(f'v_perm_b32 v{t0}, v{v+1}, v{v}, s{sP01}')
    A(f'v_perm_b32 v{t1}, v{v+3}, v{v+2}, s{sP23}')
    A(f'v_or_b32 v{t0}, v{t0}, v{t1}')
    if first:
        A(f'v_cmp_ne_u32 s[88:89], s{sTAG}, v{t0}')
    else:
        A(f'v_cmp_ne_u32 s[90:91], s{sTAG}, v{t0}')
        A('s_or_b64 s[88:89], s[88:89], s[90:91]')

def mask_vals(A, v, n=4):
    for k in range(n):
        A(f'v_and_b32 v{v+k}, s{sMSK}, v{v+k}')

def build_sel(A, dst, val, tmp):
    A(f'v_lshlrev_b32 v{tmp}, v{vSH}, v{val}')
    for j, m in enumerate((M0, M1, M2, M3)):
        A(f'v_cndmask_b32_e64 v{dst+j}, 0, v{tmp}, s[{m}:{m+1}]')

class Prof:
    def __init__(self, A, cfg):
        self.A, self.on, self.prev, self.k = A, cfg.prof, None, 0
        self.lite = cfg.prof == 'lite'
    def reset(self, prev=None, k=0):
        if self.lite:
            self.prev = None
            return
        self.prev, self.k = prev, k
    def __call__(self, idx):
        if not self.on: return
        if self.on == 'lite' and idx not in (0, 15): return
        if idx >= 23 and self.on != 'heavy': return
        A = self.A
        if self.on == 'heavy' and self.prev is not None:
            A('s_waitcnt lgkmcnt(0)')
        if self.prev is not None:
            A(f'v_writelane_b32 v{vPROF}, s{28 + 2*self.k}, {self.prev}')
            self.k ^= 1
        A(f's_memrealtime s[{28+2*self.k}:{29+2*self.k}]')
        self.prev = None if self.lite else idx
    def flush(self):
        if not self.on: return
        if self.prev is None: return
        A = self.A
        A('s_waitcnt lgkmcnt(0)')
        A(f'v_writelane_b32 v{vPROF}, s{28 + 2*self.k}, {self.prev}')

def common_consts(A):
    A(f's_mov_b32 s{sLOG2E}, 0x3fb8aa3b')
    A(f's_mov_b32 s{sSCALE}, 0x3db504f3')
    A(f's_mov_b32 s{sMSK}, 0xffffff00')
    A(f's_mov_b32 s{sP01}, 0x0c0c0400')
    A(f's_mov_b32 s{sP23}, 0x04000c0c')
    A(f's_mov_b32 s{sI0}, 0x07060500')
    A(f's_mov_b32 s{sI1}, 0x07060501')
    A(f's_mov_b32 s{sI2}, 0x07060502')
    A(f's_mov_b32 s{sI3}, 0x07060503')

def poll_tail(A, cfg, label, oklabel, switch=None):
    A('s_cmp_eq_u64 s[88:89], 0')
    A(f's_cbranch_scc1 {oklabel}')
    A(f's_add_u32 s{sIT}, s{sIT}, 1')
    if switch:
        A(f's_cmp_eq_u32 s{sIT}, {cfg.swit}')
        A(f's_cselect_b32 s{switch}, {BDELTA}, s{switch}')
    A(f's_cmp_le_u32 s{sIT}, {cfg.maxit}')
    A(f's_cbranch_scc1 {label}')

def gen(cfg):
    A = Asm()
    P = Prof(A, cfg)
    nt = cfg.nt
    A('.amdgcn_target "amdgcn-amd-amdhsa--gfx950"')
    A('.text')
    A(f'.globl {NAME}')
    A(f'.p2align {cfg.align}')
    A(f'.type {NAME},@function')
    A.label(NAME)
    A('s_cmp_ge_u32 s2, 256')
    A('s_cbranch_scc1 L_end')
    P(0)
    if cfg.calib:
        A('s_memrealtime s[36:37]')
    for sr, off in ((SWQ, 24), (SX, 0), (SWS, 88), (SK, 8)):
        A(f's_load_dwordx2 s[{sr}:{sr+1}], s[0:1], {off}')
    A('v_lshrrev_b32 v2, 6, v0')
    A('v_and_b32 v1, 63, v0')
    A('s_and_b32 s4, s2, 7')
    A('v_readfirstlane_b32 s3, v2')
    A('s_lshr_b32 s5, s2, 3')
    A(f's_lshr_b32 s{sRB}, s5, 3')
    A(f's_and_b32 s{sCB}, s5, 7')
    for sr, n in ((SWQ, 4194304), (SX, 1024), (SWS, WS_BYTES), (SK, 134217728)):
        A(f's_mov_b32 s{sr+2}, {n}')
        A(f's_mov_b32 s{sr+3}, 0x20000')
    A('s_cmp_ge_u32 s3, 4')
    A('s_cbranch_scc1 L_comm0')
    A(f's_lshl_b32 s16, s{sRB}, 20')
    A('s_lshl_b32 s11, s3, 18')
    A('s_add_u32 s16, s16, s11')
    A('s_lshl_b32 s11, s4, 10')
    A('s_add_u32 s16, s16, s11')
    if cfg.exp_cb:
        A(f's_add_u32 s11, s{sCB}, {cfg.exp_cb}')
        A('s_and_b32 s11, s11, 7')
        A('s_lshl_b32 s11, s11, 7')
    else:
        A(f's_lshl_b32 s11, s{sCB}, 7')
    A('s_add_u32 s16, s16, s11')
    A('v_lshlrev_b32 v163, 4, v1')
    A('v_lshrrev_b32 v164, 3, v1')
    A('v_and_b32 v4, 0x70, v163')
    A('v_lshl_add_u32 v6, v164, 13, v4')
    A(f'v_mov_b32 v7, {EOFF}')
    A('s_add_u32 s17, s16, 65536')
    A('s_add_u32 s18, s16, 131072')
    A('s_add_u32 s19, s16, 196608')
    A('s_waitcnt lgkmcnt(0)')
    P(27)
    A(f'buffer_load_dwordx4 v[8:11], v163, {srd(SX)}, 0 offen {cfg.xnt}')
    A(f'buffer_load_dword v{vTAG}, v7, {srd(SWS)}, 0 offen {cfg.xnt}')
    if cfg.b0 == 1:
        A('s_barrier')
    for i in range(4):
        A(f'buffer_load_dwordx4 {vr(12+4*i)}, v6, {srd(SWQ)}, s{16+i} offen {nt}')
    for sr, off in ((SV, 16), (SGA, 48), (SUP, 56), (SWO, 32), (SDN, 64), (SOUT, 72)):
        A(f's_load_dwordx2 s[{sr}:{sr+1}], s[0:1], {off}')
    A('v_lshrrev_b32 v2, 4, v1')
    A('v_and_b32 v3, 15, v1')
    for i in range(4):
        A(f'v_add_u32 v5, {4*i}, v2')
        A('v_xor_b32 v5, v5, v3')
        A('v_lshlrev_b32 v5, 4, v5')
        A(f'v_lshl_add_u32 v{156+i}, v2, 8, v5')
    A('s_lshl_b32 s19, s4, 24')
    A('s_lshl_b32 s11, s5, 15')
    A('s_add_u32 s19, s19, s11')
    A('s_lshl_b32 s11, s3, 13')
    A('s_add_u32 s19, s19, s11')
    A('s_add_u32 s19, s19, 15728640')
    A('s_lshl_b32 s20, s3, 13')
    if cfg.swap:
        A('s_and_b32 s25, s4, 1')
        A('s_lshl_b32 s25, s25, 12')
    else:
        A('s_mov_b32 s25, 0')
    A('s_xor_b32 s26, s25, 4096')
    A('s_add_u32 s27, s19, s26')
    A('s_add_u32 s19, s19, s25')
    A('s_add_u32 s25, s25, s20')
    A('s_add_u32 s26, s26, s20')
    A('s_mov_b32 m0, s25')
    if cfg.b0 == 2:
        A('s_barrier')
    A.nop(1)
    def kloads(lo, hi):
        for i in range(lo, hi):
            if i == 4:
                A('s_mov_b32 m0, s26')
                A.nop(1)
            A(f'buffer_load_dwordx4 v{156+(i&3)}, {srd(SK)}, s{19 if i < 4 else 27} offen offset:{1024*(i&3)} {nt} lds')
    kloads(0, cfg.nk1)
    A('v_mul_u32_u24 v162, 3584, v164')
    A('v_add_u32 v161, v162, v4')
    A(f's_lshl_b32 s{sT}, s{sRB}, 3')
    A(f's_add_u32 s{sT}, s{sT}, s4')
    A(f's_cmp_lt_u32 s{sT}, 28')
    A('s_cselect_b32 s9, 1835008, 0')
    for sr, n in ((SV, 134217728), (SWO, 4194304), (SOUT, 1024)):
        A(f's_mov_b32 s{sr+2}, {n}')
        A(f's_mov_b32 s{sr+3}, 0x20000')
    for sr in (SGA, SUP, SDN):
        A(f's_mov_b32 s{sr+2}, s9')
        A(f's_mov_b32 s{sr+3}, 0x20000')
    A('s_branch L_cmp_go')
    A.label('L_comm0')
    if cfg.codepf:
        A('s_cmp_eq_u32 s3, 5')
        A('s_cbranch_scc0 L_nocodepf')
        A('s_getpc_b64 s[12:13]')
        A.label('L_pc')
        A(f's_sub_u32 s12, s12, L_pc-{NAME}')
        A('s_subb_u32 s13, s13, 0')
        A('s_lshl_b32 s14, s5, 6')
        A('s_add_u32 s12, s12, s14')
        A('s_addc_u32 s13, s13, 0')
        for i in range(cfg.codepf_n):
            A(f's_load_dword s{32+(i&3)}, s[12:13], {2048*i}')
        A.label('L_nocodepf')
    if cfg.prio:
        A(f's_setprio {cfg.prio}')
    if cfg.b0:
        A('s_barrier')
    A('s_branch L_comm')
    A.label('L_cmp_go')
    for m, lo in ((M0, 0x03030303), (M1, 0x0c0c0c0c), (M2, 0x30303030), (M3, 0xc0c0c0c0)):
        A(f's_mov_b32 s{m}, {hex(lo)}')
        A(f's_mov_b32 s{m+1}, {hex(lo)}')
    common_consts(A)
    A(f'v_and_b32 v{vSH}, 1, v1')
    A(f'v_lshlrev_b32 v{vSH}, 4, v{vSH}')
    A(f's_lshl_b32 s17, s{sCB}, 6')
    A('s_lshl_b32 s11, s3, 4')
    A('s_add_u32 s17, s17, s11')
    A('s_mul_i32 s17, s17, 3584')
    A(f's_lshl_b32 s11, s{sT}, 7')
    A('s_add_u32 s17, s17, s11')
    A('s_lshl_b32 s21, s4, 19')
    A('s_lshl_b32 s11, s5, 14')
    A('s_add_u32 s21, s21, s11')
    A('s_lshl_b32 s11, s3, 8')
    A('s_add_u32 s21, s21, s11')
    A(f's_lshl_b32 s22, s{sT}, 16')
    A(f's_lshl_b32 s23, s{sCB}, 13')
    A('s_add_u32 s22, s22, s23')
    A('s_add_u32 s22, s22, s11')
    A('v_lshlrev_b32 v162, 4, v3')
    A('v_lshl_add_u32 v162, v2, 10, v162')
    P(1)
    A.c('layernorm')
    A(f's_waitcnt vmcnt({4 + cfg.nk1})')
    P(2)
    for k in range(4):
        A(f'v_lshlrev_b32 v{80+2*k}, 16, v{8+k}')
        A(f'v_and_b32 v{81+2*k}, 0xffff0000, v{8+k}')
    A('v_add_f32 v88, v80, v81')
    A('v_add_f32 v89, v82, v83')
    A('v_add_f32 v90, v84, v85')
    A('v_add_f32 v91, v86, v87')
    A('v_add_f32 v88, v88, v89')
    A('v_add_f32 v90, v90, v91')
    A('v_add_f32 v88, v88, v90')
    wave_allreduce(A, 88, 89, 'v_add_f32')
    A('v_mul_f32 v88, 0x3b000000, v88')
    for k in range(8):
        A(f'v_sub_f32 v{92+k}, v{80+k}, v88')
    A('v_mul_f32 v90, v92, v92')
    for k in range(1, 8):
        A(f'v_fmac_f32 v90, v{92+k}, v{92+k}')
    wave_allreduce(A, 90, 89, 'v_add_f32')
    P(23)
    A('v_mul_f32 v90, 0x3b000000, v90')
    A('v_cvt_pk_bf16_f32 v88, v88, v90')
    A('v_and_b32 v90, 0xffff0000, v88')
    A('v_lshlrev_b32 v88, 16, v88')
    A('v_add_f32 v90, 0x3727c5ac, v90')
    A('v_cvt_pk_bf16_f32 v90, v90, v90')
    A('v_lshlrev_b32 v90, 16, v90')
    A('v_sqrt_f32 v90, v90')
    for k in range(8):
        A(f'v_sub_f32 v{92+k}, v{80+k}, v88')
    A('v_cvt_pk_bf16_f32 v90, v90, v90')
    A('v_lshlrev_b32 v90, 16, v90')
    A('v_rcp_f32 v90, v90')
    for k in range(4):
        A(f'v_cvt_pk_bf16_f32 v{100+k}, v{92+2*k}, v{93+2*k}')
    for k in range(4):
        A(f'v_lshlrev_b32 v{92+2*k}, 16, v{100+k}')
        A(f'v_and_b32 v{93+2*k}, 0xffff0000, v{100+k}')
    for k in range(8):
        A(f'v_mul_f32 v{92+k}, v{92+k}, v90')
    for k in range(4):
        A(f'v_cvt_pk_bf16_f32 v{100+k}, v{92+2*k}, v{93+2*k}')
    A(f'v_add_u32 v104, {L_XN}, v163')
    A('ds_write_b128 v104, v[100:103]')
    P(24)
    A('v_lshrrev_b32 v105, 3, v3')
    A('v_lshl_add_u32 v105, v2, 1, v105')
    A(f's_lshl_b32 s11, s{sRB}, 7')
    A('s_lshl_b32 s12, s3, 5')
    A('s_add_u32 s11, s11, s12')
    A('s_lshl_b32 s11, s11, 1')
    A(f's_add_u32 s11, s11, {L_XN}')
    A('v_lshl_add_u32 v106, v105, 1, s11')
    A(f's_lshl_b32 s11, s{sCB}, 6')
    A('s_lshl_b32 s12, s3, 4')
    A('s_add_u32 s11, s11, s12')
    A('s_lshl_b32 s11, s11, 1')
    A(f's_add_u32 s11, s11, {L_XN}')
    A('v_lshl_add_u32 v107, v105, 1, s11')
    A('s_waitcnt lgkmcnt(0)')
    for i in range(4):
        A(f'ds_read_u16 v{80+i}, v106 offset:{16*i}')
    for i in range(2):
        A(f'ds_read_u16 v{84+i}, v107 offset:{16*i}')
    A(f'v_add_u32 v{vTAG}, 0x01010101, v{vTAG}')
    P(25)
    kloads(cfg.nk1, 8)
    P(26)
    A.nop(1)
    A(f'v_readfirstlane_b32 s6, v{vTAG}')
    A('s_waitcnt lgkmcnt(0)')
    for i in range(4):
        build_sel(A, 48+4*i, 80+i, 86)
    for i in range(2):
        build_sel(A, 64+4*i, 84+i, 86)
    for i, r in ((0, 160), (1, 164)):
        A(f'v_add_u32 v86, {4*i}, v2')
        A('v_lshlrev_b32 v86, 1, v86')
        A('v_xor_b32 v86, v86, v3')
        A('v_lshlrev_b32 v86, 4, v86')
        A(f'v_lshl_add_u32 v{r}, v2, 8, v86')
    A('v_lshrrev_b32 v87, 5, v1')
    A('v_lshlrev_b32 v87, 8, v87')
    A('v_and_b32 v86, 7, v1')
    A('v_lshl_add_u32 v87, v86, 5, v87')
    A('v_and_b32 v86, 1, v2')
    A('v_lshl_add_u32 v87, v86, 4, v87')
    A('s_lshl_b32 s11, s3, 9')
    A(f's_add_u32 s11, s11, {L_PART}')
    A('v_add_u32 v163, s11, v87')
    P(3)
    A.c('q partial product')
    A('s_waitcnt vmcnt(8)')
    P(16)
    for i in range(4):
        A(f'v_mfma_f32_16x16x32_bf16 v[72:75], {vr(48+4*i)}, {vr(12+4*i)}, {"0" if i == 0 else "v[72:75]"}')
    A('s_mov_b32 exec_lo, 0x00ff00ff')
    A('s_mov_b32 exec_hi, 0xff00ff00')
    A.nop(6)
    A('ds_write_b128 v163, v[72:75]')
    A('s_mov_b64 exec, -1')
    A('s_waitcnt lgkmcnt(0)')
    A('s_barrier')
    P(4)
    A('s_cmp_lg_u32 s3, 3')
    A('s_cbranch_scc1 L_pub1_done')
    A('v_lshlrev_b32 v86, 4, v3')
    A(f'v_add_u32 v87, {L_PART}, v86')
    for k in range(8):
        A(f'ds_read_b128 {vr(80+4*k+32)}, v87 offset:{256*k}')
    A('s_lshl_b32 s11, s4, 2')
    A(f's_add_u32 s11, s11, s{sRB}')
    A('s_lshl_b32 s11, s11, 11')
    A(f's_lshl_b32 s12, s{sCB}, 8')
    A('s_add_u32 s11, s11, s12')
    A(f's_add_u32 s11, s11, {QA}')
    A('v_add_u32 v86, s11, v86')
    A('s_lshl_b32 s12, s4, 9')
    A('s_lshl_b32 s13, s5, 4')
    A('s_add_u32 s12, s12, s13')
    A(f's_add_u32 s12, s12, {IDA}')
    A('v_mov_b32 v87, s12')
    A('v_cmp_eq_u32 vcc, 0, v2')
    A('s_getreg_b32 s13, hwreg(HW_REG_XCC_ID, 0, 4)')
    A('s_lshl_b32 s13, s13, 8')
    A('v_cndmask_b32 v86, v87, v86, vcc')
    A('s_waitcnt lgkmcnt(0)')
    for k in range(4):
        A(f'v_add_f32 v{112+k}, v{112+k}, v{116+k}')
        A(f'v_add_f32 v{120+k}, v{120+k}, v{124+k}')
        A(f'v_add_f32 v{128+k}, v{128+k}, v{132+k}')
        A(f'v_add_f32 v{136+k}, v{136+k}, v{140+k}')
    for k in range(4):
        A(f'v_add_f32 v{112+k}, v{112+k}, v{120+k}')
        A(f'v_add_f32 v{128+k}, v{128+k}, v{136+k}')
    for k in range(4):
        A(f'v_add_f32 v{112+k}, v{112+k}, v{128+k}')
    A('v_mov_b32 v116, s13')
    A('v_cndmask_b32 v112, v116, v112, vcc')
    tag_insert(A, 112)
    A('s_mov_b32 exec_lo, 0x0001ffff')
    A('s_mov_b32 exec_hi, 0')
    if not cfg.forceb:
        A(f'buffer_store_dwordx4 v[112:115], v86, {srd(SWS)}, 0 offen')
    A(f's_mov_b32 s12, {BDELTA}')
    A(f'buffer_store_dwordx4 v[112:115], v86, {srd(SWS)}, s12 offen sc1')
    A('s_mov_b64 exec, -1')
    A.label('L_pub1_done')
    if cfg.b1a:
        A('s_barrier')
    nst = (1 if cfg.forceb else 2)
    A.c('gate/up loads, V loads')
    A('s_add_u32 s18, s17, 28672')
    A(f'buffer_load_dwordx4 {vr(8)}, v161, {srd(SGA)}, s17 offen {nt}')
    A(f'buffer_load_dwordx4 {vr(12)}, v161, {srd(SGA)}, s18 offen {nt}')
    A(f'buffer_load_dwordx4 {vr(16)}, v161, {srd(SUP)}, s17 offen {nt}')
    A(f'buffer_load_dwordx4 {vr(20)}, v161, {srd(SUP)}, s18 offen {nt}')
    def vloads(lo, hi, win=None):
        for i in range(lo, hi):
            if win:
                A(f's_waitcnt vmcnt({win-1})')
            if i % 4 == 0 or i == lo:
                A(f's_add_u32 m0, s{25 if i < 4 else 26}, {L_V}')
                A.nop(1)
            A(f'buffer_load_dwordx4 v{(160, 164)[i&1]}, {srd(SV)}, s{19 if i < 4 else 27} offen offset:{1024*(i&3)} {nt} lds')
    vloads(0, cfg.nv1)
    if cfg.kwait is not None:
        A('s_cmp_eq_u32 s3, 3')
        A('s_cbranch_scc1 L_nokwait')
        A(f's_waitcnt vmcnt({cfg.kwait + cfg.nv1})')
        A.label('L_nokwait')
    if cfg.b1b:
        A('s_barrier')
    P(5)
    if cfg.b1c:
        vloads(cfg.nv1, cfg.nv2)
        A('s_barrier')
        vloads(cfg.nv2, 8)
    else:
        vloads(cfg.nv1, 8, cfg.win)
    def wo_loads(win=None):
        A('s_mov_b32 s13, s21')
        for i in range(4):
            if i:
                A('s_add_u32 s13, s13, 4096')
            if win:
                A(f's_waitcnt vmcnt({win-1})')
            A(f'buffer_load_dwordx4 {vr(24+4*i)}, v162, {srd(SWO)}, s13 offen {nt}')
    def dn_loads(win=None):
        A('s_add_u32 s13, s22, 4096')
        if win:
            A(f's_waitcnt vmcnt({win-1})')
        A(f'buffer_load_dwordx4 {vr(40)}, v162, {srd(SDN)}, s22 offen {nt}')
        if win:
            A(f's_waitcnt vmcnt({win-1})')
        A(f'buffer_load_dwordx4 {vr(44)}, v162, {srd(SDN)}, s13 offen {nt}')
    nearly = 0
    if cfg.wo_early >= 1:
        wo_loads(); nearly += 4
    if cfg.wo_early >= 2:
        dn_loads(); nearly += 2
    A.c('gate/up partial products')
    P(17)
    A(f's_waitcnt vmcnt({8 + nearly})')
    P(18)
    for i in range(2):
        A(f'v_mfma_f32_16x16x32_bf16 v[72:75], {vr(64+4*i)}, {vr(8+4*i)}, {"0" if i == 0 else "v[72:75]"}')
    for i in range(2):
        A(f'v_mfma_f32_16x16x32_bf16 v[76:79], {vr(64+4*i)}, {vr(16+4*i)}, {"0" if i == 0 else "v[76:79]"}')
    for j in range(4):
        A(f'v_or_b32 v86, {4*j}, v2')
        A('v_xor_b32 v86, v86, v3')
        A('v_lshlrev_b32 v86, 4, v86')
        A(f'v_lshl_add_u32 v{156+j}, v3, 8, v86')
        A(f'v_add_u32 v{156+j}, s20, v{156+j}')
    A('s_mov_b32 exec_lo, 0x00ff00ff')
    A('s_mov_b32 exec_hi, 0xff00ff00')
    A('ds_write_b128 v163, v[72:75] offset:2048')
    A('ds_write_b128 v163, v[76:79] offset:4096')
    A('s_mov_b64 exec, -1')
    A('v_and_b32 v86, 3, v1')
    A('v_mul_u32_u24 v86, 272, v86')
    A('v_lshl_add_u32 v4, v2, 4, v86')
    A(f'v_add_u32 v4, {L_QB}, v4')
    A('v_lshrrev_b32 v86, 2, v3')
    A('v_lshl_add_u32 v87, v2, 2, v86')
    A('v_and_b32 v86, 7, v87')
    A('v_lshlrev_b32 v87, 8, v87')
    A('v_lshl_add_u32 v87, v86, 5, v87')
    A('v_and_b32 v86, 3, v3')
    A('v_lshl_add_u32 v87, v86, 3, v87')
    A(f's_add_u32 s11, s20, {L_V}')
    A('v_add_u32 v5, s11, v87')
    A('s_waitcnt lgkmcnt(0)')
    P(6)
    A('s_barrier')
    P(7)
    A.c('scores')
    for j in range(4):
        A(f'ds_read_b128 {vr(112+4*j)}, v4 offset:{64*j}')
    for t in range(2):
        for j in range(4):
            A(f'ds_read_b128 {vr(80+16*t+4*j)}, v{156+j} offset:{L_K + 4096*t}')
    if cfg.wo_early == 0:
        wo_loads()
    for j in range(4):
        A(f's_waitcnt lgkmcnt({7-j})')
        A(f'v_mfma_f32_16x16x32_bf16 v[144:147], {vr(80+4*j)}, {vr(112+4*j)}, {"0" if j == 0 else "v[144:147]"}')
    for j in range(4):
        A(f's_waitcnt lgkmcnt({3-j})')
        A(f'v_mfma_f32_16x16x32_bf16 v[148:151], {vr(96+4*j)}, {vr(112+4*j)}, {"0" if j == 0 else "v[148:151]"}')
    if 0 <= cfg.wo_early < 2:
        dn_loads()
    A(f'v_mov_b32 v6, {L_MODE}')
    A('ds_read_b32 v7, v6')
    A.nop(4 if 0 <= cfg.wo_early < 2 else 7)
    A.c('softmax')
    for k in range(4):
        A(f'v_cvt_pk_bf16_f32 v{152+k}, v{144+2*k}, v{145+2*k}')
    for k in range(4):
        A(f'v_lshlrev_b32 v{144+2*k}, 16, v{152+k}')
        A(f'v_and_b32 v{145+2*k}, 0xffff0000, v{152+k}')
    for k in range(8):
        A(f'v_mul_f32 v{144+k}, s{sSCALE}, v{144+k}')
    for k in range(4):
        A(f'v_cvt_pk_bf16_f32 v{152+k}, v{144+2*k}, v{145+2*k}')
    for k in range(4):
        A(f'v_lshlrev_b32 v{144+2*k}, 16, v{152+k}')
        A(f'v_and_b32 v{145+2*k}, 0xffff0000, v{152+k}')
    A('v_max3_f32 v156, v144, v145, v146')
    A('v_max3_f32 v157, v147, v148, v149')
    A('v_max3_f32 v156, v156, v150, v151')
    A('v_max_f32 v156, v156, v157')
    cross_rows(A, 156, 157, 'v_max_f32')
    A(f'v_mul_f32 v157, s{sLOG2E}, v156')
    for k in range(8):
        A(f'v_fma_f32 v{144+k}, v{144+k}, s{sLOG2E}, -v157')
    for k in range(8):
        A(f'v_exp_f32 v{144+k}, v{144+k}')
    A.nop(1)
    for k in range(4):
        A(f'v_cvt_pk_bf16_f32 v{152+k}, v{144+2*k}, v{145+2*k}')
    A('v_add_f32 v158, v144, v145')
    A('v_add_f32 v157, v146, v147')
    A('v_add_f32 v144, v148, v149')
    A('v_add_f32 v145, v150, v151')
    A('v_add_f32 v158, v158, v157')
    A('v_add_f32 v144, v144, v145')
    A('v_add_f32 v158, v158, v144')
    cross_rows(A, 158, 157, 'v_add_f32')
    A('v_mov_b32 v144, v5')
    for T in range(1, 8):
        A(f'v_xor_b32 v{144+T}, {T*32}, v5')
    A('s_waitcnt lgkmcnt(0)')
    A('v_readfirstlane_b32 s24, v7')
    A('v_and_b32 v86, 3, v1')
    A('v_mul_u32_u24 v87, 528, v86')
    A('v_lshl_add_u32 v87, v2, 4, v87')
    A('v_add_u32 v6, s20, v87')
    A('s_lshl_b32 s11, s3, 2')
    A(f's_add_u32 s11, s11, {L_ML}')
    A('v_lshlrev_b32 v86, 5, v86')
    A('v_add_u32 v7, s11, v86')
    P(8)
    if cfg.wo_early == -1:
        wo_loads(cfg.win2)
        dn_loads(cfg.win2)
    A.c('PV')
    A('s_waitcnt vmcnt(6)')
    P(9)
    for T in range(8):
        A(f'ds_read_b64_tr_b16 v[{80+4*T}:{81+4*T}], v{144+T}')
        A(f'ds_read_b64_tr_b16 v[{82+4*T}:{83+4*T}], v{144+T} offset:4096')
    for T in range(8):
        A(f's_waitcnt lgkmcnt({14-2*T})')
        A(f'v_mfma_f32_16x16x32_bf16 {vr(112+4*T)}, {vr(80+4*T)}, v[152:155], 0')
    A('s_mov_b32 exec_lo, 0x000f000f')
    A('s_mov_b32 exec_hi, 0x000f000f')
    A('ds_write_b32 v7, v156')
    A('ds_write_b32 v7, v158 offset:16')
    A.nop(1)
    for T in range(8):
        A(f'ds_write_b128 v6, {vr(112+4*T)} offset:{64*T}')
    A('s_mov_b64 exec, -1')
    A('s_waitcnt lgkmcnt(0)')
    A('s_barrier')
    P(10)
    A('s_cmp_eq_u32 s3, 3')
    A('s_cbranch_scc1 L_gupub')
    A.c('o partial publish (waves 0..2)')
    A('v_lshrrev_b32 v86, 5, v0')
    A('v_and_b32 v87, 3, v1')
    A('s_cmp_eq_u32 s3, 2')
    A('s_cselect_b64 vcc, -1, 0')
    A('v_cndmask_b32 v86, v86, v87, vcc')
    A('v_lshlrev_b32 v87, 5, v86')
    A(f'v_add_u32 v87, {L_ML}, v87')
    A('ds_read_b128 v[80:83], v87')
    A('ds_read_b128 v[84:87], v87 offset:16') if False else None
    A('ds_read_b128 v[88:91], v87 offset:16')
    A('v_mul_u32_u24 v87, 528, v86')
    A('v_and_b32 v92, 31, v0')
    A('v_lshl_add_u32 v87, v92, 4, v87')
    for w in range(4):
        A(f'ds_read_b128 {vr(96+4*w)}, v87 offset:{8192*w}')
    A('v_lshrrev_b32 v93, 2, v92')
    A('v_lshl_add_u32 v93, v86, 3, v93')
    A('v_lshlrev_b32 v93, 11, v93')
    A('v_and_b32 v92, 3, v92')
    A('v_lshl_add_u32 v93, v92, 4, v93')
    A('s_lshl_b32 s11, s4, 16')
    A('s_lshl_b32 s12, s5, 6')
    A('s_add_u32 s11, s11, s12')
    A(f's_add_u32 s11, s11, {OIO}')
    A('v_add_u32 v93, s11, v93')
    A('s_lshl_b32 s11, s4, 11')
    A('s_lshl_b32 s12, s5, 4')
    A('s_add_u32 s11, s11, s12')
    A(f's_add_u32 s11, s11, {MLO}')
    A('v_lshl_add_u32 v94, v86, 9, s11')
    A('v_cndmask_b32 v93, v93, v94, vcc')
    A('s_waitcnt lgkmcnt(4)')
    A('v_max3_f32 v94, v80, v81, v82')
    A('v_max_f32 v94, v94, v83')
    for w in range(4):
        A(f'v_sub_f32 v{80+w}, v{80+w}, v94')
    for w in range(4):
        A(f'v_mul_f32 v{80+w}, s{sLOG2E}, v{80+w}')
    for w in range(4):
        A(f'v_exp_f32 v{80+w}, v{80+w}')
    A.nop(1)
    A('v_mul_f32 v95, v80, v88')
    for w in range(1, 4):
        A(f'v_fmac_f32 v95, v{80+w}, v{88+w}')
    A('s_waitcnt lgkmcnt(0)')
    for k in range(4):
        A(f'v_mul_f32 v{84+k}, v80, v{96+k}')
    for w in range(1, 4):
        for k in range(4):
            A(f'v_fmac_f32 v{84+k}, v{80+w}, v{96+4*w+k}')
    A('v_cndmask_b32 v84, v84, v94, vcc')
    A('v_cndmask_b32 v85, v85, v95, vcc')
    tag_insert(A, 84)
    A('s_cmp_eq_u32 s3, 2')
    A('s_cselect_b32 exec_lo, 15, -1')
    A('s_cselect_b32 exec_hi, 0, -1')
    A('s_cmp_eq_u32 s24, 1')
    A('s_cbranch_scc0 L_opub_slow')
    A(f'buffer_store_dwordx4 v[84:87], v93, {srd(SWS)}, 0 offen')
    A('s_branch L_pub2_done')
    A.label('L_opub_slow')
    A(f'buffer_store_dwordx4 v[84:87], v93, {srd(SWS)}, 0 offen sc1')
    A('s_branch L_pub2_done')
    A.label('L_gupub')
    A.c('gate/up partial publish (wave 3): lanes 0..15 gate, 16..31 up')
    A('v_lshlrev_b32 v86, 4, v3')
    A('v_and_b32 v87, 1, v2')
    A('v_lshl_add_u32 v87, v87, 11, v86')
    A(f'v_add_u32 v87, {L_PART + 2048}, v87')
    for k in range(8):
        A(f'ds_read_b128 {vr(112+4*k)}, v87 offset:{256*k}')
    A('s_lshl_b32 s12, s4, 2')
    A(f's_add_u32 s12, s12, s{sRB}')
    A('s_lshl_b32 s12, s12, 3')
    A(f's_add_u32 s12, s12, s{sCB}')
    A('s_lshl_b32 s12, s12, 9')
    A(f's_add_u32 s12, s12, {GUO}')
    A('v_and_b32 v87, 1, v2')
    A('v_lshl_add_u32 v86, v87, 8, v86')
    A('v_add_u32 v86, s12, v86')
    A('s_waitcnt lgkmcnt(0)')
    for k in range(4):
        A(f'v_add_f32 v{112+k}, v{112+k}, v{116+k}')
        A(f'v_add_f32 v{120+k}, v{120+k}, v{124+k}')
        A(f'v_add_f32 v{128+k}, v{128+k}, v{132+k}')
        A(f'v_add_f32 v{136+k}, v{136+k}, v{140+k}')
    for k in range(4):
        A(f'v_add_f32 v{112+k}, v{112+k}, v{120+k}')
        A(f'v_add_f32 v{128+k}, v{128+k}, v{136+k}')
    for k in range(4):
        A(f'v_add_f32 v{112+k}, v{112+k}, v{128+k}')
    tag_insert(A, 112)
    A('s_mov_b32 exec_hi, 0')
    A('s_cmp_eq_u32 s24, 1')
    A('s_cbranch_scc0 L_gupub_slow')
    A(f'buffer_store_dwordx4 v[112:115], v86, {srd(SWS)}, 0 offen')
    A('s_branch L_pub2_done')
    A.label('L_gupub_slow')
    A(f'buffer_store_dwordx4 v[112:115], v86, {srd(SWS)}, 0 offen sc1')
    A.label('L_pub2_done')
    A('s_mov_b64 exec, -1')
    if cfg.b3b:
        A('s_barrier')
    P(11)
    A('v_lshlrev_b32 v6, 1, v2')
    A(f'v_add_u32 v7, {L_HB}, v6')
    A(f'v_add_u32 v6, {L_OB}, v6')
    A('v_lshrrev_b32 v86, 2, v3')
    A('v_lshl_add_u32 v86, v2, 2, v86')
    A('s_lshl_b32 s11, s3, 3')
    A('v_add_u32 v86, s11, v86')
    A('v_lshlrev_b32 v86, 14, v86')
    A('v_and_b32 v87, 3, v3')
    A('v_lshl_add_u32 v86, v87, 4, v86')
    A('s_lshl_b32 s11, s2, 6')
    A(f's_add_u32 s11, s11, {FIN}')
    A('v_add_u32 v5, s11, v86')
    A('s_barrier')
    P(12)
    A.c('output projection')
    for i in range(2):
        A(f'ds_read_u16 v{84+i}, v7 offset:{8*i}')
    for i in range(4):
        A(f'ds_read_u16 v{80+i}, v6 offset:{8*i}')
    for i in range(2):
        A(f's_waitcnt lgkmcnt({5-i})')
        build_sel(A, 64+4*i, 84+i, 86)
    for i in range(4):
        A(f's_waitcnt lgkmcnt({3-i})')
        build_sel(A, 48+4*i, 80+i, 86)
    A('s_waitcnt vmcnt(1)')
    for i in range(4):
        A(f'v_mfma_f32_16x16x32_bf16 v[72:75], {vr(48+4*i)}, {vr(24+4*i)}, {"0" if i == 0 else "v[72:75]"}')
    for i in range(2):
        A(f'v_mfma_f32_16x16x32_bf16 v[72:75], {vr(64+4*i)}, {vr(40+4*i)}, v[72:75]')
    A('s_mov_b32 exec_hi, 0')
    A.nop(7)
    tag_insert(A, 72)
    A(f'buffer_store_dwordx4 v[72:75], v5, {srd(SWS)}, 0 offen sc1')
    A('s_mov_b64 exec, -1')
    P(13)
    P.flush(); P.reset()
    A('s_cmp_ge_u32 s2, 32')
    A('s_cbranch_scc1 L_done')
    A.c('final reduce')
    A('s_lshr_b32 s11, s2, 3')
    A('s_lshl_b32 s11, s11, 7')
    A('s_and_b32 s12, s2, 3')
    A('s_lshl_b32 s12, s12, 5')
    A('s_add_u32 s11, s11, s12')
    A('s_bfe_u32 s12, s2, 0x10002')
    A('s_lshl_b32 s12, s12, 2')
    A('s_add_u32 s11, s11, s12')
    A('v_lshrrev_b32 v100, 2, v3')
    A('v_lshlrev_b32 v100, 3, v100')
    A('v_and_b32 v101, 3, v3')
    A('v_add3_u32 v100, v100, v101, s11')
    A('v_lshlrev_b32 v100, 1, v100')
    A(f'buffer_load_ushort v101, v100, {srd(SX)}, 0 offen {cfg.xnt}')
    A('s_lshl_b32 s11, s2, 14')
    A(f's_add_u32 s11, s11, {FIN}')
    A('v_lshlrev_b32 v6, 4, v0')
    A('v_add_u32 v6, s11, v6')
    A(f's_mov_b32 s{sIT}, 0')
    A('s_mov_b32 s12, 4096')
    A('s_mov_b32 s13, 8192')
    A('s_mov_b32 s14, 12288')
    A.label('L_fgat')
    A(f'buffer_load_dwordx4 v[80:83], v6, {srd(SWS)}, 0 offen {cfg.gat}')
    A(f'buffer_load_dwordx4 v[84:87], v6, {srd(SWS)}, s12 offen {cfg.gat}')
    A(f'buffer_load_dwordx4 v[88:91], v6, {srd(SWS)}, s13 offen {cfg.gat}')
    A(f'buffer_load_dwordx4 v[92:95], v6, {srd(SWS)}, s14 offen {cfg.gat}')
    A('s_waitcnt vmcnt(0)')
    for q in range(4):
        tag_check(A, 80+4*q, 96, 97, q == 0)
    poll_tail(A, cfg, 'L_fgat', 'L_fok')
    A.label('L_fok')
    if cfg.prof in (True, 'heavy'):
        A(f'v_writelane_b32 v{vPROF}, s{sIT}, 22')
    P(14)
    P.flush(); P.reset()
    mask_vals(A, 80, 16)
    for k in range(4):
        A(f'v_add_f32 v{80+k}, v{80+k}, v{84+k}')
        A(f'v_add_f32 v{88+k}, v{88+k}, v{92+k}')
    for k in range(4):
        A(f'v_add_f32 v{80+k}, v{80+k}, v{88+k}')
    transpose_reduce4(A, 80)
    rowred(A, [80], 'v_add_f32', ['row_ror:8', 'row_ror:4'])
    A('v_and_b32 v86, 1, v2')
    A('v_lshlrev_b32 v86, 1, v86')
    A('v_lshrrev_b32 v87, 1, v2')
    A('v_or_b32 v86, v86, v87')
    A('v_and_b32 v87, 3, v1')
    A('v_lshl_add_u32 v86, v87, 2, v86')
    A('v_lshlrev_b32 v86, 4, v86')
    A('s_lshl_b32 s11, s3, 2')
    A(f's_add_u32 s11, s11, {L_FINR}')
    A('v_add_u32 v86, s11, v86')
    A('s_mov_b32 exec_lo, 0x000f000f')
    A('s_mov_b32 exec_hi, 0x000f000f')
    A('ds_write_b32 v86, v80')
    A('s_mov_b64 exec, -1')
    A('s_waitcnt lgkmcnt(0)')
    A('s_barrier')
    A('s_cmp_lg_u32 s3, 0')
    A('s_cbranch_scc1 L_done')
    A('v_lshlrev_b32 v86, 4, v3')
    A(f'v_add_u32 v86, {L_FINR}, v86')
    A('ds_read_b128 v[80:83], v86')
    A('v_lshlrev_b32 v101, 16, v101')
    A('s_waitcnt lgkmcnt(0)')
    A('v_add_f32 v80, v80, v81')
    A('v_add_f32 v82, v82, v83')
    A('v_add_f32 v80, v80, v82')
    A('v_add_f32 v80, v80, v101')
    A('v_cvt_pk_bf16_f32 v80, v80, v80')
    if cfg.calib:
        A('s_cmp_lg_u32 s2, 0')
        A('s_cbranch_scc1 L_nocal')
        A(f's_add_u32 s36, s36, {cfg.calib}')
        A.label('L_cal')
        A('s_memrealtime s[38:39]')
        A('s_waitcnt lgkmcnt(0)')
        A('s_sub_u32 s37, s38, s36')
        A('s_cmp_lt_i32 s37, 0')
        A('s_cbranch_scc1 L_cal')
        A.label('L_nocal')
    A('s_mov_b64 exec, 0xffff')
    A(f'buffer_store_short v80, v100, {srd(SOUT)}, 0 offen')
    A('s_cmp_lg_u32 s2, 0')
    A('s_cbranch_scc1 L_noepoch')
    A('s_mov_b64 exec, 1')
    A(f'v_mov_b32 v81, {EOFF}')
    A(f'v_mov_b32 v82, s{sTAG}')
    A(f'buffer_store_dword v82, v81, {srd(SWS)}, 0 offen sc1')
    A.label('L_noepoch')
    A('s_mov_b64 exec, -1')
    A('s_branch L_done')
    A.label('L_comm')
    P.reset(prev=0, k=0)
    P(1)
    A(f's_lshl_b32 s{sT}, s{sRB}, 3')
    A(f's_add_u32 s{sT}, s{sT}, s4')
    A('v_lshrrev_b32 v2, 4, v1')
    A('v_and_b32 v3, 15, v1')
    common_consts(A)
    A(f'v_mov_b32 v4, {EOFF}')
    if cfg.exp_dirty:
        A('s_cmp_eq_u32 s3, 4')
        A('s_cbranch_scc0 L_nodirty')
        A('s_waitcnt lgkmcnt(0)')
        A(f's_mov_b32 s{SWS+2}, 0x2000000')
        A(f's_mul_i32 s11, s2, {cfg.exp_dirty*1024}')
        A('s_add_u32 s11, s11, 0x400000')
        A('v_lshlrev_b32 v20, 4, v1')
        for i in range(cfg.exp_dirty):
            A(f'buffer_store_dwordx4 v[16:19], v20, {srd(SWS)}, s11 offen')
            A('s_add_u32 s11, s11, 1024')
        A.label('L_nodirty')
    def pretouch():
        A('s_cmp_eq_u32 s3, 4')
        A('s_cbranch_scc0 L_nopre')
        A('s_waitcnt lgkmcnt(0)')
        A('s_lshl_b32 s11, s4, 5')
        A('s_add_u32 s11, s11, s5')
        A('s_lshl_b32 s12, s11, 11')
        A(f's_add_u32 s12, s12, {OIO}')
        A('v_lshl_add_u32 v10, v1, 7, s12')
        A('s_lshl_b32 s12, s11, 9')
        A(f's_add_u32 s12, s12, {GUO - 16*128}')
        A('v_lshl_add_u32 v11, v1, 7, s12')
        A('v_cmp_le_u32 vcc, 16, v1')
        A('s_lshl_b32 s12, s11, 8')
        A(f's_add_u32 s12, s12, {QA - 20*128}')
        A('v_cndmask_b32 v10, v10, v11, vcc')
        A('v_lshl_add_u32 v11, v1, 7, s12')
        A('v_cmp_le_u32 vcc, 20, v1')
        A('s_lshl_b32 s12, s4, 9')
        A('s_and_b32 s13, s5, 3')
        A('s_lshl_b32 s13, s13, 7')
        A('s_add_u32 s12, s12, s13')
        A(f's_add_u32 s12, s12, {IDA}')
        A('v_cndmask_b32 v10, v10, v11, vcc')
        A('v_mov_b32 v11, s12')
        A('v_cmp_le_u32 vcc, 22, v1')
        A('s_lshl_b32 s12, s4, 11')
        A('s_and_b32 s13, s5, 15')
        A('s_lshl_b32 s13, s13, 7')
        A('s_add_u32 s12, s12, s13')
        A(f's_add_u32 s12, s12, {MLO}')
        A('v_cndmask_b32 v10, v10, v11, vcc')
        A('v_mov_b32 v11, s12')
        A('v_cmp_le_u32 vcc, 23, v1')
        A.nop(2)
        A('v_cndmask_b32 v10, v10, v11, vcc')
        A('s_mov_b64 exec, 0xffffff')
        A(f'buffer_load_dword v12, v10, {srd(SWS)}, 0 offen {cfg.pre_fl}')
        A('s_mov_b64 exec, -1')
        A.label('L_nopre')
    if cfg.pretouch == 1:
        pretouch()
    if cfg.finpre == 1:
        A('s_cmp_eq_u32 s3, 5')
        A('s_cbranch_scc0 L_nofinpre')
        A('s_cmp_lt_u32 s2, 32')
        A('s_cbranch_scc0 L_nofinpre')
        A('s_waitcnt lgkmcnt(0)')
        A('s_lshl_b32 s11, s2, 14')
        A(f's_add_u32 s11, s11, {FIN}')
        A('v_lshl_add_u32 v10, v1, 7, s11')
        A('s_mov_b32 s12, 8192')
        A(f'buffer_load_dword v12, v10, {srd(SWS)}, 0 offen {cfg.finpre_fl}')
        A(f'buffer_load_dword v13, v10, {srd(SWS)}, s12 offen {cfg.finpre_fl}')
        A.label('L_nofinpre')
    elif cfg.finpre == 2:
        A('s_cmp_eq_u32 s3, 5')
        A('s_cbranch_scc0 L_nofinpre')
        A('s_waitcnt lgkmcnt(0)')
        A('s_lshl_b32 s11, s2, 11')
        A(f's_add_u32 s11, s11, {FIN}')
        A('v_lshl_add_u32 v10, v1, 7, s11')
        A('s_mov_b64 exec, 0xffff')
        A(f'buffer_load_dword v12, v10, {srd(SWS)}, 0 offen {cfg.finpre_fl}')
        A('s_mov_b64 exec, -1')
        A.label('L_nofinpre')
    A('s_lshl_b32 s11, s4, 13')
    A('s_sub_u32 s12, s3, 4')
    A('s_lshl_b32 s12, s12, 10')
    A('s_add_u32 s11, s11, s12')
    A(f's_add_u32 s11, s11, {QA}')
    A('v_lshlrev_b32 v6, 4, v1')
    A('v_add_u32 v6, s11, v6')
    A('s_lshl_b32 s11, s4, 9')
    A(f's_add_u32 s11, s11, {IDA}')
    A('v_and_b32 v7, 31, v1')
    A('v_lshl_add_u32 v7, v7, 4, s11')
    A('s_sub_u32 s12, s3, 4')
    A('s_lshl_b32 s12, s12, 1')
    A('v_lshrrev_b32 v8, 5, v1')
    A('v_add_u32 v8, s12, v8')
    A('v_mul_u32_u24 v8, 272, v8')
    A('v_and_b32 v9, 31, v1')
    A('v_lshl_add_u32 v8, v9, 3, v8')
    A(f'v_add_u32 v8, {L_QB}, v8')
    P(3)
    A('s_barrier')
    P(4)
    if cfg.b1a:
        A('s_barrier')
    if cfg.b1b:
        A('s_barrier')
    P(5)
    A('s_waitcnt lgkmcnt(0)')
    A(f'buffer_load_dword v5, v4, {srd(SWS)}, 0 offen {cfg.xnt}')
    A(f's_mov_b32 s{sIT}, 0')
    A('s_mov_b32 s14, 0')
    def q_issue():
        A('s_add_u32 s15, s14, 4096')
        A(f'buffer_load_dwordx4 v[16:19], v6, {srd(SWS)}, s14 offen {cfg.gat}')
        A(f'buffer_load_dwordx4 v[20:23], v6, {srd(SWS)}, s14 offen offset:2048 {cfg.gat}')
        A(f'buffer_load_dwordx4 v[24:27], v6, {srd(SWS)}, s15 offen {cfg.gat}')
        A(f'buffer_load_dwordx4 v[28:31], v6, {srd(SWS)}, s15 offen offset:2048 {cfg.gat}')
        A(f'buffer_load_dwordx4 v[32:35], v7, {srd(SWS)}, s14 offen {cfg.gat}')
    def q_check():
        for q in range(5):
            tag_check(A, 16+4*q, 36, 37, q == 0)
    if cfg.b1c:
        q_issue()
        A('s_waitcnt vmcnt(0)')
        A('v_add_u32 v9, 0x01010101, v5')
        A.nop(1)
        A('v_readfirstlane_b32 s6, v9')
        q_check()
        A('s_cmp_eq_u64 s[88:89], 0')
        A('s_cbranch_scc1 L_qfirst_ok')
        q_issue()
        A('s_barrier')
        A(f's_mov_b32 s{sIT}, 1')
        A('s_branch L_qwait')
        A.label('L_qfirst_ok')
        A('s_barrier')
        A('s_branch L_qok')
        A.label('L_qgat')
        q_issue()
        A.label('L_qwait')
        A('s_waitcnt vmcnt(0)')
        q_check()
        poll_tail(A, cfg, 'L_qgat', 'L_qok', switch=14)
    else:
        A.label('L_qgat')
        q_issue()
        A('s_waitcnt vmcnt(0)')
        A('v_add_u32 v9, 0x01010101, v5')
        A.nop(1)
        A('v_readfirstlane_b32 s6, v9')
        q_check()
        poll_tail(A, cfg, 'L_qgat', 'L_qok', switch=14)
    A.label('L_qok')
    if cfg.prof in (True, 'heavy'):
        A(f'v_writelane_b32 v{vPROF}, s{sIT}, 20')
    P(6)
    mask_vals(A, 16, 16)
    for k in range(4):
        A(f'v_add_f32 v{16+k}, v{16+k}, v{20+k}')
        A(f'v_add_f32 v{24+k}, v{24+k}, v{28+k}')
    for k in range(4):
        A(f'v_add_f32 v{16+k}, v{16+k}, v{24+k}')
    A('v_cvt_pk_bf16_f32 v16, v16, v17')
    A('v_cvt_pk_bf16_f32 v17, v18, v19')
    A('ds_write_b64 v8, v[16:17]')
    if cfg.pretouch == 2:
        pretouch()
    A('s_getreg_b32 s13, hwreg(HW_REG_XCC_ID, 0, 4)')
    A('v_bfe_u32 v32, v32, 8, 8')
    A('v_cmp_ne_u32 vcc, s13, v32')
    A('s_cmp_eq_u64 vcc, 0')
    A('s_cselect_b32 s13, 1, 0')
    if cfg.forceslow:
        A('s_mov_b32 s13, 0')
    A('v_mov_b32 v33, s13')
    A(f'v_mov_b32 v34, {L_MODE}')
    A('s_cmp_eq_u32 s3, 5')
    A('s_cbranch_scc0 L_nomode')
    A('ds_write_b32 v34, v33')
    A.label('L_nomode')
    A('s_waitcnt lgkmcnt(0)')
    A('s_barrier')
    P(7)
    P.flush(); P.reset()
    A('s_cmp_eq_u32 s3, 5')
    A('s_cbranch_scc1 L_comm5')
    A('s_lshl_b32 s11, s4, 5')
    A('s_add_u32 s11, s11, s5')
    A('s_lshl_b32 s11, s11, 11')
    A(f's_add_u32 s11, s11, {OIO}')
    A('v_lshlrev_b32 v6, 4, v1')
    A('v_add_u32 v6, s11, v6')
    A('s_lshl_b32 s11, s4, 2')
    A('s_lshr_b32 s12, s5, 3')
    A('s_add_u32 s11, s11, s12')
    A('s_lshl_b32 s11, s11, 9')
    A(f's_add_u32 s11, s11, {MLO}')
    A('v_lshrrev_b32 v7, 2, v1')
    A('v_lshl_add_u32 v7, v7, 4, s11')
    A('v_and_b32 v8, 1, v2')
    A('v_lshlrev_b32 v8, 1, v8')
    A('v_lshrrev_b32 v9, 1, v2')
    A('v_or_b32 v8, v8, v9')
    A('v_and_b32 v9, 3, v1')
    A('v_lshl_add_u32 v8, v9, 2, v8')
    A('v_lshlrev_b32 v8, 1, v8')
    A(f'v_add_u32 v8, {L_OB}, v8')
    A('s_barrier')
    P(10)
    if cfg.b3b:
        A('s_barrier')
    P(11)
    A(f's_mov_b32 s{sIT}, 0')
    A.label('L_ogat')
    A(f'buffer_load_dwordx4 v[16:19], v6, {srd(SWS)}, 0 offen {cfg.gat}')
    A(f'buffer_load_dwordx4 v[20:23], v6, {srd(SWS)}, 0 offen offset:1024 {cfg.gat}')
    A(f'buffer_load_dwordx4 v[24:27], v7, {srd(SWS)}, 0 offen {cfg.gat}')
    A(f'buffer_load_dwordx4 v[28:31], v7, {srd(SWS)}, 0 offen offset:256 {cfg.gat}')
    A('s_waitcnt vmcnt(0)')
    for q in range(4):
        tag_check(A, 16+4*q, 36, 37, q == 0)
    poll_tail(A, cfg, 'L_ogat', 'L_ook')
    A.label('L_ook')
    if cfg.prof in (True, 'heavy'):
        A(f'v_writelane_b32 v{vPROF}, s{sIT}, 21')
    P(13)
    P.flush(); P.reset()
    mask_vals(A, 16, 8)
    mask_vals(A, 24, 2)
    mask_vals(A, 28, 2)
    A('v_max_f32 v32, v24, v28')
    rowred(A, [32], 'v_max_f32', ['row_ror:8', 'row_ror:4'])
    cross_rows(A, 32, 33, 'v_max_f32')
    A('v_sub_f32 v24, v24, v32')
    A('v_sub_f32 v28, v28, v32')
    A(f'v_mul_f32 v24, s{sLOG2E}, v24')
    A(f'v_mul_f32 v28, s{sLOG2E}, v28')
    A('v_exp_f32 v24, v24')
    A('v_exp_f32 v28, v28')
    A.nop(1)
    A('v_mul_f32 v34, v24, v25')
    A('v_fmac_f32 v34, v28, v29')
    for k in range(4):
        A(f'v_mul_f32 v{16+k}, v24, v{16+k}')
    for k in range(4):
        A(f'v_fmac_f32 v{16+k}, v28, v{20+k}')
    transpose_reduce4(A, 16)
    for st in ('row_ror:8', 'row_ror:4'):
        A.nop(1)
        A(f'v_add_f32_dpp v34, v34, v34 {st} row_mask:0xf bank_mask:0xf')
        A(f'v_add_f32_dpp v16, v16, v16 {st} row_mask:0xf bank_mask:0xf')
    cross_rows(A, 34, 33, 'v_add_f32')
    A('v_rcp_f32 v34, v34')
    A.nop(1)
    A('v_mul_f32 v16, v16, v34')
    A('v_cvt_pk_bf16_f32 v16, v16, v16')
    A('s_mov_b32 exec_lo, 0x000f000f')
    A('s_mov_b32 exec_hi, 0x000f000f')
    A('ds_write_b16 v8, v16')
    A('s_mov_b64 exec, -1')
    A('s_waitcnt lgkmcnt(0)')
    A('s_branch L_comm_b4')
    A.label('L_comm5')
    P.reset()
    A('s_lshl_b32 s11, s4, 2')
    A(f's_add_u32 s11, s11, s{sRB}')
    A('s_lshl_b32 s11, s11, 12')
    A(f's_lshl_b32 s12, s{sCB}, 5')
    A('s_add_u32 s11, s11, s12')
    A(f's_add_u32 s11, s11, {GUO}')
    A('v_bfe_u32 v6, v1, 2, 3')
    A('v_lshlrev_b32 v6, 9, v6')
    A('v_bfe_u32 v7, v1, 1, 1')
    A('v_lshl_add_u32 v6, v7, 8, v6')
    A('v_and_b32 v7, 1, v1')
    A('v_lshl_add_u32 v6, v7, 4, v6')
    A('v_add_u32 v6, s11, v6')
    A('v_lshlrev_b32 v8, 3, v1')
    A(f'v_add_u32 v8, {L_HB}, v8')
    A('s_barrier')
    if cfg.b3b:
        A('s_barrier')
    A(f's_mov_b32 s{sIT}, 0')
    A.label('L_ggat')
    A(f'buffer_load_dwordx4 v[16:19], v6, {srd(SWS)}, 0 offen {cfg.gat}')
    A('s_waitcnt vmcnt(0)')
    tag_check(A, 16, 36, 37, True)
    poll_tail(A, cfg, 'L_ggat', 'L_gok')
    A.label('L_gok')
    if cfg.prof in (True, 'heavy'):
        A(f'v_writelane_b32 v{vPROF}, s{sIT}, 21')
    P(13)
    P.flush(); P.reset()
    mask_vals(A, 16)
    for st in ('row_ror:8', 'row_ror:4'):
        for k in range(4):
            A(f'v_add_f32_dpp v{16+k}, v{16+k}, v{16+k} {st} row_mask:0xf bank_mask:0xf')
    for k in range(4):
        A(f'v_mov_b32 v{20+k}, v{16+k}')
    for k in range(4):
        A(f'v_permlane16_swap_b32 v{20+k}, v{16+k}')
    for k in range(4):
        A(f'v_add_f32 v{16+k}, v{20+k}, v{16+k}')
    A('v_cvt_pk_bf16_f32 v20, v16, v17')
    A('v_cvt_pk_bf16_f32 v21, v18, v19')
    A('v_lshlrev_b32 v16, 16, v20')
    A('v_and_b32 v17, 0xffff0000, v20')
    A('v_lshlrev_b32 v18, 16, v21')
    A('v_and_b32 v19, 0xffff0000, v21')
    for k in range(4):
        A(f'v_mul_f32_dpp v{20+k}, v{16+k}, v{16+k} quad_perm:[2,3,0,1] row_mask:0xf bank_mask:0xf')
    A('v_cvt_pk_bf16_f32 v16, v20, v21')
    A('v_cvt_pk_bf16_f32 v17, v22, v23')
    A('s_mov_b64 exec, 3')
    A('ds_write_b64 v8, v[16:17]')
    A('s_mov_b64 exec, -1')
    A('s_waitcnt lgkmcnt(0)')
    A.label('L_comm_b4')
    A('s_barrier')
    A('s_cmp_ge_u32 s2, 32')
    A('s_cbranch_scc1 L_done')
    A('s_barrier')
    A.label('L_done')
    if cfg.exp_hwid:
        A('s_getreg_b32 s11, hwreg(HW_REG_HW_ID)')
        A(f'v_writelane_b32 v{vPROF}, s11, 31')
    if cfg.prof == 'lite':
        A('s_memrealtime s[30:31]')
        A('s_waitcnt lgkmcnt(0)')
        A(f'v_writelane_b32 v{vPROF}, s28, 0')
        A(f'v_writelane_b32 v{vPROF}, s30, 15')
    elif cfg.prof:
        P(15)
        P.flush()
    if cfg.prof:
        A('s_mul_i32 s11, s2, 6')
        A('s_add_u32 s11, s11, s3')
        A('s_lshl_b32 s11, s11, 7')
        A(f's_add_u32 s11, s11, {PROF}')
        A('v_lshl_add_u32 v86, v1, 2, s11')
        A('s_mov_b32 exec_hi, 0')
        A(f'buffer_store_dword v{vPROF}, v86, {srd(SWS)}, 0 offen')
        A('s_mov_b64 exec, -1')
    A.label('L_end')
    A('s_endpgm')
    A('.section .rodata,"a"')
    A('.p2align 6')
    A(f'.amdhsa_kernel {NAME}')
    A(f'  .amdhsa_next_free_vgpr {cfg.nvgpr}')
    A('  .amdhsa_next_free_sgpr 102')
    A(f'  .amdhsa_accum_offset {min(cfg.nvgpr, 256)}')
    A('  .amdhsa_group_segment_fixed_size 0')
    A('  .amdhsa_kernarg_size 96')
    A('  .amdhsa_user_sgpr_count 2')
    A('  .amdhsa_user_sgpr_kernarg_segment_ptr 1')
    A('  .amdhsa_system_sgpr_workgroup_id_x 1')
    A('  .amdhsa_float_denorm_mode_32 3')
    A('.end_amdhsa_kernel')
    return A.text()

HEADER = open('parallel_sum__sliding_block_cached__glu_gated_bilinear__decode.s.ref').read().split('; Override launch')[0]

def full(cfg):
    body = gen(cfg)
    probs = check(body)
    for p in probs:
        if 'wide store WAR' in p and 'v_lshlrev_b32 v86, 4, v3' in p:
            continue
        print('HAZARD', p)
    return HEADER + f'; @launch grid=(256,1,1) block=(384,1,1) lds={cfg.ldsbytes}\n' + body

if __name__ == '__main__':
    cfg = Cfg()
    for a in sys.argv[2:]:
        k, v = a.split('=')
        old = getattr(cfg, k, None)
        setattr(cfg, k, v if ((isinstance(old, str) or v in ('lite', 'heavy')) and v not in ('False', 'True')) else eval(v))
    open(sys.argv[1], 'w').write(full(cfg))
```

```python
import sys
from asmlib import Asm, check

NAME = 'parallel_sum__sliding_block_cached__glu_gated_bilinear__decode_kernel'

EOFF  = 0
QA    = 0x1000
IDA   = 0x11000
BDELTA = 0x11000
GUO   = 0x23000
MLO   = 0x43000
OIO   = 0x48000
FIN   = 0xC8000
PROF  = 0x180000
WS_BYTES = 0x200000

L_K = 0
L_V = 32768
L_XN = 65536
L_PART = 66560
L_QB = 72704
L_HB = 73792
L_MODE = 73808
L_MW = 73824
L_LW = 73888
L_PB = L_PART
L_RED = L_PART + 4096
LDS_BYTES = 73984

sW, sG, sS, sTAG = 3, 4, 5, 6
SX, SK, SV, SWQ, SWO, SGA, SUP, SDN, SOUT, SWS = 40, 44, 48, 52, 56, 60, 64, 68, 72, 76
M0, M1, M2, M3 = 80, 82, 84, 86
sX0, sX1 = 90, 91
sIT = 92
sLOG2E, sSCALE = 93, 94
sMSK = 95
sP01, sP23 = 96, 97
sI0, sI1, sI2, sI3 = 98, 99, 100, 101
sRB, sT, sCB = 7, 8, 10
vTAG, vSH = 167, 166
vPROF = 165
def srd(n): return f's[{n}:{n+3}]'
def vr(n, k=4): return f'v[{n}:{n+k-1}]'

class Cfg:
    nt = 'nt'
    gat = 'sc1'
    nk1 = 8
    oline = False
    tpos = (2, 2, 2, 2, 2, 2)
    calib = 0
    ldsbytes = LDS_BYTES
    nvgpr = 168
    b1a = True
    win = None
    win2 = None
    exp_dirty = 0
    b1c = False
    nv2 = 4
    kwait = 3
    exp_cb = 0
    exp_hwid = False
    swap = True
    wo_early = -1
    b0 = 0
    prio = 3
    align = 12
    xnt = ''
    finpre = 0
    finpre_fl = 'nt'
    codepf_n = 4
    nv1 = 3
    b1b = True
    b3b = True
    maxit = 200000
    swit = 24
    prof = False
    dbgprof = None
    pretouch = 0
    pre_fl = 'nt'
    codepf = 's'
    forceslow = False
    forceb = False

ROW_FULL = ['quad_perm:[1,0,3,2]', 'quad_perm:[2,3,0,1]', 'row_half_mirror', 'row_mirror']

def rowred(A, regs, op, steps):
    for st in steps:
        A.nop(2 if len(regs) < 3 else max(0, 2 - (len(regs) - 1)))
        for v in regs:
            A(f'{op}_dpp v{v}, v{v}, v{v} {st} row_mask:0xf bank_mask:0xf')
        if len(regs) >= 3:
            pass

def cross_rows(A, v, tmp, op):
    A(f'v_mov_b32 v{tmp}, v{v}')
    A.nop(2)
    A(f'v_permlane16_swap_b32 v{tmp}, v{v}')
    A.nop(1)
    A(f'{op} v{v}, v{tmp}, v{v}')
    A(f'v_mov_b32 v{tmp}, v{v}')
    A.nop(2)
    A(f'v_permlane32_swap_b32 v{tmp}, v{v}')
    A.nop(1)
    A(f'{op} v{v}, v{tmp}, v{v}')

def wave_allreduce(A, v, tmp, op):
    rowred(A, [v], op, ROW_FULL)
    cross_rows(A, v, tmp, op)

def transpose_reduce4(A, v):
    A.nop(1)
    A(f'v_permlane32_swap_b32 v{v}, v{v+1}')
    A(f'v_permlane32_swap_b32 v{v+2}, v{v+3}')
    A.nop(1)
    A(f'v_add_f32 v{v}, v{v}, v{v+1}')
    A(f'v_add_f32 v{v+2}, v{v+2}, v{v+3}')
    A.nop(2)
    A(f'v_permlane16_swap_b32 v{v}, v{v+2}')
    A.nop(1)
    A(f'v_add_f32 v{v}, v{v}, v{v+2}')

def tag_insert(A, v):
    for k, s in enumerate((sI0, sI1, sI2, sI3)):
        A(f'v_perm_b32 v{v+k}, v{v+k}, v{vTAG}, s{s}')

def tag_check(A, v, t0, t1, first):
    A(f'v_perm_b32 v{t0}, v{v+1}, v{v}, s{sP01}')
    A(f'v_perm_b32 v{t1}, v{v+3}, v{v+2}, s{sP23}')
    A(f'v_or_b32 v{t0}, v{t0}, v{t1}')
    if first:
        A(f'v_cmp_ne_u32 s[88:89], s{sTAG}, v{t0}')
    else:
        A(f'v_cmp_ne_u32 s[90:91], s{sTAG}, v{t0}')
        A('s_or_b64 s[88:89], s[88:89], s[90:91]')

def mask_vals(A, v, n=4):
    for k in range(n):
        A(f'v_and_b32 v{v+k}, s{sMSK}, v{v+k}')

def build_sel(A, dst, val, tmp):
    A(f'v_lshlrev_b32 v{tmp}, v{vSH}, v{val}')
    for j, m in enumerate((M0, M1, M2, M3)):
        A(f'v_cndmask_b32_e64 v{dst+j}, 0, v{tmp}, s[{m}:{m+1}]')

class Prof:
    def __init__(self, A, cfg):
        self.A, self.on, self.prev, self.k = A, cfg.prof, None, 0
        self.lite = cfg.prof == 'lite'
    def reset(self, prev=None, k=0):
        if self.lite:
            self.prev = None
            return
        self.prev, self.k = prev, k
    def __call__(self, idx):
        if not self.on: return
        if self.on == 'lite' and idx not in (0, 15): return
        if idx >= 23 and self.on != 'heavy': return
        A = self.A
        if self.on == 'heavy' and self.prev is not None:
            A('s_waitcnt lgkmcnt(0)')
        if self.prev is not None:
            A(f'v_writelane_b32 v{vPROF}, s{28 + 2*self.k}, {self.prev}')
            self.k ^= 1
        A(f's_memrealtime s[{28+2*self.k}:{29+2*self.k}]')
        self.prev = None if self.lite else idx
    def flush(self):
        if not self.on: return
        if self.prev is None: return
        A = self.A
        A('s_waitcnt lgkmcnt(0)')
        A(f'v_writelane_b32 v{vPROF}, s{28 + 2*self.k}, {self.prev}')

def common_consts(A):
    A(f's_mov_b32 s{sLOG2E}, 0x3fb8aa3b')
    A(f's_mov_b32 s{sSCALE}, 0x3db504f3')
    A(f's_mov_b32 s{sMSK}, 0xffffff00')
    A(f's_mov_b32 s{sP01}, 0x0c0c0400')
    A(f's_mov_b32 s{sP23}, 0x04000c0c')
    A(f's_mov_b32 s{sI0}, 0x07060500')
    A(f's_mov_b32 s{sI1}, 0x07060501')
    A(f's_mov_b32 s{sI2}, 0x07060502')
    A(f's_mov_b32 s{sI3}, 0x07060503')

def poll_tail(A, cfg, label, oklabel, switch=None):
    A('s_cmp_eq_u64 s[88:89], 0')
    A(f's_cbranch_scc1 {oklabel}')
    A(f's_add_u32 s{sIT}, s{sIT}, 1')
    if switch:
        A(f's_cmp_eq_u32 s{sIT}, {cfg.swit}')
        A(f's_cselect_b32 s{switch}, {BDELTA}, s{switch}')
    A(f's_cmp_le_u32 s{sIT}, {cfg.maxit}')
    A(f's_cbranch_scc1 {label}')

def gen(cfg):
    A = Asm()
    P = Prof(A, cfg)
    nt = cfg.nt
    A('.amdgcn_target "amdgcn-amd-amdhsa--gfx950"')
    A('.text')
    A(f'.globl {NAME}')
    A(f'.p2align {cfg.align}')
    A(f'.type {NAME},@function')
    A.label(NAME)
    A('s_cmp_ge_u32 s2, 256')
    A('s_cbranch_scc1 L_end')
    P(0)
    if cfg.calib:
        A('s_memrealtime s[36:37]')
    for sr, off in ((SWQ, 24), (SX, 0), (SWS, 88), (SK, 8)):
        A(f's_load_dwordx2 s[{sr}:{sr+1}], s[0:1], {off}')
    A('v_lshrrev_b32 v2, 6, v0')
    A('v_and_b32 v1, 63, v0')
    A('s_and_b32 s4, s2, 7')
    A('v_readfirstlane_b32 s3, v2')
    A('s_lshr_b32 s5, s2, 3')
    A(f's_lshr_b32 s{sRB}, s5, 3')
    A(f's_and_b32 s{sCB}, s5, 7')
    for sr, n in ((SWQ, 4194304), (SX, 1024), (SWS, WS_BYTES), (SK, 134217728)):
        A(f's_mov_b32 s{sr+2}, {n}')
        A(f's_mov_b32 s{sr+3}, 0x20000')
    A('s_cmp_ge_u32 s3, 4')
    A('s_cbranch_scc1 L_comm0')
    A(f's_lshl_b32 s16, s{sRB}, 20')
    A('s_lshl_b32 s11, s3, 18')
    A('s_add_u32 s16, s16, s11')
    A('s_lshl_b32 s11, s4, 10')
    A('s_add_u32 s16, s16, s11')
    if cfg.exp_cb:
        A(f's_add_u32 s11, s{sCB}, {cfg.exp_cb}')
        A('s_and_b32 s11, s11, 7')
        A('s_lshl_b32 s11, s11, 7')
    else:
        A(f's_lshl_b32 s11, s{sCB}, 7')
    A('s_add_u32 s16, s16, s11')
    A('v_lshlrev_b32 v163, 4, v1')
    A('v_lshrrev_b32 v164, 3, v1')
    A('v_and_b32 v4, 0x70, v163')
    A('v_lshl_add_u32 v6, v164, 13, v4')
    A(f'v_mov_b32 v7, {EOFF}')
    A('s_add_u32 s17, s16, 65536')
    A('s_add_u32 s18, s16, 131072')
    A('s_add_u32 s19, s16, 196608')
    A('s_waitcnt lgkmcnt(0)')
    P(27)
    A(f'buffer_load_dwordx4 v[8:11], v163, {srd(SX)}, 0 offen {cfg.xnt}')
    A(f'buffer_load_dword v{vTAG}, v7, {srd(SWS)}, 0 offen {cfg.xnt}')
    if cfg.b0 == 1:
        A('s_barrier')
    for i in range(4):
        A(f'buffer_load_dwordx4 {vr(12+4*i)}, v6, {srd(SWQ)}, s{16+i} offen {nt}')
    for sr, off in ((SV, 16), (SGA, 48), (SUP, 56), (SWO, 32), (SDN, 64)):
        A(f's_load_dwordx2 s[{sr}:{sr+1}], s[0:1], {off}')
    A('v_lshrrev_b32 v2, 4, v1')
    A('v_and_b32 v3, 15, v1')
    for i in range(4):
        A(f'v_add_u32 v5, {4*i}, v2')
        A('v_xor_b32 v5, v5, v3')
        A('v_lshlrev_b32 v5, 4, v5')
        A(f'v_lshl_add_u32 v{156+i}, v2, 8, v5')
    A('s_lshl_b32 s19, s4, 24')
    A('s_lshl_b32 s11, s5, 15')
    A('s_add_u32 s19, s19, s11')
    A('s_lshl_b32 s11, s3, 13')
    A('s_add_u32 s19, s19, s11')
    A('s_add_u32 s19, s19, 15728640')
    A('s_lshl_b32 s20, s3, 13')
    if cfg.swap:
        A('s_and_b32 s25, s4, 1')
        A('s_lshl_b32 s25, s25, 12')
    else:
        A('s_mov_b32 s25, 0')
    A('s_xor_b32 s26, s25, 4096')
    A('s_add_u32 s27, s19, s26')
    A('s_add_u32 s19, s19, s25')
    A('s_add_u32 s25, s25, s20')
    A('s_add_u32 s26, s26, s20')
    A('s_mov_b32 m0, s25')
    if cfg.b0 == 2:
        A('s_barrier')
    A.nop(1)
    def kloads(lo, hi):
        for i in range(lo, hi):
            if i == 4:
                A('s_mov_b32 m0, s26')
                A.nop(1)
            A(f'buffer_load_dwordx4 v{156+(i&3)}, {srd(SK)}, s{19 if i < 4 else 27} offen offset:{1024*(i&3)} {nt} lds')
    kloads(0, cfg.nk1)
    A('v_mul_u32_u24 v162, 3584, v164')
    A('v_add_u32 v161, v162, v4')
    A(f's_lshl_b32 s{sT}, s{sRB}, 3')
    A(f's_add_u32 s{sT}, s{sT}, s4')
    A(f's_cmp_lt_u32 s{sT}, 28')
    A('s_cselect_b32 s9, 1835008, 0')
    for sr, n in ((SV, 134217728), (SWO, 4194304)):
        A(f's_mov_b32 s{sr+2}, {n}')
        A(f's_mov_b32 s{sr+3}, 0x20000')
    for sr in (SGA, SUP, SDN):
        A(f's_mov_b32 s{sr+2}, s9')
        A(f's_mov_b32 s{sr+3}, 0x20000')
    A('s_branch L_cmp_go')
    A.label('L_comm0')
    if cfg.codepf:
        A('s_cmp_eq_u32 s3, 5')
        A('s_cbranch_scc0 L_nocodepf')
        A('s_getpc_b64 s[12:13]')
        A.label('L_pc')
        A(f's_sub_u32 s12, s12, L_pc-{NAME}')
        A('s_subb_u32 s13, s13, 0')
        A('s_lshl_b32 s14, s5, 6')
        A('s_add_u32 s12, s12, s14')
        A('s_addc_u32 s13, s13, 0')
        for i in range(cfg.codepf_n):
            A(f's_load_dword s{32+(i&3)}, s[12:13], {2048*i}')
        A.label('L_nocodepf')
    if cfg.prio:
        A(f's_setprio {cfg.prio}')
    if cfg.b0:
        A('s_barrier')
    A('s_branch L_comm')
    A.label('L_cmp_go')
    for m, lo in ((M0, 0x03030303), (M1, 0x0c0c0c0c), (M2, 0x30303030), (M3, 0xc0c0c0c0)):
        A(f's_mov_b32 s{m}, {hex(lo)}')
        A(f's_mov_b32 s{m+1}, {hex(lo)}')
    common_consts(A)
    A(f'v_and_b32 v{vSH}, 1, v1')
    A(f'v_lshlrev_b32 v{vSH}, 4, v{vSH}')
    A(f's_lshl_b32 s17, s{sCB}, 6')
    A('s_lshl_b32 s11, s3, 4')
    A('s_add_u32 s17, s17, s11')
    A('s_mul_i32 s17, s17, 3584')
    A(f's_lshl_b32 s11, s{sT}, 7')
    A('s_add_u32 s17, s17, s11')
    A('s_lshl_b32 s21, s4, 19')
    A('s_lshr_b32 s11, s5, 2')
    A('s_lshl_b32 s12, s11, 16')
    A('s_add_u32 s21, s21, s12')
    A('s_lshl_b32 s12, s3, 14')
    A('s_add_u32 s21, s21, s12')
    A('s_and_b32 s23, s5, 3')
    A('s_lshl_b32 s23, s23, 8')
    A('s_add_u32 s21, s21, s23')
    A(f's_lshl_b32 s22, s{sT}, 16')
    A('s_and_b32 s11, s11, 1')
    A('s_lshl_b32 s11, s11, 15')
    A('s_add_u32 s22, s22, s11')
    A('s_lshl_b32 s12, s3, 13')
    A('s_add_u32 s22, s22, s12')
    A('s_add_u32 s22, s22, s23')
    A('v_lshlrev_b32 v162, 4, v3')
    A('v_lshl_add_u32 v162, v2, 10, v162')
    P(1)
    A.c('layernorm')
    A(f's_waitcnt vmcnt({4 + cfg.nk1})')
    P(2)
    for k in range(4):
        A(f'v_lshlrev_b32 v{80+2*k}, 16, v{8+k}')
        A(f'v_and_b32 v{81+2*k}, 0xffff0000, v{8+k}')
    A('v_add_f32 v88, v80, v81')
    A('v_add_f32 v89, v82, v83')
    A('v_add_f32 v90, v84, v85')
    A('v_add_f32 v91, v86, v87')
    A('v_add_f32 v88, v88, v89')
    A('v_add_f32 v90, v90, v91')
    A('v_add_f32 v88, v88, v90')
    wave_allreduce(A, 88, 89, 'v_add_f32')
    A('v_mul_f32 v88, 0x3b000000, v88')
    for k in range(8):
        A(f'v_sub_f32 v{92+k}, v{80+k}, v88')
    A('v_mul_f32 v90, v92, v92')
    for k in range(1, 8):
        A(f'v_fmac_f32 v90, v{92+k}, v{92+k}')
    wave_allreduce(A, 90, 89, 'v_add_f32')
    P(23)
    A('v_mul_f32 v90, 0x3b000000, v90')
    A('v_cvt_pk_bf16_f32 v88, v88, v90')
    A('v_and_b32 v90, 0xffff0000, v88')
    A('v_lshlrev_b32 v88, 16, v88')
    A('v_add_f32 v90, 0x3727c5ac, v90')
    A('v_cvt_pk_bf16_f32 v90, v90, v90')
    A('v_lshlrev_b32 v90, 16, v90')
    A('v_sqrt_f32 v90, v90')
    for k in range(8):
        A(f'v_sub_f32 v{92+k}, v{80+k}, v88')
    A('v_cvt_pk_bf16_f32 v90, v90, v90')
    A('v_lshlrev_b32 v90, 16, v90')
    A('v_rcp_f32 v90, v90')
    for k in range(4):
        A(f'v_cvt_pk_bf16_f32 v{100+k}, v{92+2*k}, v{93+2*k}')
    for k in range(4):
        A(f'v_lshlrev_b32 v{92+2*k}, 16, v{100+k}')
        A(f'v_and_b32 v{93+2*k}, 0xffff0000, v{100+k}')
    for k in range(8):
        A(f'v_mul_f32 v{92+k}, v{92+k}, v90')
    for k in range(4):
        A(f'v_cvt_pk_bf16_f32 v{100+k}, v{92+2*k}, v{93+2*k}')
    A(f'v_add_u32 v104, {L_XN}, v163')
    A('ds_write_b128 v104, v[100:103]')
    P(24)
    A('v_lshrrev_b32 v105, 3, v3')
    A('v_lshl_add_u32 v105, v2, 1, v105')
    A(f's_lshl_b32 s11, s{sRB}, 7')
    A('s_lshl_b32 s12, s3, 5')
    A('s_add_u32 s11, s11, s12')
    A('s_lshl_b32 s11, s11, 1')
    A(f's_add_u32 s11, s11, {L_XN}')
    A('v_lshl_add_u32 v106, v105, 1, s11')
    A(f's_lshl_b32 s11, s{sCB}, 6')
    A('s_lshl_b32 s12, s3, 4')
    A('s_add_u32 s11, s11, s12')
    A('s_lshl_b32 s11, s11, 1')
    A(f's_add_u32 s11, s11, {L_XN}')
    A('v_lshl_add_u32 v107, v105, 1, s11')
    A('s_waitcnt lgkmcnt(0)')
    for i in range(4):
        A(f'ds_read_u16 v{80+i}, v106 offset:{16*i}')
    for i in range(2):
        A(f'ds_read_u16 v{84+i}, v107 offset:{16*i}')
    A(f'v_add_u32 v{vTAG}, 0x01010101, v{vTAG}')
    P(25)
    kloads(cfg.nk1, 8)
    P(26)
    A.nop(1)
    A(f'v_readfirstlane_b32 s6, v{vTAG}')
    A('s_waitcnt lgkmcnt(0)')
    for i in range(4):
        build_sel(A, 48+4*i, 80+i, 86)
    for i in range(2):
        build_sel(A, 64+4*i, 84+i, 86)
    for i, r in ((0, 160), (1, 164)):
        A(f'v_add_u32 v86, {4*i}, v2')
        A('v_lshlrev_b32 v86, 1, v86')
        A('v_xor_b32 v86, v86, v3')
        A('v_lshlrev_b32 v86, 4, v86')
        A(f'v_lshl_add_u32 v{r}, v2, 8, v86')
    A('v_lshrrev_b32 v87, 5, v1')
    A('v_lshlrev_b32 v87, 8, v87')
    A('v_and_b32 v86, 7, v1')
    A('v_lshl_add_u32 v87, v86, 5, v87')
    A('v_and_b32 v86, 1, v2')
    A('v_lshl_add_u32 v87, v86, 4, v87')
    A('s_lshl_b32 s11, s3, 9')
    A(f's_add_u32 s11, s11, {L_PART}')
    A('v_add_u32 v163, s11, v87')
    P(3)
    A.c('q partial product')
    A('s_waitcnt vmcnt(8)')
    P(16)
    for i in range(4):
        A(f'v_mfma_f32_16x16x32_bf16 v[72:75], {vr(48+4*i)}, {vr(12+4*i)}, {"0" if i == 0 else "v[72:75]"}')
    A('s_mov_b32 exec_lo, 0x00ff00ff')
    A('s_mov_b32 exec_hi, 0xff00ff00')
    A.nop(6)
    A('ds_write_b128 v163, v[72:75]')
    A('s_mov_b64 exec, -1')
    A('s_waitcnt lgkmcnt(0)')
    A('s_barrier')
    P(4)
    A('s_cmp_lg_u32 s3, 3')
    A('s_cbranch_scc1 L_pub1_done')
    A('v_lshlrev_b32 v86, 4, v3')
    A(f'v_add_u32 v87, {L_PART}, v86')
    for k in range(8):
        A(f'ds_read_b128 {vr(80+4*k+32)}, v87 offset:{256*k}')
    A('s_lshl_b32 s11, s4, 2')
    A(f's_add_u32 s11, s11, s{sRB}')
    A('s_lshl_b32 s11, s11, 11')
    A(f's_lshl_b32 s12, s{sCB}, 8')
    A('s_add_u32 s11, s11, s12')
    A(f's_add_u32 s11, s11, {QA}')
    A('v_add_u32 v86, s11, v86')
    A('s_lshl_b32 s12, s4, 9')
    A('s_lshl_b32 s13, s5, 4')
    A('s_add_u32 s12, s12, s13')
    A(f's_add_u32 s12, s12, {IDA}')
    A('v_mov_b32 v87, s12')
    A('v_cmp_eq_u32 vcc, 0, v2')
    A('s_getreg_b32 s13, hwreg(HW_REG_XCC_ID, 0, 4)')
    A('s_lshl_b32 s13, s13, 8')
    A('v_cndmask_b32 v86, v87, v86, vcc')
    A('s_waitcnt lgkmcnt(0)')
    for k in range(4):
        A(f'v_add_f32 v{112+k}, v{112+k}, v{116+k}')
        A(f'v_add_f32 v{120+k}, v{120+k}, v{124+k}')
        A(f'v_add_f32 v{128+k}, v{128+k}, v{132+k}')
        A(f'v_add_f32 v{136+k}, v{136+k}, v{140+k}')
    for k in range(4):
        A(f'v_add_f32 v{112+k}, v{112+k}, v{120+k}')
        A(f'v_add_f32 v{128+k}, v{128+k}, v{136+k}')
    for k in range(4):
        A(f'v_add_f32 v{112+k}, v{112+k}, v{128+k}')
    A('v_mov_b32 v116, s13')
    A('v_cndmask_b32 v112, v116, v112, vcc')
    tag_insert(A, 112)
    A('s_mov_b32 exec_lo, 0x0001ffff')
    A('s_mov_b32 exec_hi, 0')
    if not cfg.forceb:
        A(f'buffer_store_dwordx4 v[112:115], v86, {srd(SWS)}, 0 offen')
    A(f's_mov_b32 s12, {BDELTA}')
    A(f'buffer_store_dwordx4 v[112:115], v86, {srd(SWS)}, s12 offen sc1')
    A('s_mov_b64 exec, -1')
    A.label('L_pub1_done')
    if cfg.b1a:
        A('s_barrier')
    nst = (1 if cfg.forceb else 2)
    A.c('gate/up loads, V loads')
    A('s_add_u32 s18, s17, 28672')
    A(f'buffer_load_dwordx4 {vr(8)}, v161, {srd(SGA)}, s17 offen {nt}')
    A(f'buffer_load_dwordx4 {vr(12)}, v161, {srd(SGA)}, s18 offen {nt}')
    A(f'buffer_load_dwordx4 {vr(16)}, v161, {srd(SUP)}, s17 offen {nt}')
    A(f'buffer_load_dwordx4 {vr(20)}, v161, {srd(SUP)}, s18 offen {nt}')
    def vloads(lo, hi, win=None):
        for i in range(lo, hi):
            if win:
                A(f's_waitcnt vmcnt({win-1})')
            if i % 4 == 0 or i == lo:
                A(f's_add_u32 m0, s{25 if i < 4 else 26}, {L_V}')
                A.nop(1)
            A(f'buffer_load_dwordx4 v{(160, 164)[i&1]}, {srd(SV)}, s{19 if i < 4 else 27} offen offset:{1024*(i&3)} {nt} lds')
    vloads(0, cfg.nv1)
    if cfg.kwait is not None:
        A('s_cmp_eq_u32 s3, 3')
        A('s_cbranch_scc1 L_nokwait')
        A(f's_waitcnt vmcnt({cfg.kwait + cfg.nv1})')
        A.label('L_nokwait')
    if cfg.b1b:
        A('s_barrier')
    P(5)
    A('v_and_b32 v85, 1, v2')
    A('v_lshrrev_b32 v86, 1, v2')
    A('v_lshl_or_b32 v85, v85, 1, v86')
    A('v_lshlrev_b32 v86, 4, v3')
    A('v_lshl_add_u32 v161, v85, 10, v86')
    for j in range(4):
        A(f'v_or_b32 v86, {4*j}, v2')
        A('v_xor_b32 v86, v86, v3')
        A('v_lshlrev_b32 v86, 4, v86')
        A(f'v_lshl_add_u32 v{156+j}, v3, 8, v86')
        A(f'v_add_u32 v{156+j}, s20, v{156+j}')
    A('v_and_b32 v86, 3, v1')
    A('v_mul_u32_u24 v86, 272, v86')
    A('v_lshl_add_u32 v4, v2, 4, v86')
    A(f'v_add_u32 v4, {L_QB}, v4')
    if cfg.b1c:
        vloads(cfg.nv1, cfg.nv2)
        A('s_barrier')
        vloads(cfg.nv2, 8)
    else:
        vloads(cfg.nv1, 8, cfg.win)
    def tail_loads(pos):
        n = 0
        for i, p in enumerate(cfg.tpos):
            if p != pos:
                continue
            n += 1
            if i < 4:
                A(f's_add_u32 s13, s21, {4096*i}')
                A(f'buffer_load_dwordx4 {vr(24+4*i)}, v161, {srd(SWO)}, s13 offen {nt}')
            else:
                A(f's_add_u32 s13, s22, {4096*(i-4)}')
                A(f'buffer_load_dwordx4 {vr(40+4*(i-4))}, v162, {srd(SDN)}, s13 offen {nt}')
        return n
    nearly = 0
    nearly += tail_loads(1)
    A.c('gate/up partial products')
    P(17)
    A(f's_waitcnt vmcnt({8 + nearly})')
    P(18)
    for i in range(2):
        A(f'v_mfma_f32_16x16x32_bf16 v[72:75], {vr(64+4*i)}, {vr(8+4*i)}, {"0" if i == 0 else "v[72:75]"}')
    for i in range(2):
        A(f'v_mfma_f32_16x16x32_bf16 v[76:79], {vr(64+4*i)}, {vr(16+4*i)}, {"0" if i == 0 else "v[76:79]"}')
    A.nop(7)
    A('s_mov_b32 exec_lo, 0x00ff00ff')
    A('s_mov_b32 exec_hi, 0xff00ff00')
    A('ds_write_b128 v163, v[72:75] offset:2048')
    A('ds_write_b128 v163, v[76:79] offset:4096')
    A('s_mov_b64 exec, -1')
    A('s_waitcnt lgkmcnt(0)')
    P(6)
    A('s_barrier')
    P(7)
    A.c('scores')
    for j in range(4):
        A(f'ds_read_b128 {vr(112+4*j)}, v4 offset:{64*j}')
    for t in range(2):
        for j in range(4):
            A(f'ds_read_b128 {vr(80+16*t+4*j)}, v{156+j} offset:{L_K + 4096*t}')
    A(f'v_mov_b32 v6, {L_MODE}')
    A('ds_read_b32 v7, v6')
    tail_loads(2)
    A('v_and_b32 v5, 3, v1')
    A('s_lshl_b32 s11, s3, 2')
    A(f's_add_u32 s11, s11, {L_MW}')
    A('v_lshl_add_u32 v6, v5, 4, s11')
    A(f'v_lshlrev_b32 v5, 4, v5')
    A(f'v_add_u32 v5, {L_MW}, v5')
    for j in range(4):
        A(f's_waitcnt lgkmcnt({8-j})')
        A(f'v_mfma_f32_16x16x32_bf16 v[144:147], {vr(80+4*j)}, {vr(112+4*j)}, {"0" if j == 0 else "v[144:147]"}')
    for j in range(4):
        A(f's_waitcnt lgkmcnt({4-j})')
        A(f'v_mfma_f32_16x16x32_bf16 v[148:151], {vr(96+4*j)}, {vr(112+4*j)}, {"0" if j == 0 else "v[148:151]"}')
    A('v_and_b32 v80, 1, v1')
    A('v_mov_b32 v81, 0xffff')
    A('v_lshlrev_b32 v80, 4, v80')
    A('v_lshlrev_b32 v80, v80, v81')
    for jj, m in enumerate((M0, M1, M2, M3)):
        A(f'v_cndmask_b32_e64 v{156+jj}, 0, v80, s[{m}:{m+1}]')
    A('s_waitcnt lgkmcnt(0)')
    A('v_readfirstlane_b32 s24, v7')
    A.c('softmax')
    for k in range(4):
        A(f'v_cvt_pk_bf16_f32 v{152+k}, v{144+2*k}, v{145+2*k}')
    for k in range(4):
        A(f'v_lshlrev_b32 v{144+2*k}, 16, v{152+k}')
        A(f'v_and_b32 v{145+2*k}, 0xffff0000, v{152+k}')
    for k in range(8):
        A(f'v_mul_f32 v{144+k}, s{sSCALE}, v{144+k}')
    for k in range(4):
        A(f'v_cvt_pk_bf16_f32 v{152+k}, v{144+2*k}, v{145+2*k}')
    for k in range(4):
        A(f'v_lshlrev_b32 v{144+2*k}, 16, v{152+k}')
        A(f'v_and_b32 v{145+2*k}, 0xffff0000, v{152+k}')
    A('v_max3_f32 v82, v144, v145, v146')
    A('v_max3_f32 v83, v147, v148, v149')
    A('v_max3_f32 v82, v82, v150, v151')
    A('v_max_f32 v82, v82, v83')
    cross_rows(A, 82, 83, 'v_max_f32')
    A('s_mov_b64 exec, 15')
    A('ds_write_b32 v6, v82')
    A('s_mov_b64 exec, -1')
    tail_loads(25)
    A('s_waitcnt lgkmcnt(0)')
    A('s_barrier')
    tail_loads(26)
    P(8)
    A('ds_read_b128 v[84:87], v5')
    A('v_lshlrev_b32 v7, 4, v1')
    A('s_lshl_b32 s11, s3, 10')
    A(f's_add_u32 s11, s11, {L_PB}')
    A('v_add_u32 v88, s11, v7')
    A(f'v_add_u32 v7, {L_PB}, v7')
    A('s_waitcnt lgkmcnt(0)')
    A('v_max3_f32 v82, v84, v85, v86')
    A('v_max_f32 v82, v82, v87')
    A(f'v_mul_f32 v83, s{sLOG2E}, v82')
    for k in range(8):
        A(f'v_fma_f32 v{144+k}, v{144+k}, s{sLOG2E}, -v83')
    for k in range(8):
        A(f'v_exp_f32 v{144+k}, v{144+k}')
    A.nop(1)
    for k in range(4):
        A(f'v_cvt_pk_bf16_f32 v{152+k}, v{144+2*k}, v{145+2*k}')
    A('v_add_f32 v84, v144, v145')
    A('v_add_f32 v85, v146, v147')
    A('ds_write_b128 v88, v[152:155]')
    A('v_add_f32 v86, v148, v149')
    A('v_add_f32 v87, v150, v151')
    A('v_add_f32 v84, v84, v85')
    A('v_add_f32 v86, v86, v87')
    A('v_add_f32 v84, v84, v86')
    cross_rows(A, 84, 85, 'v_add_f32')
    A('s_mov_b64 exec, 15')
    A(f'ds_write_b32 v6, v84 offset:{L_LW - L_MW}')
    A('s_mov_b64 exec, -1')
    tail_loads(3)
    A('v_lshrrev_b32 v84, 2, v3')
    A('v_lshl_add_u32 v85, v2, 2, v84')
    A('v_and_b32 v84, 7, v85')
    A('v_lshlrev_b32 v85, 8, v85')
    A('v_lshl_add_u32 v85, v84, 5, v85')
    A('v_and_b32 v84, 3, v3')
    A('v_lshl_add_u32 v85, v84, 3, v85')
    A(f'v_add_u32 v85, {L_V}, v85')
    A('s_lshl_b32 s11, s3, 6')
    A('v_xor_b32 v144, s11, v85')
    A('v_xor_b32 v145, 32, v144')
    A('v_and_b32 v84, 3, v3')
    A('v_lshlrev_b32 v84, 14, v84')
    A('v_bfe_u32 v85, v3, 2, 1')
    A(f'v_lshl_add_u32 v84, v85, {6 if cfg.oline else 11}, v84')
    A('v_lshl_add_u32 v84, v2, 4, v84')
    A('s_lshl_b32 s11, s4, 16')
    A('s_lshl_b32 s12, s3, 12')
    A('s_add_u32 s11, s11, s12')
    A(f's_lshl_b32 s12, s5, {7 if cfg.oline else 6}')
    A('s_add_u32 s11, s11, s12')
    A(f's_add_u32 s11, s11, {OIO}')
    A('v_add_u32 v146, s11, v84')
    A('s_lshr_b32 s14, s5, 3')
    A('s_lshl_b32 s11, s4, 2')
    A('s_add_u32 s11, s11, s14')
    A('s_lshl_b32 s12, s11, 9')
    A(f's_add_u32 s12, s12, {MLO}')
    A('v_lshrrev_b32 v84, 2, v1')
    A('v_lshl_add_u32 v148, v84, 4, s12')
    A('s_bfe_u32 s12, s5, 0x10002')
    if cfg.oline:
        A('s_lshl_b32 s11, s11, 14')
        A('s_lshl_b32 s13, s12, 2')
        A('s_add_u32 s13, s13, s3')
        A('s_lshr_b32 s15, s13, 1')
        A('s_lshl_b32 s15, s15, 12')
        A('s_add_u32 s11, s11, s15')
        A('s_and_b32 s13, s13, 1')
        A('s_lshl_b32 s13, s13, 6')
        A('s_add_u32 s11, s11, s13')
        A(f's_add_u32 s11, s11, {OIO}')
        A('v_lshrrev_b32 v84, 2, v1')
        A('v_lshlrev_b32 v84, 7, v84')
        A('v_and_b32 v85, 3, v1')
        A('v_lshl_add_u32 v84, v85, 4, v84')
        A('v_add_u32 v147, s11, v84')
    else:
        A('s_lshl_b32 s11, s11, 3')
        A('s_lshl_b32 s13, s12, 2')
        A('s_add_u32 s11, s11, s13')
        A('s_add_u32 s11, s11, s3')
        A('s_lshl_b32 s11, s11, 11')
        A(f's_add_u32 s11, s11, {OIO}')
        A('v_lshl_add_u32 v147, v1, 4, s11')
    A('s_lshl_b32 s11, s4, 2')
    A('s_add_u32 s11, s11, s14')
    A('s_lshl_b32 s11, s11, 12')
    A('s_lshl_b32 s12, s12, 7')
    A('s_add_u32 s11, s11, s12')
    A('s_lshl_b32 s12, s3, 5')
    A('s_add_u32 s11, s11, s12')
    A(f's_add_u32 s11, s11, {GUO}')
    A('v_bfe_u32 v84, v1, 2, 3')
    A('v_lshlrev_b32 v84, 9, v84')
    A('v_bfe_u32 v85, v1, 1, 1')
    A('v_lshl_add_u32 v84, v85, 8, v84')
    A('v_and_b32 v85, 1, v1')
    A('v_lshl_add_u32 v84, v85, 4, v84')
    A('v_add_u32 v149, s11, v84')
    A('v_mul_u32_u24 v150, 0x020202, v2')
    A('v_lshlrev_b32 v84, 25, v2')
    A('v_add_u32 v150, v150, v84')
    A('v_add_u32 v150, 0x01000100, v150')
    P(9)
    A('s_waitcnt vmcnt(6) lgkmcnt(0)')
    A('s_barrier')
    P(10)
    A.c('PV over all 128 keys for tiles 2w, 2w+1')
    for ks in range(4):
        A(f'ds_read_b128 {vr(112+4*ks)}, v7 offset:{1024*ks}')
        for tt in range(2):
            base = 80 + (ks*2 + tt)*4
            A(f'ds_read_b64_tr_b16 v[{base}:{base+1}], v{144+tt} offset:{8192*ks}')
            A(f'ds_read_b64_tr_b16 v[{base+2}:{base+3}], v{144+tt} offset:{8192*ks + 4096}')
    for ks in range(4):
        for tt in range(2):
            base = 80 + (ks*2 + tt)*4
            left = 20 - (5*ks + 1 + 2*(tt+1))
            A(f's_waitcnt lgkmcnt({min(left, 15)})')
            A(f'v_mfma_f32_16x16x32_bf16 {vr(128+4*tt)}, {vr(base)}, {vr(112+4*ks)}, {"0" if ks == 0 else vr(128+4*tt)}')
    A('s_mov_b32 s12, 0x00f000f0')
    A('s_mov_b32 s13, 0x00f000f0')
    A('s_mov_b32 exec_lo, 0x00ff00ff')
    A('s_mov_b32 exec_hi, 0x00ff00ff')
    A.nop(4)
    for k in range(4):
        A(f'v_cndmask_b32_e64 v{128+k}, v{128+k}, v{132+k}, s[12:13]')
    tag_insert(A, 128)
    A('s_cmp_eq_u32 s24, 1')
    A('s_cbranch_scc0 L_opub_slow')
    A(f'buffer_store_dwordx4 v[128:131], v146, {srd(SWS)}, 0 offen')
    A('s_branch L_opub_done')
    A.label('L_opub_slow')
    A(f'buffer_store_dwordx4 v[128:131], v146, {srd(SWS)}, 0 offen sc1')
    A.label('L_opub_done')
    A('s_mov_b64 exec, -1')
    P(11)
    A.c('gather the partial attention outputs and the gate/up sums')
    A(f's_mov_b32 s{sIT}, 0')
    A.label('L_ogat')
    A(f'buffer_load_dwordx4 v[80:83], v148, {srd(SWS)}, 0 offen {cfg.gat}')
    A(f'buffer_load_dwordx4 v[84:87], v148, {srd(SWS)}, 0 offen offset:256 {cfg.gat}')
    A(f'buffer_load_dwordx4 v[96:99], v149, {srd(SWS)}, 0 offen {cfg.gat}')
    A(f'buffer_load_dwordx4 v[88:91], v147, {srd(SWS)}, 0 offen {cfg.gat}')
    A(f'buffer_load_dwordx4 v[92:95], v147, {srd(SWS)}, 0 offen offset:{2048 if cfg.oline else 1024} {cfg.gat}')
    A('s_waitcnt vmcnt(0)')
    for q in range(5):
        tag_check(A, 80+4*q, 100, 101, q == 0)
    poll_tail(A, cfg, 'L_ogat', 'L_ook')
    A.label('L_ook')
    if cfg.prof in (True, 'heavy'):
        A(f'v_writelane_b32 v{vPROF}, s{sIT}, 21')
    P(12)
    mask_vals(A, 80, 2)
    mask_vals(A, 84, 2)
    mask_vals(A, 88, 12)
    A('v_max_f32 v100, v80, v84')
    for st in ('row_ror:8', 'row_ror:4'):
        for k in range(4):
            A(f'v_add_f32_dpp v{96+k}, v{96+k}, v{96+k} {st} row_mask:0xf bank_mask:0xf')
        A(f'v_max_f32_dpp v100, v100, v100 {st} row_mask:0xf bank_mask:0xf')
    for k in range(4):
        A(f'v_mov_b32 v{104+k}, v{96+k}')
    A('v_mov_b32 v101, v100')
    for k in range(4):
        A(f'v_permlane16_swap_b32 v{104+k}, v{96+k}')
    A('v_permlane16_swap_b32 v101, v100')
    for k in range(4):
        A(f'v_add_f32 v{96+k}, v{104+k}, v{96+k}')
    A('v_max_f32 v100, v101, v100')
    A('v_cvt_pk_bf16_f32 v104, v96, v97')
    A('v_mov_b32 v101, v100')
    A('v_cvt_pk_bf16_f32 v105, v98, v99')
    A('v_lshlrev_b32 v96, 16, v104')
    A('v_permlane32_swap_b32 v101, v100')
    A('v_and_b32 v97, 0xffff0000, v104')
    A('v_max_f32 v100, v101, v100')
    A('v_lshlrev_b32 v98, 16, v105')
    A('v_and_b32 v99, 0xffff0000, v105')
    A('v_sub_f32 v80, v80, v100')
    A('v_sub_f32 v84, v84, v100')
    A(f'v_mul_f32 v80, s{sLOG2E}, v80')
    A(f'v_mul_f32 v84, s{sLOG2E}, v84')
    A('v_exp_f32 v80, v80')
    A('v_exp_f32 v84, v84')
    for k in range(4):
        A(f'v_mul_f32_dpp v{104+k}, v{96+k}, v{96+k} quad_perm:[2,3,0,1] row_mask:0xf bank_mask:0xf')
    A('v_mul_f32 v102, v80, v81')
    A('v_fmac_f32 v102, v84, v85')
    for k in range(4):
        A(f'v_mul_f32 v{88+k}, v80, v{88+k}')
    for k in range(4):
        A(f'v_fmac_f32 v{88+k}, v84, v{92+k}')
    A('v_cvt_pk_bf16_f32 v96, v104, v105')
    A('v_cvt_pk_bf16_f32 v97, v106, v107')
    A('v_permlane32_swap_b32 v88, v89')
    A('v_permlane32_swap_b32 v90, v91')
    A('v_perm_b32 v98, v97, v96, v150')
    A('v_add_f32 v88, v88, v89')
    A('v_add_f32 v90, v90, v91')
    A('v_mov_b32 v103, v102')
    for i in range(2):
        for jj in range(4):
            A(f'v_and_b32_dpp v{64+4*i+jj}, v98, v{156+jj} quad_perm:[{i},{i},{i},{i}] row_mask:0xf bank_mask:0xf')
        if i == 0:
            A('v_permlane16_swap_b32 v88, v90')
            A('v_permlane16_swap_b32 v103, v102')
    A('v_add_f32 v88, v88, v90')
    A('v_add_f32 v102, v103, v102')
    A('v_mfma_f32_16x16x32_bf16 v[72:75], v[64:67], v[40:43], 0')
    A('v_mov_b32 v103, v102')
    A(f'v_add_f32_dpp v88, v88, v88 row_ror:8 row_mask:0xf bank_mask:0xf')
    A('v_mfma_f32_16x16x32_bf16 v[72:75], v[68:71], v[44:47], v[72:75]')
    A('v_permlane32_swap_b32 v103, v102')
    A(f'v_add_f32_dpp v88, v88, v88 row_ror:4 row_mask:0xf bank_mask:0xf')
    A('v_add_f32 v102, v103, v102')
    A.nop(2)
    A(f'v_add_f32_dpp v102, v102, v102 row_ror:8 row_mask:0xf bank_mask:0xf')
    A.nop(2)
    A(f'v_add_f32_dpp v102, v102, v102 row_ror:4 row_mask:0xf bank_mask:0xf')
    A.nop(1)
    A('v_rcp_f32 v102, v102')
    A.nop(1)
    A('v_mul_f32 v88, v88, v102')
    A('v_cvt_pk_bf16_f32 v88, v88, v88')
    A.nop(2)
    for i in range(4):
        for jj in range(4):
            A(f'v_and_b32_dpp v{48+4*i+jj}, v88, v{156+jj} quad_perm:[{i},{i},{i},{i}] row_mask:0xf bank_mask:0xf')
        if i:
            A(f'v_mfma_f32_16x16x32_bf16 v[72:75], {vr(48+4*(i-1))}, {vr(24+4*(i-1))}, v[72:75]')
    A('v_lshlrev_b32 v84, 5, v3')
    A('v_lshl_add_u32 v84, v2, 4, v84')
    A('v_mfma_f32_16x16x32_bf16 v[72:75], v[60:63], v[36:39], v[72:75]')
    A('s_lshl_b32 s11, s3, 9')
    A(f's_add_u32 s11, s11, {L_RED}')
    A('v_add_u32 v84, s11, v84')
    A('v_lshlrev_b32 v85, 4, v1')
    A(f'v_add_u32 v85, {L_RED}, v85')
    A('s_mov_b32 exec_hi, 0')
    A.nop(3)
    A('ds_write_b128 v84, v[72:75]')
    A('s_mov_b64 exec, -1')
    A('s_waitcnt lgkmcnt(0)')
    A('s_barrier')
    P(13)
    A('s_cmp_lg_u32 s3, 0')
    A('s_cbranch_scc1 L_cmp_end')
    for w in range(4):
        A(f'ds_read_b128 {vr(88+4*w)}, v85 offset:{512*w}')
    A('v_lshrrev_b32 v84, 2, v1')
    A('v_lshlrev_b32 v84, 12, v84')
    A('v_and_b32 v86, 3, v1')
    A('v_lshl_add_u32 v84, v86, 4, v84')
    A('s_and_b32 s11, s5, 3')
    A('s_lshl_b32 s11, s11, 15')
    A('s_lshl_b32 s12, s4, 3')
    A('s_lshr_b32 s13, s5, 2')
    A('s_add_u32 s12, s12, s13')
    A('s_lshl_b32 s12, s12, 6')
    A('s_add_u32 s11, s11, s12')
    A(f's_add_u32 s11, s11, {FIN}')
    A('v_add_u32 v84, s11, v84')
    A('s_waitcnt lgkmcnt(2)')
    for k in range(4):
        A(f'v_add_f32 v{88+k}, v{88+k}, v{92+k}')
    A('s_waitcnt lgkmcnt(0)')
    for k in range(4):
        A(f'v_add_f32 v{96+k}, v{96+k}, v{100+k}')
    for k in range(4):
        A(f'v_add_f32 v{88+k}, v{88+k}, v{96+k}')
    tag_insert(A, 88)
    A('s_mov_b32 exec_hi, 0')
    A(f'buffer_store_dwordx4 v[88:91], v84, {srd(SWS)}, 0 offen sc1')
    A('s_mov_b64 exec, -1')
    A.label('L_cmp_end')
    P(14)
    P.flush(); P.reset()
    A('s_branch L_done')
    A.label('L_comm')
    P.reset(prev=0, k=0)
    P(1)
    A(f's_load_dwordx2 s[{SOUT}:{SOUT+1}], s[0:1], 72')
    A(f's_mov_b32 s{SOUT+2}, 1024')
    A(f's_mov_b32 s{SOUT+3}, 0x20000')
    A(f's_lshl_b32 s{sT}, s{sRB}, 3')
    A(f's_add_u32 s{sT}, s{sT}, s4')
    A('v_lshrrev_b32 v2, 4, v1')
    A('v_and_b32 v3, 15, v1')
    common_consts(A)
    A(f'v_mov_b32 v4, {EOFF}')
    if cfg.exp_dirty:
        A('s_cmp_eq_u32 s3, 4')
        A('s_cbranch_scc0 L_nodirty')
        A('s_waitcnt lgkmcnt(0)')
        A(f's_mov_b32 s{SWS+2}, 0x2000000')
        A(f's_mul_i32 s11, s2, {cfg.exp_dirty*1024}')
        A('s_add_u32 s11, s11, 0x400000')
        A('v_lshlrev_b32 v20, 4, v1')
        for i in range(cfg.exp_dirty):
            A(f'buffer_store_dwordx4 v[16:19], v20, {srd(SWS)}, s11 offen')
            A('s_add_u32 s11, s11, 1024')
        A.label('L_nodirty')
    def pretouch():
        A('s_cmp_eq_u32 s3, 4')
        A('s_cbranch_scc0 L_nopre')
        A('s_waitcnt lgkmcnt(0)')
        A('s_lshl_b32 s11, s4, 5')
        A('s_add_u32 s11, s11, s5')
        A('s_lshl_b32 s12, s11, 11')
        A(f's_add_u32 s12, s12, {OIO}')
        A('v_lshl_add_u32 v10, v1, 7, s12')
        A('s_lshl_b32 s12, s11, 9')
        A(f's_add_u32 s12, s12, {GUO - 16*128}')
        A('v_lshl_add_u32 v11, v1, 7, s12')
        A('v_cmp_le_u32 vcc, 16, v1')
        A('s_lshl_b32 s12, s11, 8')
        A(f's_add_u32 s12, s12, {QA - 20*128}')
        A('v_cndmask_b32 v10, v10, v11, vcc')
        A('v_lshl_add_u32 v11, v1, 7, s12')
        A('v_cmp_le_u32 vcc, 20, v1')
        A('s_lshl_b32 s12, s4, 9')
        A('s_and_b32 s13, s5, 3')
        A('s_lshl_b32 s13, s13, 7')
        A('s_add_u32 s12, s12, s13')
        A(f's_add_u32 s12, s12, {IDA}')
        A('v_cndmask_b32 v10, v10, v11, vcc')
        A('v_mov_b32 v11, s12')
        A('v_cmp_le_u32 vcc, 22, v1')
        A('s_lshl_b32 s12, s4, 11')
        A('s_and_b32 s13, s5, 15')
        A('s_lshl_b32 s13, s13, 7')
        A('s_add_u32 s12, s12, s13')
        A(f's_add_u32 s12, s12, {MLO}')
        A('v_cndmask_b32 v10, v10, v11, vcc')
        A('v_mov_b32 v11, s12')
        A('v_cmp_le_u32 vcc, 23, v1')
        A.nop(2)
        A('v_cndmask_b32 v10, v10, v11, vcc')
        A('s_mov_b64 exec, 0xffffff')
        A(f'buffer_load_dword v12, v10, {srd(SWS)}, 0 offen {cfg.pre_fl}')
        A('s_mov_b64 exec, -1')
        A.label('L_nopre')
    if cfg.pretouch == 1:
        pretouch()
    if cfg.finpre == 1:
        A('s_cmp_eq_u32 s3, 5')
        A('s_cbranch_scc0 L_nofinpre')
        A('s_cmp_lt_u32 s2, 32')
        A('s_cbranch_scc0 L_nofinpre')
        A('s_waitcnt lgkmcnt(0)')
        A('s_lshl_b32 s11, s2, 14')
        A(f's_add_u32 s11, s11, {FIN}')
        A('v_lshl_add_u32 v10, v1, 7, s11')
        A('s_mov_b32 s12, 8192')
        A(f'buffer_load_dword v12, v10, {srd(SWS)}, 0 offen {cfg.finpre_fl}')
        A(f'buffer_load_dword v13, v10, {srd(SWS)}, s12 offen {cfg.finpre_fl}')
        A.label('L_nofinpre')
    elif cfg.finpre == 2:
        A('s_cmp_eq_u32 s3, 5')
        A('s_cbranch_scc0 L_nofinpre')
        A('s_waitcnt lgkmcnt(0)')
        A('s_lshl_b32 s11, s2, 11')
        A(f's_add_u32 s11, s11, {FIN}')
        A('v_lshl_add_u32 v10, v1, 7, s11')
        A('s_mov_b64 exec, 0xffff')
        A(f'buffer_load_dword v12, v10, {srd(SWS)}, 0 offen {cfg.finpre_fl}')
        A('s_mov_b64 exec, -1')
        A.label('L_nofinpre')
    A('s_lshl_b32 s11, s4, 13')
    A('s_sub_u32 s12, s3, 4')
    A('s_lshl_b32 s12, s12, 10')
    A('s_add_u32 s11, s11, s12')
    A(f's_add_u32 s11, s11, {QA}')
    A('v_lshlrev_b32 v6, 4, v1')
    A('v_add_u32 v6, s11, v6')
    A('s_lshl_b32 s11, s4, 9')
    A(f's_add_u32 s11, s11, {IDA}')
    A('v_and_b32 v7, 31, v1')
    A('v_lshl_add_u32 v7, v7, 4, s11')
    A('s_sub_u32 s12, s3, 4')
    A('s_lshl_b32 s12, s12, 1')
    A('v_lshrrev_b32 v8, 5, v1')
    A('v_add_u32 v8, s12, v8')
    A('v_mul_u32_u24 v8, 272, v8')
    A('v_and_b32 v9, 31, v1')
    A('v_lshl_add_u32 v8, v9, 3, v8')
    A(f'v_add_u32 v8, {L_QB}, v8')
    P(3)
    A('s_barrier')
    P(4)
    if cfg.b1a:
        A('s_barrier')
    A('s_waitcnt lgkmcnt(0)')
    A(f'buffer_load_dword v5, v4, {srd(SWS)}, 0 offen {cfg.xnt}')
    A(f's_mov_b32 s{sIT}, 0')
    A('s_mov_b32 s14, 0')
    if cfg.b1b:
        A('s_barrier')
    P(5)
    def q_issue():
        A('s_add_u32 s15, s14, 4096')
        A(f'buffer_load_dwordx4 v[16:19], v6, {srd(SWS)}, s14 offen {cfg.gat}')
        A(f'buffer_load_dwordx4 v[20:23], v6, {srd(SWS)}, s14 offen offset:2048 {cfg.gat}')
        A(f'buffer_load_dwordx4 v[24:27], v6, {srd(SWS)}, s15 offen {cfg.gat}')
        A(f'buffer_load_dwordx4 v[28:31], v6, {srd(SWS)}, s15 offen offset:2048 {cfg.gat}')
        A(f'buffer_load_dwordx4 v[32:35], v7, {srd(SWS)}, s14 offen {cfg.gat}')
    def q_check():
        for q in range(5):
            tag_check(A, 16+4*q, 36, 37, q == 0)
    if cfg.b1c:
        q_issue()
        A('s_waitcnt vmcnt(0)')
        A('v_add_u32 v9, 0x01010101, v5')
        A.nop(1)
        A('v_readfirstlane_b32 s6, v9')
        q_check()
        A('s_cmp_eq_u64 s[88:89], 0')
        A('s_cbranch_scc1 L_qfirst_ok')
        q_issue()
        A('s_barrier')
        A(f's_mov_b32 s{sIT}, 1')
        A('s_branch L_qwait')
        A.label('L_qfirst_ok')
        A('s_barrier')
        A('s_branch L_qok')
        A.label('L_qgat')
        q_issue()
        A.label('L_qwait')
        A('s_waitcnt vmcnt(0)')
        q_check()
        poll_tail(A, cfg, 'L_qgat', 'L_qok', switch=14)
    else:
        A.label('L_qgat')
        q_issue()
        A('s_waitcnt vmcnt(0)')
        A('v_add_u32 v9, 0x01010101, v5')
        A.nop(1)
        A('v_readfirstlane_b32 s6, v9')
        q_check()
        poll_tail(A, cfg, 'L_qgat', 'L_qok', switch=14)
    A.label('L_qok')
    if cfg.prof in (True, 'heavy'):
        A(f'v_writelane_b32 v{vPROF}, s{sIT}, 20')
    P(6)
    mask_vals(A, 16, 16)
    for k in range(4):
        A(f'v_add_f32 v{16+k}, v{16+k}, v{20+k}')
        A(f'v_add_f32 v{24+k}, v{24+k}, v{28+k}')
    for k in range(4):
        A(f'v_add_f32 v{16+k}, v{16+k}, v{24+k}')
    A('v_cvt_pk_bf16_f32 v16, v16, v17')
    A('v_cvt_pk_bf16_f32 v17, v18, v19')
    A('ds_write_b64 v8, v[16:17]')
    if cfg.pretouch == 2:
        pretouch()
    A('s_getreg_b32 s13, hwreg(HW_REG_XCC_ID, 0, 4)')
    A('v_bfe_u32 v32, v32, 8, 8')
    A('v_cmp_ne_u32 vcc, s13, v32')
    A('s_cmp_eq_u64 vcc, 0')
    A('s_cselect_b32 s13, 1, 0')
    if cfg.forceslow:
        A('s_mov_b32 s13, 0')
    A('s_mov_b32 s24, s13')
    A('v_mov_b32 v33, s13')
    A(f'v_mov_b32 v34, {L_MODE}')
    A('s_cmp_eq_u32 s3, 5')
    A('s_cbranch_scc0 L_nomode')
    A('ds_write_b32 v34, v33')
    A.label('L_nomode')
    A('s_waitcnt lgkmcnt(0)')
    A('s_barrier')
    P(7)
    P.flush(); P.reset()
    A('s_cmp_eq_u32 s3, 5')
    A('s_cbranch_scc1 L_comm5')
    A('s_lshl_b32 s11, s2, 12')
    A(f's_add_u32 s11, s11, {FIN}')
    A('v_lshl_add_u32 v6, v1, 4, s11')
    A('v_and_b32 v8, 1, v2')
    A('v_lshrrev_b32 v9, 1, v2')
    A('v_lshl_or_b32 v8, v8, 1, v9')
    A('v_and_b32 v9, 3, v1')
    A('v_lshl_add_u32 v8, v9, 2, v8')
    A('s_and_b32 s11, s2, 31')
    A('s_lshl_b32 s11, s11, 4')
    A('v_add_u32 v8, s11, v8')
    A('v_lshlrev_b32 v8, 1, v8')
    A(f'buffer_load_ushort v9, v8, {srd(SX)}, 0 offen')
    A('s_barrier')
    A('s_barrier')
    A('s_barrier')
    P(13)
    P.flush(); P.reset()
    A('s_cmp_ge_u32 s2, 32')
    A('s_cbranch_scc1 L_done')
    A(f's_mov_b32 s{sIT}, 0')
    A.label('L_fgat')
    for q in range(4):
        A(f'buffer_load_dwordx4 {vr(16+4*q)}, v6, {srd(SWS)}, 0 offen offset:{1024*q} {cfg.gat}')
    A('s_waitcnt vmcnt(0)')
    for q in range(4):
        tag_check(A, 16+4*q, 36, 37, q == 0)
    poll_tail(A, cfg, 'L_fgat', 'L_fok')
    A.label('L_fok')
    if cfg.prof in (True, 'heavy'):
        A(f'v_writelane_b32 v{vPROF}, s{sIT}, 22')
    P(14)
    P.flush(); P.reset()
    mask_vals(A, 16, 16)
    for k in range(4):
        A(f'v_add_f32 v{16+k}, v{16+k}, v{20+k}')
        A(f'v_add_f32 v{24+k}, v{24+k}, v{28+k}')
    for k in range(4):
        A(f'v_add_f32 v{16+k}, v{16+k}, v{24+k}')
    transpose_reduce4(A, 16)
    A('v_lshlrev_b32 v9, 16, v9')
    A.nop(1)
    A('v_add_f32_dpp v16, v16, v16 row_ror:8 row_mask:0xf bank_mask:0xf')
    A.nop(2)
    A('v_add_f32_dpp v16, v16, v16 row_ror:4 row_mask:0xf bank_mask:0xf')
    A('v_add_f32 v16, v16, v9')
    A('v_cvt_pk_bf16_f32 v16, v16, v16')
    if cfg.calib:
        A('s_cmp_lg_u32 s2, 0')
        A('s_cbranch_scc1 L_nocal')
        A(f's_add_u32 s36, s36, {cfg.calib}')
        A.label('L_cal')
        A('s_memrealtime s[38:39]')
        A('s_waitcnt lgkmcnt(0)')
        A('s_sub_u32 s37, s38, s36')
        A('s_cmp_lt_i32 s37, 0')
        A('s_cbranch_scc1 L_cal')
        A.label('L_nocal')
    A('s_mov_b32 exec_lo, 0x000f000f')
    A('s_mov_b32 exec_hi, 0x000f000f')
    A(f'buffer_store_short v16, v8, {srd(SOUT)}, 0 offen')
    A('s_cmp_lg_u32 s2, 0')
    A('s_cbranch_scc1 L_noepoch')
    A('s_mov_b64 exec, 1')
    A(f'v_mov_b32 v17, {EOFF}')
    A(f'v_mov_b32 v18, s{sTAG}')
    A(f'buffer_store_dword v18, v17, {srd(SWS)}, 0 offen')
    A.label('L_noepoch')
    A('s_mov_b64 exec, -1')
    A('s_branch L_done')
    A.label('L_comm5')
    P.reset()
    A(f'v_mov_b32 v{vTAG}, s6')
    A('v_lshlrev_b32 v6, 4, v3')
    A('v_and_b32 v7, 1, v2')
    A('v_lshl_add_u32 v7, v7, 11, v6')
    A(f'v_add_u32 v7, {L_PART + 2048}, v7')
    for k in range(8):
        A(f'ds_read_b128 {vr(16+4*k)}, v7 offset:{256*k}')
    A('s_lshl_b32 s12, s4, 2')
    A(f's_add_u32 s12, s12, s{sRB}')
    A('s_lshl_b32 s12, s12, 3')
    A(f's_add_u32 s12, s12, s{sCB}')
    A('s_lshl_b32 s12, s12, 9')
    A(f's_add_u32 s12, s12, {GUO}')
    A('v_and_b32 v7, 1, v2')
    A('v_lshl_add_u32 v6, v7, 8, v6')
    A('v_add_u32 v6, s12, v6')
    A('s_waitcnt lgkmcnt(0)')
    for k in range(4):
        A(f'v_add_f32 v{16+k}, v{16+k}, v{20+k}')
        A(f'v_add_f32 v{24+k}, v{24+k}, v{28+k}')
        A(f'v_add_f32 v{32+k}, v{32+k}, v{36+k}')
        A(f'v_add_f32 v{40+k}, v{40+k}, v{44+k}')
    for k in range(4):
        A(f'v_add_f32 v{16+k}, v{16+k}, v{24+k}')
        A(f'v_add_f32 v{32+k}, v{32+k}, v{40+k}')
    for k in range(4):
        A(f'v_add_f32 v{16+k}, v{16+k}, v{32+k}')
    tag_insert(A, 16)
    A('s_mov_b32 exec_hi, 0')
    A('s_cmp_eq_u32 s24, 1')
    A('s_cbranch_scc0 L_gupub_slow')
    A(f'buffer_store_dwordx4 v[16:19], v6, {srd(SWS)}, 0 offen')
    A('s_branch L_gupub_done')
    A.label('L_gupub_slow')
    A(f'buffer_store_dwordx4 v[16:19], v6, {srd(SWS)}, 0 offen sc1')
    A.label('L_gupub_done')
    A('s_mov_b64 exec, -1')
    A('v_and_b32 v8, 3, v1')
    A('v_lshlrev_b32 v9, 4, v8')
    A(f'v_add_u32 v9, {L_MW}, v9')
    A('s_lshl_b32 s11, s4, 11')
    A('s_lshl_b32 s12, s5, 4')
    A('s_add_u32 s11, s11, s12')
    A(f's_add_u32 s11, s11, {MLO}')
    A('v_lshl_add_u32 v8, v8, 9, s11')
    A('s_barrier')
    A('s_barrier')
    A('ds_read_b128 v[20:23], v9')
    A(f'ds_read_b128 v[24:27], v9 offset:{L_LW - L_MW}')
    A('s_waitcnt lgkmcnt(0)')
    A('v_max3_f32 v20, v20, v21, v22')
    A('v_add_f32 v24, v24, v25')
    A('v_add_f32 v26, v26, v27')
    A('v_max_f32 v20, v20, v23')
    A('v_add_f32 v21, v24, v26')
    tag_insert(A, 20)
    A('s_mov_b64 exec, 15')
    A('s_cmp_eq_u32 s24, 1')
    A('s_cbranch_scc0 L_mlpub_slow')
    A(f'buffer_store_dwordx4 v[20:23], v8, {srd(SWS)}, 0 offen')
    A('s_branch L_mlpub_done')
    A.label('L_mlpub_slow')
    A(f'buffer_store_dwordx4 v[20:23], v8, {srd(SWS)}, 0 offen sc1')
    A.label('L_mlpub_done')
    A('s_mov_b64 exec, -1')
    A('s_barrier')
    A.label('L_done')
    if cfg.exp_hwid:
        A('s_getreg_b32 s11, hwreg(HW_REG_HW_ID)')
        A(f'v_writelane_b32 v{vPROF}, s11, 31')
    if cfg.prof == 'lite':
        A('s_memrealtime s[30:31]')
        A('s_waitcnt lgkmcnt(0)')
        A(f'v_writelane_b32 v{vPROF}, s28, 0')
        A(f'v_writelane_b32 v{vPROF}, s30, 15')
    elif cfg.prof:
        P(15)
        P.flush()
    if cfg.prof:
        A('s_mul_i32 s11, s2, 6')
        A('s_add_u32 s11, s11, s3')
        A('s_lshl_b32 s11, s11, 7')
        A(f's_add_u32 s11, s11, {PROF}')
        A('v_lshl_add_u32 v86, v1, 2, s11')
        A('s_mov_b32 exec_hi, 0')
        A(f'buffer_store_dword v{vPROF}, v86, {srd(SWS)}, 0 offen')
        A('s_mov_b64 exec, -1')
    A.label('L_end')
    A('s_endpgm')
    A('.section .rodata,"a"')
    A('.p2align 6')
    A(f'.amdhsa_kernel {NAME}')
    A(f'  .amdhsa_next_free_vgpr {cfg.nvgpr}')
    A('  .amdhsa_next_free_sgpr 102')
    A(f'  .amdhsa_accum_offset {min(cfg.nvgpr, 256)}')
    A('  .amdhsa_group_segment_fixed_size 0')
    A('  .amdhsa_kernarg_size 96')
    A('  .amdhsa_user_sgpr_count 2')
    A('  .amdhsa_user_sgpr_kernarg_segment_ptr 1')
    A('  .amdhsa_system_sgpr_workgroup_id_x 1')
    A('  .amdhsa_float_denorm_mode_32 3')
    A('.end_amdhsa_kernel')
    return A.text()

HEADER = open('parallel_sum__sliding_block_cached__glu_gated_bilinear__decode.s.ref').read().split('; Override launch')[0]

def full(cfg):
    body = gen(cfg)
    probs = check(body)
    for p in probs:
        if 'wide store WAR' in p and 'v_lshlrev_b32 v86, 4, v3' in p:
            continue
        print('HAZARD', p)
    return HEADER + f'; @launch grid=(256,1,1) block=(384,1,1) lds={cfg.ldsbytes}\n' + body

if __name__ == '__main__':
    cfg = Cfg()
    for a in sys.argv[2:]:
        k, v = a.split('=')
        old = getattr(cfg, k, None)
        setattr(cfg, k, v if ((isinstance(old, str) or v in ('lite', 'heavy')) and v not in ('False', 'True')) else eval(v))
    open(sys.argv[1], 'w').write(full(cfg))
```

```python
import sys
from asmlib import Asm, check

NAME = 'parallel_sum__sliding_block_cached__glu_gated_bilinear__decode_kernel'

EOFF  = 0
QA    = 0x1000
IDA   = 0x11000
BDELTA = 0x11000
GUO   = 0x23000
MLO   = 0x43000
OIO   = 0x48000
FIN   = 0xC8000
PROF  = 0x180000
WS_BYTES = 0x200000

L_K = 0
L_V = 32768
L_XN = 65536
L_PART = 66560
L_QB = 72704
L_HB = 73792
L_MODE = 73808
L_MW = 73824
L_LW = 73888
L_PB = L_PART
L_RED = L_PART + 4096
LDS_BYTES = 73984

sW, sG, sS, sTAG = 3, 4, 5, 6
SX, SK, SV, SWQ, SWO, SGA, SUP, SDN, SOUT, SWS = 40, 44, 48, 52, 56, 60, 64, 68, 72, 76
M0, M1, M2, M3 = 80, 82, 84, 86
sX0, sX1 = 90, 91
sIT = 92
sLOG2E, sSCALE = 93, 94
sMSK = 95
sP01, sP23 = 96, 97
sI0, sI1, sI2, sI3 = 98, 99, 100, 101
sRB, sT, sCB = 7, 8, 10
vTAG, vSH = 167, 166
vPROF = 165
def srd(n): return f's[{n}:{n+3}]'
def vr(n, k=4): return f'v[{n}:{n+k-1}]'

class Cfg:
    nt = 'nt'
    gat = 'sc1'
    nk1 = 8
    domask = True
    elate = True
    finpre2 = True
    fpub = 'sc1'
    fgat = 'sc1'
    worot = True
    kearly = False
    owait = 3
    oline = False
    tpos = (2, 2, 2, 2, 2, 2)
    calib = 0
    ldsbytes = LDS_BYTES
    nvgpr = 168
    b1a = True
    win = None
    win2 = None
    exp_dirty = 0
    b1c = False
    nv2 = 4
    kwait = 3
    exp_cb = 0
    exp_hwid = False
    swap = True
    wo_early = -1
    b0 = 0
    prio = 3
    align = 12
    xnt = ''
    finpre = 0
    finpre_fl = ''
    codepf_n = 4
    nv1 = 3
    b1b = True
    b3b = True
    maxit = 200000
    swit = 24
    prof = False
    dbgprof = None
    pretouch = 0
    pre_fl = 'nt'
    codepf = 's'
    forceslow = False
    forceb = False

ROW_FULL = ['quad_perm:[1,0,3,2]', 'quad_perm:[2,3,0,1]', 'row_half_mirror', 'row_mirror']

def rowred(A, regs, op, steps):
    for st in steps:
        A.nop(2 if len(regs) < 3 else max(0, 2 - (len(regs) - 1)))
        for v in regs:
            A(f'{op}_dpp v{v}, v{v}, v{v} {st} row_mask:0xf bank_mask:0xf')
        if len(regs) >= 3:
            pass

def cross_rows(A, v, tmp, op):
    A(f'v_mov_b32 v{tmp}, v{v}')
    A.nop(2)
    A(f'v_permlane16_swap_b32 v{tmp}, v{v}')
    A.nop(1)
    A(f'{op} v{v}, v{tmp}, v{v}')
    A(f'v_mov_b32 v{tmp}, v{v}')
    A.nop(2)
    A(f'v_permlane32_swap_b32 v{tmp}, v{v}')
    A.nop(1)
    A(f'{op} v{v}, v{tmp}, v{v}')

def wave_allreduce(A, v, tmp, op):
    rowred(A, [v], op, ROW_FULL)
    cross_rows(A, v, tmp, op)

def transpose_reduce4(A, v):
    A.nop(1)
    A(f'v_permlane32_swap_b32 v{v}, v{v+1}')
    A(f'v_permlane32_swap_b32 v{v+2}, v{v+3}')
    A.nop(1)
    A(f'v_add_f32 v{v}, v{v}, v{v+1}')
    A(f'v_add_f32 v{v+2}, v{v+2}, v{v+3}')
    A.nop(2)
    A(f'v_permlane16_swap_b32 v{v}, v{v+2}')
    A.nop(1)
    A(f'v_add_f32 v{v}, v{v}, v{v+2}')

def tag_insert(A, v):
    for k, s in enumerate((sI0, sI1, sI2, sI3)):
        A(f'v_perm_b32 v{v+k}, v{v+k}, v{vTAG}, s{s}')

def tag_check(A, v, t0, t1, first):
    A(f'v_perm_b32 v{t0}, v{v+1}, v{v}, s{sP01}')
    A(f'v_perm_b32 v{t1}, v{v+3}, v{v+2}, s{sP23}')
    A(f'v_or_b32 v{t0}, v{t0}, v{t1}')
    if first:
        A(f'v_cmp_ne_u32 s[88:89], s{sTAG}, v{t0}')
    else:
        A(f'v_cmp_ne_u32 s[90:91], s{sTAG}, v{t0}')
        A('s_or_b64 s[88:89], s[88:89], s[90:91]')

def mask_vals(A, v, n=4):
    for k in range(n):
        A(f'v_and_b32 v{v+k}, s{sMSK}, v{v+k}')

def build_sel(A, dst, val, tmp):
    A(f'v_lshlrev_b32 v{tmp}, v{vSH}, v{val}')
    for j, m in enumerate((M0, M1, M2, M3)):
        A(f'v_cndmask_b32_e64 v{dst+j}, 0, v{tmp}, s[{m}:{m+1}]')

class Prof:
    def __init__(self, A, cfg):
        self.A, self.on, self.prev, self.k = A, cfg.prof, None, 0
        self.lite = cfg.prof == 'lite'
    def reset(self, prev=None, k=0):
        if self.lite:
            self.prev = None
            return
        self.prev, self.k = prev, k
    def __call__(self, idx):
        if not self.on: return
        if self.on == 'lite' and idx not in (0, 15): return
        if idx >= 23 and self.on != 'heavy': return
        A = self.A
        if self.on == 'heavy' and self.prev is not None:
            A('s_waitcnt lgkmcnt(0)')
        if self.prev is not None:
            A(f'v_writelane_b32 v{vPROF}, s{28 + 2*self.k}, {self.prev}')
            self.k ^= 1
        A(f's_memrealtime s[{28+2*self.k}:{29+2*self.k}]')
        self.prev = None if self.lite else idx
    def flush(self):
        if not self.on: return
        if self.prev is None: return
        A = self.A
        A('s_waitcnt lgkmcnt(0)')
        A(f'v_writelane_b32 v{vPROF}, s{28 + 2*self.k}, {self.prev}')

def common_consts(A):
    A(f's_mov_b32 s{sLOG2E}, 0x3fb8aa3b')
    A(f's_mov_b32 s{sSCALE}, 0x3db504f3')
    A(f's_mov_b32 s{sMSK}, 0xffffff00')
    A(f's_mov_b32 s{sP01}, 0x0c0c0400')
    A(f's_mov_b32 s{sP23}, 0x04000c0c')
    A(f's_mov_b32 s{sI0}, 0x07060500')
    A(f's_mov_b32 s{sI1}, 0x07060501')
    A(f's_mov_b32 s{sI2}, 0x07060502')
    A(f's_mov_b32 s{sI3}, 0x07060503')

def poll_tail(A, cfg, label, oklabel, switch=None):
    A('s_cmp_eq_u64 s[88:89], 0')
    A(f's_cbranch_scc1 {oklabel}')
    A(f's_add_u32 s{sIT}, s{sIT}, 1')
    if switch:
        A(f's_cmp_eq_u32 s{sIT}, {cfg.swit}')
        A(f's_cselect_b32 s{switch}, {BDELTA}, s{switch}')
    A(f's_cmp_le_u32 s{sIT}, {cfg.maxit}')
    A(f's_cbranch_scc1 {label}')

def gen(cfg):
    A = Asm()
    P = Prof(A, cfg)
    nt = cfg.nt
    A('.amdgcn_target "amdgcn-amd-amdhsa--gfx950"')
    A('.text')
    A(f'.globl {NAME}')
    A(f'.p2align {cfg.align}')
    A(f'.type {NAME},@function')
    A.label(NAME)
    A('s_cmp_ge_u32 s2, 256')
    A('s_cbranch_scc1 L_end')
    P(0)
    if cfg.calib:
        A('s_memrealtime s[36:37]')
    for sr, off in ((SWQ, 24), (SX, 0), (SWS, 88), (SK, 8)):
        A(f's_load_dwordx2 s[{sr}:{sr+1}], s[0:1], {off}')
    A('v_lshrrev_b32 v2, 6, v0')
    A('v_and_b32 v1, 63, v0')
    A('s_and_b32 s4, s2, 7')
    A('v_readfirstlane_b32 s3, v2')
    A('s_lshr_b32 s5, s2, 3')
    A(f's_lshr_b32 s{sRB}, s5, 3')
    A(f's_and_b32 s{sCB}, s5, 7')
    for sr, n in ((SWQ, 4194304), (SX, 1024), (SWS, WS_BYTES), (SK, 134217728)):
        A(f's_mov_b32 s{sr+2}, {n}')
        A(f's_mov_b32 s{sr+3}, 0x20000')
    A('s_cmp_ge_u32 s3, 4')
    A('s_cbranch_scc1 L_comm0')
    def kcalc():
        A('v_lshrrev_b32 v2, 4, v1')
        A('v_and_b32 v3, 15, v1')
        A('v_xor_b32 v5, v2, v3')
        A('v_lshlrev_b32 v5, 4, v5')
        A('v_lshl_add_u32 v156, v2, 8, v5')
        for i in range(1, 4):
            A(f'v_xor_b32 v{156+i}, {64*i}, v156')
        A('s_lshl_b32 s19, s4, 24')
        A('s_lshl_b32 s11, s5, 15')
        A('s_add_u32 s19, s19, s11')
        A('s_lshl_b32 s20, s3, 13')
        A('s_add_u32 s19, s19, s20')
        A('s_add_u32 s19, s19, 15728640')
        A('s_and_b32 s25, s4, 1')
        A('s_lshl_b32 s25, s25, 12')
        A('s_xor_b32 s26, s25, 4096')
        A('s_add_u32 s27, s19, s26')
        A('s_add_u32 s19, s19, s25')
        A('s_add_u32 s25, s25, s20')
        A('s_add_u32 s26, s26, s20')
        A('s_mov_b32 m0, s25')
    A(f's_lshl_b32 s12, s{sRB}, 20')
    A('s_lshl_b32 s11, s3, 18')
    A('s_add_u32 s12, s12, s11')
    A('s_lshl_b32 s11, s4, 10')
    A('s_add_u32 s12, s12, s11')
    A(f's_lshl_b32 s11, s{sCB}, 7')
    A('s_add_u32 s12, s12, s11')
    A('v_lshlrev_b32 v163, 4, v1')
    A('v_lshrrev_b32 v164, 3, v1')
    A('v_and_b32 v4, 0x70, v163')
    A('v_lshl_add_u32 v6, v164, 13, v4')
    A(f'v_mov_b32 v7, {EOFF}')
    A('s_add_u32 s13, s12, 65536')
    A('s_add_u32 s14, s12, 131072')
    A('s_add_u32 s15, s12, 196608')
    if cfg.kearly:
        kcalc()
    A('s_waitcnt lgkmcnt(0)')
    P(27)
    A(f'buffer_load_dwordx4 v[8:11], v163, {srd(SX)}, 0 offen {cfg.xnt}')
    if not cfg.elate:
        A(f'buffer_load_dword v{vTAG}, v7, {srd(SWS)}, 0 offen {cfg.xnt}')
    for i in range(4):
        A(f'buffer_load_dwordx4 {vr(12+4*i)}, v6, {srd(SWQ)}, s{12+i} offen {nt}')
    if cfg.elate:
        A(f'buffer_load_dword v{vTAG}, v7, {srd(SWS)}, 0 offen {cfg.xnt}')
    for sr, off in ((SV, 16), (SGA, 48), (SUP, 56), (SWO, 32), (SDN, 64)):
        A(f's_load_dwordx2 s[{sr}:{sr+1}], s[0:1], {off}')
    if not cfg.kearly:
        kcalc()
        A.nop(1)
    def kloads(lo, hi):
        for i in range(lo, hi):
            if i == 4:
                A('s_mov_b32 m0, s26')
                A.nop(1)
            A(f'buffer_load_dwordx4 v{156+(i&3)}, {srd(SK)}, s{19 if i < 4 else 27} offen offset:{1024*(i&3)} {nt} lds')
    kloads(0, cfg.nk1)
    A('v_mul_u32_u24 v162, 3584, v164')
    A('v_add_u32 v161, v162, v4')
    A(f's_lshl_b32 s{sT}, s{sRB}, 3')
    A(f's_add_u32 s{sT}, s{sT}, s4')
    A(f's_cmp_lt_u32 s{sT}, 28')
    A('s_cselect_b32 s9, 1835008, 0')
    for sr, n in ((SV, 134217728), (SWO, 4194304)):
        A(f's_mov_b32 s{sr+2}, {n}')
        A(f's_mov_b32 s{sr+3}, 0x20000')
    for sr in (SGA, SUP, SDN):
        A(f's_mov_b32 s{sr+2}, s9')
        A(f's_mov_b32 s{sr+3}, 0x20000')
    A('s_branch L_cmp_go')
    A.label('L_comm0')
    if cfg.codepf:
        A('s_cmp_eq_u32 s3, 5')
        A('s_cbranch_scc0 L_nocodepf')
        A('s_getpc_b64 s[12:13]')
        A.label('L_pc')
        A(f's_sub_u32 s12, s12, L_pc-{NAME}')
        A('s_subb_u32 s13, s13, 0')
        A('s_lshl_b32 s14, s5, 6')
        A('s_add_u32 s12, s12, s14')
        A('s_addc_u32 s13, s13, 0')
        for i in range(cfg.codepf_n):
            A(f's_load_dword s{32+(i&3)}, s[12:13], {2048*i}')
        A.label('L_nocodepf')
    if cfg.prio:
        A(f's_setprio {cfg.prio}')
    A('s_branch L_comm')
    A.label('L_cmp_go')
    for m, lo in ((M0, 0x03030303), (M1, 0x0c0c0c0c), (M2, 0x30303030), (M3, 0xc0c0c0c0)):
        A(f's_mov_b32 s{m}, {hex(lo)}')
        A(f's_mov_b32 s{m+1}, {hex(lo)}')
    common_consts(A)
    A(f'v_and_b32 v{vSH}, 1, v1')
    A(f'v_lshlrev_b32 v{vSH}, 4, v{vSH}')
    A(f's_lshl_b32 s17, s{sCB}, 6')
    A('s_lshl_b32 s11, s3, 4')
    A('s_add_u32 s17, s17, s11')
    A('s_mul_i32 s17, s17, 3584')
    A(f's_lshl_b32 s11, s{sT}, 7')
    A('s_add_u32 s17, s17, s11')
    A('s_lshl_b32 s21, s4, 19')
    A('s_lshr_b32 s11, s5, 2')
    A('s_lshl_b32 s12, s11, 16')
    A('s_add_u32 s21, s21, s12')
    A('s_lshl_b32 s12, s3, 14')
    A('s_add_u32 s21, s21, s12')
    A('s_and_b32 s23, s5, 3')
    A('s_lshl_b32 s23, s23, 8')
    A('s_add_u32 s21, s21, s23')
    A(f's_lshl_b32 s22, s{sT}, 16')
    A('s_and_b32 s11, s11, 1')
    A('s_lshl_b32 s11, s11, 15')
    A('s_add_u32 s22, s22, s11')
    A('s_lshl_b32 s12, s3, 13')
    A('s_add_u32 s22, s22, s12')
    A('s_add_u32 s22, s22, s23')
    A('v_lshlrev_b32 v162, 4, v3')
    A('v_lshl_add_u32 v162, v2, 10, v162')
    P(1)
    A.c('layernorm')
    A(f's_waitcnt vmcnt({4 + cfg.nk1 + (1 if cfg.elate else 0)})')
    P(2)
    for k in range(4):
        A(f'v_lshlrev_b32 v{80+2*k}, 16, v{8+k}')
        A(f'v_and_b32 v{81+2*k}, 0xffff0000, v{8+k}')
    A('v_add_f32 v88, v80, v81')
    A('v_add_f32 v89, v82, v83')
    A('v_add_f32 v90, v84, v85')
    A('v_add_f32 v91, v86, v87')
    A('v_add_f32 v88, v88, v89')
    A('v_add_f32 v90, v90, v91')
    A('v_add_f32 v88, v88, v90')
    wave_allreduce(A, 88, 89, 'v_add_f32')
    A('v_mul_f32 v88, 0x3b000000, v88')
    for k in range(8):
        A(f'v_sub_f32 v{92+k}, v{80+k}, v88')
    A('v_mul_f32 v90, v92, v92')
    for k in range(1, 8):
        A(f'v_fmac_f32 v90, v{92+k}, v{92+k}')
    wave_allreduce(A, 90, 89, 'v_add_f32')
    P(23)
    A('v_mul_f32 v90, 0x3b000000, v90')
    A('v_cvt_pk_bf16_f32 v88, v88, v90')
    A('v_and_b32 v90, 0xffff0000, v88')
    A('v_lshlrev_b32 v88, 16, v88')
    A('v_add_f32 v90, 0x3727c5ac, v90')
    A('v_cvt_pk_bf16_f32 v90, v90, v90')
    A('v_lshlrev_b32 v90, 16, v90')
    A('v_sqrt_f32 v90, v90')
    for k in range(8):
        A(f'v_sub_f32 v{92+k}, v{80+k}, v88')
    A('v_cvt_pk_bf16_f32 v90, v90, v90')
    A('v_lshlrev_b32 v90, 16, v90')
    A('v_rcp_f32 v90, v90')
    for k in range(4):
        A(f'v_cvt_pk_bf16_f32 v{100+k}, v{92+2*k}, v{93+2*k}')
    for k in range(4):
        A(f'v_lshlrev_b32 v{92+2*k}, 16, v{100+k}')
        A(f'v_and_b32 v{93+2*k}, 0xffff0000, v{100+k}')
    for k in range(8):
        A(f'v_mul_f32 v{92+k}, v{92+k}, v90')
    for k in range(4):
        A(f'v_cvt_pk_bf16_f32 v{100+k}, v{92+2*k}, v{93+2*k}')
    A(f'v_add_u32 v104, {L_XN}, v163')
    A('ds_write_b128 v104, v[100:103]')
    P(24)
    A('v_lshrrev_b32 v105, 3, v3')
    A('v_lshl_add_u32 v105, v2, 1, v105')
    A(f's_lshl_b32 s11, s{sRB}, 7')
    A('s_lshl_b32 s12, s3, 5')
    A('s_add_u32 s11, s11, s12')
    A('s_lshl_b32 s11, s11, 1')
    A(f's_add_u32 s11, s11, {L_XN}')
    A('v_lshl_add_u32 v106, v105, 1, s11')
    A(f's_lshl_b32 s11, s{sCB}, 6')
    A('s_lshl_b32 s12, s3, 4')
    A('s_add_u32 s11, s11, s12')
    A('s_lshl_b32 s11, s11, 1')
    A(f's_add_u32 s11, s11, {L_XN}')
    A('v_lshl_add_u32 v107, v105, 1, s11')
    A('s_waitcnt lgkmcnt(0)')
    for i in range(4):
        A(f'ds_read_u16 v{80+i}, v106 offset:{16*i}')
    for i in range(2):
        A(f'ds_read_u16 v{84+i}, v107 offset:{16*i}')
    if not cfg.elate:
        A(f'v_add_u32 v{vTAG}, 0x01010101, v{vTAG}')
    P(25)
    kloads(cfg.nk1, 8)
    P(26)
    if not cfg.elate:
        A.nop(1)
        A(f'v_readfirstlane_b32 s6, v{vTAG}')
    A('s_waitcnt lgkmcnt(0)')
    for i in range(4):
        build_sel(A, 48+4*i, 80+i, 86)
    for i in range(2):
        build_sel(A, 64+4*i, 84+i, 86)
    A('v_lshlrev_b32 v86, 1, v2')
    A('v_xor_b32 v86, v86, v3')
    A('v_lshlrev_b32 v86, 4, v86')
    A('v_lshl_add_u32 v160, v2, 8, v86')
    A('v_xor_b32 v164, 128, v160')
    A('v_lshrrev_b32 v87, 5, v1')
    A('v_lshlrev_b32 v87, 8, v87')
    A('v_and_b32 v86, 7, v1')
    A('v_lshl_add_u32 v87, v86, 5, v87')
    A('v_and_b32 v86, 1, v2')
    A('v_lshl_add_u32 v87, v86, 4, v87')
    A('s_lshl_b32 s11, s3, 9')
    A(f's_add_u32 s11, s11, {L_PART}')
    A('v_add_u32 v163, s11, v87')
    P(3)
    A.c('q partial product')
    A('s_waitcnt vmcnt(8)')
    P(16)
    if cfg.elate:
        A(f'v_add_u32 v{vTAG}, 0x01010101, v{vTAG}')
    for i in range(4):
        A(f'v_mfma_f32_16x16x32_bf16 v[72:75], {vr(48+4*i)}, {vr(12+4*i)}, {"0" if i == 0 else "v[72:75]"}')
    A('s_mov_b32 exec_lo, 0x00ff00ff')
    A('s_mov_b32 exec_hi, 0xff00ff00')
    A.nop(6)
    A('ds_write_b128 v163, v[72:75]')
    A('s_mov_b64 exec, -1')
    if cfg.elate:
        A(f'v_readfirstlane_b32 s6, v{vTAG}')
    A('s_waitcnt lgkmcnt(0)')
    A('s_barrier')
    P(4)
    A('s_cmp_lg_u32 s3, 3')
    A('s_cbranch_scc1 L_pub1_done')
    A('v_lshlrev_b32 v86, 4, v3')
    A(f'v_add_u32 v87, {L_PART}, v86')
    for k in range(8):
        A(f'ds_read_b128 {vr(80+4*k+32)}, v87 offset:{256*k}')
    A('s_lshl_b32 s11, s4, 2')
    A(f's_add_u32 s11, s11, s{sRB}')
    A('s_lshl_b32 s11, s11, 11')
    A(f's_lshl_b32 s12, s{sCB}, 8')
    A('s_add_u32 s11, s11, s12')
    A(f's_add_u32 s11, s11, {QA}')
    A('v_add_u32 v86, s11, v86')
    A('s_lshl_b32 s12, s4, 9')
    A('s_lshl_b32 s13, s5, 4')
    A('s_add_u32 s12, s12, s13')
    A(f's_add_u32 s12, s12, {IDA}')
    A('v_mov_b32 v87, s12')
    A('v_cmp_eq_u32 vcc, 0, v2')
    A('s_getreg_b32 s13, hwreg(HW_REG_XCC_ID, 0, 4)')
    A('s_lshl_b32 s13, s13, 8')
    A('v_cndmask_b32 v86, v87, v86, vcc')
    A('s_waitcnt lgkmcnt(0)')
    for k in range(4):
        A(f'v_add_f32 v{112+k}, v{112+k}, v{116+k}')
        A(f'v_add_f32 v{120+k}, v{120+k}, v{124+k}')
        A(f'v_add_f32 v{128+k}, v{128+k}, v{132+k}')
        A(f'v_add_f32 v{136+k}, v{136+k}, v{140+k}')
    for k in range(4):
        A(f'v_add_f32 v{112+k}, v{112+k}, v{120+k}')
        A(f'v_add_f32 v{128+k}, v{128+k}, v{136+k}')
    for k in range(4):
        A(f'v_add_f32 v{112+k}, v{112+k}, v{128+k}')
    A('v_mov_b32 v116, s13')
    A('v_cndmask_b32 v112, v116, v112, vcc')
    tag_insert(A, 112)
    A('s_mov_b32 exec_lo, 0x0001ffff')
    A('s_mov_b32 exec_hi, 0')
    if not cfg.forceb:
        A(f'buffer_store_dwordx4 v[112:115], v86, {srd(SWS)}, 0 offen')
    A(f's_mov_b32 s12, {BDELTA}')
    A(f'buffer_store_dwordx4 v[112:115], v86, {srd(SWS)}, s12 offen sc1')
    A('s_mov_b64 exec, -1')
    A.label('L_pub1_done')
    if cfg.b1a:
        A('s_barrier')
    nst = (1 if cfg.forceb else 2)
    A.c('gate/up loads, V loads')
    A('s_add_u32 s18, s17, 28672')
    A(f'buffer_load_dwordx4 {vr(8)}, v161, {srd(SGA)}, s17 offen {nt}')
    A(f'buffer_load_dwordx4 {vr(12)}, v161, {srd(SGA)}, s18 offen {nt}')
    A(f'buffer_load_dwordx4 {vr(16)}, v161, {srd(SUP)}, s17 offen {nt}')
    A(f'buffer_load_dwordx4 {vr(20)}, v161, {srd(SUP)}, s18 offen {nt}')
    def vloads(lo, hi, win=None):
        for i in range(lo, hi):
            if win:
                A(f's_waitcnt vmcnt({win-1})')
            if i % 4 == 0 or i == lo:
                A(f's_add_u32 m0, s{25 if i < 4 else 26}, {L_V}')
                A.nop(1)
            A(f'buffer_load_dwordx4 v{(160, 164)[i&1]}, {srd(SV)}, s{19 if i < 4 else 27} offen offset:{1024*(i&3)} {nt} lds')
    vloads(0, cfg.nv1)
    if cfg.kwait is not None:
        A('s_cmp_eq_u32 s3, 3')
        A('s_cbranch_scc1 L_nokwait')
        A(f's_waitcnt vmcnt({cfg.kwait + cfg.nv1})')
        A.label('L_nokwait')
    if cfg.b1b:
        A('s_barrier')
    P(5)
    A('v_and_b32 v85, 1, v2')
    A('v_lshrrev_b32 v86, 1, v2')
    A('v_lshl_or_b32 v85, v85, 1, v86')
    A('v_lshlrev_b32 v86, 4, v3')
    A('v_lshl_add_u32 v161, v85, 10, v86')
    A('v_xor_b32 v86, v2, v3')
    A('v_lshlrev_b32 v86, 4, v86')
    A('v_lshl_add_u32 v156, v3, 8, v86')
    A('v_add_u32 v156, s20, v156')
    for j in range(1, 4):
        A(f'v_xor_b32 v{156+j}, {64*j}, v156')
    A('v_and_b32 v86, 3, v1')
    A('v_mul_u32_u24 v86, 272, v86')
    A('v_lshl_add_u32 v4, v2, 4, v86')
    A(f'v_add_u32 v4, {L_QB}, v4')
    if cfg.b1c:
        vloads(cfg.nv1, cfg.nv2)
        A('s_barrier')
        vloads(cfg.nv2, 8)
    else:
        vloads(cfg.nv1, 8, cfg.win)
    def tail_loads(pos):
        n = 0
        for i, p in enumerate(cfg.tpos):
            if p != pos:
                continue
            n += 1
            if i < 4:
                if cfg.worot:
                    A(f'buffer_load_dwordx4 {vr(24+4*i)}, v161, {srd(SWO)}, s{32+i} offen {nt}')
                else:
                    A(f's_add_u32 s13, s21, {4096*i}')
                    A(f'buffer_load_dwordx4 {vr(24+4*i)}, v161, {srd(SWO)}, s13 offen {nt}')
            else:
                if cfg.worot:
                    A(f'buffer_load_dwordx4 {vr(40+4*(i-4))}, v162, {srd(SDN)}, s{36+(i-4)} offen {nt}')
                else:
                    A(f's_add_u32 s13, s22, {4096*(i-4)}')
                    A(f'buffer_load_dwordx4 {vr(40+4*(i-4))}, v162, {srd(SDN)}, s13 offen {nt}')
        return n
    nearly = 0
    nearly += tail_loads(1)
    A.c('addresses for the attention tail (computed while the loads are in flight)')
    if cfg.worot:
        A('s_add_u32 s38, s4, s3')
        A('s_and_b32 s38, s38, 3')
        for i in range(4):
            A(f's_add_u32 s11, s38, {i}')
            A('s_and_b32 s11, s11, 3')
            A('s_lshl_b32 s11, s11, 12')
            A(f's_add_u32 s{32+i}, s21, s11')
        A('s_and_b32 s11, s38, 1')
        A('s_lshl_b32 s11, s11, 12')
        A('s_add_u32 s36, s22, s11')
        A('s_xor_b32 s11, s11, 4096')
        A('s_add_u32 s37, s22, s11')
    A('v_lshrrev_b32 v84, 2, v3')
    A('v_lshl_add_u32 v85, v2, 2, v84')
    A('v_and_b32 v84, 7, v85')
    A('v_lshlrev_b32 v85, 8, v85')
    A('v_lshl_add_u32 v85, v84, 5, v85')
    A('v_and_b32 v84, 3, v3')
    A('v_lshl_add_u32 v85, v84, 3, v85')
    A(f'v_add_u32 v85, {L_V}, v85')
    A('s_lshl_b32 s11, s3, 6')
    A('v_xor_b32 v48, s11, v85')
    A('v_xor_b32 v49, 32, v48')
    A('v_and_b32 v84, 3, v3')
    A('v_lshlrev_b32 v84, 14, v84')
    A('v_bfe_u32 v85, v3, 2, 1')
    A(f'v_lshl_add_u32 v84, v85, {6 if cfg.oline else 11}, v84')
    A('v_lshl_add_u32 v84, v2, 4, v84')
    A('s_lshl_b32 s11, s4, 16')
    A('s_lshl_b32 s12, s3, 12')
    A('s_add_u32 s11, s11, s12')
    A(f's_lshl_b32 s12, s5, {7 if cfg.oline else 6}')
    A('s_add_u32 s11, s11, s12')
    A(f's_add_u32 s11, s11, {OIO}')
    A('v_add_u32 v50, s11, v84')
    A('s_lshr_b32 s14, s5, 3')
    A('s_lshl_b32 s11, s4, 2')
    A('s_add_u32 s11, s11, s14')
    A('s_lshl_b32 s12, s11, 9')
    A(f's_add_u32 s12, s12, {MLO}')
    A('v_lshrrev_b32 v84, 2, v1')
    A('v_lshl_add_u32 v52, v84, 4, s12')
    A('s_bfe_u32 s12, s5, 0x10002')
    if cfg.oline:
        A('s_lshl_b32 s11, s11, 14')
        A('s_lshl_b32 s13, s12, 2')
        A('s_add_u32 s13, s13, s3')
        A('s_lshr_b32 s15, s13, 1')
        A('s_lshl_b32 s15, s15, 12')
        A('s_add_u32 s11, s11, s15')
        A('s_and_b32 s13, s13, 1')
        A('s_lshl_b32 s13, s13, 6')
        A('s_add_u32 s11, s11, s13')
        A(f's_add_u32 s11, s11, {OIO}')
        A('v_lshrrev_b32 v84, 2, v1')
        A('v_lshlrev_b32 v84, 7, v84')
        A('v_and_b32 v85, 3, v1')
        A('v_lshl_add_u32 v84, v85, 4, v84')
        A('v_add_u32 v51, s11, v84')
    else:
        A('s_lshl_b32 s11, s11, 3')
        A('s_lshl_b32 s13, s12, 2')
        A('s_add_u32 s11, s11, s13')
        A('s_add_u32 s11, s11, s3')
        A('s_lshl_b32 s11, s11, 11')
        A(f's_add_u32 s11, s11, {OIO}')
        if cfg.worot:
            A('v_add_u32 v84, s38, v1')
            A('v_and_b32 v84, 3, v84')
            A('v_and_b32 v85, 0x3c, v1')
            A('v_or_b32 v84, v84, v85')
            A('v_lshl_add_u32 v51, v84, 4, s11')
        else:
            A('v_lshl_add_u32 v51, v1, 4, s11')
    A('s_lshl_b32 s11, s4, 2')
    A('s_add_u32 s11, s11, s14')
    A('s_lshl_b32 s11, s11, 12')
    A('s_lshl_b32 s12, s12, 7')
    A('s_add_u32 s11, s11, s12')
    A('s_lshl_b32 s12, s3, 5')
    A('s_add_u32 s11, s11, s12')
    A(f's_add_u32 s11, s11, {GUO}')
    A('v_bfe_u32 v84, v1, 2, 3')
    A('v_lshlrev_b32 v84, 9, v84')
    A('v_bfe_u32 v85, v1, 1, 1')
    A('v_lshl_add_u32 v84, v85, 8, v84')
    if cfg.worot:
        A('v_xor_b32 v85, s38, v1')
        A('v_and_b32 v85, 1, v85')
    else:
        A('v_and_b32 v85, 1, v1')
    A('v_lshl_add_u32 v84, v85, 4, v84')
    A('v_add_u32 v53, s11, v84')
    A('v_mul_u32_u24 v54, 0x020202, v2')
    A('v_lshlrev_b32 v84, 25, v2')
    A('v_add_u32 v54, v54, v84')
    A('v_add_u32 v54, 0x01000100, v54')
    A('v_and_b32 v84, 1, v1')
    A('v_mov_b32 v85, 0xffff')
    A('v_lshlrev_b32 v84, 4, v84')
    A('v_lshlrev_b32 v84, v84, v85')
    for jj, m in enumerate((M0, M1, M2, M3)):
        A(f'v_cndmask_b32_e64 v{136+jj}, 0, v84, s[{m}:{m+1}]')
    A('v_and_b32 v84, 3, v1')
    A('s_lshl_b32 s11, s3, 2')
    A(f's_add_u32 s11, s11, {L_MW}')
    A('v_lshl_add_u32 v55, v84, 4, s11')
    A('v_lshlrev_b32 v84, 4, v84')
    A(f'v_add_u32 v56, {L_MW}, v84')
    A('v_lshlrev_b32 v84, 4, v1')
    A('s_lshl_b32 s11, s3, 10')
    A(f's_add_u32 s11, s11, {L_PB}')
    A('v_add_u32 v57, s11, v84')
    A(f'v_add_u32 v58, {L_PB}, v84')
    A('v_lshlrev_b32 v85, 5, v3')
    A('v_lshl_add_u32 v85, v2, 4, v85')
    A('s_lshl_b32 s11, s3, 9')
    A(f's_add_u32 s11, s11, {L_RED}')
    A('v_add_u32 v59, s11, v85')
    A.c('gate/up partial products')
    P(17)
    A(f's_waitcnt vmcnt({8 + nearly})')
    P(18)
    for i in range(2):
        A(f'v_mfma_f32_16x16x32_bf16 v[72:75], {vr(64+4*i)}, {vr(8+4*i)}, {"0" if i == 0 else "v[72:75]"}')
    for i in range(2):
        A(f'v_mfma_f32_16x16x32_bf16 v[76:79], {vr(64+4*i)}, {vr(16+4*i)}, {"0" if i == 0 else "v[76:79]"}')
    A.nop(7)
    A('s_mov_b32 exec_lo, 0x00ff00ff')
    A('s_mov_b32 exec_hi, 0xff00ff00')
    A('ds_write_b128 v163, v[72:75] offset:2048')
    A('ds_write_b128 v163, v[76:79] offset:4096')
    A('s_mov_b64 exec, -1')
    A('s_waitcnt lgkmcnt(0)')
    P(6)
    A('s_barrier')
    P(7)
    A.c('scores')
    for j in range(4):
        A(f'ds_read_b128 {vr(112+4*j)}, v4 offset:{64*j}')
    for t in range(2):
        for j in range(4):
            A(f'ds_read_b128 {vr(80+16*t+4*j)}, v{156+j} offset:{L_K + 4096*t}')
    A(f'v_mov_b32 v6, {L_MODE}')
    A('ds_read_b32 v7, v6')
    tail_loads(2)
    for j in range(4):
        A(f's_waitcnt lgkmcnt({8-j})')
        A(f'v_mfma_f32_16x16x32_bf16 v[144:147], {vr(80+4*j)}, {vr(112+4*j)}, {"0" if j == 0 else "v[144:147]"}')
    for j in range(4):
        A(f's_waitcnt lgkmcnt({4-j})')
        A(f'v_mfma_f32_16x16x32_bf16 v[148:151], {vr(96+4*j)}, {vr(112+4*j)}, {"0" if j == 0 else "v[148:151]"}')
    A.nop(7)
    A('s_waitcnt lgkmcnt(0)')
    A('v_readfirstlane_b32 s24, v7')
    A.c('softmax')
    for k in range(4):
        A(f'v_cvt_pk_bf16_f32 v{152+k}, v{144+2*k}, v{145+2*k}')
    for k in range(4):
        A(f'v_lshlrev_b32 v{144+2*k}, 16, v{152+k}')
        A(f'v_and_b32 v{145+2*k}, 0xffff0000, v{152+k}')
    for k in range(8):
        A(f'v_mul_f32 v{144+k}, s{sSCALE}, v{144+k}')
    for k in range(4):
        A(f'v_cvt_pk_bf16_f32 v{152+k}, v{144+2*k}, v{145+2*k}')
    for k in range(4):
        A(f'v_lshlrev_b32 v{144+2*k}, 16, v{152+k}')
        A(f'v_and_b32 v{145+2*k}, 0xffff0000, v{152+k}')
    A('v_max3_f32 v82, v144, v145, v146')
    A('v_max3_f32 v83, v147, v148, v149')
    A('v_max3_f32 v82, v82, v150, v151')
    A('v_max_f32 v82, v82, v83')
    cross_rows(A, 82, 83, 'v_max_f32')
    A('s_mov_b64 exec, 15')
    A('ds_write_b32 v55, v82')
    A('s_mov_b64 exec, -1')
    tail_loads(25)
    A('s_waitcnt lgkmcnt(0)')
    A('s_barrier')
    tail_loads(26)
    P(8)
    A('ds_read_b128 v[84:87], v56')
    A('s_waitcnt lgkmcnt(0)')
    A('v_max3_f32 v82, v84, v85, v86')
    A('v_max_f32 v82, v82, v87')
    A(f'v_mul_f32 v83, s{sLOG2E}, v82')
    for k in range(8):
        A(f'v_fma_f32 v{144+k}, v{144+k}, s{sLOG2E}, -v83')
    for k in range(8):
        A(f'v_exp_f32 v{144+k}, v{144+k}')
    A.nop(1)
    for k in range(4):
        A(f'v_cvt_pk_bf16_f32 v{152+k}, v{144+2*k}, v{145+2*k}')
    A('v_add_f32 v84, v144, v145')
    A('v_add_f32 v85, v146, v147')
    A('ds_write_b128 v57, v[152:155]')
    A('v_add_f32 v86, v148, v149')
    A('v_add_f32 v87, v150, v151')
    A('v_add_f32 v84, v84, v85')
    A('v_add_f32 v86, v86, v87')
    A('v_add_f32 v84, v84, v86')
    cross_rows(A, 84, 85, 'v_add_f32')
    A('s_mov_b64 exec, 15')
    A(f'ds_write_b32 v55, v84 offset:{L_LW - L_MW}')
    A('s_mov_b64 exec, -1')
    tail_loads(3)
    P(9)
    A('s_waitcnt vmcnt(6) lgkmcnt(0)')
    A('s_barrier')
    P(10)
    A.c('PV over all 128 keys for tiles 2w, 2w+1')
    for ks in range(4):
        A(f'ds_read_b128 {vr(112+4*ks)}, v58 offset:{1024*ks}')
        for tt in range(2):
            base = 80 + (ks*2 + tt)*4
            A(f'ds_read_b64_tr_b16 v[{base}:{base+1}], v{48+tt} offset:{8192*ks}')
            A(f'ds_read_b64_tr_b16 v[{base+2}:{base+3}], v{48+tt} offset:{8192*ks + 4096}')
    for ks in range(4):
        for tt in range(2):
            base = 80 + (ks*2 + tt)*4
            left = 20 - (5*ks + 1 + 2*(tt+1))
            A(f's_waitcnt lgkmcnt({min(left, 15)})')
            A(f'v_mfma_f32_16x16x32_bf16 {vr(128+4*tt)}, {vr(base)}, {vr(112+4*ks)}, {"0" if ks == 0 else vr(128+4*tt)}')
    A('s_mov_b32 s12, 0x00f000f0')
    A('s_mov_b32 s13, 0x00f000f0')
    A('s_mov_b32 exec_lo, 0x00ff00ff')
    A('s_mov_b32 exec_hi, 0x00ff00ff')
    A.nop(4)
    for k in range(4):
        A(f'v_cndmask_b32_e64 v{128+k}, v{128+k}, v{132+k}, s[12:13]')
    tag_insert(A, 128)
    A('s_cmp_eq_u32 s24, 1')
    A('s_cbranch_scc0 L_opub_slow')
    A(f'buffer_store_dwordx4 v[128:131], v50, {srd(SWS)}, 0 offen')
    A('s_branch L_opub_done')
    A.label('L_opub_slow')
    A(f'buffer_store_dwordx4 v[128:131], v50, {srd(SWS)}, 0 offen sc1')
    A.label('L_opub_done')
    A('s_mov_b64 exec, -1')
    P(11)
    A.c('gather the partial attention outputs and the gate/up sums')
    if cfg.owait is not None:
        A(f's_waitcnt vmcnt({cfg.owait})')
    A(f's_mov_b32 s{sIT}, 0')
    A.label('L_ogat')
    A(f'buffer_load_dwordx4 v[80:83], v52, {srd(SWS)}, 0 offen {cfg.gat}')
    A(f'buffer_load_dwordx4 v[84:87], v52, {srd(SWS)}, 0 offen offset:256 {cfg.gat}')
    A(f'buffer_load_dwordx4 v[96:99], v53, {srd(SWS)}, 0 offen {cfg.gat}')
    A(f'buffer_load_dwordx4 v[88:91], v51, {srd(SWS)}, 0 offen {cfg.gat}')
    A(f'buffer_load_dwordx4 v[92:95], v51, {srd(SWS)}, 0 offen offset:{2048 if cfg.oline else 1024} {cfg.gat}')
    A('s_waitcnt vmcnt(0)')
    for q in range(5):
        tag_check(A, 80+4*q, 100, 101, q == 0)
    poll_tail(A, cfg, 'L_ogat', 'L_ook')
    A.label('L_ook')
    if cfg.prof in (True, 'heavy'):
        A(f'v_writelane_b32 v{vPROF}, s{sIT}, 21')
    P(12)
    if cfg.domask:
        mask_vals(A, 80, 2)
        mask_vals(A, 84, 2)
        mask_vals(A, 88, 12)
    A('v_max_f32 v100, v80, v84')
    for st in ('row_ror:8', 'row_ror:4'):
        for k in range(4):
            A(f'v_add_f32_dpp v{96+k}, v{96+k}, v{96+k} {st} row_mask:0xf bank_mask:0xf')
        A(f'v_max_f32_dpp v100, v100, v100 {st} row_mask:0xf bank_mask:0xf')
    for k in range(4):
        A(f'v_mov_b32 v{104+k}, v{96+k}')
    A('v_mov_b32 v101, v100')
    for k in range(4):
        A(f'v_permlane16_swap_b32 v{104+k}, v{96+k}')
    A('v_permlane16_swap_b32 v101, v100')
    for k in range(4):
        A(f'v_add_f32 v{96+k}, v{104+k}, v{96+k}')
    A('v_max_f32 v100, v101, v100')
    A('v_cvt_pk_bf16_f32 v104, v96, v97')
    A('v_mov_b32 v101, v100')
    A('v_cvt_pk_bf16_f32 v105, v98, v99')
    A('v_lshlrev_b32 v96, 16, v104')
    A('v_permlane32_swap_b32 v101, v100')
    A('v_and_b32 v97, 0xffff0000, v104')
    A('v_max_f32 v100, v101, v100')
    A('v_lshlrev_b32 v98, 16, v105')
    A('v_and_b32 v99, 0xffff0000, v105')
    A('v_sub_f32 v80, v80, v100')
    A('v_sub_f32 v84, v84, v100')
    A(f'v_mul_f32 v80, s{sLOG2E}, v80')
    A(f'v_mul_f32 v84, s{sLOG2E}, v84')
    A('v_exp_f32 v80, v80')
    A('v_exp_f32 v84, v84')
    for k in range(4):
        A(f'v_mul_f32_dpp v{104+k}, v{96+k}, v{96+k} quad_perm:[2,3,0,1] row_mask:0xf bank_mask:0xf')
    A('v_mul_f32 v102, v80, v81')
    A('v_fmac_f32 v102, v84, v85')
    for k in range(4):
        A(f'v_mul_f32 v{88+k}, v80, v{88+k}')
    for k in range(4):
        A(f'v_fmac_f32 v{88+k}, v84, v{92+k}')
    A('v_cvt_pk_bf16_f32 v96, v104, v105')
    A('v_cvt_pk_bf16_f32 v97, v106, v107')
    A('v_permlane32_swap_b32 v88, v89')
    A('v_permlane32_swap_b32 v90, v91')
    A('v_perm_b32 v98, v97, v96, v54')
    A('v_add_f32 v88, v88, v89')
    A('v_add_f32 v90, v90, v91')
    A('v_mov_b32 v103, v102')
    for i in range(2):
        for jj in range(4):
            A(f'v_and_b32_dpp v{64+4*i+jj}, v98, v{136+jj} quad_perm:[{i},{i},{i},{i}] row_mask:0xf bank_mask:0xf')
        if i == 0:
            A('v_permlane16_swap_b32 v88, v90')
            A('v_permlane16_swap_b32 v103, v102')
    A('v_add_f32 v88, v88, v90')
    A('v_add_f32 v102, v103, v102')
    A('v_mfma_f32_16x16x32_bf16 v[72:75], v[64:67], v[40:43], 0')
    A('v_mov_b32 v103, v102')
    A(f'v_add_f32_dpp v88, v88, v88 row_ror:8 row_mask:0xf bank_mask:0xf')
    A('v_mfma_f32_16x16x32_bf16 v[72:75], v[68:71], v[44:47], v[72:75]')
    A('v_permlane32_swap_b32 v103, v102')
    A(f'v_add_f32_dpp v88, v88, v88 row_ror:4 row_mask:0xf bank_mask:0xf')
    A('v_add_f32 v102, v103, v102')
    A.nop(2)
    A(f'v_add_f32_dpp v102, v102, v102 row_ror:8 row_mask:0xf bank_mask:0xf')
    A.nop(2)
    A(f'v_add_f32_dpp v102, v102, v102 row_ror:4 row_mask:0xf bank_mask:0xf')
    A.nop(1)
    A('v_rcp_f32 v102, v102')
    A.nop(1)
    A('v_mul_f32 v88, v88, v102')
    A('v_cvt_pk_bf16_f32 v88, v88, v88')
    A.nop(2)
    for i in range(4):
        for jj in range(4):
            A(f'v_and_b32_dpp v{112+4*i+jj}, v88, v{136+jj} quad_perm:[{i},{i},{i},{i}] row_mask:0xf bank_mask:0xf')
        if i:
            A(f'v_mfma_f32_16x16x32_bf16 v[72:75], {vr(112+4*(i-1))}, {vr(24+4*(i-1))}, v[72:75]')
    A.nop(1)
    A('v_mfma_f32_16x16x32_bf16 v[72:75], v[124:127], v[36:39], v[72:75]')
    A('v_lshlrev_b32 v85, 4, v1')
    A(f'v_add_u32 v85, {L_RED}, v85')
    A('s_mov_b32 exec_hi, 0')
    A.nop(6)
    A('ds_write_b128 v59, v[72:75]')
    A('s_mov_b64 exec, -1')
    A('s_waitcnt lgkmcnt(0)')
    A('s_barrier')
    P(13)
    A('s_cmp_lg_u32 s3, 0')
    A('s_cbranch_scc1 L_cmp_end')
    for w in range(4):
        A(f'ds_read_b128 {vr(88+4*w)}, v85 offset:{512*w}')
    A('v_lshrrev_b32 v84, 2, v1')
    A('v_lshlrev_b32 v84, 12, v84')
    A('v_and_b32 v86, 3, v1')
    A('v_lshl_add_u32 v84, v86, 4, v84')
    A('s_and_b32 s11, s5, 3')
    A('s_lshl_b32 s11, s11, 15')
    A('s_lshl_b32 s12, s4, 3')
    A('s_lshr_b32 s13, s5, 2')
    A('s_add_u32 s12, s12, s13')
    A('s_lshl_b32 s12, s12, 6')
    A('s_add_u32 s11, s11, s12')
    A(f's_add_u32 s11, s11, {FIN}')
    A('v_add_u32 v84, s11, v84')
    A('s_waitcnt lgkmcnt(2)')
    for k in range(4):
        A(f'v_add_f32 v{88+k}, v{88+k}, v{92+k}')
    A('s_waitcnt lgkmcnt(0)')
    for k in range(4):
        A(f'v_add_f32 v{96+k}, v{96+k}, v{100+k}')
    for k in range(4):
        A(f'v_add_f32 v{88+k}, v{88+k}, v{96+k}')
    tag_insert(A, 88)
    A('s_mov_b32 exec_hi, 0')
    A(f'buffer_store_dwordx4 v[88:91], v84, {srd(SWS)}, 0 offen {cfg.fpub}')
    A('s_mov_b64 exec, -1')
    A.label('L_cmp_end')
    P(14)
    P.flush(); P.reset()
    A('s_branch L_done')
    A.label('L_comm')
    P.reset(prev=0, k=0)
    P(1)
    A(f's_load_dwordx2 s[{SOUT}:{SOUT+1}], s[0:1], 72')
    A(f's_mov_b32 s{SOUT+2}, 1024')
    A(f's_mov_b32 s{SOUT+3}, 0x20000')
    A(f's_lshl_b32 s{sT}, s{sRB}, 3')
    A(f's_add_u32 s{sT}, s{sT}, s4')
    A('v_lshrrev_b32 v2, 4, v1')
    A('v_and_b32 v3, 15, v1')
    common_consts(A)
    A(f'v_mov_b32 v4, {EOFF}')
    if cfg.exp_dirty:
        A('s_cmp_eq_u32 s3, 4')
        A('s_cbranch_scc0 L_nodirty')
        A('s_waitcnt lgkmcnt(0)')
        A(f's_mov_b32 s{SWS+2}, 0x2000000')
        A(f's_mul_i32 s11, s2, {cfg.exp_dirty*1024}')
        A('s_add_u32 s11, s11, 0x400000')
        A('v_lshlrev_b32 v20, 4, v1')
        for i in range(cfg.exp_dirty):
            A(f'buffer_store_dwordx4 v[16:19], v20, {srd(SWS)}, s11 offen')
            A('s_add_u32 s11, s11, 1024')
        A.label('L_nodirty')
    def pretouch():
        A('s_cmp_eq_u32 s3, 4')
        A('s_cbranch_scc0 L_nopre')
        A('s_waitcnt lgkmcnt(0)')
        A('s_lshl_b32 s11, s4, 5')
        A('s_add_u32 s11, s11, s5')
        A('s_lshl_b32 s12, s11, 11')
        A(f's_add_u32 s12, s12, {OIO}')
        A('v_lshl_add_u32 v10, v1, 7, s12')
        A('s_lshl_b32 s12, s11, 9')
        A(f's_add_u32 s12, s12, {GUO - 16*128}')
        A('v_lshl_add_u32 v11, v1, 7, s12')
        A('v_cmp_le_u32 vcc, 16, v1')
        A('s_lshl_b32 s12, s11, 8')
        A(f's_add_u32 s12, s12, {QA - 20*128}')
        A('v_cndmask_b32 v10, v10, v11, vcc')
        A('v_lshl_add_u32 v11, v1, 7, s12')
        A('v_cmp_le_u32 vcc, 20, v1')
        A('s_lshl_b32 s12, s4, 9')
        A('s_and_b32 s13, s5, 3')
        A('s_lshl_b32 s13, s13, 7')
        A('s_add_u32 s12, s12, s13')
        A(f's_add_u32 s12, s12, {IDA}')
        A('v_cndmask_b32 v10, v10, v11, vcc')
        A('v_mov_b32 v11, s12')
        A('v_cmp_le_u32 vcc, 22, v1')
        A('s_lshl_b32 s12, s4, 11')
        A('s_and_b32 s13, s5, 15')
        A('s_lshl_b32 s13, s13, 7')
        A('s_add_u32 s12, s12, s13')
        A(f's_add_u32 s12, s12, {MLO}')
        A('v_cndmask_b32 v10, v10, v11, vcc')
        A('v_mov_b32 v11, s12')
        A('v_cmp_le_u32 vcc, 23, v1')
        A.nop(2)
        A('v_cndmask_b32 v10, v10, v11, vcc')
        A('s_mov_b64 exec, 0xffffff')
        A(f'buffer_load_dword v12, v10, {srd(SWS)}, 0 offen {cfg.pre_fl}')
        A('s_mov_b64 exec, -1')
        A.label('L_nopre')
    if cfg.pretouch == 1:
        pretouch()
    if cfg.finpre == 1:
        A('s_cmp_eq_u32 s3, 5')
        A('s_cbranch_scc0 L_nofinpre')
        A('s_cmp_lt_u32 s2, 32')
        A('s_cbranch_scc0 L_nofinpre')
        A('s_waitcnt lgkmcnt(0)')
        A('s_lshl_b32 s11, s2, 14')
        A(f's_add_u32 s11, s11, {FIN}')
        A('v_lshl_add_u32 v10, v1, 7, s11')
        A('s_mov_b32 s12, 8192')
        A(f'buffer_load_dword v12, v10, {srd(SWS)}, 0 offen {cfg.finpre_fl}')
        A(f'buffer_load_dword v13, v10, {srd(SWS)}, s12 offen {cfg.finpre_fl}')
        A.label('L_nofinpre')
    elif cfg.finpre == 2:
        A('s_cmp_eq_u32 s3, 5')
        A('s_cbranch_scc0 L_nofinpre')
        A('s_waitcnt lgkmcnt(0)')
        A('s_lshl_b32 s11, s2, 11')
        A(f's_add_u32 s11, s11, {FIN}')
        A('v_lshl_add_u32 v10, v1, 7, s11')
        A('s_mov_b64 exec, 0xffff')
        A(f'buffer_load_dword v12, v10, {srd(SWS)}, 0 offen {cfg.finpre_fl}')
        A('s_mov_b64 exec, -1')
        A.label('L_nofinpre')
    A('s_lshl_b32 s11, s4, 13')
    A('s_sub_u32 s12, s3, 4')
    A('s_lshl_b32 s12, s12, 10')
    A('s_add_u32 s11, s11, s12')
    A(f's_add_u32 s11, s11, {QA}')
    A('v_lshlrev_b32 v6, 4, v1')
    A('v_add_u32 v6, s11, v6')
    A('s_lshl_b32 s11, s4, 9')
    A(f's_add_u32 s11, s11, {IDA}')
    A('v_and_b32 v7, 31, v1')
    A('v_lshl_add_u32 v7, v7, 4, s11')
    A('s_sub_u32 s12, s3, 4')
    A('s_lshl_b32 s12, s12, 1')
    A('v_lshrrev_b32 v8, 5, v1')
    A('v_add_u32 v8, s12, v8')
    A('v_mul_u32_u24 v8, 272, v8')
    A('v_and_b32 v9, 31, v1')
    A('v_lshl_add_u32 v8, v9, 3, v8')
    A(f'v_add_u32 v8, {L_QB}, v8')
    P(3)
    A('s_barrier')
    P(4)
    if cfg.b1a:
        A('s_barrier')
    A('s_waitcnt lgkmcnt(0)')
    A(f'buffer_load_dword v5, v4, {srd(SWS)}, 0 offen {cfg.xnt}')
    A(f's_mov_b32 s{sIT}, 0')
    A('s_mov_b32 s14, 0')
    if cfg.b1b:
        A('s_barrier')
    P(5)
    def q_issue():
        A('s_add_u32 s15, s14, 4096')
        A(f'buffer_load_dwordx4 v[16:19], v6, {srd(SWS)}, s14 offen {cfg.gat}')
        A(f'buffer_load_dwordx4 v[20:23], v6, {srd(SWS)}, s14 offen offset:2048 {cfg.gat}')
        A(f'buffer_load_dwordx4 v[24:27], v6, {srd(SWS)}, s15 offen {cfg.gat}')
        A(f'buffer_load_dwordx4 v[28:31], v6, {srd(SWS)}, s15 offen offset:2048 {cfg.gat}')
        A(f'buffer_load_dwordx4 v[32:35], v7, {srd(SWS)}, s14 offen {cfg.gat}')
    def q_check():
        for q in range(5):
            tag_check(A, 16+4*q, 36, 37, q == 0)
    if cfg.b1c:
        q_issue()
        A('s_waitcnt vmcnt(0)')
        A('v_add_u32 v9, 0x01010101, v5')
        A.nop(1)
        A('v_readfirstlane_b32 s6, v9')
        q_check()
        A('s_cmp_eq_u64 s[88:89], 0')
        A('s_cbranch_scc1 L_qfirst_ok')
        q_issue()
        A('s_barrier')
        A(f's_mov_b32 s{sIT}, 1')
        A('s_branch L_qwait')
        A.label('L_qfirst_ok')
        A('s_barrier')
        A('s_branch L_qok')
        A.label('L_qgat')
        q_issue()
        A.label('L_qwait')
        A('s_waitcnt vmcnt(0)')
        q_check()
        poll_tail(A, cfg, 'L_qgat', 'L_qok', switch=14)
    else:
        A.label('L_qgat')
        q_issue()
        A('s_waitcnt vmcnt(0)')
        A('v_add_u32 v9, 0x01010101, v5')
        A.nop(1)
        A('v_readfirstlane_b32 s6, v9')
        q_check()
        poll_tail(A, cfg, 'L_qgat', 'L_qok', switch=14)
    A.label('L_qok')
    if cfg.prof in (True, 'heavy'):
        A(f'v_writelane_b32 v{vPROF}, s{sIT}, 20')
    P(6)
    if cfg.domask:
        mask_vals(A, 16, 16)
    for k in range(4):
        A(f'v_add_f32 v{16+k}, v{16+k}, v{20+k}')
        A(f'v_add_f32 v{24+k}, v{24+k}, v{28+k}')
    for k in range(4):
        A(f'v_add_f32 v{16+k}, v{16+k}, v{24+k}')
    A('v_cvt_pk_bf16_f32 v16, v16, v17')
    A('v_cvt_pk_bf16_f32 v17, v18, v19')
    A('ds_write_b64 v8, v[16:17]')
    if cfg.pretouch == 2:
        pretouch()
    A('s_getreg_b32 s13, hwreg(HW_REG_XCC_ID, 0, 4)')
    A('v_bfe_u32 v32, v32, 8, 8')
    A('v_cmp_ne_u32 vcc, s13, v32')
    A('s_cmp_eq_u64 vcc, 0')
    A('s_cselect_b32 s13, 1, 0')
    if cfg.forceslow:
        A('s_mov_b32 s13, 0')
    A('s_mov_b32 s24, s13')
    A('v_mov_b32 v33, s13')
    A(f'v_mov_b32 v34, {L_MODE}')
    A('s_cmp_eq_u32 s3, 5')
    A('s_cbranch_scc0 L_nomode')
    A('ds_write_b32 v34, v33')
    A.label('L_nomode')
    A('s_waitcnt lgkmcnt(0)')
    A('s_barrier')
    P(7)
    P.flush(); P.reset()
    A('s_cmp_eq_u32 s3, 5')
    A('s_cbranch_scc1 L_comm5')
    A('s_lshl_b32 s11, s2, 12')
    A(f's_add_u32 s11, s11, {FIN}')
    A('v_lshl_add_u32 v6, v1, 4, s11')
    A('v_and_b32 v8, 1, v2')
    A('v_lshrrev_b32 v9, 1, v2')
    A('v_lshl_or_b32 v8, v8, 1, v9')
    A('v_and_b32 v9, 3, v1')
    A('v_lshl_add_u32 v8, v9, 2, v8')
    A('s_and_b32 s11, s2, 31')
    A('s_lshl_b32 s11, s11, 4')
    A('v_add_u32 v8, s11, v8')
    A('v_lshlrev_b32 v8, 1, v8')
    A(f'buffer_load_ushort v9, v8, {srd(SX)}, 0 offen')
    if cfg.finpre2:
        A('s_cmp_ge_u32 s2, 32')
        A('s_cbranch_scc1 L_nofp2')
        A('s_lshl_b32 s11, s2, 12')
        A(f's_add_u32 s11, s11, {FIN}')
        A('v_lshl_add_u32 v10, v1, 7, s11')
        A('s_mov_b32 exec_hi, 0')
        A(f'buffer_load_dword v11, v10, {srd(SWS)}, 0 offen {cfg.finpre_fl}')
        A('s_mov_b64 exec, -1')
        A.label('L_nofp2')
    A('s_barrier')
    A('s_barrier')
    A('s_barrier')
    P(13)
    P.flush(); P.reset()
    A('s_cmp_ge_u32 s2, 32')
    A('s_cbranch_scc1 L_done')
    A(f's_mov_b32 s{sIT}, 0')
    A.label('L_fgat')
    for q in range(4):
        A(f'buffer_load_dwordx4 {vr(16+4*q)}, v6, {srd(SWS)}, 0 offen offset:{1024*q} {cfg.fgat}')
    A('s_waitcnt vmcnt(0)')
    for q in range(4):
        tag_check(A, 16+4*q, 36, 37, q == 0)
    poll_tail(A, cfg, 'L_fgat', 'L_fok')
    A.label('L_fok')
    if cfg.prof in (True, 'heavy'):
        A(f'v_writelane_b32 v{vPROF}, s{sIT}, 22')
    P(14)
    P.flush(); P.reset()
    if cfg.domask:
        mask_vals(A, 16, 16)
    for k in range(4):
        A(f'v_add_f32 v{16+k}, v{16+k}, v{20+k}')
        A(f'v_add_f32 v{24+k}, v{24+k}, v{28+k}')
    for k in range(4):
        A(f'v_add_f32 v{16+k}, v{16+k}, v{24+k}')
    transpose_reduce4(A, 16)
    A('v_lshlrev_b32 v9, 16, v9')
    A.nop(1)
    A('v_add_f32_dpp v16, v16, v16 row_ror:8 row_mask:0xf bank_mask:0xf')
    A.nop(2)
    A('v_add_f32_dpp v16, v16, v16 row_ror:4 row_mask:0xf bank_mask:0xf')
    A('v_add_f32 v16, v16, v9')
    A('v_cvt_pk_bf16_f32 v16, v16, v16')
    if cfg.calib:
        A('s_cmp_lg_u32 s2, 0')
        A('s_cbranch_scc1 L_nocal')
        A(f's_add_u32 s36, s36, {cfg.calib}')
        A.label('L_cal')
        A('s_memrealtime s[38:39]')
        A('s_waitcnt lgkmcnt(0)')
        A('s_sub_u32 s37, s38, s36')
        A('s_cmp_lt_i32 s37, 0')
        A('s_cbranch_scc1 L_cal')
        A.label('L_nocal')
    A('s_mov_b32 exec_lo, 0x000f000f')
    A('s_mov_b32 exec_hi, 0x000f000f')
    A(f'buffer_store_short v16, v8, {srd(SOUT)}, 0 offen')
    A('s_cmp_lg_u32 s2, 0')
    A('s_cbranch_scc1 L_noepoch')
    A('s_mov_b64 exec, 1')
    A(f'v_mov_b32 v17, {EOFF}')
    A(f'v_mov_b32 v18, s{sTAG}')
    A(f'buffer_store_dword v18, v17, {srd(SWS)}, 0 offen')
    A.label('L_noepoch')
    A('s_mov_b64 exec, -1')
    A('s_branch L_done')
    A.label('L_comm5')
    P.reset()
    A(f'v_mov_b32 v{vTAG}, s6')
    A('v_lshlrev_b32 v6, 4, v3')
    A('v_and_b32 v7, 1, v2')
    A('v_lshl_add_u32 v7, v7, 11, v6')
    A(f'v_add_u32 v7, {L_PART + 2048}, v7')
    for k in range(8):
        A(f'ds_read_b128 {vr(16+4*k)}, v7 offset:{256*k}')
    A('s_lshl_b32 s12, s4, 2')
    A(f's_add_u32 s12, s12, s{sRB}')
    A('s_lshl_b32 s12, s12, 3')
    A(f's_add_u32 s12, s12, s{sCB}')
    A('s_lshl_b32 s12, s12, 9')
    A(f's_add_u32 s12, s12, {GUO}')
    A('v_and_b32 v7, 1, v2')
    A('v_lshl_add_u32 v6, v7, 8, v6')
    A('v_add_u32 v6, s12, v6')
    A('s_waitcnt lgkmcnt(0)')
    for k in range(4):
        A(f'v_add_f32 v{16+k}, v{16+k}, v{20+k}')
        A(f'v_add_f32 v{24+k}, v{24+k}, v{28+k}')
        A(f'v_add_f32 v{32+k}, v{32+k}, v{36+k}')
        A(f'v_add_f32 v{40+k}, v{40+k}, v{44+k}')
    for k in range(4):
        A(f'v_add_f32 v{16+k}, v{16+k}, v{24+k}')
        A(f'v_add_f32 v{32+k}, v{32+k}, v{40+k}')
    for k in range(4):
        A(f'v_add_f32 v{16+k}, v{16+k}, v{32+k}')
    tag_insert(A, 16)
    A('s_mov_b32 exec_hi, 0')
    A('s_cmp_eq_u32 s24, 1')
    A('s_cbranch_scc0 L_gupub_slow')
    A(f'buffer_store_dwordx4 v[16:19], v6, {srd(SWS)}, 0 offen')
    A('s_branch L_gupub_done')
    A.label('L_gupub_slow')
    A(f'buffer_store_dwordx4 v[16:19], v6, {srd(SWS)}, 0 offen sc1')
    A.label('L_gupub_done')
    A('s_mov_b64 exec, -1')
    A('v_and_b32 v8, 3, v1')
    A('v_lshlrev_b32 v9, 4, v8')
    A(f'v_add_u32 v9, {L_MW}, v9')
    A('s_lshl_b32 s11, s4, 11')
    A('s_lshl_b32 s12, s5, 4')
    A('s_add_u32 s11, s11, s12')
    A(f's_add_u32 s11, s11, {MLO}')
    A('v_lshl_add_u32 v8, v8, 9, s11')
    A('s_barrier')
    A('s_barrier')
    A('ds_read_b128 v[20:23], v9')
    A(f'ds_read_b128 v[24:27], v9 offset:{L_LW - L_MW}')
    A('s_waitcnt lgkmcnt(0)')
    A('v_max3_f32 v20, v20, v21, v22')
    A('v_add_f32 v24, v24, v25')
    A('v_add_f32 v26, v26, v27')
    A('v_max_f32 v20, v20, v23')
    A('v_add_f32 v21, v24, v26')
    tag_insert(A, 20)
    A('s_mov_b64 exec, 15')
    A('s_cmp_eq_u32 s24, 1')
    A('s_cbranch_scc0 L_mlpub_slow')
    A(f'buffer_store_dwordx4 v[20:23], v8, {srd(SWS)}, 0 offen')
    A('s_branch L_mlpub_done')
    A.label('L_mlpub_slow')
    A(f'buffer_store_dwordx4 v[20:23], v8, {srd(SWS)}, 0 offen sc1')
    A.label('L_mlpub_done')
    A('s_mov_b64 exec, -1')
    A('s_barrier')
    A.label('L_done')
    if cfg.exp_hwid:
        A('s_getreg_b32 s11, hwreg(HW_REG_HW_ID)')
        A(f'v_writelane_b32 v{vPROF}, s11, 31')
    if cfg.prof == 'lite':
        A('s_memrealtime s[30:31]')
        A('s_waitcnt lgkmcnt(0)')
        A(f'v_writelane_b32 v{vPROF}, s28, 0')
        A(f'v_writelane_b32 v{vPROF}, s30, 15')
    elif cfg.prof:
        P(15)
        P.flush()
    if cfg.prof:
        A('s_mul_i32 s11, s2, 6')
        A('s_add_u32 s11, s11, s3')
        A('s_lshl_b32 s11, s11, 7')
        A(f's_add_u32 s11, s11, {PROF}')
        A('v_lshl_add_u32 v86, v1, 2, s11')
        A('s_mov_b32 exec_hi, 0')
        A(f'buffer_store_dword v{vPROF}, v86, {srd(SWS)}, 0 offen')
        A('s_mov_b64 exec, -1')
    A.label('L_end')
    A('s_endpgm')
    A('.section .rodata,"a"')
    A('.p2align 6')
    A(f'.amdhsa_kernel {NAME}')
    A(f'  .amdhsa_next_free_vgpr {cfg.nvgpr}')
    A('  .amdhsa_next_free_sgpr 102')
    A(f'  .amdhsa_accum_offset {min(cfg.nvgpr, 256)}')
    A('  .amdhsa_group_segment_fixed_size 0')
    A('  .amdhsa_kernarg_size 96')
    A('  .amdhsa_user_sgpr_count 2')
    A('  .amdhsa_user_sgpr_kernarg_segment_ptr 1')
    A('  .amdhsa_system_sgpr_workgroup_id_x 1')
    A('  .amdhsa_float_denorm_mode_32 3')
    A('.end_amdhsa_kernel')
    return A.text()

HEADER = open('parallel_sum__sliding_block_cached__glu_gated_bilinear__decode.s.ref').read().split('; Override launch')[0]

def full(cfg):
    body = gen(cfg)
    probs = check(body)
    for p in probs:
        if 'wide store WAR' in p and 'v_lshlrev_b32 v86, 4, v3' in p:
            continue
        print('HAZARD', p)
    return HEADER + f'; @launch grid=(256,1,1) block=(384,1,1) lds={cfg.ldsbytes}\n' + body

if __name__ == '__main__':
    cfg = Cfg()
    for a in sys.argv[2:]:
        k, v = a.split('=')
        old = getattr(cfg, k, None)
        setattr(cfg, k, v if ((isinstance(old, str) or v in ('lite', 'heavy')) and v not in ('False', 'True')) else eval(v))
    open(sys.argv[1], 'w').write(full(cfg))
```

```python
import sys
from asmlib import Asm, check

NAME = 'parallel_sum__sliding_block_cached__glu_gated_bilinear__decode_kernel'

EOFF  = 0
QA    = 0x1000
IDA   = 0x11000
BDELTA = 0x11000
GUO   = 0x23000
MLO   = 0x43000
OIO   = 0x48000
FIN   = 0xC8000
PROF  = 0x180000
WS_BYTES = 0x200000

L_K = 0
L_V = 32768
L_XN = 65536
L_PART = 66560
L_QB = 72704
L_HB = 73792
L_MODE = 73808
L_MW = 73824
L_LW = 73888
L_PB = L_PART
L_RED = L_PART + 4096
L_FLAG = 73812
LDS_BYTES = 73984

sW, sG, sS, sTAG = 3, 4, 5, 6
SX, SK, SV, SWQ, SWO, SGA, SUP, SDN, SOUT, SWS = 40, 44, 48, 52, 56, 60, 64, 68, 72, 76
M0, M1, M2, M3 = 80, 82, 84, 86
sX0, sX1 = 90, 91
sIT = 92
sLOG2E, sSCALE = 93, 94
sMSK = 95
sP01, sP23 = 96, 97
sI0, sI1, sI2, sI3 = 98, 99, 100, 101
sRB, sT, sCB = 7, 8, 10
vTAG, vSH = 167, 166
vPROF = 165
def srd(n): return f's[{n}:{n+3}]'
def vr(n, k=4): return f'v[{n}:{n+k-1}]'

class Cfg:
    nt = 'nt'
    gat = 'sc1'
    nk1 = 8
    domask = 'm'
    elate = True
    poll2 = True
    finpre2 = True
    fpub = 'sc1'
    fgat = 'sc1'
    worot = True
    kearly = False
    owait = 3
    oline = False
    tpos = (2, 2, 2, 2, 2, 2)
    calib = 0
    ldsbytes = LDS_BYTES
    nvgpr = 168
    b1a = True
    win = None
    win2 = None
    exp_dirty = 0
    b1c = False
    nv2 = 4
    kwait = 3
    exp_cb = 0
    exp_hwid = False
    swap = True
    wo_early = -1
    b0 = 0
    prio = 3
    align = 12
    xnt = ''
    finpre = 0
    finpre_fl = ''
    codepf_n = 4
    nv1 = 3
    b1b = True
    b3b = True
    maxit = 200000
    swit = 24
    prof = False
    dbgprof = None
    pretouch = 0
    pre_fl = 'nt'
    codepf = 's'
    forceslow = False
    forceb = False

ROW_FULL = ['quad_perm:[1,0,3,2]', 'quad_perm:[2,3,0,1]', 'row_half_mirror', 'row_mirror']

def rowred(A, regs, op, steps):
    for st in steps:
        A.nop(2 if len(regs) < 3 else max(0, 2 - (len(regs) - 1)))
        for v in regs:
            A(f'{op}_dpp v{v}, v{v}, v{v} {st} row_mask:0xf bank_mask:0xf')
        if len(regs) >= 3:
            pass

def cross_rows(A, v, tmp, op):
    A(f'v_mov_b32 v{tmp}, v{v}')
    A.nop(2)
    A(f'v_permlane16_swap_b32 v{tmp}, v{v}')
    A.nop(1)
    A(f'{op} v{v}, v{tmp}, v{v}')
    A(f'v_mov_b32 v{tmp}, v{v}')
    A.nop(2)
    A(f'v_permlane32_swap_b32 v{tmp}, v{v}')
    A.nop(1)
    A(f'{op} v{v}, v{tmp}, v{v}')

def wave_allreduce(A, v, tmp, op):
    rowred(A, [v], op, ROW_FULL)
    cross_rows(A, v, tmp, op)

def transpose_reduce4(A, v):
    A.nop(1)
    A(f'v_permlane32_swap_b32 v{v}, v{v+1}')
    A(f'v_permlane32_swap_b32 v{v+2}, v{v+3}')
    A.nop(1)
    A(f'v_add_f32 v{v}, v{v}, v{v+1}')
    A(f'v_add_f32 v{v+2}, v{v+2}, v{v+3}')
    A.nop(2)
    A(f'v_permlane16_swap_b32 v{v}, v{v+2}')
    A.nop(1)
    A(f'v_add_f32 v{v}, v{v}, v{v+2}')

def tag_insert(A, v):
    for k, s in enumerate((sI0, sI1, sI2, sI3)):
        A(f'v_perm_b32 v{v+k}, v{v+k}, v{vTAG}, s{s}')

def tag_check(A, v, t0, t1, first):
    A(f'v_perm_b32 v{t0}, v{v+1}, v{v}, s{sP01}')
    A(f'v_perm_b32 v{t1}, v{v+3}, v{v+2}, s{sP23}')
    A(f'v_or_b32 v{t0}, v{t0}, v{t1}')
    if first:
        A(f'v_cmp_ne_u32 s[88:89], s{sTAG}, v{t0}')
    else:
        A(f'v_cmp_ne_u32 s[90:91], s{sTAG}, v{t0}')
        A('s_or_b64 s[88:89], s[88:89], s[90:91]')

def mask_vals(A, v, n=4):
    for k in range(n):
        A(f'v_and_b32 v{v+k}, s{sMSK}, v{v+k}')

def build_sel(A, dst, val, tmp):
    A(f'v_lshlrev_b32 v{tmp}, v{vSH}, v{val}')
    for j, m in enumerate((M0, M1, M2, M3)):
        A(f'v_cndmask_b32_e64 v{dst+j}, 0, v{tmp}, s[{m}:{m+1}]')

class Prof:
    def __init__(self, A, cfg):
        self.A, self.on, self.prev, self.k = A, cfg.prof, None, 0
        self.lite = cfg.prof == 'lite'
    def reset(self, prev=None, k=0):
        if self.lite:
            self.prev = None
            return
        self.prev, self.k = prev, k
    def __call__(self, idx):
        if not self.on: return
        if self.on == 'lite' and idx not in (0, 15): return
        if idx >= 23 and self.on != 'heavy': return
        A = self.A
        if self.on == 'heavy' and self.prev is not None:
            A('s_waitcnt lgkmcnt(0)')
        if self.prev is not None:
            A(f'v_writelane_b32 v{vPROF}, s{28 + 2*self.k}, {self.prev}')
            self.k ^= 1
        A(f's_memrealtime s[{28+2*self.k}:{29+2*self.k}]')
        self.prev = None if self.lite else idx
    def flush(self):
        if not self.on: return
        if self.prev is None: return
        A = self.A
        A('s_waitcnt lgkmcnt(0)')
        A(f'v_writelane_b32 v{vPROF}, s{28 + 2*self.k}, {self.prev}')

def common_consts(A):
    A(f's_mov_b32 s{sLOG2E}, 0x3fb8aa3b')
    A(f's_mov_b32 s{sSCALE}, 0x3db504f3')
    A(f's_mov_b32 s{sMSK}, 0xffffff00')
    A(f's_mov_b32 s{sP01}, 0x0c0c0400')
    A(f's_mov_b32 s{sP23}, 0x04000c0c')
    A(f's_mov_b32 s{sI0}, 0x07060500')
    A(f's_mov_b32 s{sI1}, 0x07060501')
    A(f's_mov_b32 s{sI2}, 0x07060502')
    A(f's_mov_b32 s{sI3}, 0x07060503')

def poll_tail(A, cfg, label, oklabel, switch=None):
    A('s_cmp_eq_u64 s[88:89], 0')
    A(f's_cbranch_scc1 {oklabel}')
    A(f's_add_u32 s{sIT}, s{sIT}, 1')
    if switch:
        A(f's_cmp_eq_u32 s{sIT}, {cfg.swit}')
        A(f's_cselect_b32 s{switch}, {BDELTA}, s{switch}')
    A(f's_cmp_le_u32 s{sIT}, {cfg.maxit}')
    A(f's_cbranch_scc1 {label}')

def gen(cfg):
    A = Asm()
    P = Prof(A, cfg)
    nt = cfg.nt
    A('.amdgcn_target "amdgcn-amd-amdhsa--gfx950"')
    A('.text')
    A(f'.globl {NAME}')
    A(f'.p2align {cfg.align}')
    A(f'.type {NAME},@function')
    A.label(NAME)
    A('s_cmp_ge_u32 s2, 256')
    A('s_cbranch_scc1 L_end')
    P(0)
    if cfg.calib:
        A('s_memrealtime s[36:37]')
    for sr, off in ((SWQ, 24), (SX, 0), (SWS, 88), (SK, 8)):
        A(f's_load_dwordx2 s[{sr}:{sr+1}], s[0:1], {off}')
    A('v_lshrrev_b32 v2, 6, v0')
    A('v_and_b32 v1, 63, v0')
    A('s_and_b32 s4, s2, 7')
    A('v_readfirstlane_b32 s3, v2')
    A('s_lshr_b32 s5, s2, 3')
    A(f's_lshr_b32 s{sRB}, s5, 3')
    A(f's_and_b32 s{sCB}, s5, 7')
    for sr, n in ((SWQ, 4194304), (SX, 1024), (SWS, WS_BYTES), (SK, 134217728)):
        A(f's_mov_b32 s{sr+2}, {n}')
        A(f's_mov_b32 s{sr+3}, 0x20000')
    A('s_cmp_ge_u32 s3, 4')
    A('s_cbranch_scc1 L_comm0')
    def kcalc():
        A('v_lshrrev_b32 v2, 4, v1')
        A('v_and_b32 v3, 15, v1')
        A('v_xor_b32 v5, v2, v3')
        A('v_lshlrev_b32 v5, 4, v5')
        A('v_lshl_add_u32 v156, v2, 8, v5')
        for i in range(1, 4):
            A(f'v_xor_b32 v{156+i}, {64*i}, v156')
        A('s_lshl_b32 s19, s4, 24')
        A('s_lshl_b32 s11, s5, 15')
        A('s_add_u32 s19, s19, s11')
        A('s_lshl_b32 s20, s3, 13')
        A('s_add_u32 s19, s19, s20')
        A('s_add_u32 s19, s19, 15728640')
        A('s_and_b32 s25, s4, 1')
        A('s_lshl_b32 s25, s25, 12')
        A('s_xor_b32 s26, s25, 4096')
        A('s_add_u32 s27, s19, s26')
        A('s_add_u32 s19, s19, s25')
        A('s_add_u32 s25, s25, s20')
        A('s_add_u32 s26, s26, s20')
        A('s_mov_b32 m0, s25')
    A(f's_lshl_b32 s12, s{sRB}, 20')
    A('s_lshl_b32 s11, s3, 18')
    A('s_add_u32 s12, s12, s11')
    A('s_lshl_b32 s11, s4, 10')
    A('s_add_u32 s12, s12, s11')
    A(f's_lshl_b32 s11, s{sCB}, 7')
    A('s_add_u32 s12, s12, s11')
    A('v_lshlrev_b32 v163, 4, v1')
    A('v_lshrrev_b32 v164, 3, v1')
    A('v_and_b32 v4, 0x70, v163')
    A('v_lshl_add_u32 v6, v164, 13, v4')
    A(f'v_mov_b32 v7, {EOFF}')
    A('s_add_u32 s13, s12, 65536')
    A('s_add_u32 s14, s12, 131072')
    A('s_add_u32 s15, s12, 196608')
    if cfg.kearly:
        kcalc()
    A('s_waitcnt lgkmcnt(0)')
    P(27)
    A(f'buffer_load_dwordx4 v[8:11], v163, {srd(SX)}, 0 offen {cfg.xnt}')
    if not cfg.elate:
        A(f'buffer_load_dword v{vTAG}, v7, {srd(SWS)}, 0 offen {cfg.xnt}')
    for i in range(4):
        A(f'buffer_load_dwordx4 {vr(12+4*i)}, v6, {srd(SWQ)}, s{12+i} offen {nt}')
    if cfg.elate:
        A(f'buffer_load_dword v{vTAG}, v7, {srd(SWS)}, 0 offen {cfg.xnt}')
    for sr, off in ((SV, 16), (SGA, 48), (SUP, 56), (SWO, 32), (SDN, 64)):
        A(f's_load_dwordx2 s[{sr}:{sr+1}], s[0:1], {off}')
    if not cfg.kearly:
        kcalc()
        A.nop(1)
    def kloads(lo, hi):
        for i in range(lo, hi):
            if i == 4:
                A('s_mov_b32 m0, s26')
                A.nop(1)
            A(f'buffer_load_dwordx4 v{156+(i&3)}, {srd(SK)}, s{19 if i < 4 else 27} offen offset:{1024*(i&3)} {nt} lds')
    kloads(0, cfg.nk1)
    A('v_mul_u32_u24 v162, 3584, v164')
    A('v_add_u32 v161, v162, v4')
    A(f's_lshl_b32 s{sT}, s{sRB}, 3')
    A(f's_add_u32 s{sT}, s{sT}, s4')
    A(f's_cmp_lt_u32 s{sT}, 28')
    A('s_cselect_b32 s9, 1835008, 0')
    for sr, n in ((SV, 134217728), (SWO, 4194304)):
        A(f's_mov_b32 s{sr+2}, {n}')
        A(f's_mov_b32 s{sr+3}, 0x20000')
    for sr in (SGA, SUP, SDN):
        A(f's_mov_b32 s{sr+2}, s9')
        A(f's_mov_b32 s{sr+3}, 0x20000')
    A('s_branch L_cmp_go')
    A.label('L_comm0')
    if cfg.codepf:
        A('s_cmp_eq_u32 s3, 5')
        A('s_cbranch_scc0 L_nocodepf')
        A('s_getpc_b64 s[12:13]')
        A.label('L_pc')
        A(f's_sub_u32 s12, s12, L_pc-{NAME}')
        A('s_subb_u32 s13, s13, 0')
        A('s_lshl_b32 s14, s5, 6')
        A('s_add_u32 s12, s12, s14')
        A('s_addc_u32 s13, s13, 0')
        for i in range(cfg.codepf_n - 1):
            A(f's_load_dword s{32+(i&3)}, s[12:13], {2048*i}')
        A(f's_add_u32 s15, s14, {2048*(cfg.codepf_n-1)}')
        A(f's_min_u32 s15, s15, L_end-{NAME}')
        A('s_sub_u32 s15, s15, s14')
        A('s_load_dword s35, s[12:13], s15')
        A.label('L_nocodepf')
    if cfg.prio:
        A(f's_setprio {cfg.prio}')
    A('s_branch L_comm')
    A.label('L_cmp_go')
    for m, lo in ((M0, 0x03030303), (M1, 0x0c0c0c0c), (M2, 0x30303030), (M3, 0xc0c0c0c0)):
        A(f's_mov_b32 s{m}, {hex(lo)}')
        A(f's_mov_b32 s{m+1}, {hex(lo)}')
    common_consts(A)
    A(f'v_and_b32 v{vSH}, 1, v1')
    A(f'v_lshlrev_b32 v{vSH}, 4, v{vSH}')
    A(f's_lshl_b32 s17, s{sCB}, 6')
    A('s_lshl_b32 s11, s3, 4')
    A('s_add_u32 s17, s17, s11')
    A('s_mul_i32 s17, s17, 3584')
    A(f's_lshl_b32 s11, s{sT}, 7')
    A('s_add_u32 s17, s17, s11')
    A('s_lshl_b32 s21, s4, 19')
    A('s_lshr_b32 s11, s5, 2')
    A('s_lshl_b32 s12, s11, 16')
    A('s_add_u32 s21, s21, s12')
    A('s_lshl_b32 s12, s3, 14')
    A('s_add_u32 s21, s21, s12')
    A('s_and_b32 s23, s5, 3')
    A('s_lshl_b32 s23, s23, 8')
    A('s_add_u32 s21, s21, s23')
    A(f's_lshl_b32 s22, s{sT}, 16')
    A('s_and_b32 s11, s11, 1')
    A('s_lshl_b32 s11, s11, 15')
    A('s_add_u32 s22, s22, s11')
    A('s_lshl_b32 s12, s3, 13')
    A('s_add_u32 s22, s22, s12')
    A('s_add_u32 s22, s22, s23')
    A('v_lshlrev_b32 v162, 4, v3')
    A('v_lshl_add_u32 v162, v2, 10, v162')
    P(1)
    A.c('layernorm')
    A(f's_waitcnt vmcnt({4 + cfg.nk1 + (1 if cfg.elate else 0)})')
    P(2)
    for k in range(4):
        A(f'v_lshlrev_b32 v{80+2*k}, 16, v{8+k}')
        A(f'v_and_b32 v{81+2*k}, 0xffff0000, v{8+k}')
    A('v_add_f32 v88, v80, v81')
    A('v_add_f32 v89, v82, v83')
    A('v_add_f32 v90, v84, v85')
    A('v_add_f32 v91, v86, v87')
    A('v_add_f32 v88, v88, v89')
    A('v_add_f32 v90, v90, v91')
    A('v_add_f32 v88, v88, v90')
    wave_allreduce(A, 88, 89, 'v_add_f32')
    A('v_mul_f32 v88, 0x3b000000, v88')
    for k in range(8):
        A(f'v_sub_f32 v{92+k}, v{80+k}, v88')
    A('v_mul_f32 v90, v92, v92')
    for k in range(1, 8):
        A(f'v_fmac_f32 v90, v{92+k}, v{92+k}')
    wave_allreduce(A, 90, 89, 'v_add_f32')
    P(23)
    A('v_mul_f32 v90, 0x3b000000, v90')
    A('v_cvt_pk_bf16_f32 v88, v88, v90')
    A('v_and_b32 v90, 0xffff0000, v88')
    A('v_lshlrev_b32 v88, 16, v88')
    A('v_add_f32 v90, 0x3727c5ac, v90')
    A('v_cvt_pk_bf16_f32 v90, v90, v90')
    A('v_lshlrev_b32 v90, 16, v90')
    A('v_sqrt_f32 v90, v90')
    for k in range(8):
        A(f'v_sub_f32 v{92+k}, v{80+k}, v88')
    A('v_cvt_pk_bf16_f32 v90, v90, v90')
    A('v_lshlrev_b32 v90, 16, v90')
    A('v_rcp_f32 v90, v90')
    for k in range(4):
        A(f'v_cvt_pk_bf16_f32 v{100+k}, v{92+2*k}, v{93+2*k}')
    for k in range(4):
        A(f'v_lshlrev_b32 v{92+2*k}, 16, v{100+k}')
        A(f'v_and_b32 v{93+2*k}, 0xffff0000, v{100+k}')
    for k in range(8):
        A(f'v_mul_f32 v{92+k}, v{92+k}, v90')
    for k in range(4):
        A(f'v_cvt_pk_bf16_f32 v{100+k}, v{92+2*k}, v{93+2*k}')
    A(f'v_add_u32 v104, {L_XN}, v163')
    A('ds_write_b128 v104, v[100:103]')
    P(24)
    A('v_lshrrev_b32 v105, 3, v3')
    A('v_lshl_add_u32 v105, v2, 1, v105')
    A(f's_lshl_b32 s11, s{sRB}, 7')
    A('s_lshl_b32 s12, s3, 5')
    A('s_add_u32 s11, s11, s12')
    A('s_lshl_b32 s11, s11, 1')
    A(f's_add_u32 s11, s11, {L_XN}')
    A('v_lshl_add_u32 v106, v105, 1, s11')
    A(f's_lshl_b32 s11, s{sCB}, 6')
    A('s_lshl_b32 s12, s3, 4')
    A('s_add_u32 s11, s11, s12')
    A('s_lshl_b32 s11, s11, 1')
    A(f's_add_u32 s11, s11, {L_XN}')
    A('v_lshl_add_u32 v107, v105, 1, s11')
    A('s_waitcnt lgkmcnt(0)')
    for i in range(4):
        A(f'ds_read_u16 v{80+i}, v106 offset:{16*i}')
    for i in range(2):
        A(f'ds_read_u16 v{84+i}, v107 offset:{16*i}')
    if not cfg.elate:
        A(f'v_add_u32 v{vTAG}, 0x01010101, v{vTAG}')
    P(25)
    kloads(cfg.nk1, 8)
    P(26)
    if not cfg.elate:
        A.nop(1)
        A(f'v_readfirstlane_b32 s6, v{vTAG}')
    A('s_waitcnt lgkmcnt(0)')
    for i in range(4):
        build_sel(A, 48+4*i, 80+i, 86)
    for i in range(2):
        build_sel(A, 64+4*i, 84+i, 86)
    A('v_lshlrev_b32 v86, 1, v2')
    A('v_xor_b32 v86, v86, v3')
    A('v_lshlrev_b32 v86, 4, v86')
    A('v_lshl_add_u32 v160, v2, 8, v86')
    A('v_xor_b32 v164, 128, v160')
    A('v_lshrrev_b32 v87, 5, v1')
    A('v_lshlrev_b32 v87, 8, v87')
    A('v_and_b32 v86, 7, v1')
    A('v_lshl_add_u32 v87, v86, 5, v87')
    A('v_and_b32 v86, 1, v2')
    A('v_lshl_add_u32 v87, v86, 4, v87')
    A('s_lshl_b32 s11, s3, 9')
    A(f's_add_u32 s11, s11, {L_PART}')
    A('v_add_u32 v163, s11, v87')
    P(3)
    A.c('q partial product')
    A('s_waitcnt vmcnt(8)')
    P(16)
    if cfg.elate:
        A(f'v_add_u32 v{vTAG}, 0x01010101, v{vTAG}')
    for i in range(4):
        A(f'v_mfma_f32_16x16x32_bf16 v[72:75], {vr(48+4*i)}, {vr(12+4*i)}, {"0" if i == 0 else "v[72:75]"}')
    A('s_mov_b32 exec_lo, 0x00ff00ff')
    A('s_mov_b32 exec_hi, 0xff00ff00')
    A.nop(6)
    A('ds_write_b128 v163, v[72:75]')
    A('s_mov_b64 exec, -1')
    if cfg.elate:
        A(f'v_readfirstlane_b32 s6, v{vTAG}')
    A('s_waitcnt lgkmcnt(0)')
    A('s_barrier')
    P(4)
    A('s_cmp_lg_u32 s3, 3')
    A('s_cbranch_scc1 L_pub1_done')
    A('v_lshlrev_b32 v86, 4, v3')
    A(f'v_add_u32 v87, {L_PART}, v86')
    for k in range(8):
        A(f'ds_read_b128 {vr(80+4*k+32)}, v87 offset:{256*k}')
    A('s_lshl_b32 s11, s4, 2')
    A(f's_add_u32 s11, s11, s{sRB}')
    A('s_lshl_b32 s11, s11, 11')
    A(f's_lshl_b32 s12, s{sCB}, 8')
    A('s_add_u32 s11, s11, s12')
    A(f's_add_u32 s11, s11, {QA}')
    A('v_add_u32 v86, s11, v86')
    A('s_lshl_b32 s12, s4, 9')
    A('s_lshl_b32 s13, s5, 4')
    A('s_add_u32 s12, s12, s13')
    A(f's_add_u32 s12, s12, {IDA}')
    A('v_mov_b32 v87, s12')
    A('v_cmp_eq_u32 vcc, 0, v2')
    A('s_getreg_b32 s13, hwreg(HW_REG_XCC_ID, 0, 4)')
    A('s_lshl_b32 s13, s13, 8')
    A('v_cndmask_b32 v86, v87, v86, vcc')
    A('s_waitcnt lgkmcnt(0)')
    for k in range(4):
        A(f'v_add_f32 v{112+k}, v{112+k}, v{116+k}')
        A(f'v_add_f32 v{120+k}, v{120+k}, v{124+k}')
        A(f'v_add_f32 v{128+k}, v{128+k}, v{132+k}')
        A(f'v_add_f32 v{136+k}, v{136+k}, v{140+k}')
    for k in range(4):
        A(f'v_add_f32 v{112+k}, v{112+k}, v{120+k}')
        A(f'v_add_f32 v{128+k}, v{128+k}, v{136+k}')
    for k in range(4):
        A(f'v_add_f32 v{112+k}, v{112+k}, v{128+k}')
    A('v_mov_b32 v116, s13')
    A('v_cndmask_b32 v112, v116, v112, vcc')
    tag_insert(A, 112)
    A('s_mov_b32 exec_lo, 0x0001ffff')
    A('s_mov_b32 exec_hi, 0')
    if not cfg.forceb:
        A(f'buffer_store_dwordx4 v[112:115], v86, {srd(SWS)}, 0 offen')
    A(f's_mov_b32 s12, {BDELTA}')
    A(f'buffer_store_dwordx4 v[112:115], v86, {srd(SWS)}, s12 offen sc1')
    A('s_mov_b64 exec, -1')
    A.label('L_pub1_done')
    if cfg.b1a:
        A('s_barrier')
    nst = (1 if cfg.forceb else 2)
    A.c('gate/up loads, V loads')
    A('s_add_u32 s18, s17, 28672')
    A(f'buffer_load_dwordx4 {vr(8)}, v161, {srd(SGA)}, s17 offen {nt}')
    A(f'buffer_load_dwordx4 {vr(12)}, v161, {srd(SGA)}, s18 offen {nt}')
    A(f'buffer_load_dwordx4 {vr(16)}, v161, {srd(SUP)}, s17 offen {nt}')
    A(f'buffer_load_dwordx4 {vr(20)}, v161, {srd(SUP)}, s18 offen {nt}')
    def vloads(lo, hi, win=None):
        for i in range(lo, hi):
            if win:
                A(f's_waitcnt vmcnt({win-1})')
            if i % 4 == 0 or i == lo:
                A(f's_add_u32 m0, s{25 if i < 4 else 26}, {L_V}')
                A.nop(1)
            A(f'buffer_load_dwordx4 v{(160, 164)[i&1]}, {srd(SV)}, s{19 if i < 4 else 27} offen offset:{1024*(i&3)} {nt} lds')
    vloads(0, cfg.nv1)
    if cfg.kwait is not None:
        A('s_cmp_eq_u32 s3, 3')
        A('s_cbranch_scc1 L_nokwait')
        A(f's_waitcnt vmcnt({cfg.kwait + cfg.nv1})')
        A.label('L_nokwait')
    if cfg.b1b:
        A('s_barrier')
    P(5)
    A('v_and_b32 v85, 1, v2')
    A('v_lshrrev_b32 v86, 1, v2')
    A('v_lshl_or_b32 v85, v85, 1, v86')
    A('v_lshlrev_b32 v86, 4, v3')
    A('v_lshl_add_u32 v161, v85, 10, v86')
    A('v_xor_b32 v86, v2, v3')
    A('v_lshlrev_b32 v86, 4, v86')
    A('v_lshl_add_u32 v156, v3, 8, v86')
    A('v_add_u32 v156, s20, v156')
    for j in range(1, 4):
        A(f'v_xor_b32 v{156+j}, {64*j}, v156')
    A('v_and_b32 v86, 3, v1')
    A('v_mul_u32_u24 v86, 272, v86')
    A('v_lshl_add_u32 v4, v2, 4, v86')
    A(f'v_add_u32 v4, {L_QB}, v4')
    if cfg.b1c:
        vloads(cfg.nv1, cfg.nv2)
        A('s_barrier')
        vloads(cfg.nv2, 8)
    else:
        vloads(cfg.nv1, 8, cfg.win)
    def tail_loads(pos):
        n = 0
        for i, p in enumerate(cfg.tpos):
            if p != pos:
                continue
            n += 1
            if i < 4:
                if cfg.worot:
                    A(f'buffer_load_dwordx4 {vr(24+4*i)}, v161, {srd(SWO)}, s{32+i} offen {nt}')
                else:
                    A(f's_add_u32 s13, s21, {4096*i}')
                    A(f'buffer_load_dwordx4 {vr(24+4*i)}, v161, {srd(SWO)}, s13 offen {nt}')
            else:
                if cfg.worot:
                    A(f'buffer_load_dwordx4 {vr(40+4*(i-4))}, v162, {srd(SDN)}, s{36+(i-4)} offen {nt}')
                else:
                    A(f's_add_u32 s13, s22, {4096*(i-4)}')
                    A(f'buffer_load_dwordx4 {vr(40+4*(i-4))}, v162, {srd(SDN)}, s13 offen {nt}')
        return n
    nearly = 0
    nearly += tail_loads(1)
    A.c('addresses for the attention tail (computed while the loads are in flight)')
    if cfg.worot:
        A('s_add_u32 s38, s4, s3')
        A('s_and_b32 s38, s38, 3')
        for i in range(4):
            A(f's_add_u32 s11, s38, {i}')
            A('s_and_b32 s11, s11, 3')
            A('s_lshl_b32 s11, s11, 12')
            A(f's_add_u32 s{32+i}, s21, s11')
        A('s_and_b32 s11, s38, 1')
        A('s_lshl_b32 s11, s11, 12')
        A('s_add_u32 s36, s22, s11')
        A('s_xor_b32 s11, s11, 4096')
        A('s_add_u32 s37, s22, s11')
    A('v_lshrrev_b32 v84, 2, v3')
    A('v_lshl_add_u32 v85, v2, 2, v84')
    A('v_and_b32 v84, 7, v85')
    A('v_lshlrev_b32 v85, 8, v85')
    A('v_lshl_add_u32 v85, v84, 5, v85')
    A('v_and_b32 v84, 3, v3')
    A('v_lshl_add_u32 v85, v84, 3, v85')
    A(f'v_add_u32 v85, {L_V}, v85')
    A('s_lshl_b32 s11, s3, 6')
    A('v_xor_b32 v48, s11, v85')
    A('v_xor_b32 v49, 32, v48')
    A('v_and_b32 v84, 3, v3')
    A('v_lshlrev_b32 v84, 14, v84')
    A('v_bfe_u32 v85, v3, 2, 1')
    A(f'v_lshl_add_u32 v84, v85, {6 if cfg.oline else 11}, v84')
    A('v_lshl_add_u32 v84, v2, 4, v84')
    A('s_lshl_b32 s11, s4, 16')
    A('s_lshl_b32 s12, s3, 12')
    A('s_add_u32 s11, s11, s12')
    A(f's_lshl_b32 s12, s5, {7 if cfg.oline else 6}')
    A('s_add_u32 s11, s11, s12')
    A(f's_add_u32 s11, s11, {OIO}')
    A('v_add_u32 v50, s11, v84')
    A('s_lshr_b32 s14, s5, 3')
    A('s_lshl_b32 s11, s4, 2')
    A('s_add_u32 s11, s11, s14')
    A('s_lshl_b32 s12, s11, 9')
    A(f's_add_u32 s12, s12, {MLO}')
    A('v_lshrrev_b32 v84, 2, v1')
    A('v_lshl_add_u32 v52, v84, 4, s12')
    A('s_bfe_u32 s12, s5, 0x10002')
    if cfg.oline:
        A('s_lshl_b32 s11, s11, 14')
        A('s_lshl_b32 s13, s12, 2')
        A('s_add_u32 s13, s13, s3')
        A('s_lshr_b32 s15, s13, 1')
        A('s_lshl_b32 s15, s15, 12')
        A('s_add_u32 s11, s11, s15')
        A('s_and_b32 s13, s13, 1')
        A('s_lshl_b32 s13, s13, 6')
        A('s_add_u32 s11, s11, s13')
        A(f's_add_u32 s11, s11, {OIO}')
        A('v_lshrrev_b32 v84, 2, v1')
        A('v_lshlrev_b32 v84, 7, v84')
        A('v_and_b32 v85, 3, v1')
        A('v_lshl_add_u32 v84, v85, 4, v84')
        A('v_add_u32 v51, s11, v84')
    else:
        A('s_lshl_b32 s11, s11, 3')
        A('s_lshl_b32 s13, s12, 2')
        A('s_add_u32 s11, s11, s13')
        A('s_add_u32 s11, s11, s3')
        A('s_lshl_b32 s11, s11, 11')
        A(f's_add_u32 s11, s11, {OIO}')
        if cfg.worot:
            A('v_add_u32 v84, s38, v1')
            A('v_and_b32 v84, 3, v84')
            A('v_and_b32 v85, 0x3c, v1')
            A('v_or_b32 v84, v84, v85')
            A('v_lshl_add_u32 v51, v84, 4, s11')
        else:
            A('v_lshl_add_u32 v51, v1, 4, s11')
    A('s_lshl_b32 s11, s4, 2')
    A('s_add_u32 s11, s11, s14')
    A('s_lshl_b32 s11, s11, 12')
    A('s_lshl_b32 s12, s12, 7')
    A('s_add_u32 s11, s11, s12')
    A('s_lshl_b32 s12, s3, 5')
    A('s_add_u32 s11, s11, s12')
    A(f's_add_u32 s11, s11, {GUO}')
    A('v_bfe_u32 v84, v1, 2, 3')
    A('v_lshlrev_b32 v84, 9, v84')
    A('v_bfe_u32 v85, v1, 1, 1')
    A('v_lshl_add_u32 v84, v85, 8, v84')
    if cfg.worot:
        A('v_xor_b32 v85, s38, v1')
        A('v_and_b32 v85, 1, v85')
    else:
        A('v_and_b32 v85, 1, v1')
    A('v_lshl_add_u32 v84, v85, 4, v84')
    A('v_add_u32 v53, s11, v84')
    A('v_mul_u32_u24 v54, 0x020202, v2')
    A('v_lshlrev_b32 v84, 25, v2')
    A('v_add_u32 v54, v54, v84')
    A('v_add_u32 v54, 0x01000100, v54')
    A('v_and_b32 v84, 1, v1')
    A('v_mov_b32 v85, 0xffff')
    A('v_lshlrev_b32 v84, 4, v84')
    A('v_lshlrev_b32 v84, v84, v85')
    for jj, m in enumerate((M0, M1, M2, M3)):
        A(f'v_cndmask_b32_e64 v{136+jj}, 0, v84, s[{m}:{m+1}]')
    A('v_and_b32 v84, 3, v1')
    A('s_lshl_b32 s11, s3, 2')
    A(f's_add_u32 s11, s11, {L_MW}')
    A('v_lshl_add_u32 v55, v84, 4, s11')
    A('v_lshlrev_b32 v84, 4, v84')
    A(f'v_add_u32 v56, {L_MW}, v84')
    A('v_lshlrev_b32 v84, 4, v1')
    A('s_lshl_b32 s11, s3, 10')
    A(f's_add_u32 s11, s11, {L_PB}')
    A('v_add_u32 v57, s11, v84')
    A(f'v_add_u32 v58, {L_PB}, v84')
    A('v_lshrrev_b32 v60, 2, v1')
    A('v_lshlrev_b32 v60, 12, v60')
    A('v_and_b32 v61, 3, v1')
    A('v_lshl_add_u32 v60, v61, 4, v60')
    A('s_and_b32 s11, s5, 3')
    A('s_lshl_b32 s11, s11, 15')
    A('s_lshl_b32 s12, s4, 3')
    A('s_lshr_b32 s13, s5, 2')
    A('s_add_u32 s12, s12, s13')
    A('s_lshl_b32 s12, s12, 6')
    A('s_add_u32 s11, s11, s12')
    A(f's_add_u32 s11, s11, {FIN}')
    A('v_add_u32 v60, s11, v60')
    A('v_lshlrev_b32 v62, 4, v1')
    A(f'v_add_u32 v62, {L_RED}, v62')
    A('v_lshlrev_b32 v85, 5, v3')
    A('v_lshl_add_u32 v85, v2, 4, v85')
    A('s_lshl_b32 s11, s3, 9')
    A(f's_add_u32 s11, s11, {L_RED}')
    A('v_add_u32 v59, s11, v85')
    A.c('gate/up partial products')
    P(17)
    A(f's_waitcnt vmcnt({8 + nearly})')
    P(18)
    for i in range(2):
        A(f'v_mfma_f32_16x16x32_bf16 v[72:75], {vr(64+4*i)}, {vr(8+4*i)}, {"0" if i == 0 else "v[72:75]"}')
    for i in range(2):
        A(f'v_mfma_f32_16x16x32_bf16 v[76:79], {vr(64+4*i)}, {vr(16+4*i)}, {"0" if i == 0 else "v[76:79]"}')
    A.nop(7)
    A('s_mov_b32 exec_lo, 0x00ff00ff')
    A('s_mov_b32 exec_hi, 0xff00ff00')
    A('ds_write_b128 v163, v[72:75] offset:2048')
    A('ds_write_b128 v163, v[76:79] offset:4096')
    A('s_mov_b64 exec, -1')
    A('s_waitcnt lgkmcnt(0)')
    P(6)
    A('s_barrier')
    P(7)
    A.c('scores')
    for j in range(4):
        A(f'ds_read_b128 {vr(112+4*j)}, v4 offset:{64*j}')
    for t in range(2):
        for j in range(4):
            A(f'ds_read_b128 {vr(80+16*t+4*j)}, v{156+j} offset:{L_K + 4096*t}')
    A(f'v_mov_b32 v6, {L_MODE}')
    A('ds_read_b32 v7, v6')
    tail_loads(2)
    for j in range(4):
        A(f's_waitcnt lgkmcnt({8-j})')
        A(f'v_mfma_f32_16x16x32_bf16 v[144:147], {vr(80+4*j)}, {vr(112+4*j)}, {"0" if j == 0 else "v[144:147]"}')
    for j in range(4):
        A(f's_waitcnt lgkmcnt({4-j})')
        A(f'v_mfma_f32_16x16x32_bf16 v[148:151], {vr(96+4*j)}, {vr(112+4*j)}, {"0" if j == 0 else "v[148:151]"}')
    A.nop(7)
    A('s_waitcnt lgkmcnt(0)')
    A('v_readfirstlane_b32 s24, v7')
    A.c('softmax')
    for k in range(4):
        A(f'v_cvt_pk_bf16_f32 v{152+k}, v{144+2*k}, v{145+2*k}')
    for k in range(4):
        A(f'v_lshlrev_b32 v{144+2*k}, 16, v{152+k}')
        A(f'v_and_b32 v{145+2*k}, 0xffff0000, v{152+k}')
    for k in range(8):
        A(f'v_mul_f32 v{144+k}, s{sSCALE}, v{144+k}')
    for k in range(4):
        A(f'v_cvt_pk_bf16_f32 v{152+k}, v{144+2*k}, v{145+2*k}')
    for k in range(4):
        A(f'v_lshlrev_b32 v{144+2*k}, 16, v{152+k}')
        A(f'v_and_b32 v{145+2*k}, 0xffff0000, v{152+k}')
    A('v_max3_f32 v82, v144, v145, v146')
    A('v_max3_f32 v83, v147, v148, v149')
    A('v_max3_f32 v82, v82, v150, v151')
    A('v_max_f32 v82, v82, v83')
    cross_rows(A, 82, 83, 'v_max_f32')
    A('s_mov_b64 exec, 15')
    A('ds_write_b32 v55, v82')
    A('s_mov_b64 exec, -1')
    tail_loads(25)
    A('s_waitcnt lgkmcnt(0)')
    A('s_barrier')
    tail_loads(26)
    P(8)
    A('ds_read_b128 v[84:87], v56')
    A('s_waitcnt lgkmcnt(0)')
    A('v_max3_f32 v82, v84, v85, v86')
    A('v_max_f32 v82, v82, v87')
    A(f'v_mul_f32 v83, s{sLOG2E}, v82')
    for k in range(8):
        A(f'v_fma_f32 v{144+k}, v{144+k}, s{sLOG2E}, -v83')
    for k in range(8):
        A(f'v_exp_f32 v{144+k}, v{144+k}')
    A.nop(1)
    for k in range(4):
        A(f'v_cvt_pk_bf16_f32 v{152+k}, v{144+2*k}, v{145+2*k}')
    A('v_add_f32 v84, v144, v145')
    A('v_add_f32 v85, v146, v147')
    A('ds_write_b128 v57, v[152:155]')
    A('v_add_f32 v86, v148, v149')
    A('v_add_f32 v87, v150, v151')
    A('v_add_f32 v84, v84, v85')
    A('v_add_f32 v86, v86, v87')
    A('v_add_f32 v84, v84, v86')
    cross_rows(A, 84, 85, 'v_add_f32')
    A('s_mov_b64 exec, 15')
    A(f'ds_write_b32 v55, v84 offset:{L_LW - L_MW}')
    A('s_mov_b64 exec, -1')
    tail_loads(3)
    P(9)
    A('s_waitcnt vmcnt(6) lgkmcnt(0)')
    A('s_barrier')
    P(10)
    A.c('PV over all 128 keys for tiles 2w, 2w+1')
    for ks in range(4):
        A(f'ds_read_b128 {vr(112+4*ks)}, v58 offset:{1024*ks}')
        for tt in range(2):
            base = 80 + (ks*2 + tt)*4
            A(f'ds_read_b64_tr_b16 v[{base}:{base+1}], v{48+tt} offset:{8192*ks}')
            A(f'ds_read_b64_tr_b16 v[{base+2}:{base+3}], v{48+tt} offset:{8192*ks + 4096}')
    for ks in range(4):
        for tt in range(2):
            base = 80 + (ks*2 + tt)*4
            left = 20 - (5*ks + 1 + 2*(tt+1))
            A(f's_waitcnt lgkmcnt({min(left, 15)})')
            A(f'v_mfma_f32_16x16x32_bf16 {vr(128+4*tt)}, {vr(base)}, {vr(112+4*ks)}, {"0" if ks == 0 else vr(128+4*tt)}')
    A('s_mov_b32 s12, 0x00f000f0')
    A('s_mov_b32 s13, 0x00f000f0')
    A('s_mov_b32 exec_lo, 0x00ff00ff')
    A('s_mov_b32 exec_hi, 0x00ff00ff')
    A.nop(4)
    for k in range(4):
        A(f'v_cndmask_b32_e64 v{128+k}, v{128+k}, v{132+k}, s[12:13]')
    tag_insert(A, 128)
    A('s_cmp_eq_u32 s24, 1')
    A('s_cbranch_scc0 L_opub_slow')
    A(f'buffer_store_dwordx4 v[128:131], v50, {srd(SWS)}, 0 offen')
    A('s_branch L_opub_done')
    A.label('L_opub_slow')
    A(f'buffer_store_dwordx4 v[128:131], v50, {srd(SWS)}, 0 offen sc1')
    A.label('L_opub_done')
    A('s_mov_b64 exec, -1')
    P(11)
    A.c('gather the partial attention outputs and the gate/up sums')
    if cfg.owait is not None:
        A(f's_waitcnt vmcnt({cfg.owait})')
    A(f's_mov_b32 s{sIT}, 0')
    A.label('L_ogat')
    A(f'buffer_load_dwordx4 v[80:83], v52, {srd(SWS)}, 0 offen {cfg.gat}')
    A(f'buffer_load_dwordx4 v[84:87], v52, {srd(SWS)}, 0 offen offset:256 {cfg.gat}')
    A(f'buffer_load_dwordx4 v[96:99], v53, {srd(SWS)}, 0 offen {cfg.gat}')
    A(f'buffer_load_dwordx4 v[88:91], v51, {srd(SWS)}, 0 offen {cfg.gat}')
    A(f'buffer_load_dwordx4 v[92:95], v51, {srd(SWS)}, 0 offen offset:{2048 if cfg.oline else 1024} {cfg.gat}')
    A('s_waitcnt vmcnt(0)')
    for q in range(5):
        tag_check(A, 80+4*q, 100, 101, q == 0)
    poll_tail(A, cfg, 'L_ogat', 'L_ook')
    A.label('L_ook')
    if cfg.prof in (True, 'heavy'):
        A(f'v_writelane_b32 v{vPROF}, s{sIT}, 21')
    P(12)
    if cfg.domask is True:
        mask_vals(A, 80, 2)
        mask_vals(A, 84, 2)
        mask_vals(A, 88, 12)
    else:
        mask_vals(A, 80, 1)
        mask_vals(A, 84, 1)
    A('v_max_f32 v100, v80, v84')
    for st in ('row_ror:8', 'row_ror:4'):
        for k in range(4):
            A(f'v_add_f32_dpp v{96+k}, v{96+k}, v{96+k} {st} row_mask:0xf bank_mask:0xf')
        A(f'v_max_f32_dpp v100, v100, v100 {st} row_mask:0xf bank_mask:0xf')
    for k in range(4):
        A(f'v_mov_b32 v{104+k}, v{96+k}')
    A('v_mov_b32 v101, v100')
    for k in range(4):
        A(f'v_permlane16_swap_b32 v{104+k}, v{96+k}')
    A('v_permlane16_swap_b32 v101, v100')
    for k in range(4):
        A(f'v_add_f32 v{96+k}, v{104+k}, v{96+k}')
    A('v_max_f32 v100, v101, v100')
    A('v_cvt_pk_bf16_f32 v104, v96, v97')
    A('v_mov_b32 v101, v100')
    A('v_cvt_pk_bf16_f32 v105, v98, v99')
    A('v_lshlrev_b32 v96, 16, v104')
    A('v_permlane32_swap_b32 v101, v100')
    A('v_and_b32 v97, 0xffff0000, v104')
    A('v_max_f32 v100, v101, v100')
    A('v_lshlrev_b32 v98, 16, v105')
    A('v_and_b32 v99, 0xffff0000, v105')
    A('v_sub_f32 v80, v80, v100')
    A('v_sub_f32 v84, v84, v100')
    A(f'v_mul_f32 v80, s{sLOG2E}, v80')
    A(f'v_mul_f32 v84, s{sLOG2E}, v84')
    A('v_exp_f32 v80, v80')
    A('v_exp_f32 v84, v84')
    for k in range(4):
        A(f'v_mul_f32_dpp v{104+k}, v{96+k}, v{96+k} quad_perm:[2,3,0,1] row_mask:0xf bank_mask:0xf')
    A('v_mul_f32 v102, v80, v81')
    A('v_fmac_f32 v102, v84, v85')
    for k in range(4):
        A(f'v_mul_f32 v{88+k}, v80, v{88+k}')
    for k in range(4):
        A(f'v_fmac_f32 v{88+k}, v84, v{92+k}')
    A('v_cvt_pk_bf16_f32 v96, v104, v105')
    A('v_cvt_pk_bf16_f32 v97, v106, v107')
    A('v_permlane32_swap_b32 v88, v89')
    A('v_permlane32_swap_b32 v90, v91')
    A('v_perm_b32 v98, v97, v96, v54')
    A('v_add_f32 v88, v88, v89')
    A('v_add_f32 v90, v90, v91')
    A('v_mov_b32 v103, v102')
    for i in range(2):
        for jj in range(4):
            A(f'v_and_b32_dpp v{64+4*i+jj}, v98, v{136+jj} quad_perm:[{i},{i},{i},{i}] row_mask:0xf bank_mask:0xf')
        if i == 0:
            A('v_permlane16_swap_b32 v88, v90')
            A('v_permlane16_swap_b32 v103, v102')
    A('v_add_f32 v88, v88, v90')
    A('v_add_f32 v102, v103, v102')
    A('v_mfma_f32_16x16x32_bf16 v[72:75], v[64:67], v[40:43], 0')
    A('v_mov_b32 v103, v102')
    A(f'v_add_f32_dpp v88, v88, v88 row_ror:8 row_mask:0xf bank_mask:0xf')
    A('v_mfma_f32_16x16x32_bf16 v[72:75], v[68:71], v[44:47], v[72:75]')
    A('v_permlane32_swap_b32 v103, v102')
    A(f'v_add_f32_dpp v88, v88, v88 row_ror:4 row_mask:0xf bank_mask:0xf')
    A('v_add_f32 v102, v103, v102')
    A.nop(2)
    A(f'v_add_f32_dpp v102, v102, v102 row_ror:8 row_mask:0xf bank_mask:0xf')
    A.nop(2)
    A(f'v_add_f32_dpp v102, v102, v102 row_ror:4 row_mask:0xf bank_mask:0xf')
    A.nop(1)
    A('v_rcp_f32 v102, v102')
    A.nop(1)
    A('v_mul_f32 v88, v88, v102')
    A('v_cvt_pk_bf16_f32 v88, v88, v88')
    A.nop(2)
    for i in range(4):
        for jj in range(4):
            A(f'v_and_b32_dpp v{112+4*i+jj}, v88, v{136+jj} quad_perm:[{i},{i},{i},{i}] row_mask:0xf bank_mask:0xf')
        if i:
            A(f'v_mfma_f32_16x16x32_bf16 v[72:75], {vr(112+4*(i-1))}, {vr(24+4*(i-1))}, v[72:75]')
    A.nop(1)
    A('v_mfma_f32_16x16x32_bf16 v[72:75], v[124:127], v[36:39], v[72:75]')
    A('s_mov_b32 exec_hi, 0')
    A.nop(7)
    A('ds_write_b128 v59, v[72:75]')
    A('s_mov_b64 exec, -1')
    A('s_waitcnt lgkmcnt(0)')
    A('s_barrier')
    P(13)
    A('s_cmp_lg_u32 s3, 0')
    A('s_cbranch_scc1 L_cmp_end')
    for w in range(4):
        A(f'ds_read_b128 {vr(88+4*w)}, v62 offset:{512*w}')
    A('s_waitcnt lgkmcnt(2)')
    for k in range(4):
        A(f'v_add_f32 v{88+k}, v{88+k}, v{92+k}')
    A('s_waitcnt lgkmcnt(0)')
    for k in range(4):
        A(f'v_add_f32 v{96+k}, v{96+k}, v{100+k}')
    for k in range(4):
        A(f'v_add_f32 v{88+k}, v{88+k}, v{96+k}')
    tag_insert(A, 88)
    A('s_mov_b32 exec_hi, 0')
    A(f'buffer_store_dwordx4 v[88:91], v60, {srd(SWS)}, 0 offen {cfg.fpub}')
    A('s_mov_b64 exec, -1')
    A.label('L_cmp_end')
    P(14)
    P.flush(); P.reset()
    A('s_branch L_done')
    A.label('L_comm')
    P.reset(prev=0, k=0)
    P(1)
    A(f's_load_dwordx2 s[{SOUT}:{SOUT+1}], s[0:1], 72')
    A(f's_mov_b32 s{SOUT+2}, 1024')
    A(f's_mov_b32 s{SOUT+3}, 0x20000')
    A(f's_lshl_b32 s{sT}, s{sRB}, 3')
    A(f's_add_u32 s{sT}, s{sT}, s4')
    A('v_lshrrev_b32 v2, 4, v1')
    A('v_and_b32 v3, 15, v1')
    common_consts(A)
    A(f'v_mov_b32 v4, {EOFF}')
    if cfg.exp_dirty:
        A('s_cmp_eq_u32 s3, 4')
        A('s_cbranch_scc0 L_nodirty')
        A('s_waitcnt lgkmcnt(0)')
        A(f's_mov_b32 s{SWS+2}, 0x2000000')
        A(f's_mul_i32 s11, s2, {cfg.exp_dirty*1024}')
        A('s_add_u32 s11, s11, 0x400000')
        A('v_lshlrev_b32 v20, 4, v1')
        for i in range(cfg.exp_dirty):
            A(f'buffer_store_dwordx4 v[16:19], v20, {srd(SWS)}, s11 offen')
            A('s_add_u32 s11, s11, 1024')
        A.label('L_nodirty')
    def pretouch():
        A('s_cmp_eq_u32 s3, 4')
        A('s_cbranch_scc0 L_nopre')
        A('s_waitcnt lgkmcnt(0)')
        A('s_lshl_b32 s11, s4, 5')
        A('s_add_u32 s11, s11, s5')
        A('s_lshl_b32 s12, s11, 11')
        A(f's_add_u32 s12, s12, {OIO}')
        A('v_lshl_add_u32 v10, v1, 7, s12')
        A('s_lshl_b32 s12, s11, 9')
        A(f's_add_u32 s12, s12, {GUO - 16*128}')
        A('v_lshl_add_u32 v11, v1, 7, s12')
        A('v_cmp_le_u32 vcc, 16, v1')
        A('s_lshl_b32 s12, s11, 8')
        A(f's_add_u32 s12, s12, {QA - 20*128}')
        A('v_cndmask_b32 v10, v10, v11, vcc')
        A('v_lshl_add_u32 v11, v1, 7, s12')
        A('v_cmp_le_u32 vcc, 20, v1')
        A('s_lshl_b32 s12, s4, 9')
        A('s_and_b32 s13, s5, 3')
        A('s_lshl_b32 s13, s13, 7')
        A('s_add_u32 s12, s12, s13')
        A(f's_add_u32 s12, s12, {IDA}')
        A('v_cndmask_b32 v10, v10, v11, vcc')
        A('v_mov_b32 v11, s12')
        A('v_cmp_le_u32 vcc, 22, v1')
        A('s_lshl_b32 s12, s4, 11')
        A('s_and_b32 s13, s5, 15')
        A('s_lshl_b32 s13, s13, 7')
        A('s_add_u32 s12, s12, s13')
        A(f's_add_u32 s12, s12, {MLO}')
        A('v_cndmask_b32 v10, v10, v11, vcc')
        A('v_mov_b32 v11, s12')
        A('v_cmp_le_u32 vcc, 23, v1')
        A.nop(2)
        A('v_cndmask_b32 v10, v10, v11, vcc')
        A('s_mov_b64 exec, 0xffffff')
        A(f'buffer_load_dword v12, v10, {srd(SWS)}, 0 offen {cfg.pre_fl}')
        A('s_mov_b64 exec, -1')
        A.label('L_nopre')
    if cfg.pretouch == 1:
        pretouch()
    if cfg.finpre == 1:
        A('s_cmp_eq_u32 s3, 5')
        A('s_cbranch_scc0 L_nofinpre')
        A('s_cmp_lt_u32 s2, 32')
        A('s_cbranch_scc0 L_nofinpre')
        A('s_waitcnt lgkmcnt(0)')
        A('s_lshl_b32 s11, s2, 14')
        A(f's_add_u32 s11, s11, {FIN}')
        A('v_lshl_add_u32 v10, v1, 7, s11')
        A('s_mov_b32 s12, 8192')
        A(f'buffer_load_dword v12, v10, {srd(SWS)}, 0 offen {cfg.finpre_fl}')
        A(f'buffer_load_dword v13, v10, {srd(SWS)}, s12 offen {cfg.finpre_fl}')
        A.label('L_nofinpre')
    elif cfg.finpre == 2:
        A('s_cmp_eq_u32 s3, 5')
        A('s_cbranch_scc0 L_nofinpre')
        A('s_waitcnt lgkmcnt(0)')
        A('s_lshl_b32 s11, s2, 11')
        A(f's_add_u32 s11, s11, {FIN}')
        A('v_lshl_add_u32 v10, v1, 7, s11')
        A('s_mov_b64 exec, 0xffff')
        A(f'buffer_load_dword v12, v10, {srd(SWS)}, 0 offen {cfg.finpre_fl}')
        A('s_mov_b64 exec, -1')
        A.label('L_nofinpre')
    A('s_lshl_b32 s11, s4, 13')
    A('s_sub_u32 s12, s3, 4')
    A('s_lshl_b32 s12, s12, 10')
    A('s_add_u32 s11, s11, s12')
    A(f's_add_u32 s11, s11, {QA}')
    A('v_lshlrev_b32 v6, 4, v1')
    A('v_add_u32 v6, s11, v6')
    A('s_lshl_b32 s11, s4, 9')
    A(f's_add_u32 s11, s11, {IDA}')
    A('v_and_b32 v7, 31, v1')
    A('v_lshl_add_u32 v7, v7, 4, s11')
    A('s_sub_u32 s12, s3, 4')
    A('s_lshl_b32 s12, s12, 1')
    A('v_lshrrev_b32 v8, 5, v1')
    A('v_add_u32 v8, s12, v8')
    A('v_mul_u32_u24 v8, 272, v8')
    A('v_and_b32 v9, 31, v1')
    A('v_lshl_add_u32 v8, v9, 3, v8')
    A(f'v_add_u32 v8, {L_QB}, v8')
    P(3)
    A('s_barrier')
    P(4)
    if cfg.b1a:
        A('s_barrier')
    A('s_waitcnt lgkmcnt(0)')
    A(f'buffer_load_dword v5, v4, {srd(SWS)}, 0 offen {cfg.xnt}')
    A(f's_mov_b32 s{sIT}, 0')
    A('s_mov_b32 s14, 0')
    if cfg.b1b:
        A('s_barrier')
    P(5)
    def q_issue():
        A('s_add_u32 s15, s14, 4096')
        A(f'buffer_load_dwordx4 v[16:19], v6, {srd(SWS)}, s14 offen {cfg.gat}')
        A(f'buffer_load_dwordx4 v[20:23], v6, {srd(SWS)}, s14 offen offset:2048 {cfg.gat}')
        A(f'buffer_load_dwordx4 v[24:27], v6, {srd(SWS)}, s15 offen {cfg.gat}')
        A(f'buffer_load_dwordx4 v[28:31], v6, {srd(SWS)}, s15 offen offset:2048 {cfg.gat}')
        A(f'buffer_load_dwordx4 v[32:35], v7, {srd(SWS)}, s14 offen {cfg.gat}')
    def q_check():
        for q in range(5):
            tag_check(A, 16+4*q, 36, 37, q == 0)
    if cfg.b1c:
        q_issue()
        A('s_waitcnt vmcnt(0)')
        A('v_add_u32 v9, 0x01010101, v5')
        A.nop(1)
        A('v_readfirstlane_b32 s6, v9')
        q_check()
        A('s_cmp_eq_u64 s[88:89], 0')
        A('s_cbranch_scc1 L_qfirst_ok')
        q_issue()
        A('s_barrier')
        A(f's_mov_b32 s{sIT}, 1')
        A('s_branch L_qwait')
        A.label('L_qfirst_ok')
        A('s_barrier')
        A('s_branch L_qok')
        A.label('L_qgat')
        q_issue()
        A.label('L_qwait')
        A('s_waitcnt vmcnt(0)')
        q_check()
        poll_tail(A, cfg, 'L_qgat', 'L_qok', switch=14)
    else:
        A.label('L_qgat')
        q_issue()
        A('s_waitcnt vmcnt(0)')
        A('v_add_u32 v9, 0x01010101, v5')
        A.nop(1)
        A('v_readfirstlane_b32 s6, v9')
        q_check()
        poll_tail(A, cfg, 'L_qgat', 'L_qok', switch=14)
    A.label('L_qok')
    if cfg.prof in (True, 'heavy'):
        A(f'v_writelane_b32 v{vPROF}, s{sIT}, 20')
    P(6)
    mask_vals(A, 16, 16)
    for k in range(4):
        A(f'v_add_f32 v{16+k}, v{16+k}, v{20+k}')
        A(f'v_add_f32 v{24+k}, v{24+k}, v{28+k}')
    for k in range(4):
        A(f'v_add_f32 v{16+k}, v{16+k}, v{24+k}')
    A('v_cvt_pk_bf16_f32 v16, v16, v17')
    A('v_cvt_pk_bf16_f32 v17, v18, v19')
    A('ds_write_b64 v8, v[16:17]')
    if cfg.pretouch == 2:
        pretouch()
    A('s_getreg_b32 s13, hwreg(HW_REG_XCC_ID, 0, 4)')
    A('v_bfe_u32 v32, v32, 8, 8')
    A('v_cmp_ne_u32 vcc, s13, v32')
    A('s_cmp_eq_u64 vcc, 0')
    A('s_cselect_b32 s13, 1, 0')
    if cfg.forceslow:
        A('s_mov_b32 s13, 0')
    A('s_mov_b32 s24, s13')
    A('v_mov_b32 v33, s13')
    A(f'v_mov_b32 v34, {L_MODE}')
    A('s_cmp_eq_u32 s3, 5')
    A('s_cbranch_scc0 L_nomode')
    A('ds_write_b32 v34, v33')
    A.label('L_nomode')
    A('s_waitcnt lgkmcnt(0)')
    A('s_barrier')
    P(7)
    P.flush(); P.reset()
    A('s_lshl_b32 s11, s2, 12')
    A(f's_add_u32 s11, s11, {FIN}')
    A('v_lshl_add_u32 v60, v1, 4, s11')
    A('v_and_b32 v61, 1, v2')
    A('v_lshrrev_b32 v62, 1, v2')
    A('v_lshl_or_b32 v61, v61, 1, v62')
    A('v_and_b32 v62, 3, v1')
    A('v_lshl_add_u32 v61, v62, 2, v61')
    A('s_and_b32 s11, s2, 31')
    A('s_lshl_b32 s11, s11, 4')
    A('v_add_u32 v61, s11, v61')
    A('v_lshlrev_b32 v61, 1, v61')
    if cfg.poll2:
        A(f'v_mov_b32 v63, {L_FLAG}')
        A('v_mov_b32 v59, 0')
    A('s_cmp_eq_u32 s3, 5')
    A('s_cbranch_scc1 L_comm5')
    A(f'buffer_load_ushort v62, v61, {srd(SX)}, 0 offen')
    if cfg.poll2:
        A('ds_write_b32 v63, v59')
        A('s_waitcnt lgkmcnt(0)')
    if cfg.finpre2:
        A('s_cmp_ge_u32 s2, 32')
        A('s_cbranch_scc1 L_nofp2')
        A('s_lshl_b32 s11, s2, 12')
        A(f's_add_u32 s11, s11, {FIN}')
        A('v_lshl_add_u32 v10, v1, 7, s11')
        A('s_mov_b32 exec_hi, 0')
        A(f'buffer_load_dword v11, v10, {srd(SWS)}, 0 offen {cfg.finpre_fl}')
        A('s_mov_b64 exec, -1')
        A.label('L_nofp2')
    A('s_barrier')
    A('s_barrier')
    A('s_barrier')
    P(13)
    P.flush(); P.reset()
    A.label('L_final')
    A('s_cmp_ge_u32 s2, 32')
    A('s_cbranch_scc1 L_done')
    A(f's_mov_b32 s{sIT}, 0')
    A.label('L_fgat')
    for q in range(4):
        A(f'buffer_load_dwordx4 {vr(16+4*q)}, v60, {srd(SWS)}, 0 offen offset:{1024*q} {cfg.fgat}')
    A('s_waitcnt vmcnt(0)')
    if cfg.poll2:
        A('ds_read_b32 v38, v63')
    for q in range(4):
        tag_check(A, 16+4*q, 36, 37, q == 0)
    if cfg.poll2:
        A('s_waitcnt lgkmcnt(0)')
        A('v_readfirstlane_b32 s11, v38')
        A('s_cmp_lg_u32 s11, 0')
        A('s_cbranch_scc1 L_done')
    poll_tail(A, cfg, 'L_fgat', 'L_fok')
    A.label('L_fok')
    if cfg.poll2:
        A('v_mov_b32 v59, 1')
        A('ds_write_b32 v63, v59')
    if cfg.prof in (True, 'heavy'):
        A(f'v_writelane_b32 v{vPROF}, s{sIT}, 22')
    P(14)
    P.flush(); P.reset()
    if cfg.domask is True:
        mask_vals(A, 16, 16)
    for k in range(4):
        A(f'v_add_f32 v{16+k}, v{16+k}, v{20+k}')
        A(f'v_add_f32 v{24+k}, v{24+k}, v{28+k}')
    for k in range(4):
        A(f'v_add_f32 v{16+k}, v{16+k}, v{24+k}')
    transpose_reduce4(A, 16)
    A('v_lshlrev_b32 v62, 16, v62')
    A.nop(1)
    A('v_add_f32_dpp v16, v16, v16 row_ror:8 row_mask:0xf bank_mask:0xf')
    A.nop(2)
    A('v_add_f32_dpp v16, v16, v16 row_ror:4 row_mask:0xf bank_mask:0xf')
    A('v_add_f32 v16, v16, v62')
    A('v_cvt_pk_bf16_f32 v16, v16, v16')
    if cfg.calib:
        A('s_cmp_lg_u32 s2, 0')
        A('s_cbranch_scc1 L_nocal')
        A(f's_add_u32 s36, s36, {cfg.calib}')
        A.label('L_cal')
        A('s_memrealtime s[38:39]')
        A('s_waitcnt lgkmcnt(0)')
        A('s_sub_u32 s37, s38, s36')
        A('s_cmp_lt_i32 s37, 0')
        A('s_cbranch_scc1 L_cal')
        A.label('L_nocal')
    A('s_mov_b32 exec_lo, 0x000f000f')
    A('s_mov_b32 exec_hi, 0x000f000f')
    A(f'buffer_store_short v16, v61, {srd(SOUT)}, 0 offen')
    A('s_cmp_lg_u32 s2, 0')
    A('s_cbranch_scc1 L_noepoch')
    A('s_mov_b64 exec, 1')
    A(f'v_mov_b32 v17, {EOFF}')
    A(f'v_mov_b32 v18, s{sTAG}')
    A(f'buffer_store_dword v18, v17, {srd(SWS)}, 0 offen')
    A.label('L_noepoch')
    A('s_mov_b64 exec, -1')
    A('s_branch L_done')
    A.label('L_comm5')
    P.reset()
    A(f'v_mov_b32 v{vTAG}, s6')
    A('v_lshlrev_b32 v6, 4, v3')
    A('v_and_b32 v7, 1, v2')
    A('v_lshl_add_u32 v7, v7, 11, v6')
    A(f'v_add_u32 v7, {L_PART + 2048}, v7')
    for k in range(8):
        A(f'ds_read_b128 {vr(16+4*k)}, v7 offset:{256*k}')
    A('s_lshl_b32 s12, s4, 2')
    A(f's_add_u32 s12, s12, s{sRB}')
    A('s_lshl_b32 s12, s12, 3')
    A(f's_add_u32 s12, s12, s{sCB}')
    A('s_lshl_b32 s12, s12, 9')
    A(f's_add_u32 s12, s12, {GUO}')
    A('v_and_b32 v7, 1, v2')
    A('v_lshl_add_u32 v6, v7, 8, v6')
    A('v_add_u32 v6, s12, v6')
    A('s_waitcnt lgkmcnt(0)')
    for k in range(4):
        A(f'v_add_f32 v{16+k}, v{16+k}, v{20+k}')
        A(f'v_add_f32 v{24+k}, v{24+k}, v{28+k}')
        A(f'v_add_f32 v{32+k}, v{32+k}, v{36+k}')
        A(f'v_add_f32 v{40+k}, v{40+k}, v{44+k}')
    for k in range(4):
        A(f'v_add_f32 v{16+k}, v{16+k}, v{24+k}')
        A(f'v_add_f32 v{32+k}, v{32+k}, v{40+k}')
    for k in range(4):
        A(f'v_add_f32 v{16+k}, v{16+k}, v{32+k}')
    tag_insert(A, 16)
    A('s_mov_b32 exec_hi, 0')
    A('s_cmp_eq_u32 s24, 1')
    A('s_cbranch_scc0 L_gupub_slow')
    A(f'buffer_store_dwordx4 v[16:19], v6, {srd(SWS)}, 0 offen')
    A('s_branch L_gupub_done')
    A.label('L_gupub_slow')
    A(f'buffer_store_dwordx4 v[16:19], v6, {srd(SWS)}, 0 offen sc1')
    A.label('L_gupub_done')
    A('s_mov_b64 exec, -1')
    A('v_and_b32 v8, 3, v1')
    A('v_lshlrev_b32 v9, 4, v8')
    A(f'v_add_u32 v9, {L_MW}, v9')
    A('s_lshl_b32 s11, s4, 11')
    A('s_lshl_b32 s12, s5, 4')
    A('s_add_u32 s11, s11, s12')
    A(f's_add_u32 s11, s11, {MLO}')
    A('v_lshl_add_u32 v8, v8, 9, s11')
    A('s_barrier')
    A('s_barrier')
    A('ds_read_b128 v[20:23], v9')
    A(f'ds_read_b128 v[24:27], v9 offset:{L_LW - L_MW}')
    A('s_waitcnt lgkmcnt(0)')
    A('v_max3_f32 v20, v20, v21, v22')
    A('v_add_f32 v24, v24, v25')
    A('v_add_f32 v26, v26, v27')
    A('v_max_f32 v20, v20, v23')
    A('v_add_f32 v21, v24, v26')
    tag_insert(A, 20)
    A('s_mov_b64 exec, 15')
    A('s_cmp_eq_u32 s24, 1')
    A('s_cbranch_scc0 L_mlpub_slow')
    A(f'buffer_store_dwordx4 v[20:23], v8, {srd(SWS)}, 0 offen')
    A('s_branch L_mlpub_done')
    A.label('L_mlpub_slow')
    A(f'buffer_store_dwordx4 v[20:23], v8, {srd(SWS)}, 0 offen sc1')
    A.label('L_mlpub_done')
    A('s_mov_b64 exec, -1')
    A('s_barrier')
    if cfg.poll2:
        A(f'buffer_load_ushort v62, v61, {srd(SX)}, 0 offen')
        A('s_waitcnt vmcnt(0)')
        A('s_branch L_final')
    A.label('L_done')
    if cfg.exp_hwid:
        A('s_getreg_b32 s11, hwreg(HW_REG_HW_ID)')
        A(f'v_writelane_b32 v{vPROF}, s11, 31')
    if cfg.prof == 'lite':
        A('s_memrealtime s[30:31]')
        A('s_waitcnt lgkmcnt(0)')
        A(f'v_writelane_b32 v{vPROF}, s28, 0')
        A(f'v_writelane_b32 v{vPROF}, s30, 15')
    elif cfg.prof:
        P(15)
        P.flush()
    if cfg.prof:
        A('s_mul_i32 s11, s2, 6')
        A('s_add_u32 s11, s11, s3')
        A('s_lshl_b32 s11, s11, 7')
        A(f's_add_u32 s11, s11, {PROF}')
        A('v_lshl_add_u32 v86, v1, 2, s11')
        A('s_mov_b32 exec_hi, 0')
        A(f'buffer_store_dword v{vPROF}, v86, {srd(SWS)}, 0 offen')
        A('s_mov_b64 exec, -1')
    A.label('L_end')
    A('s_endpgm')
    A('.section .rodata,"a"')
    A('.p2align 6')
    A(f'.amdhsa_kernel {NAME}')
    A(f'  .amdhsa_next_free_vgpr {cfg.nvgpr}')
    A('  .amdhsa_next_free_sgpr 102')
    A(f'  .amdhsa_accum_offset {min(cfg.nvgpr, 256)}')
    A('  .amdhsa_group_segment_fixed_size 0')
    A('  .amdhsa_kernarg_size 96')
    A('  .amdhsa_user_sgpr_count 2')
    A('  .amdhsa_user_sgpr_kernarg_segment_ptr 1')
    A('  .amdhsa_system_sgpr_workgroup_id_x 1')
    A('  .amdhsa_float_denorm_mode_32 3')
    A('.end_amdhsa_kernel')
    return A.text()

HEADER = open('parallel_sum__sliding_block_cached__glu_gated_bilinear__decode.s.ref').read().split('; Override launch')[0]

def full(cfg):
    body = gen(cfg)
    probs = check(body)
    for p in probs:
        if 'wide store WAR' in p and 'v_lshlrev_b32 v86, 4, v3' in p:
            continue
        print('HAZARD', p)
    return HEADER + f'; @launch grid=(256,1,1) block=(384,1,1) lds={cfg.ldsbytes}\n' + body

if __name__ == '__main__':
    cfg = Cfg()
    for a in sys.argv[2:]:
        k, v = a.split('=')
        old = getattr(cfg, k, None)
        setattr(cfg, k, v if ((isinstance(old, str) or v in ('lite', 'heavy')) and v not in ('False', 'True')) else eval(v))
    open(sys.argv[1], 'w').write(full(cfg))
```

```python
import sys
from asmlib import Asm, check

NAME = 'parallel_sum__sliding_block_cached__glu_gated_bilinear__decode_kernel'

EOFF  = 0
QA    = 0x1000
IDA   = 0x11000
BDELTA = 0x11000
GUO   = 0x23000
MLO   = 0x43000
OIO   = 0x48000
FIN   = 0xC8000
PROF  = 0x180000
WS_BYTES = 0x200000

L_K = 0
L_V = 32768
L_XN = 65536
L_PART = 66560
L_QB = 72704
L_HB = 73792
L_MODE = 73808
L_MW = 73824
L_LW = 73888
L_PB = L_PART
L_RED = L_PART + 4096
L_FLAG = 73812
LDS_BYTES = 73984

sW, sG, sS, sTAG = 3, 4, 5, 6
SX, SK, SV, SWQ, SWO, SGA, SUP, SDN, SOUT, SWS = 40, 44, 48, 52, 56, 60, 64, 68, 72, 76
M0, M1, M2, M3 = 80, 82, 84, 86
sX0, sX1 = 90, 91
sIT = 92
sLOG2E, sSCALE = 93, 94
sMSK = 95
sP01, sP23 = 96, 97
sI0, sI1, sI2, sI3 = 98, 99, 100, 101
sRB, sT, sCB = 7, 8, 10
vTAG, vSH = 167, 166
vPROF = 165
def srd(n): return f's[{n}:{n+3}]'
def vr(n, k=4): return f'v[{n}:{n+k-1}]'

class Cfg:
    nt = 'nt'
    gat = 'sc1'
    nk1 = 8
    domask = 'm'
    elate = True
    poll2 = False
    finpre2 = True
    fpub = 'sc1'
    fgat = 'sc1'
    worot = True
    kearly = False
    owait = 3
    oline = False
    tpos = (2, 2, 2, 2, 2, 2)
    calib = 0
    ldsbytes = LDS_BYTES
    nvgpr = 168
    b1a = True
    win = None
    win2 = None
    exp_dirty = 0
    b1c = False
    nv2 = 4
    kwait = 3
    exp_cb = 0
    exp_hwid = False
    swap = True
    wo_early = -1
    b0 = 0
    prio = 3
    align = 12
    xnt = ''
    finpre = 0
    finpre_fl = ''
    codepf_n = 4
    nv1 = 3
    b1b = True
    b3b = True
    maxit = 200000
    swit = 24
    prof = False
    dbgprof = None
    pretouch = 0
    pre_fl = 'nt'
    codepf = 's'
    forceslow = False
    forceb = False

ROW_FULL = ['quad_perm:[1,0,3,2]', 'quad_perm:[2,3,0,1]', 'row_half_mirror', 'row_mirror']

def rowred(A, regs, op, steps):
    for st in steps:
        A.nop(2 if len(regs) < 3 else max(0, 2 - (len(regs) - 1)))
        for v in regs:
            A(f'{op}_dpp v{v}, v{v}, v{v} {st} row_mask:0xf bank_mask:0xf')
        if len(regs) >= 3:
            pass

def cross_rows(A, v, tmp, op):
    A(f'v_mov_b32 v{tmp}, v{v}')
    A.nop(2)
    A(f'v_permlane16_swap_b32 v{tmp}, v{v}')
    A.nop(1)
    A(f'{op} v{v}, v{tmp}, v{v}')
    A(f'v_mov_b32 v{tmp}, v{v}')
    A.nop(2)
    A(f'v_permlane32_swap_b32 v{tmp}, v{v}')
    A.nop(1)
    A(f'{op} v{v}, v{tmp}, v{v}')

def wave_allreduce(A, v, tmp, op):
    rowred(A, [v], op, ROW_FULL)
    cross_rows(A, v, tmp, op)

def transpose_reduce4(A, v):
    A.nop(1)
    A(f'v_permlane32_swap_b32 v{v}, v{v+1}')
    A(f'v_permlane32_swap_b32 v{v+2}, v{v+3}')
    A.nop(1)
    A(f'v_add_f32 v{v}, v{v}, v{v+1}')
    A(f'v_add_f32 v{v+2}, v{v+2}, v{v+3}')
    A.nop(2)
    A(f'v_permlane16_swap_b32 v{v}, v{v+2}')
    A.nop(1)
    A(f'v_add_f32 v{v}, v{v}, v{v+2}')

def tag_insert(A, v):
    for k, s in enumerate((sI0, sI1, sI2, sI3)):
        A(f'v_perm_b32 v{v+k}, v{v+k}, v{vTAG}, s{s}')

def tag_check(A, v, t0, t1, first):
    A(f'v_perm_b32 v{t0}, v{v+1}, v{v}, s{sP01}')
    A(f'v_perm_b32 v{t1}, v{v+3}, v{v+2}, s{sP23}')
    A(f'v_or_b32 v{t0}, v{t0}, v{t1}')
    if first:
        A(f'v_cmp_ne_u32 s[88:89], s{sTAG}, v{t0}')
    else:
        A(f'v_cmp_ne_u32 s[90:91], s{sTAG}, v{t0}')
        A('s_or_b64 s[88:89], s[88:89], s[90:91]')

def mask_vals(A, v, n=4):
    for k in range(n):
        A(f'v_and_b32 v{v+k}, s{sMSK}, v{v+k}')

def build_sel(A, dst, val, tmp):
    A(f'v_lshlrev_b32 v{tmp}, v{vSH}, v{val}')
    for j, m in enumerate((M0, M1, M2, M3)):
        A(f'v_cndmask_b32_e64 v{dst+j}, 0, v{tmp}, s[{m}:{m+1}]')

class Prof:
    def __init__(self, A, cfg):
        self.A, self.on, self.prev, self.k = A, cfg.prof, None, 0
        self.lite = cfg.prof == 'lite'
    def reset(self, prev=None, k=0):
        if self.lite:
            self.prev = None
            return
        self.prev, self.k = prev, k
    def __call__(self, idx):
        if not self.on: return
        if self.on == 'lite' and idx not in (0, 15): return
        if idx >= 23 and self.on != 'heavy': return
        A = self.A
        if self.on == 'heavy' and self.prev is not None:
            A('s_waitcnt lgkmcnt(0)')
        if self.prev is not None:
            A(f'v_writelane_b32 v{vPROF}, s{28 + 2*self.k}, {self.prev}')
            self.k ^= 1
        A(f's_memrealtime s[{28+2*self.k}:{29+2*self.k}]')
        self.prev = None if self.lite else idx
    def flush(self):
        if not self.on: return
        if self.prev is None: return
        A = self.A
        A('s_waitcnt lgkmcnt(0)')
        A(f'v_writelane_b32 v{vPROF}, s{28 + 2*self.k}, {self.prev}')

def common_consts(A):
    A(f's_mov_b32 s{sLOG2E}, 0x3fb8aa3b')
    A(f's_mov_b32 s{sSCALE}, 0x3db504f3')
    A(f's_mov_b32 s{sMSK}, 0xffffff00')
    A(f's_mov_b32 s{sP01}, 0x0c0c0400')
    A(f's_mov_b32 s{sP23}, 0x04000c0c')
    A(f's_mov_b32 s{sI0}, 0x07060500')
    A(f's_mov_b32 s{sI1}, 0x07060501')
    A(f's_mov_b32 s{sI2}, 0x07060502')
    A(f's_mov_b32 s{sI3}, 0x07060503')

def poll_tail(A, cfg, label, oklabel, switch=None):
    A('s_cmp_eq_u64 s[88:89], 0')
    A(f's_cbranch_scc1 {oklabel}')
    A(f's_add_u32 s{sIT}, s{sIT}, 1')
    if switch:
        A(f's_cmp_eq_u32 s{sIT}, {cfg.swit}')
        A(f's_cselect_b32 s{switch}, {BDELTA}, s{switch}')
    A(f's_cmp_le_u32 s{sIT}, {cfg.maxit}')
    A(f's_cbranch_scc1 {label}')

def gen(cfg):
    A = Asm()
    P = Prof(A, cfg)
    nt = cfg.nt
    A('.amdgcn_target "amdgcn-amd-amdhsa--gfx950"')
    A('.text')
    A(f'.globl {NAME}')
    A(f'.p2align {cfg.align}')
    A(f'.type {NAME},@function')
    A.label(NAME)
    A('s_cmp_ge_u32 s2, 256')
    A('s_cbranch_scc1 L_end')
    P(0)
    if cfg.calib:
        A('s_memrealtime s[36:37]')
    for sr, off in ((SWQ, 24), (SX, 0), (SWS, 88), (SK, 8)):
        A(f's_load_dwordx2 s[{sr}:{sr+1}], s[0:1], {off}')
    A('v_lshrrev_b32 v2, 6, v0')
    A('v_and_b32 v1, 63, v0')
    A('s_and_b32 s4, s2, 7')
    A('v_readfirstlane_b32 s3, v2')
    A('s_lshr_b32 s5, s2, 3')
    A(f's_lshr_b32 s{sRB}, s5, 3')
    A(f's_and_b32 s{sCB}, s5, 7')
    for sr, n in ((SWQ, 4194304), (SX, 1024), (SWS, WS_BYTES), (SK, 134217728)):
        A(f's_mov_b32 s{sr+2}, {n}')
        A(f's_mov_b32 s{sr+3}, ' + ('0x20000' if sr == SWQ else f's{SWQ+3}'))
    common_consts(A)
    A('s_cmp_ge_u32 s3, 4')
    A('s_cbranch_scc1 L_comm0')
    def kcalc():
        A('v_lshrrev_b32 v2, 4, v1')
        A('v_and_b32 v3, 15, v1')
        A('v_xor_b32 v5, v2, v3')
        A('v_lshlrev_b32 v5, 4, v5')
        A('v_lshl_add_u32 v156, v2, 8, v5')
        for i in range(1, 4):
            A(f'v_xor_b32 v{156+i}, {64*i}, v156')
        A('s_lshl_b32 s19, s4, 24')
        A('s_lshl_b32 s11, s5, 15')
        A('s_add_u32 s19, s19, s11')
        A('s_lshl_b32 s20, s3, 13')
        A('s_add_u32 s19, s19, s20')
        A('s_add_u32 s19, s19, 15728640')
        A('s_and_b32 s25, s4, 1')
        A('s_lshl_b32 s25, s25, 12')
        A('s_xor_b32 s26, s25, 4096')
        A('s_add_u32 s27, s19, s26')
        A('s_add_u32 s19, s19, s25')
        A('s_add_u32 s25, s25, s20')
        A('s_add_u32 s26, s26, s20')
        A('s_mov_b32 m0, s25')
    A(f's_lshl_b32 s12, s{sRB}, 20')
    A('s_lshl_b32 s11, s3, 18')
    A('s_add_u32 s12, s12, s11')
    A('s_lshl_b32 s11, s4, 10')
    A('s_add_u32 s12, s12, s11')
    A(f's_lshl_b32 s11, s{sCB}, 7')
    A('s_add_u32 s12, s12, s11')
    A('v_lshlrev_b32 v163, 4, v1')
    A('v_lshrrev_b32 v164, 3, v1')
    A('v_and_b32 v4, 0x70, v163')
    A('v_lshl_add_u32 v6, v164, 13, v4')
    A(f'v_mov_b32 v7, {EOFF}')
    A('s_add_u32 s13, s12, 65536')
    A('s_add_u32 s14, s12, 131072')
    A('s_add_u32 s15, s12, 196608')
    if cfg.kearly:
        kcalc()
    A('s_waitcnt lgkmcnt(0)')
    P(27)
    A(f'buffer_load_dwordx4 v[8:11], v163, {srd(SX)}, 0 offen {cfg.xnt}')
    if not cfg.elate:
        A(f'buffer_load_dword v{vTAG}, v7, {srd(SWS)}, 0 offen {cfg.xnt}')
    for i in range(4):
        A(f'buffer_load_dwordx4 {vr(12+4*i)}, v6, {srd(SWQ)}, s{12+i} offen {nt}')
    if cfg.elate:
        A(f'buffer_load_dword v{vTAG}, v7, {srd(SWS)}, 0 offen {cfg.xnt}')
    for sr, off in ((SV, 16), (SGA, 48), (SUP, 56), (SWO, 32), (SDN, 64)):
        A(f's_load_dwordx2 s[{sr}:{sr+1}], s[0:1], {off}')
    if not cfg.kearly:
        kcalc()
        A.nop(1)
    def kloads(lo, hi):
        for i in range(lo, hi):
            if i == 4:
                A('s_mov_b32 m0, s26')
                A.nop(1)
            A(f'buffer_load_dwordx4 v{156+(i&3)}, {srd(SK)}, s{19 if i < 4 else 27} offen offset:{1024*(i&3)} {nt} lds')
    kloads(0, cfg.nk1)
    A('v_mul_u32_u24 v162, 3584, v164')
    A('v_add_u32 v161, v162, v4')
    A(f's_lshl_b32 s{sT}, s{sRB}, 3')
    A(f's_add_u32 s{sT}, s{sT}, s4')
    A(f's_cmp_lt_u32 s{sT}, 28')
    A('s_cselect_b32 s9, 1835008, 0')
    for sr, n in ((SV, f's{SK+2}'), (SWO, f's{SWQ+2}')):
        A(f's_mov_b32 s{sr+2}, {n}')
        A(f's_mov_b32 s{sr+3}, s{SWQ+3}')
    for sr in (SGA, SUP, SDN):
        A(f's_mov_b32 s{sr+2}, s9')
        A(f's_mov_b32 s{sr+3}, s{SWQ+3}')
    A('s_branch L_cmp_go')
    A.label('L_comm0')
    if cfg.codepf:
        A('s_cmp_eq_u32 s3, 5')
        A('s_cbranch_scc0 L_nocodepf')
        A('s_getpc_b64 s[12:13]')
        A.label('L_pc')
        A(f's_sub_u32 s12, s12, L_pc-{NAME}')
        A('s_subb_u32 s13, s13, 0')
        A('s_lshl_b32 s14, s5, 6')
        A('s_add_u32 s12, s12, s14')
        A('s_addc_u32 s13, s13, 0')
        for i in range(cfg.codepf_n - 1):
            A(f's_load_dword s{32+(i&3)}, s[12:13], {2048*i}')
        A(f's_add_u32 s15, s14, {2048*(cfg.codepf_n-1)}')
        A(f's_min_u32 s15, s15, L_end-{NAME}')
        A('s_sub_u32 s15, s15, s14')
        A('s_load_dword s35, s[12:13], s15')
        A.label('L_nocodepf')
    if cfg.prio:
        A(f's_setprio {cfg.prio}')
    A('s_branch L_comm')
    A.label('L_cmp_go')
    for m, lo in ((M0, 0x03030303), (M1, 0x0c0c0c0c), (M2, 0x30303030), (M3, 0xc0c0c0c0)):
        A(f's_mov_b32 s{m}, {hex(lo)}')
        A(f's_mov_b32 s{m+1}, s{m}')
    A(f'v_and_b32 v{vSH}, 1, v1')
    A(f'v_lshlrev_b32 v{vSH}, 4, v{vSH}')
    A(f's_lshl_b32 s17, s{sCB}, 6')
    A('s_lshl_b32 s11, s3, 4')
    A('s_add_u32 s17, s17, s11')
    A('s_mul_i32 s17, s17, 3584')
    A(f's_lshl_b32 s11, s{sT}, 7')
    A('s_add_u32 s17, s17, s11')
    A('s_lshl_b32 s21, s4, 19')
    A('s_lshr_b32 s11, s5, 2')
    A('s_lshl_b32 s12, s11, 16')
    A('s_add_u32 s21, s21, s12')
    A('s_lshl_b32 s12, s3, 14')
    A('s_add_u32 s21, s21, s12')
    A('s_and_b32 s23, s5, 3')
    A('s_lshl_b32 s23, s23, 8')
    A('s_add_u32 s21, s21, s23')
    A(f's_lshl_b32 s22, s{sT}, 16')
    A('s_and_b32 s11, s11, 1')
    A('s_lshl_b32 s11, s11, 15')
    A('s_add_u32 s22, s22, s11')
    A('s_lshl_b32 s12, s3, 13')
    A('s_add_u32 s22, s22, s12')
    A('s_add_u32 s22, s22, s23')
    A('v_lshlrev_b32 v162, 4, v3')
    A('v_lshl_add_u32 v162, v2, 10, v162')
    P(1)
    A.c('layernorm')
    A(f's_waitcnt vmcnt({4 + cfg.nk1 + (1 if cfg.elate else 0)})')
    P(2)
    for k in range(4):
        A(f'v_lshlrev_b32 v{80+2*k}, 16, v{8+k}')
        A(f'v_and_b32 v{81+2*k}, 0xffff0000, v{8+k}')
    A('v_add_f32 v88, v80, v81')
    A('v_add_f32 v89, v82, v83')
    A('v_add_f32 v90, v84, v85')
    A('v_add_f32 v91, v86, v87')
    A('v_add_f32 v88, v88, v89')
    A('v_add_f32 v90, v90, v91')
    A('v_add_f32 v88, v88, v90')
    wave_allreduce(A, 88, 89, 'v_add_f32')
    A('v_mul_f32 v88, 0x3b000000, v88')
    for k in range(8):
        A(f'v_sub_f32 v{92+k}, v{80+k}, v88')
    A('v_mul_f32 v90, v92, v92')
    for k in range(1, 8):
        A(f'v_fmac_f32 v90, v{92+k}, v{92+k}')
    wave_allreduce(A, 90, 89, 'v_add_f32')
    P(23)
    A('v_mul_f32 v90, 0x3b000000, v90')
    A('v_cvt_pk_bf16_f32 v88, v88, v90')
    A('v_and_b32 v90, 0xffff0000, v88')
    A('v_lshlrev_b32 v88, 16, v88')
    A('v_add_f32 v90, 0x3727c5ac, v90')
    A('v_cvt_pk_bf16_f32 v90, v90, v90')
    A('v_lshlrev_b32 v90, 16, v90')
    A('v_sqrt_f32 v90, v90')
    for k in range(8):
        A(f'v_sub_f32 v{92+k}, v{80+k}, v88')
    A('v_cvt_pk_bf16_f32 v90, v90, v90')
    A('v_lshlrev_b32 v90, 16, v90')
    A('v_rcp_f32 v90, v90')
    for k in range(4):
        A(f'v_cvt_pk_bf16_f32 v{100+k}, v{92+2*k}, v{93+2*k}')
    for k in range(4):
        A(f'v_lshlrev_b32 v{92+2*k}, 16, v{100+k}')
        A(f'v_and_b32 v{93+2*k}, 0xffff0000, v{100+k}')
    for k in range(8):
        A(f'v_mul_f32 v{92+k}, v{92+k}, v90')
    for k in range(4):
        A(f'v_cvt_pk_bf16_f32 v{100+k}, v{92+2*k}, v{93+2*k}')
    A(f'v_add_u32 v104, {L_XN}, v163')
    A('ds_write_b128 v104, v[100:103]')
    P(24)
    A('v_lshrrev_b32 v105, 3, v3')
    A('v_lshl_add_u32 v105, v2, 1, v105')
    A(f's_lshl_b32 s11, s{sRB}, 7')
    A('s_lshl_b32 s12, s3, 5')
    A('s_add_u32 s11, s11, s12')
    A('s_lshl_b32 s11, s11, 1')
    A(f's_add_u32 s11, s11, {L_XN}')
    A('v_lshl_add_u32 v106, v105, 1, s11')
    A(f's_lshl_b32 s11, s{sCB}, 6')
    A('s_lshl_b32 s12, s3, 4')
    A('s_add_u32 s11, s11, s12')
    A('s_lshl_b32 s11, s11, 1')
    A(f's_add_u32 s11, s11, {L_XN}')
    A('v_lshl_add_u32 v107, v105, 1, s11')
    A('s_waitcnt lgkmcnt(0)')
    for i in range(4):
        A(f'ds_read_u16 v{80+i}, v106 offset:{16*i}')
    for i in range(2):
        A(f'ds_read_u16 v{84+i}, v107 offset:{16*i}')
    if not cfg.elate:
        A(f'v_add_u32 v{vTAG}, 0x01010101, v{vTAG}')
    P(25)
    kloads(cfg.nk1, 8)
    P(26)
    if not cfg.elate:
        A.nop(1)
        A(f'v_readfirstlane_b32 s6, v{vTAG}')
    A('s_waitcnt lgkmcnt(0)')
    for i in range(4):
        build_sel(A, 48+4*i, 80+i, 86)
    for i in range(2):
        build_sel(A, 64+4*i, 84+i, 86)
    A('v_lshlrev_b32 v86, 1, v2')
    A('v_xor_b32 v86, v86, v3')
    A('v_lshlrev_b32 v86, 4, v86')
    A('v_lshl_add_u32 v160, v2, 8, v86')
    A('v_xor_b32 v164, 128, v160')
    A('v_lshrrev_b32 v87, 5, v1')
    A('v_lshlrev_b32 v87, 8, v87')
    A('v_and_b32 v86, 7, v1')
    A('v_lshl_add_u32 v87, v86, 5, v87')
    A('v_and_b32 v86, 1, v2')
    A('v_lshl_add_u32 v87, v86, 4, v87')
    A('s_lshl_b32 s11, s3, 9')
    A(f's_add_u32 s11, s11, {L_PART}')
    A('v_add_u32 v163, s11, v87')
    P(3)
    A.c('q partial product')
    A('s_waitcnt vmcnt(8)')
    P(16)
    if cfg.elate:
        A(f'v_add_u32 v{vTAG}, 0x01010101, v{vTAG}')
    for i in range(4):
        A(f'v_mfma_f32_16x16x32_bf16 v[72:75], {vr(48+4*i)}, {vr(12+4*i)}, {"0" if i == 0 else "v[72:75]"}')
    A('s_mov_b32 exec_lo, 0x00ff00ff')
    A('s_mov_b32 exec_hi, 0xff00ff00')
    A.nop(6)
    A('ds_write_b128 v163, v[72:75]')
    A('s_mov_b64 exec, -1')
    if cfg.elate:
        A(f'v_readfirstlane_b32 s6, v{vTAG}')
    A('s_waitcnt lgkmcnt(0)')
    A('s_barrier')
    P(4)
    A('s_cmp_lg_u32 s3, 3')
    A('s_cbranch_scc1 L_pub1_done')
    A('v_lshlrev_b32 v86, 4, v3')
    A(f'v_add_u32 v87, {L_PART}, v86')
    for k in range(8):
        A(f'ds_read_b128 {vr(80+4*k+32)}, v87 offset:{256*k}')
    A('s_lshl_b32 s11, s4, 2')
    A(f's_add_u32 s11, s11, s{sRB}')
    A('s_lshl_b32 s11, s11, 11')
    A(f's_lshl_b32 s12, s{sCB}, 8')
    A('s_add_u32 s11, s11, s12')
    A(f's_add_u32 s11, s11, {QA}')
    A('v_add_u32 v86, s11, v86')
    A('s_lshl_b32 s12, s4, 9')
    A('s_lshl_b32 s13, s5, 4')
    A('s_add_u32 s12, s12, s13')
    A(f's_add_u32 s12, s12, {IDA}')
    A('v_mov_b32 v87, s12')
    A('v_cmp_eq_u32 vcc, 0, v2')
    A('s_getreg_b32 s13, hwreg(HW_REG_XCC_ID, 0, 4)')
    A('s_lshl_b32 s13, s13, 8')
    A('v_cndmask_b32 v86, v87, v86, vcc')
    A('s_waitcnt lgkmcnt(0)')
    for k in range(4):
        A(f'v_add_f32 v{112+k}, v{112+k}, v{116+k}')
        A(f'v_add_f32 v{120+k}, v{120+k}, v{124+k}')
        A(f'v_add_f32 v{128+k}, v{128+k}, v{132+k}')
        A(f'v_add_f32 v{136+k}, v{136+k}, v{140+k}')
    for k in range(4):
        A(f'v_add_f32 v{112+k}, v{112+k}, v{120+k}')
        A(f'v_add_f32 v{128+k}, v{128+k}, v{136+k}')
    for k in range(4):
        A(f'v_add_f32 v{112+k}, v{112+k}, v{128+k}')
    A('v_mov_b32 v116, s13')
    A('v_cndmask_b32 v112, v116, v112, vcc')
    tag_insert(A, 112)
    A('s_mov_b32 exec_lo, 0x0001ffff')
    A('s_mov_b32 exec_hi, 0')
    if not cfg.forceb:
        A(f'buffer_store_dwordx4 v[112:115], v86, {srd(SWS)}, 0 offen')
    A(f's_mov_b32 s12, {BDELTA}')
    A(f'buffer_store_dwordx4 v[112:115], v86, {srd(SWS)}, s12 offen sc1')
    A('s_mov_b64 exec, -1')
    A.label('L_pub1_done')
    if cfg.b1a:
        A('s_barrier')
    nst = (1 if cfg.forceb else 2)
    A.c('gate/up loads, V loads')
    A('s_add_u32 s18, s17, 28672')
    A(f'buffer_load_dwordx4 {vr(8)}, v161, {srd(SGA)}, s17 offen {nt}')
    A(f'buffer_load_dwordx4 {vr(12)}, v161, {srd(SGA)}, s18 offen {nt}')
    A(f'buffer_load_dwordx4 {vr(16)}, v161, {srd(SUP)}, s17 offen {nt}')
    A(f'buffer_load_dwordx4 {vr(20)}, v161, {srd(SUP)}, s18 offen {nt}')
    def vloads(lo, hi, win=None):
        for i in range(lo, hi):
            if win:
                A(f's_waitcnt vmcnt({win-1})')
            if i % 4 == 0 or i == lo:
                A(f's_add_u32 m0, s{25 if i < 4 else 26}, {L_V}')
                A.nop(1)
            A(f'buffer_load_dwordx4 v{(160, 164)[i&1]}, {srd(SV)}, s{19 if i < 4 else 27} offen offset:{1024*(i&3)} {nt} lds')
    vloads(0, cfg.nv1)
    if cfg.kwait is not None:
        A('s_cmp_eq_u32 s3, 3')
        A('s_cbranch_scc1 L_nokwait')
        A(f's_waitcnt vmcnt({cfg.kwait + cfg.nv1})')
        A.label('L_nokwait')
    if cfg.b1b:
        A('s_barrier')
    P(5)
    A('v_and_b32 v85, 1, v2')
    A('v_lshrrev_b32 v86, 1, v2')
    A('v_lshl_or_b32 v85, v85, 1, v86')
    A('v_lshlrev_b32 v86, 4, v3')
    A('v_lshl_add_u32 v161, v85, 10, v86')
    A('v_xor_b32 v86, v2, v3')
    A('v_lshlrev_b32 v86, 4, v86')
    A('v_lshl_add_u32 v156, v3, 8, v86')
    A('v_add_u32 v156, s20, v156')
    for j in range(1, 4):
        A(f'v_xor_b32 v{156+j}, {64*j}, v156')
    A('v_and_b32 v86, 3, v1')
    A('v_mul_u32_u24 v86, 272, v86')
    A('v_lshl_add_u32 v4, v2, 4, v86')
    A(f'v_add_u32 v4, {L_QB}, v4')
    if cfg.b1c:
        vloads(cfg.nv1, cfg.nv2)
        A('s_barrier')
        vloads(cfg.nv2, 8)
    else:
        vloads(cfg.nv1, 8, cfg.win)
    def tail_loads(pos):
        n = 0
        for i, p in enumerate(cfg.tpos):
            if p != pos:
                continue
            n += 1
            if i < 4:
                if cfg.worot:
                    A(f'buffer_load_dwordx4 {vr(24+4*i)}, v161, {srd(SWO)}, s{32+i} offen {nt}')
                else:
                    A(f's_add_u32 s13, s21, {4096*i}')
                    A(f'buffer_load_dwordx4 {vr(24+4*i)}, v161, {srd(SWO)}, s13 offen {nt}')
            else:
                if cfg.worot:
                    A(f'buffer_load_dwordx4 {vr(40+4*(i-4))}, v162, {srd(SDN)}, s{36+(i-4)} offen {nt}')
                else:
                    A(f's_add_u32 s13, s22, {4096*(i-4)}')
                    A(f'buffer_load_dwordx4 {vr(40+4*(i-4))}, v162, {srd(SDN)}, s13 offen {nt}')
        return n
    nearly = 0
    nearly += tail_loads(1)
    A.c('addresses for the attention tail (computed while the loads are in flight)')
    if cfg.worot:
        A('s_add_u32 s38, s4, s3')
        A('s_and_b32 s38, s38, 3')
        for i in range(4):
            A(f's_add_u32 s11, s38, {i}')
            A('s_and_b32 s11, s11, 3')
            A('s_lshl_b32 s11, s11, 12')
            A(f's_add_u32 s{32+i}, s21, s11')
        A('s_and_b32 s11, s38, 1')
        A('s_lshl_b32 s11, s11, 12')
        A('s_add_u32 s36, s22, s11')
        A('s_xor_b32 s11, s11, 4096')
        A('s_add_u32 s37, s22, s11')
    A('v_lshrrev_b32 v84, 2, v3')
    A('v_lshl_add_u32 v85, v2, 2, v84')
    A('v_and_b32 v84, 7, v85')
    A('v_lshlrev_b32 v85, 8, v85')
    A('v_lshl_add_u32 v85, v84, 5, v85')
    A('v_and_b32 v84, 3, v3')
    A('v_lshl_add_u32 v85, v84, 3, v85')
    A(f'v_add_u32 v85, {L_V}, v85')
    A('s_lshl_b32 s11, s3, 6')
    A('v_xor_b32 v48, s11, v85')
    A('v_xor_b32 v49, 32, v48')
    A('v_and_b32 v84, 3, v3')
    A('v_lshlrev_b32 v84, 14, v84')
    A('v_bfe_u32 v85, v3, 2, 1')
    A(f'v_lshl_add_u32 v84, v85, {6 if cfg.oline else 11}, v84')
    A('v_lshl_add_u32 v84, v2, 4, v84')
    A('s_lshl_b32 s11, s4, 16')
    A('s_lshl_b32 s12, s3, 12')
    A('s_add_u32 s11, s11, s12')
    A(f's_lshl_b32 s12, s5, {7 if cfg.oline else 6}')
    A('s_add_u32 s11, s11, s12')
    A(f's_add_u32 s11, s11, {OIO}')
    A('v_add_u32 v50, s11, v84')
    A('s_lshr_b32 s14, s5, 3')
    A('s_lshl_b32 s11, s4, 2')
    A('s_add_u32 s11, s11, s14')
    A('s_lshl_b32 s12, s11, 9')
    A(f's_add_u32 s12, s12, {MLO}')
    A('v_lshrrev_b32 v84, 2, v1')
    A('v_lshl_add_u32 v52, v84, 4, s12')
    A('s_bfe_u32 s12, s5, 0x10002')
    if cfg.oline:
        A('s_lshl_b32 s11, s11, 14')
        A('s_lshl_b32 s13, s12, 2')
        A('s_add_u32 s13, s13, s3')
        A('s_lshr_b32 s15, s13, 1')
        A('s_lshl_b32 s15, s15, 12')
        A('s_add_u32 s11, s11, s15')
        A('s_and_b32 s13, s13, 1')
        A('s_lshl_b32 s13, s13, 6')
        A('s_add_u32 s11, s11, s13')
        A(f's_add_u32 s11, s11, {OIO}')
        A('v_lshrrev_b32 v84, 2, v1')
        A('v_lshlrev_b32 v84, 7, v84')
        A('v_and_b32 v85, 3, v1')
        A('v_lshl_add_u32 v84, v85, 4, v84')
        A('v_add_u32 v51, s11, v84')
    else:
        A('s_lshl_b32 s11, s11, 3')
        A('s_lshl_b32 s13, s12, 2')
        A('s_add_u32 s11, s11, s13')
        A('s_add_u32 s11, s11, s3')
        A('s_lshl_b32 s11, s11, 11')
        A(f's_add_u32 s11, s11, {OIO}')
        if cfg.worot:
            A('v_add_u32 v84, s38, v1')
            A('v_and_b32 v84, 3, v84')
            A('v_and_b32 v85, 0x3c, v1')
            A('v_or_b32 v84, v84, v85')
            A('v_lshl_add_u32 v51, v84, 4, s11')
        else:
            A('v_lshl_add_u32 v51, v1, 4, s11')
    A('s_lshl_b32 s11, s4, 2')
    A('s_add_u32 s11, s11, s14')
    A('s_lshl_b32 s11, s11, 12')
    A('s_lshl_b32 s12, s12, 7')
    A('s_add_u32 s11, s11, s12')
    A('s_lshl_b32 s12, s3, 5')
    A('s_add_u32 s11, s11, s12')
    A(f's_add_u32 s11, s11, {GUO}')
    A('v_bfe_u32 v84, v1, 2, 3')
    A('v_lshlrev_b32 v84, 9, v84')
    A('v_bfe_u32 v85, v1, 1, 1')
    A('v_lshl_add_u32 v84, v85, 8, v84')
    if cfg.worot:
        A('v_xor_b32 v85, s38, v1')
        A('v_and_b32 v85, 1, v85')
    else:
        A('v_and_b32 v85, 1, v1')
    A('v_lshl_add_u32 v84, v85, 4, v84')
    A('v_add_u32 v53, s11, v84')
    A('v_mul_u32_u24 v54, 0x020202, v2')
    A('v_lshlrev_b32 v84, 25, v2')
    A('v_add_u32 v54, v54, v84')
    A('v_add_u32 v54, 0x01000100, v54')
    A('v_and_b32 v84, 1, v1')
    A('v_mov_b32 v85, 0xffff')
    A('v_lshlrev_b32 v84, 4, v84')
    A('v_lshlrev_b32 v84, v84, v85')
    for jj, m in enumerate((M0, M1, M2, M3)):
        A(f'v_cndmask_b32_e64 v{136+jj}, 0, v84, s[{m}:{m+1}]')
    A('v_and_b32 v84, 3, v1')
    A('s_lshl_b32 s11, s3, 2')
    A(f's_add_u32 s11, s11, {L_MW}')
    A('v_lshl_add_u32 v55, v84, 4, s11')
    A('v_lshlrev_b32 v84, 4, v84')
    A(f'v_add_u32 v56, {L_MW}, v84')
    A('v_lshlrev_b32 v84, 4, v1')
    A('s_lshl_b32 s11, s3, 10')
    A(f's_add_u32 s11, s11, {L_PB}')
    A('v_add_u32 v57, s11, v84')
    A(f'v_add_u32 v58, {L_PB}, v84')
    A('v_lshrrev_b32 v60, 2, v1')
    A('v_lshlrev_b32 v60, 12, v60')
    A('v_and_b32 v61, 3, v1')
    A('v_lshl_add_u32 v60, v61, 4, v60')
    A('s_and_b32 s11, s5, 3')
    A('s_lshl_b32 s11, s11, 15')
    A('s_lshl_b32 s12, s4, 3')
    A('s_lshr_b32 s13, s5, 2')
    A('s_add_u32 s12, s12, s13')
    A('s_lshl_b32 s12, s12, 6')
    A('s_add_u32 s11, s11, s12')
    A(f's_add_u32 s11, s11, {FIN}')
    A('v_add_u32 v60, s11, v60')
    A('v_lshlrev_b32 v62, 4, v1')
    A(f'v_add_u32 v62, {L_RED}, v62')
    A('v_lshlrev_b32 v85, 5, v3')
    A('v_lshl_add_u32 v85, v2, 4, v85')
    A('s_lshl_b32 s11, s3, 9')
    A(f's_add_u32 s11, s11, {L_RED}')
    A('v_add_u32 v59, s11, v85')
    A.c('gate/up partial products')
    P(17)
    A(f's_waitcnt vmcnt({8 + nearly})')
    P(18)
    for i in range(2):
        A(f'v_mfma_f32_16x16x32_bf16 v[72:75], {vr(64+4*i)}, {vr(8+4*i)}, {"0" if i == 0 else "v[72:75]"}')
    for i in range(2):
        A(f'v_mfma_f32_16x16x32_bf16 v[76:79], {vr(64+4*i)}, {vr(16+4*i)}, {"0" if i == 0 else "v[76:79]"}')
    A.nop(7)
    A('s_mov_b32 exec_lo, 0x00ff00ff')
    A('s_mov_b32 exec_hi, 0xff00ff00')
    A('ds_write_b128 v163, v[72:75] offset:2048')
    A('ds_write_b128 v163, v[76:79] offset:4096')
    A('s_mov_b64 exec, -1')
    A('s_waitcnt lgkmcnt(0)')
    P(6)
    A('s_barrier')
    P(7)
    A.c('scores')
    for j in range(4):
        A(f'ds_read_b128 {vr(112+4*j)}, v4 offset:{64*j}')
    for t in range(2):
        for j in range(4):
            A(f'ds_read_b128 {vr(80+16*t+4*j)}, v{156+j} offset:{L_K + 4096*t}')
    A(f'v_mov_b32 v6, {L_MODE}')
    A('ds_read_b32 v7, v6')
    tail_loads(2)
    for j in range(4):
        A(f's_waitcnt lgkmcnt({8-j})')
        A(f'v_mfma_f32_16x16x32_bf16 v[144:147], {vr(80+4*j)}, {vr(112+4*j)}, {"0" if j == 0 else "v[144:147]"}')
    for j in range(4):
        A(f's_waitcnt lgkmcnt({4-j})')
        A(f'v_mfma_f32_16x16x32_bf16 v[148:151], {vr(96+4*j)}, {vr(112+4*j)}, {"0" if j == 0 else "v[148:151]"}')
    A.nop(7)
    A('s_waitcnt lgkmcnt(0)')
    A('v_readfirstlane_b32 s24, v7')
    A.c('softmax')
    for k in range(4):
        A(f'v_cvt_pk_bf16_f32 v{152+k}, v{144+2*k}, v{145+2*k}')
    for k in range(4):
        A(f'v_lshlrev_b32 v{144+2*k}, 16, v{152+k}')
        A(f'v_and_b32 v{145+2*k}, 0xffff0000, v{152+k}')
    for k in range(8):
        A(f'v_mul_f32 v{144+k}, s{sSCALE}, v{144+k}')
    for k in range(4):
        A(f'v_cvt_pk_bf16_f32 v{152+k}, v{144+2*k}, v{145+2*k}')
    for k in range(4):
        A(f'v_lshlrev_b32 v{144+2*k}, 16, v{152+k}')
        A(f'v_and_b32 v{145+2*k}, 0xffff0000, v{152+k}')
    A('v_max3_f32 v82, v144, v145, v146')
    A('v_max3_f32 v83, v147, v148, v149')
    A('v_max3_f32 v82, v82, v150, v151')
    A('v_max_f32 v82, v82, v83')
    cross_rows(A, 82, 83, 'v_max_f32')
    A('s_mov_b64 exec, 15')
    A('ds_write_b32 v55, v82')
    A('s_mov_b64 exec, -1')
    tail_loads(25)
    A('s_waitcnt lgkmcnt(0)')
    A('s_barrier')
    tail_loads(26)
    P(8)
    A('ds_read_b128 v[84:87], v56')
    A('s_waitcnt lgkmcnt(0)')
    A('v_max3_f32 v82, v84, v85, v86')
    A('v_max_f32 v82, v82, v87')
    A(f'v_mul_f32 v83, s{sLOG2E}, v82')
    for k in range(8):
        A(f'v_fma_f32 v{144+k}, v{144+k}, s{sLOG2E}, -v83')
    for k in range(8):
        A(f'v_exp_f32 v{144+k}, v{144+k}')
    A.nop(1)
    for k in range(4):
        A(f'v_cvt_pk_bf16_f32 v{152+k}, v{144+2*k}, v{145+2*k}')
    A('v_add_f32 v84, v144, v145')
    A('v_add_f32 v85, v146, v147')
    A('ds_write_b128 v57, v[152:155]')
    A('v_add_f32 v86, v148, v149')
    A('v_add_f32 v87, v150, v151')
    A('v_add_f32 v84, v84, v85')
    A('v_add_f32 v86, v86, v87')
    A('v_add_f32 v84, v84, v86')
    cross_rows(A, 84, 85, 'v_add_f32')
    A('s_mov_b64 exec, 15')
    A(f'ds_write_b32 v55, v84 offset:{L_LW - L_MW}')
    A('s_mov_b64 exec, -1')
    tail_loads(3)
    P(9)
    A('s_waitcnt vmcnt(6) lgkmcnt(0)')
    A('s_barrier')
    P(10)
    A.c('PV over all 128 keys for tiles 2w, 2w+1')
    for ks in range(4):
        A(f'ds_read_b128 {vr(112+4*ks)}, v58 offset:{1024*ks}')
        for tt in range(2):
            base = 80 + (ks*2 + tt)*4
            A(f'ds_read_b64_tr_b16 v[{base}:{base+1}], v{48+tt} offset:{8192*ks}')
            A(f'ds_read_b64_tr_b16 v[{base+2}:{base+3}], v{48+tt} offset:{8192*ks + 4096}')
    for ks in range(4):
        for tt in range(2):
            base = 80 + (ks*2 + tt)*4
            left = 20 - (5*ks + 1 + 2*(tt+1))
            A(f's_waitcnt lgkmcnt({min(left, 15)})')
            A(f'v_mfma_f32_16x16x32_bf16 {vr(128+4*tt)}, {vr(base)}, {vr(112+4*ks)}, {"0" if ks == 0 else vr(128+4*tt)}')
    A('s_mov_b32 s12, 0x00f000f0')
    A('s_mov_b32 s13, 0x00f000f0')
    A('s_mov_b32 exec_lo, 0x00ff00ff')
    A('s_mov_b32 exec_hi, 0x00ff00ff')
    A.nop(4)
    for k in range(4):
        A(f'v_cndmask_b32_e64 v{128+k}, v{128+k}, v{132+k}, s[12:13]')
    tag_insert(A, 128)
    A('s_cmp_eq_u32 s24, 1')
    A('s_cbranch_scc0 L_opub_slow')
    A(f'buffer_store_dwordx4 v[128:131], v50, {srd(SWS)}, 0 offen')
    A('s_branch L_opub_done')
    A.label('L_opub_slow')
    A(f'buffer_store_dwordx4 v[128:131], v50, {srd(SWS)}, 0 offen sc1')
    A.label('L_opub_done')
    A('s_mov_b64 exec, -1')
    P(11)
    A.c('gather the partial attention outputs and the gate/up sums')
    if cfg.owait is not None:
        A(f's_waitcnt vmcnt({cfg.owait})')
    A(f's_mov_b32 s{sIT}, 0')
    A.label('L_ogat')
    A(f'buffer_load_dwordx4 v[80:83], v52, {srd(SWS)}, 0 offen {cfg.gat}')
    A(f'buffer_load_dwordx4 v[84:87], v52, {srd(SWS)}, 0 offen offset:256 {cfg.gat}')
    A(f'buffer_load_dwordx4 v[96:99], v53, {srd(SWS)}, 0 offen {cfg.gat}')
    A(f'buffer_load_dwordx4 v[88:91], v51, {srd(SWS)}, 0 offen {cfg.gat}')
    A(f'buffer_load_dwordx4 v[92:95], v51, {srd(SWS)}, 0 offen offset:{2048 if cfg.oline else 1024} {cfg.gat}')
    A('s_waitcnt vmcnt(0)')
    for q in range(5):
        tag_check(A, 80+4*q, 100, 101, q == 0)
    poll_tail(A, cfg, 'L_ogat', 'L_ook')
    A.label('L_ook')
    if cfg.prof in (True, 'heavy'):
        A(f'v_writelane_b32 v{vPROF}, s{sIT}, 21')
    P(12)
    if cfg.domask is True:
        mask_vals(A, 80, 2)
        mask_vals(A, 84, 2)
        mask_vals(A, 88, 12)
    else:
        mask_vals(A, 80, 1)
        mask_vals(A, 84, 1)
    A('v_max_f32 v100, v80, v84')
    for st in ('row_ror:8', 'row_ror:4'):
        for k in range(4):
            A(f'v_add_f32_dpp v{96+k}, v{96+k}, v{96+k} {st} row_mask:0xf bank_mask:0xf')
        A(f'v_max_f32_dpp v100, v100, v100 {st} row_mask:0xf bank_mask:0xf')
    for k in range(4):
        A(f'v_mov_b32 v{104+k}, v{96+k}')
    A('v_mov_b32 v101, v100')
    for k in range(4):
        A(f'v_permlane16_swap_b32 v{104+k}, v{96+k}')
    A('v_permlane16_swap_b32 v101, v100')
    for k in range(4):
        A(f'v_add_f32 v{96+k}, v{104+k}, v{96+k}')
    A('v_max_f32 v100, v101, v100')
    A('v_cvt_pk_bf16_f32 v104, v96, v97')
    A('v_mov_b32 v101, v100')
    A('v_cvt_pk_bf16_f32 v105, v98, v99')
    A('v_lshlrev_b32 v96, 16, v104')
    A('v_permlane32_swap_b32 v101, v100')
    A('v_and_b32 v97, 0xffff0000, v104')
    A('v_max_f32 v100, v101, v100')
    A('v_lshlrev_b32 v98, 16, v105')
    A('v_and_b32 v99, 0xffff0000, v105')
    A('v_sub_f32 v80, v80, v100')
    A('v_sub_f32 v84, v84, v100')
    A(f'v_mul_f32 v80, s{sLOG2E}, v80')
    A(f'v_mul_f32 v84, s{sLOG2E}, v84')
    A('v_exp_f32 v80, v80')
    A('v_exp_f32 v84, v84')
    for k in range(4):
        A(f'v_mul_f32_dpp v{104+k}, v{96+k}, v{96+k} quad_perm:[2,3,0,1] row_mask:0xf bank_mask:0xf')
    A('v_mul_f32 v102, v80, v81')
    A('v_fmac_f32 v102, v84, v85')
    for k in range(4):
        A(f'v_mul_f32 v{88+k}, v80, v{88+k}')
    for k in range(4):
        A(f'v_fmac_f32 v{88+k}, v84, v{92+k}')
    A('v_cvt_pk_bf16_f32 v96, v104, v105')
    A('v_cvt_pk_bf16_f32 v97, v106, v107')
    A('v_permlane32_swap_b32 v88, v89')
    A('v_permlane32_swap_b32 v90, v91')
    A('v_perm_b32 v98, v97, v96, v54')
    A('v_add_f32 v88, v88, v89')
    A('v_add_f32 v90, v90, v91')
    A('v_mov_b32 v103, v102')
    for i in range(2):
        for jj in range(4):
            A(f'v_and_b32_dpp v{64+4*i+jj}, v98, v{136+jj} quad_perm:[{i},{i},{i},{i}] row_mask:0xf bank_mask:0xf')
        if i == 0:
            A('v_permlane16_swap_b32 v88, v90')
            A('v_permlane16_swap_b32 v103, v102')
    A('v_add_f32 v88, v88, v90')
    A('v_add_f32 v102, v103, v102')
    A('v_mfma_f32_16x16x32_bf16 v[72:75], v[64:67], v[40:43], 0')
    A('v_mov_b32 v103, v102')
    A(f'v_add_f32_dpp v88, v88, v88 row_ror:8 row_mask:0xf bank_mask:0xf')
    A('v_mfma_f32_16x16x32_bf16 v[72:75], v[68:71], v[44:47], v[72:75]')
    A('v_permlane32_swap_b32 v103, v102')
    A(f'v_add_f32_dpp v88, v88, v88 row_ror:4 row_mask:0xf bank_mask:0xf')
    A('v_add_f32 v102, v103, v102')
    A.nop(2)
    A(f'v_add_f32_dpp v102, v102, v102 row_ror:8 row_mask:0xf bank_mask:0xf')
    A.nop(2)
    A(f'v_add_f32_dpp v102, v102, v102 row_ror:4 row_mask:0xf bank_mask:0xf')
    A.nop(1)
    A('v_rcp_f32 v102, v102')
    A.nop(1)
    A('v_mul_f32 v88, v88, v102')
    A('v_cvt_pk_bf16_f32 v88, v88, v88')
    A.nop(2)
    for i in range(4):
        for jj in range(4):
            A(f'v_and_b32_dpp v{112+4*i+jj}, v88, v{136+jj} quad_perm:[{i},{i},{i},{i}] row_mask:0xf bank_mask:0xf')
        if i:
            A(f'v_mfma_f32_16x16x32_bf16 v[72:75], {vr(112+4*(i-1))}, {vr(24+4*(i-1))}, v[72:75]')
    A.nop(1)
    A('v_mfma_f32_16x16x32_bf16 v[72:75], v[124:127], v[36:39], v[72:75]')
    A('s_mov_b32 exec_hi, 0')
    A.nop(7)
    A('ds_write_b128 v59, v[72:75]')
    A('s_mov_b64 exec, -1')
    A('s_waitcnt lgkmcnt(0)')
    A('s_barrier')
    P(13)
    A('s_cmp_lg_u32 s3, 0')
    A('s_cbranch_scc1 L_cmp_end')
    for w in range(4):
        A(f'ds_read_b128 {vr(88+4*w)}, v62 offset:{512*w}')
    A('s_waitcnt lgkmcnt(2)')
    for k in range(4):
        A(f'v_add_f32 v{88+k}, v{88+k}, v{92+k}')
    A('s_waitcnt lgkmcnt(0)')
    for k in range(4):
        A(f'v_add_f32 v{96+k}, v{96+k}, v{100+k}')
    for k in range(4):
        A(f'v_add_f32 v{88+k}, v{88+k}, v{96+k}')
    tag_insert(A, 88)
    A('s_mov_b32 exec_hi, 0')
    A(f'buffer_store_dwordx4 v[88:91], v60, {srd(SWS)}, 0 offen {cfg.fpub}')
    A('s_mov_b64 exec, -1')
    A.label('L_cmp_end')
    P(14)
    P.flush(); P.reset()
    A('s_branch L_done')
    A.label('L_comm')
    P.reset(prev=0, k=0)
    P(1)
    A(f's_load_dwordx2 s[{SOUT}:{SOUT+1}], s[0:1], 72')
    A(f's_mov_b32 s{SOUT+2}, s{SX+2}')
    A(f's_mov_b32 s{SOUT+3}, s{SWQ+3}')
    A(f's_lshl_b32 s{sT}, s{sRB}, 3')
    A(f's_add_u32 s{sT}, s{sT}, s4')
    A('v_lshrrev_b32 v2, 4, v1')
    A('v_and_b32 v3, 15, v1')
    A(f'v_mov_b32 v4, {EOFF}')
    if cfg.exp_dirty:
        A('s_cmp_eq_u32 s3, 4')
        A('s_cbranch_scc0 L_nodirty')
        A('s_waitcnt lgkmcnt(0)')
        A(f's_mov_b32 s{SWS+2}, 0x2000000')
        A(f's_mul_i32 s11, s2, {cfg.exp_dirty*1024}')
        A('s_add_u32 s11, s11, 0x400000')
        A('v_lshlrev_b32 v20, 4, v1')
        for i in range(cfg.exp_dirty):
            A(f'buffer_store_dwordx4 v[16:19], v20, {srd(SWS)}, s11 offen')
            A('s_add_u32 s11, s11, 1024')
        A.label('L_nodirty')
    def pretouch():
        A('s_cmp_eq_u32 s3, 4')
        A('s_cbranch_scc0 L_nopre')
        A('s_waitcnt lgkmcnt(0)')
        A('s_lshl_b32 s11, s4, 5')
        A('s_add_u32 s11, s11, s5')
        A('s_lshl_b32 s12, s11, 11')
        A(f's_add_u32 s12, s12, {OIO}')
        A('v_lshl_add_u32 v10, v1, 7, s12')
        A('s_lshl_b32 s12, s11, 9')
        A(f's_add_u32 s12, s12, {GUO - 16*128}')
        A('v_lshl_add_u32 v11, v1, 7, s12')
        A('v_cmp_le_u32 vcc, 16, v1')
        A('s_lshl_b32 s12, s11, 8')
        A(f's_add_u32 s12, s12, {QA - 20*128}')
        A('v_cndmask_b32 v10, v10, v11, vcc')
        A('v_lshl_add_u32 v11, v1, 7, s12')
        A('v_cmp_le_u32 vcc, 20, v1')
        A('s_lshl_b32 s12, s4, 9')
        A('s_and_b32 s13, s5, 3')
        A('s_lshl_b32 s13, s13, 7')
        A('s_add_u32 s12, s12, s13')
        A(f's_add_u32 s12, s12, {IDA}')
        A('v_cndmask_b32 v10, v10, v11, vcc')
        A('v_mov_b32 v11, s12')
        A('v_cmp_le_u32 vcc, 22, v1')
        A('s_lshl_b32 s12, s4, 11')
        A('s_and_b32 s13, s5, 15')
        A('s_lshl_b32 s13, s13, 7')
        A('s_add_u32 s12, s12, s13')
        A(f's_add_u32 s12, s12, {MLO}')
        A('v_cndmask_b32 v10, v10, v11, vcc')
        A('v_mov_b32 v11, s12')
        A('v_cmp_le_u32 vcc, 23, v1')
        A.nop(2)
        A('v_cndmask_b32 v10, v10, v11, vcc')
        A('s_mov_b64 exec, 0xffffff')
        A(f'buffer_load_dword v12, v10, {srd(SWS)}, 0 offen {cfg.pre_fl}')
        A('s_mov_b64 exec, -1')
        A.label('L_nopre')
    if cfg.pretouch == 1:
        pretouch()
    if cfg.finpre == 1:
        A('s_cmp_eq_u32 s3, 5')
        A('s_cbranch_scc0 L_nofinpre')
        A('s_cmp_lt_u32 s2, 32')
        A('s_cbranch_scc0 L_nofinpre')
        A('s_waitcnt lgkmcnt(0)')
        A('s_lshl_b32 s11, s2, 14')
        A(f's_add_u32 s11, s11, {FIN}')
        A('v_lshl_add_u32 v10, v1, 7, s11')
        A('s_mov_b32 s12, 8192')
        A(f'buffer_load_dword v12, v10, {srd(SWS)}, 0 offen {cfg.finpre_fl}')
        A(f'buffer_load_dword v13, v10, {srd(SWS)}, s12 offen {cfg.finpre_fl}')
        A.label('L_nofinpre')
    elif cfg.finpre == 2:
        A('s_cmp_eq_u32 s3, 5')
        A('s_cbranch_scc0 L_nofinpre')
        A('s_waitcnt lgkmcnt(0)')
        A('s_lshl_b32 s11, s2, 11')
        A(f's_add_u32 s11, s11, {FIN}')
        A('v_lshl_add_u32 v10, v1, 7, s11')
        A('s_mov_b64 exec, 0xffff')
        A(f'buffer_load_dword v12, v10, {srd(SWS)}, 0 offen {cfg.finpre_fl}')
        A('s_mov_b64 exec, -1')
        A.label('L_nofinpre')
    A('s_lshl_b32 s11, s4, 13')
    A('s_sub_u32 s12, s3, 4')
    A('s_lshl_b32 s12, s12, 10')
    A('s_add_u32 s11, s11, s12')
    A(f's_add_u32 s11, s11, {QA}')
    A('v_lshlrev_b32 v6, 4, v1')
    A('v_add_u32 v6, s11, v6')
    A('s_lshl_b32 s11, s4, 9')
    A(f's_add_u32 s11, s11, {IDA}')
    A('v_and_b32 v7, 31, v1')
    A('v_lshl_add_u32 v7, v7, 4, s11')
    A('s_sub_u32 s12, s3, 4')
    A('s_lshl_b32 s12, s12, 1')
    A('v_lshrrev_b32 v8, 5, v1')
    A('v_add_u32 v8, s12, v8')
    A('v_mul_u32_u24 v8, 272, v8')
    A('v_and_b32 v9, 31, v1')
    A('v_lshl_add_u32 v8, v9, 3, v8')
    A(f'v_add_u32 v8, {L_QB}, v8')
    P(3)
    A('s_barrier')
    P(4)
    if cfg.b1a:
        A('s_barrier')
    A('s_waitcnt lgkmcnt(0)')
    A(f'buffer_load_dword v5, v4, {srd(SWS)}, 0 offen {cfg.xnt}')
    A(f's_mov_b32 s{sIT}, 0')
    A('s_mov_b32 s14, 0')
    if cfg.b1b:
        A('s_barrier')
    P(5)
    def q_issue():
        A('s_add_u32 s15, s14, 4096')
        A(f'buffer_load_dwordx4 v[16:19], v6, {srd(SWS)}, s14 offen {cfg.gat}')
        A(f'buffer_load_dwordx4 v[20:23], v6, {srd(SWS)}, s14 offen offset:2048 {cfg.gat}')
        A(f'buffer_load_dwordx4 v[24:27], v6, {srd(SWS)}, s15 offen {cfg.gat}')
        A(f'buffer_load_dwordx4 v[28:31], v6, {srd(SWS)}, s15 offen offset:2048 {cfg.gat}')
        A(f'buffer_load_dwordx4 v[32:35], v7, {srd(SWS)}, s14 offen {cfg.gat}')
    def q_check():
        for q in range(5):
            tag_check(A, 16+4*q, 36, 37, q == 0)
    if cfg.b1c:
        q_issue()
        A('s_waitcnt vmcnt(0)')
        A('v_add_u32 v9, 0x01010101, v5')
        A.nop(1)
        A('v_readfirstlane_b32 s6, v9')
        q_check()
        A('s_cmp_eq_u64 s[88:89], 0')
        A('s_cbranch_scc1 L_qfirst_ok')
        q_issue()
        A('s_barrier')
        A(f's_mov_b32 s{sIT}, 1')
        A('s_branch L_qwait')
        A.label('L_qfirst_ok')
        A('s_barrier')
        A('s_branch L_qok')
        A.label('L_qgat')
        q_issue()
        A.label('L_qwait')
        A('s_waitcnt vmcnt(0)')
        q_check()
        poll_tail(A, cfg, 'L_qgat', 'L_qok', switch=14)
    else:
        A.label('L_qgat')
        q_issue()
        A('s_waitcnt vmcnt(0)')
        A('v_add_u32 v9, 0x01010101, v5')
        A.nop(1)
        A('v_readfirstlane_b32 s6, v9')
        q_check()
        poll_tail(A, cfg, 'L_qgat', 'L_qok', switch=14)
    A.label('L_qok')
    if cfg.prof in (True, 'heavy'):
        A(f'v_writelane_b32 v{vPROF}, s{sIT}, 20')
    P(6)
    mask_vals(A, 16, 16)
    for k in range(4):
        A(f'v_add_f32 v{16+k}, v{16+k}, v{20+k}')
        A(f'v_add_f32 v{24+k}, v{24+k}, v{28+k}')
    for k in range(4):
        A(f'v_add_f32 v{16+k}, v{16+k}, v{24+k}')
    A('v_cvt_pk_bf16_f32 v16, v16, v17')
    A('v_cvt_pk_bf16_f32 v17, v18, v19')
    A('ds_write_b64 v8, v[16:17]')
    if cfg.pretouch == 2:
        pretouch()
    A('s_getreg_b32 s13, hwreg(HW_REG_XCC_ID, 0, 4)')
    A('v_bfe_u32 v32, v32, 8, 8')
    A('v_cmp_ne_u32 vcc, s13, v32')
    A('s_cmp_eq_u64 vcc, 0')
    A('s_cselect_b32 s13, 1, 0')
    if cfg.forceslow:
        A('s_mov_b32 s13, 0')
    A('s_mov_b32 s24, s13')
    A('v_mov_b32 v33, s13')
    A(f'v_mov_b32 v34, {L_MODE}')
    A('s_cmp_eq_u32 s3, 5')
    A('s_cbranch_scc0 L_nomode')
    A('ds_write_b32 v34, v33')
    A.label('L_nomode')
    A('s_waitcnt lgkmcnt(0)')
    A('s_barrier')
    P(7)
    P.flush(); P.reset()
    A('s_lshl_b32 s11, s2, 12')
    A(f's_add_u32 s11, s11, {FIN}')
    A('v_lshl_add_u32 v60, v1, 4, s11')
    A('v_and_b32 v61, 1, v2')
    A('v_lshrrev_b32 v62, 1, v2')
    A('v_lshl_or_b32 v61, v61, 1, v62')
    A('v_and_b32 v62, 3, v1')
    A('v_lshl_add_u32 v61, v62, 2, v61')
    A('s_and_b32 s11, s2, 31')
    A('s_lshl_b32 s11, s11, 4')
    A('v_add_u32 v61, s11, v61')
    A('v_lshlrev_b32 v61, 1, v61')
    if cfg.poll2:
        A(f'v_mov_b32 v63, {L_FLAG}')
        A('v_mov_b32 v59, 0')
    A('s_cmp_eq_u32 s3, 5')
    A('s_cbranch_scc1 L_comm5')
    A(f'buffer_load_ushort v62, v61, {srd(SX)}, 0 offen')
    if cfg.poll2:
        A('ds_write_b32 v63, v59')
        A('s_waitcnt lgkmcnt(0)')
    if cfg.finpre2:
        A('s_cmp_ge_u32 s2, 32')
        A('s_cbranch_scc1 L_nofp2')
        A('s_lshl_b32 s11, s2, 12')
        A(f's_add_u32 s11, s11, {FIN}')
        A('v_lshl_add_u32 v10, v1, 7, s11')
        A('s_mov_b32 exec_hi, 0')
        A(f'buffer_load_dword v11, v10, {srd(SWS)}, 0 offen {cfg.finpre_fl}')
        A('s_mov_b64 exec, -1')
        A.label('L_nofp2')
    A('s_barrier')
    A('s_barrier')
    A('s_barrier')
    P(13)
    P.flush(); P.reset()
    A.label('L_final')
    A('s_cmp_ge_u32 s2, 32')
    A('s_cbranch_scc1 L_done')
    A(f's_mov_b32 s{sIT}, 0')
    A.label('L_fgat')
    for q in range(4):
        A(f'buffer_load_dwordx4 {vr(16+4*q)}, v60, {srd(SWS)}, 0 offen offset:{1024*q} {cfg.fgat}')
    A('s_waitcnt vmcnt(0)')
    if cfg.poll2:
        A('ds_read_b32 v38, v63')
    for q in range(4):
        tag_check(A, 16+4*q, 36, 37, q == 0)
    if cfg.poll2:
        A('s_waitcnt lgkmcnt(0)')
        A('v_readfirstlane_b32 s11, v38')
        A('s_cmp_lg_u32 s11, 0')
        A('s_cbranch_scc1 L_done')
    poll_tail(A, cfg, 'L_fgat', 'L_fok')
    A.label('L_fok')
    if cfg.poll2:
        A('v_mov_b32 v59, 1')
        A('ds_write_b32 v63, v59')
    if cfg.prof in (True, 'heavy'):
        A(f'v_writelane_b32 v{vPROF}, s{sIT}, 22')
    P(14)
    P.flush(); P.reset()
    if cfg.domask is True:
        mask_vals(A, 16, 16)
    for k in range(4):
        A(f'v_add_f32 v{16+k}, v{16+k}, v{20+k}')
        A(f'v_add_f32 v{24+k}, v{24+k}, v{28+k}')
    for k in range(4):
        A(f'v_add_f32 v{16+k}, v{16+k}, v{24+k}')
    transpose_reduce4(A, 16)
    A('v_lshlrev_b32 v62, 16, v62')
    A.nop(1)
    A('v_add_f32_dpp v16, v16, v16 row_ror:8 row_mask:0xf bank_mask:0xf')
    A.nop(2)
    A('v_add_f32_dpp v16, v16, v16 row_ror:4 row_mask:0xf bank_mask:0xf')
    A('v_add_f32 v16, v16, v62')
    A('v_cvt_pk_bf16_f32 v16, v16, v16')
    if cfg.calib:
        A('s_cmp_lg_u32 s2, 0')
        A('s_cbranch_scc1 L_nocal')
        A(f's_add_u32 s36, s36, {cfg.calib}')
        A.label('L_cal')
        A('s_memrealtime s[38:39]')
        A('s_waitcnt lgkmcnt(0)')
        A('s_sub_u32 s37, s38, s36')
        A('s_cmp_lt_i32 s37, 0')
        A('s_cbranch_scc1 L_cal')
        A.label('L_nocal')
    A('s_mov_b32 exec_lo, 0x000f000f')
    A('s_mov_b32 exec_hi, 0x000f000f')
    A(f'buffer_store_short v16, v61, {srd(SOUT)}, 0 offen')
    A('s_cmp_lg_u32 s2, 0')
    A('s_cbranch_scc1 L_noepoch')
    A('s_mov_b64 exec, 1')
    A(f'v_mov_b32 v17, {EOFF}')
    A(f'v_mov_b32 v18, s{sTAG}')
    A(f'buffer_store_dword v18, v17, {srd(SWS)}, 0 offen')
    A.label('L_noepoch')
    A('s_mov_b64 exec, -1')
    A('s_branch L_done')
    A.label('L_comm5')
    P.reset()
    A(f'v_mov_b32 v{vTAG}, s6')
    A('v_lshlrev_b32 v6, 4, v3')
    A('v_and_b32 v7, 1, v2')
    A('v_lshl_add_u32 v7, v7, 11, v6')
    A(f'v_add_u32 v7, {L_PART + 2048}, v7')
    for k in range(8):
        A(f'ds_read_b128 {vr(16+4*k)}, v7 offset:{256*k}')
    A('s_lshl_b32 s12, s4, 2')
    A(f's_add_u32 s12, s12, s{sRB}')
    A('s_lshl_b32 s12, s12, 3')
    A(f's_add_u32 s12, s12, s{sCB}')
    A('s_lshl_b32 s12, s12, 9')
    A(f's_add_u32 s12, s12, {GUO}')
    A('v_and_b32 v7, 1, v2')
    A('v_lshl_add_u32 v6, v7, 8, v6')
    A('v_add_u32 v6, s12, v6')
    A('s_waitcnt lgkmcnt(0)')
    for k in range(4):
        A(f'v_add_f32 v{16+k}, v{16+k}, v{20+k}')
        A(f'v_add_f32 v{24+k}, v{24+k}, v{28+k}')
        A(f'v_add_f32 v{32+k}, v{32+k}, v{36+k}')
        A(f'v_add_f32 v{40+k}, v{40+k}, v{44+k}')
    for k in range(4):
        A(f'v_add_f32 v{16+k}, v{16+k}, v{24+k}')
        A(f'v_add_f32 v{32+k}, v{32+k}, v{40+k}')
    for k in range(4):
        A(f'v_add_f32 v{16+k}, v{16+k}, v{32+k}')
    tag_insert(A, 16)
    A('s_mov_b32 exec_hi, 0')
    A('s_cmp_eq_u32 s24, 1')
    A('s_cbranch_scc0 L_gupub_slow')
    A(f'buffer_store_dwordx4 v[16:19], v6, {srd(SWS)}, 0 offen')
    A('s_branch L_gupub_done')
    A.label('L_gupub_slow')
    A(f'buffer_store_dwordx4 v[16:19], v6, {srd(SWS)}, 0 offen sc1')
    A.label('L_gupub_done')
    A('s_mov_b64 exec, -1')
    A('v_and_b32 v8, 3, v1')
    A('v_lshlrev_b32 v9, 4, v8')
    A(f'v_add_u32 v9, {L_MW}, v9')
    A('s_lshl_b32 s11, s4, 11')
    A('s_lshl_b32 s12, s5, 4')
    A('s_add_u32 s11, s11, s12')
    A(f's_add_u32 s11, s11, {MLO}')
    A('v_lshl_add_u32 v8, v8, 9, s11')
    A('s_barrier')
    A('s_barrier')
    A('ds_read_b128 v[20:23], v9')
    A(f'ds_read_b128 v[24:27], v9 offset:{L_LW - L_MW}')
    A('s_waitcnt lgkmcnt(0)')
    A('v_max3_f32 v20, v20, v21, v22')
    A('v_add_f32 v24, v24, v25')
    A('v_add_f32 v26, v26, v27')
    A('v_max_f32 v20, v20, v23')
    A('v_add_f32 v21, v24, v26')
    tag_insert(A, 20)
    A('s_mov_b64 exec, 15')
    A('s_cmp_eq_u32 s24, 1')
    A('s_cbranch_scc0 L_mlpub_slow')
    A(f'buffer_store_dwordx4 v[20:23], v8, {srd(SWS)}, 0 offen')
    A('s_branch L_mlpub_done')
    A.label('L_mlpub_slow')
    A(f'buffer_store_dwordx4 v[20:23], v8, {srd(SWS)}, 0 offen sc1')
    A.label('L_mlpub_done')
    A('s_mov_b64 exec, -1')
    A('s_barrier')
    if cfg.poll2:
        A(f'buffer_load_ushort v62, v61, {srd(SX)}, 0 offen')
        A('s_waitcnt vmcnt(0)')
        A('s_branch L_final')
    A.label('L_done')
    if cfg.exp_hwid:
        A('s_getreg_b32 s11, hwreg(HW_REG_HW_ID)')
        A(f'v_writelane_b32 v{vPROF}, s11, 31')
    if cfg.prof == 'lite':
        A('s_memrealtime s[30:31]')
        A('s_waitcnt lgkmcnt(0)')
        A(f'v_writelane_b32 v{vPROF}, s28, 0')
        A(f'v_writelane_b32 v{vPROF}, s30, 15')
    elif cfg.prof:
        P(15)
        P.flush()
    if cfg.prof:
        A('s_mul_i32 s11, s2, 6')
        A('s_add_u32 s11, s11, s3')
        A('s_lshl_b32 s11, s11, 7')
        A(f's_add_u32 s11, s11, {PROF}')
        A('v_lshl_add_u32 v86, v1, 2, s11')
        A('s_mov_b32 exec_hi, 0')
        A(f'buffer_store_dword v{vPROF}, v86, {srd(SWS)}, 0 offen')
        A('s_mov_b64 exec, -1')
    A.label('L_end')
    A('s_endpgm')
    A('.section .rodata,"a"')
    A('.p2align 6')
    A(f'.amdhsa_kernel {NAME}')
    A(f'  .amdhsa_next_free_vgpr {cfg.nvgpr}')
    A('  .amdhsa_next_free_sgpr 102')
    A(f'  .amdhsa_accum_offset {min(cfg.nvgpr, 256)}')
    A('  .amdhsa_group_segment_fixed_size 0')
    A('  .amdhsa_kernarg_size 96')
    A('  .amdhsa_user_sgpr_count 2')
    A('  .amdhsa_user_sgpr_kernarg_segment_ptr 1')
    A('  .amdhsa_system_sgpr_workgroup_id_x 1')
    A('  .amdhsa_float_denorm_mode_32 3')
    A('.end_amdhsa_kernel')
    return A.text()

HEADER = open('parallel_sum__sliding_block_cached__glu_gated_bilinear__decode.s.ref').read().split('; Override launch')[0]

DOC = """;
"""

def full(cfg):
    body = gen(cfg)
    probs = check(body)
    for p in probs:
        if 'wide store WAR' in p and 'v_lshlrev_b32 v86, 4, v3' in p:
            continue
        print('HAZARD', p)
    return HEADER + f'; @launch grid=(256,1,1) block=(384,1,1) lds={cfg.ldsbytes}\n' + DOC + body

if __name__ == '__main__':
    cfg = Cfg()
    for a in sys.argv[2:]:
        k, v = a.split('=')
        old = getattr(cfg, k, None)
        setattr(cfg, k, v if ((isinstance(old, str) or v in ('lite', 'heavy')) and v not in ('False', 'True')) else eval(v))
    open(sys.argv[1], 'w').write(full(cfg))
```

```python
import sys
from asmlib import Asm, check

NAME = 'parallel_sum__sliding_block_cached__glu_gated_bilinear__decode_kernel'

EOFF  = 0
QA    = 0x1000
IDA   = 0x11000
BDELTA = 0x11000
GUO   = 0x23000
MLO   = 0x43000
OIO   = 0x48000
FIN   = 0xC8000
PROF  = 0x180000
WS_BYTES = 0x200000

L_K = 0
L_V = 32768
L_XN = 65536
L_PART = 66560
L_QB = 72704
L_HB = 73792
L_MODE = 73808
L_MW = 73824
L_LW = 73888
L_PB = L_PART
L_RED = L_PART + 4096
L_FLAG = 73812
LDS_BYTES = 73984

sW, sG, sS, sTAG = 3, 4, 5, 6
SX, SK, SV, SWQ, SWO, SGA, SUP, SDN, SOUT, SWS = 40, 44, 48, 52, 56, 60, 64, 68, 72, 76
M0, M1, M2, M3 = 80, 82, 84, 86
sX0, sX1 = 90, 91
sIT = 92
sLOG2E, sSCALE = 93, 94
sMSK = 95
sP01, sP23 = 96, 97
sI0, sI1, sI2, sI3 = 98, 99, 100, 101
sRB, sT, sCB = 7, 8, 10
vTAG, vSH = 167, 166
vPROF = 165
def srd(n): return f's[{n}:{n+3}]'
def vr(n, k=4): return f'v[{n}:{n+k-1}]'

class Cfg:
    nt = 'nt'
    gat = 'sc1'
    nk1 = 8
    domask = 'm'
    elate = True
    xone = 0
    poll2 = False
    finpre2 = True
    fpub = 'sc1'
    fgat = 'sc1'
    worot = True
    kearly = True
    owait = None
    oline = False
    tpos = (2, 2, 2, 2, 2, 2)
    calib = 0
    ldsbytes = LDS_BYTES
    nvgpr = 168
    b1a = True
    win = None
    win2 = None
    exp_dirty = 0
    b1c = False
    nv2 = 4
    kwait = 3
    exp_cb = 0
    exp_hwid = False
    swap = True
    wo_early = -1
    b0 = 0
    prio = 3
    align = 12
    xnt = ''
    finpre = 0
    finpre_fl = ''
    codepf_n = 4
    nv1 = 3
    b1b = True
    b3b = True
    maxit = 200000
    swit = 24
    prof = False
    dbgprof = None
    pretouch = 0
    pre_fl = 'nt'
    codepf = 's'
    forceslow = False
    forceb = False

ROW_FULL = ['quad_perm:[1,0,3,2]', 'quad_perm:[2,3,0,1]', 'row_half_mirror', 'row_mirror']

def rowred(A, regs, op, steps):
    for st in steps:
        A.nop(2 if len(regs) < 3 else max(0, 2 - (len(regs) - 1)))
        for v in regs:
            A(f'{op}_dpp v{v}, v{v}, v{v} {st} row_mask:0xf bank_mask:0xf')
        if len(regs) >= 3:
            pass

def cross_rows(A, v, tmp, op):
    A(f'v_mov_b32 v{tmp}, v{v}')
    A.nop(2)
    A(f'v_permlane16_swap_b32 v{tmp}, v{v}')
    A.nop(1)
    A(f'{op} v{v}, v{tmp}, v{v}')
    A(f'v_mov_b32 v{tmp}, v{v}')
    A.nop(2)
    A(f'v_permlane32_swap_b32 v{tmp}, v{v}')
    A.nop(1)
    A(f'{op} v{v}, v{tmp}, v{v}')

def wave_allreduce(A, v, tmp, op):
    rowred(A, [v], op, ROW_FULL)
    cross_rows(A, v, tmp, op)

def transpose_reduce4(A, v):
    A.nop(1)
    A(f'v_permlane32_swap_b32 v{v}, v{v+1}')
    A(f'v_permlane32_swap_b32 v{v+2}, v{v+3}')
    A.nop(1)
    A(f'v_add_f32 v{v}, v{v}, v{v+1}')
    A(f'v_add_f32 v{v+2}, v{v+2}, v{v+3}')
    A.nop(2)
    A(f'v_permlane16_swap_b32 v{v}, v{v+2}')
    A.nop(1)
    A(f'v_add_f32 v{v}, v{v}, v{v+2}')

def tag_insert(A, v):
    for k, s in enumerate((sI0, sI1, sI2, sI3)):
        A(f'v_perm_b32 v{v+k}, v{v+k}, v{vTAG}, s{s}')

def tag_check(A, v, t0, t1, first):
    A(f'v_perm_b32 v{t0}, v{v+1}, v{v}, s{sP01}')
    A(f'v_perm_b32 v{t1}, v{v+3}, v{v+2}, s{sP23}')
    A(f'v_or_b32 v{t0}, v{t0}, v{t1}')
    if first:
        A(f'v_cmp_ne_u32 s[88:89], s{sTAG}, v{t0}')
    else:
        A(f'v_cmp_ne_u32 s[90:91], s{sTAG}, v{t0}')
        A('s_or_b64 s[88:89], s[88:89], s[90:91]')

def mask_vals(A, v, n=4):
    for k in range(n):
        A(f'v_and_b32 v{v+k}, s{sMSK}, v{v+k}')

def build_sel(A, dst, val, tmp):
    A(f'v_lshlrev_b32 v{tmp}, v{vSH}, v{val}')
    for j, m in enumerate((M0, M1, M2, M3)):
        A(f'v_cndmask_b32_e64 v{dst+j}, 0, v{tmp}, s[{m}:{m+1}]')

class Prof:
    def __init__(self, A, cfg):
        self.A, self.on, self.prev, self.k = A, cfg.prof, None, 0
        self.lite = cfg.prof == 'lite'
    def reset(self, prev=None, k=0):
        if self.lite:
            self.prev = None
            return
        self.prev, self.k = prev, k
    def __call__(self, idx):
        if not self.on: return
        if self.on == 'lite' and idx not in (0, 15): return
        if idx >= 23 and self.on != 'heavy': return
        A = self.A
        if self.on == 'heavy' and self.prev is not None:
            A('s_waitcnt lgkmcnt(0)')
        if self.prev is not None:
            A(f'v_writelane_b32 v{vPROF}, s{28 + 2*self.k}, {self.prev}')
            self.k ^= 1
        A(f's_memrealtime s[{28+2*self.k}:{29+2*self.k}]')
        self.prev = None if self.lite else idx
    def flush(self):
        if not self.on: return
        if self.prev is None: return
        A = self.A
        A('s_waitcnt lgkmcnt(0)')
        A(f'v_writelane_b32 v{vPROF}, s{28 + 2*self.k}, {self.prev}')

def common_consts(A):
    A(f's_mov_b32 s{sLOG2E}, 0x3fb8aa3b')
    A(f's_mov_b32 s{sSCALE}, 0x3db504f3')
    A(f's_mov_b32 s{sMSK}, 0xffffff00')
    A(f's_mov_b32 s{sP01}, 0x0c0c0400')
    A(f's_mov_b32 s{sP23}, 0x04000c0c')
    A(f's_mov_b32 s{sI0}, 0x07060500')
    A(f's_mov_b32 s{sI1}, 0x07060501')
    A(f's_mov_b32 s{sI2}, 0x07060502')
    A(f's_mov_b32 s{sI3}, 0x07060503')

def poll_tail(A, cfg, label, oklabel, switch=None):
    A('s_cmp_eq_u64 s[88:89], 0')
    A(f's_cbranch_scc1 {oklabel}')
    A(f's_add_u32 s{sIT}, s{sIT}, 1')
    if switch:
        A(f's_cmp_eq_u32 s{sIT}, {cfg.swit}')
        A(f's_cselect_b32 s{switch}, {BDELTA}, s{switch}')
    A(f's_cmp_le_u32 s{sIT}, {cfg.maxit}')
    A(f's_cbranch_scc1 {label}')

def gen(cfg):
    A = Asm()
    P = Prof(A, cfg)
    nt = cfg.nt
    A('.amdgcn_target "amdgcn-amd-amdhsa--gfx950"')
    A('.text')
    A(f'.globl {NAME}')
    A(f'.p2align {cfg.align}')
    A(f'.type {NAME},@function')
    A.label(NAME)
    A('s_cmp_ge_u32 s2, 256')
    A('s_cbranch_scc1 L_end')
    P(0)
    if cfg.calib:
        A('s_memrealtime s[36:37]')
    for sr, off in ((SWQ, 24), (SX, 0), (SWS, 88), (SK, 8)):
        A(f's_load_dwordx2 s[{sr}:{sr+1}], s[0:1], {off}')
    A('v_lshrrev_b32 v2, 6, v0')
    A('v_and_b32 v1, 63, v0')
    A('s_and_b32 s4, s2, 7')
    A('v_readfirstlane_b32 s3, v2')
    A('s_lshr_b32 s5, s2, 3')
    A(f's_lshr_b32 s{sRB}, s5, 3')
    A(f's_and_b32 s{sCB}, s5, 7')
    for sr, n in ((SWQ, 4194304), (SX, 1024), (SWS, WS_BYTES), (SK, 134217728)):
        A(f's_mov_b32 s{sr+2}, {n}')
        A(f's_mov_b32 s{sr+3}, ' + ('0x20000' if sr == SWQ else f's{SWQ+3}'))
    common_consts(A)
    A('s_cmp_ge_u32 s3, 4')
    A('s_cbranch_scc1 L_comm0')
    def kcalc():
        A('v_lshrrev_b32 v2, 4, v1')
        A('v_and_b32 v3, 15, v1')
        A('v_xor_b32 v5, v2, v3')
        A('v_lshlrev_b32 v5, 4, v5')
        A('v_lshl_add_u32 v156, v2, 8, v5')
        for i in range(1, 4):
            A(f'v_xor_b32 v{156+i}, {64*i}, v156')
        A('s_lshl_b32 s19, s4, 24')
        A('s_lshl_b32 s11, s5, 15')
        A('s_add_u32 s19, s19, s11')
        A('s_lshl_b32 s20, s3, 13')
        A('s_add_u32 s19, s19, s20')
        A('s_add_u32 s19, s19, 15728640')
        A('s_and_b32 s25, s4, 1')
        A('s_lshl_b32 s25, s25, 12')
        A('s_xor_b32 s26, s25, 4096')
        A('s_add_u32 s27, s19, s26')
        A('s_add_u32 s19, s19, s25')
        A('s_add_u32 s25, s25, s20')
        A('s_add_u32 s26, s26, s20')
        A('s_mov_b32 m0, s25')
    A(f's_lshl_b32 s12, s{sRB}, 20')
    A('s_lshl_b32 s11, s3, 18')
    A('s_add_u32 s12, s12, s11')
    A('s_lshl_b32 s11, s4, 10')
    A('s_add_u32 s12, s12, s11')
    A(f's_lshl_b32 s11, s{sCB}, 7')
    A('s_add_u32 s12, s12, s11')
    A('v_lshlrev_b32 v163, 4, v1')
    A('v_lshrrev_b32 v164, 3, v1')
    A('v_and_b32 v4, 0x70, v163')
    A('v_lshl_add_u32 v6, v164, 13, v4')
    A(f'v_mov_b32 v7, {EOFF}')
    A('s_add_u32 s13, s12, 65536')
    A('s_add_u32 s14, s12, 131072')
    A('s_add_u32 s15, s12, 196608')
    if cfg.kearly:
        kcalc()
    A('s_waitcnt lgkmcnt(0)')
    P(27)
    if cfg.xone is not None:
        A(f's_cmp_lg_u32 s3, {cfg.xone}')
        A('s_cbranch_scc1 L_nox')
    A(f'buffer_load_dwordx4 v[8:11], v163, {srd(SX)}, 0 offen {cfg.xnt}')
    if cfg.xone is not None:
        A.label('L_nox')
    if not cfg.elate:
        A(f'buffer_load_dword v{vTAG}, v7, {srd(SWS)}, 0 offen {cfg.xnt}')
    for i in range(4):
        A(f'buffer_load_dwordx4 {vr(12+4*i)}, v6, {srd(SWQ)}, s{12+i} offen {nt}')
    if cfg.elate:
        A(f'buffer_load_dword v{vTAG}, v7, {srd(SWS)}, 0 offen {cfg.xnt}')
    for sr, off in ((SV, 16), (SGA, 48), (SUP, 56), (SWO, 32), (SDN, 64)):
        A(f's_load_dwordx2 s[{sr}:{sr+1}], s[0:1], {off}')
    if not cfg.kearly:
        kcalc()
        A.nop(1)
    def kloads(lo, hi):
        for i in range(lo, hi):
            if i == 4:
                A('s_mov_b32 m0, s26')
                A.nop(1)
            A(f'buffer_load_dwordx4 v{156+(i&3)}, {srd(SK)}, s{19 if i < 4 else 27} offen offset:{1024*(i&3)} {nt} lds')
    kloads(0, cfg.nk1)
    A('v_mul_u32_u24 v162, 3584, v164')
    A('v_add_u32 v161, v162, v4')
    A(f's_lshl_b32 s{sT}, s{sRB}, 3')
    A(f's_add_u32 s{sT}, s{sT}, s4')
    A(f's_cmp_lt_u32 s{sT}, 28')
    A('s_cselect_b32 s9, 1835008, 0')
    for sr, n in ((SV, f's{SK+2}'), (SWO, f's{SWQ+2}')):
        A(f's_mov_b32 s{sr+2}, {n}')
        A(f's_mov_b32 s{sr+3}, s{SWQ+3}')
    for sr in (SGA, SUP, SDN):
        A(f's_mov_b32 s{sr+2}, s9')
        A(f's_mov_b32 s{sr+3}, s{SWQ+3}')
    A('s_branch L_cmp_go')
    A.label('L_comm0')
    if cfg.codepf:
        A('s_cmp_eq_u32 s3, 5')
        A('s_cbranch_scc0 L_nocodepf')
        A('s_getpc_b64 s[12:13]')
        A.label('L_pc')
        A(f's_sub_u32 s12, s12, L_pc-{NAME}')
        A('s_subb_u32 s13, s13, 0')
        A('s_lshl_b32 s14, s5, 6')
        A('s_add_u32 s12, s12, s14')
        A('s_addc_u32 s13, s13, 0')
        for i in range(cfg.codepf_n - 1):
            A(f's_load_dword s{32+(i&3)}, s[12:13], {2048*i}')
        A(f's_add_u32 s15, s14, {2048*(cfg.codepf_n-1)}')
        A(f's_min_u32 s15, s15, L_end-{NAME}')
        A('s_sub_u32 s15, s15, s14')
        A('s_load_dword s35, s[12:13], s15')
        A.label('L_nocodepf')
    if cfg.prio:
        A(f's_setprio {cfg.prio}')
    A('s_branch L_comm')
    A.label('L_cmp_go')
    for m, lo in ((M0, 0x03030303), (M1, 0x0c0c0c0c), (M2, 0x30303030), (M3, 0xc0c0c0c0)):
        A(f's_mov_b32 s{m}, {hex(lo)}')
        A(f's_mov_b32 s{m+1}, s{m}')
    A(f'v_and_b32 v{vSH}, 1, v1')
    A(f'v_lshlrev_b32 v{vSH}, 4, v{vSH}')
    A(f's_lshl_b32 s17, s{sCB}, 6')
    A('s_lshl_b32 s11, s3, 4')
    A('s_add_u32 s17, s17, s11')
    A('s_mul_i32 s17, s17, 3584')
    A(f's_lshl_b32 s11, s{sT}, 7')
    A('s_add_u32 s17, s17, s11')
    A('s_lshl_b32 s21, s4, 19')
    A('s_lshr_b32 s11, s5, 2')
    A('s_lshl_b32 s12, s11, 16')
    A('s_add_u32 s21, s21, s12')
    A('s_lshl_b32 s12, s3, 14')
    A('s_add_u32 s21, s21, s12')
    A('s_and_b32 s23, s5, 3')
    A('s_lshl_b32 s23, s23, 8')
    A('s_add_u32 s21, s21, s23')
    A(f's_lshl_b32 s22, s{sT}, 16')
    A('s_and_b32 s11, s11, 1')
    A('s_lshl_b32 s11, s11, 15')
    A('s_add_u32 s22, s22, s11')
    A('s_lshl_b32 s12, s3, 13')
    A('s_add_u32 s22, s22, s12')
    A('s_add_u32 s22, s22, s23')
    A('v_lshlrev_b32 v162, 4, v3')
    A('v_lshl_add_u32 v162, v2, 10, v162')
    P(1)
    A('v_lshrrev_b32 v105, 3, v3')
    A('v_lshl_add_u32 v105, v2, 1, v105')
    A(f's_lshl_b32 s11, s{sRB}, 7')
    A('s_lshl_b32 s12, s3, 5')
    A('s_add_u32 s11, s11, s12')
    A('s_lshl_b32 s11, s11, 1')
    A(f's_add_u32 s11, s11, {L_XN}')
    A('v_lshl_add_u32 v106, v105, 1, s11')
    A(f's_lshl_b32 s11, s{sCB}, 6')
    A('s_lshl_b32 s12, s3, 4')
    A('s_add_u32 s11, s11, s12')
    A('s_lshl_b32 s11, s11, 1')
    A(f's_add_u32 s11, s11, {L_XN}')
    A('v_lshl_add_u32 v107, v105, 1, s11')
    A.c('layernorm')
    if cfg.xone is not None:
        A(f's_cmp_lg_u32 s3, {cfg.xone}')
        A('s_cbranch_scc1 L_noln')
    A(f's_waitcnt vmcnt({4 + cfg.nk1 + (1 if cfg.elate else 0)})')
    P(2)
    for k in range(4):
        A(f'v_lshlrev_b32 v{80+2*k}, 16, v{8+k}')
        A(f'v_and_b32 v{81+2*k}, 0xffff0000, v{8+k}')
    A('v_add_f32 v88, v80, v81')
    A('v_add_f32 v89, v82, v83')
    A('v_add_f32 v90, v84, v85')
    A('v_add_f32 v91, v86, v87')
    A('v_add_f32 v88, v88, v89')
    A('v_add_f32 v90, v90, v91')
    A('v_add_f32 v88, v88, v90')
    wave_allreduce(A, 88, 89, 'v_add_f32')
    A('v_mul_f32 v88, 0x3b000000, v88')
    for k in range(8):
        A(f'v_sub_f32 v{92+k}, v{80+k}, v88')
    A('v_mul_f32 v90, v92, v92')
    for k in range(1, 8):
        A(f'v_fmac_f32 v90, v{92+k}, v{92+k}')
    wave_allreduce(A, 90, 89, 'v_add_f32')
    P(23)
    A('v_mul_f32 v90, 0x3b000000, v90')
    A('v_cvt_pk_bf16_f32 v88, v88, v90')
    A('v_and_b32 v90, 0xffff0000, v88')
    A('v_lshlrev_b32 v88, 16, v88')
    A('v_add_f32 v90, 0x3727c5ac, v90')
    A('v_cvt_pk_bf16_f32 v90, v90, v90')
    A('v_lshlrev_b32 v90, 16, v90')
    A('v_sqrt_f32 v90, v90')
    for k in range(8):
        A(f'v_sub_f32 v{92+k}, v{80+k}, v88')
    A('v_cvt_pk_bf16_f32 v90, v90, v90')
    A('v_lshlrev_b32 v90, 16, v90')
    A('v_rcp_f32 v90, v90')
    for k in range(4):
        A(f'v_cvt_pk_bf16_f32 v{100+k}, v{92+2*k}, v{93+2*k}')
    for k in range(4):
        A(f'v_lshlrev_b32 v{92+2*k}, 16, v{100+k}')
        A(f'v_and_b32 v{93+2*k}, 0xffff0000, v{100+k}')
    for k in range(8):
        A(f'v_mul_f32 v{92+k}, v{92+k}, v90')
    for k in range(4):
        A(f'v_cvt_pk_bf16_f32 v{100+k}, v{92+2*k}, v{93+2*k}')
    A(f'v_add_u32 v104, {L_XN}, v163')
    A('ds_write_b128 v104, v[100:103]')
    P(24)
    if cfg.xone is not None:
        A.label('L_noln')
        A('s_waitcnt lgkmcnt(0)')
        A('s_barrier')
    A('s_waitcnt lgkmcnt(0)')
    for i in range(4):
        A(f'ds_read_u16 v{80+i}, v106 offset:{16*i}')
    for i in range(2):
        A(f'ds_read_u16 v{84+i}, v107 offset:{16*i}')
    if not cfg.elate:
        A(f'v_add_u32 v{vTAG}, 0x01010101, v{vTAG}')
    P(25)
    kloads(cfg.nk1, 8)
    P(26)
    if not cfg.elate:
        A.nop(1)
        A(f'v_readfirstlane_b32 s6, v{vTAG}')
    A('s_waitcnt lgkmcnt(0)')
    for i in range(4):
        build_sel(A, 48+4*i, 80+i, 86)
    for i in range(2):
        build_sel(A, 64+4*i, 84+i, 86)
    A('v_lshlrev_b32 v86, 1, v2')
    A('v_xor_b32 v86, v86, v3')
    A('v_lshlrev_b32 v86, 4, v86')
    A('v_lshl_add_u32 v160, v2, 8, v86')
    A('v_xor_b32 v164, 128, v160')
    A('v_lshrrev_b32 v87, 5, v1')
    A('v_lshlrev_b32 v87, 8, v87')
    A('v_and_b32 v86, 7, v1')
    A('v_lshl_add_u32 v87, v86, 5, v87')
    A('v_and_b32 v86, 1, v2')
    A('v_lshl_add_u32 v87, v86, 4, v87')
    A('s_lshl_b32 s11, s3, 9')
    A(f's_add_u32 s11, s11, {L_PART}')
    A('v_add_u32 v163, s11, v87')
    P(3)
    A.c('q partial product')
    A('s_waitcnt vmcnt(8)')
    P(16)
    if cfg.elate:
        A(f'v_add_u32 v{vTAG}, 0x01010101, v{vTAG}')
    for i in range(4):
        A(f'v_mfma_f32_16x16x32_bf16 v[72:75], {vr(48+4*i)}, {vr(12+4*i)}, {"0" if i == 0 else "v[72:75]"}')
    A('s_mov_b32 exec_lo, 0x00ff00ff')
    A('s_mov_b32 exec_hi, 0xff00ff00')
    A.nop(6)
    A('ds_write_b128 v163, v[72:75]')
    A('s_mov_b64 exec, -1')
    if cfg.elate:
        A(f'v_readfirstlane_b32 s6, v{vTAG}')
    A('s_waitcnt lgkmcnt(0)')
    A('s_barrier')
    P(4)
    A('s_cmp_lg_u32 s3, 3')
    A('s_cbranch_scc1 L_pub1_done')
    A('v_lshlrev_b32 v86, 4, v3')
    A(f'v_add_u32 v87, {L_PART}, v86')
    for k in range(8):
        A(f'ds_read_b128 {vr(80+4*k+32)}, v87 offset:{256*k}')
    A('s_lshl_b32 s11, s4, 2')
    A(f's_add_u32 s11, s11, s{sRB}')
    A('s_lshl_b32 s11, s11, 11')
    A(f's_lshl_b32 s12, s{sCB}, 8')
    A('s_add_u32 s11, s11, s12')
    A(f's_add_u32 s11, s11, {QA}')
    A('v_add_u32 v86, s11, v86')
    A('s_lshl_b32 s12, s4, 9')
    A('s_lshl_b32 s13, s5, 4')
    A('s_add_u32 s12, s12, s13')
    A(f's_add_u32 s12, s12, {IDA}')
    A('v_mov_b32 v87, s12')
    A('v_cmp_eq_u32 vcc, 0, v2')
    A('s_getreg_b32 s13, hwreg(HW_REG_XCC_ID, 0, 4)')
    A('s_lshl_b32 s13, s13, 8')
    A('v_cndmask_b32 v86, v87, v86, vcc')
    A('s_waitcnt lgkmcnt(0)')
    for k in range(4):
        A(f'v_add_f32 v{112+k}, v{112+k}, v{116+k}')
        A(f'v_add_f32 v{120+k}, v{120+k}, v{124+k}')
        A(f'v_add_f32 v{128+k}, v{128+k}, v{132+k}')
        A(f'v_add_f32 v{136+k}, v{136+k}, v{140+k}')
    for k in range(4):
        A(f'v_add_f32 v{112+k}, v{112+k}, v{120+k}')
        A(f'v_add_f32 v{128+k}, v{128+k}, v{136+k}')
    for k in range(4):
        A(f'v_add_f32 v{112+k}, v{112+k}, v{128+k}')
    A('v_mov_b32 v116, s13')
    A('v_cndmask_b32 v112, v116, v112, vcc')
    tag_insert(A, 112)
    A('s_mov_b32 exec_lo, 0x0001ffff')
    A('s_mov_b32 exec_hi, 0')
    if not cfg.forceb:
        A(f'buffer_store_dwordx4 v[112:115], v86, {srd(SWS)}, 0 offen')
    A(f's_mov_b32 s12, {BDELTA}')
    A(f'buffer_store_dwordx4 v[112:115], v86, {srd(SWS)}, s12 offen sc1')
    A('s_mov_b64 exec, -1')
    A.label('L_pub1_done')
    if cfg.b1a:
        A('s_barrier')
    nst = (1 if cfg.forceb else 2)
    A.c('gate/up loads, V loads')
    A('s_add_u32 s18, s17, 28672')
    A(f'buffer_load_dwordx4 {vr(8)}, v161, {srd(SGA)}, s17 offen {nt}')
    A(f'buffer_load_dwordx4 {vr(12)}, v161, {srd(SGA)}, s18 offen {nt}')
    A(f'buffer_load_dwordx4 {vr(16)}, v161, {srd(SUP)}, s17 offen {nt}')
    A(f'buffer_load_dwordx4 {vr(20)}, v161, {srd(SUP)}, s18 offen {nt}')
    def vloads(lo, hi, win=None):
        for i in range(lo, hi):
            if win:
                A(f's_waitcnt vmcnt({win-1})')
            if i % 4 == 0 or i == lo:
                A(f's_add_u32 m0, s{25 if i < 4 else 26}, {L_V}')
                A.nop(1)
            A(f'buffer_load_dwordx4 v{(160, 164)[i&1]}, {srd(SV)}, s{19 if i < 4 else 27} offen offset:{1024*(i&3)} {nt} lds')
    vloads(0, cfg.nv1)
    if cfg.kwait is not None:
        A('s_cmp_eq_u32 s3, 3')
        A('s_cbranch_scc1 L_nokwait')
        A(f's_waitcnt vmcnt({cfg.kwait + cfg.nv1})')
        A.label('L_nokwait')
    if cfg.b1b:
        A('s_barrier')
    P(5)
    A('v_and_b32 v85, 1, v2')
    A('v_lshrrev_b32 v86, 1, v2')
    A('v_lshl_or_b32 v85, v85, 1, v86')
    A('v_lshlrev_b32 v86, 4, v3')
    A('v_lshl_add_u32 v161, v85, 10, v86')
    A('v_xor_b32 v86, v2, v3')
    A('v_lshlrev_b32 v86, 4, v86')
    A('v_lshl_add_u32 v156, v3, 8, v86')
    A('v_add_u32 v156, s20, v156')
    for j in range(1, 4):
        A(f'v_xor_b32 v{156+j}, {64*j}, v156')
    A('v_and_b32 v86, 3, v1')
    A('v_mul_u32_u24 v86, 272, v86')
    A('v_lshl_add_u32 v4, v2, 4, v86')
    A(f'v_add_u32 v4, {L_QB}, v4')
    if cfg.b1c:
        vloads(cfg.nv1, cfg.nv2)
        A('s_barrier')
        vloads(cfg.nv2, 8)
    else:
        vloads(cfg.nv1, 8, cfg.win)
    def tail_loads(pos):
        n = 0
        for i, p in enumerate(cfg.tpos):
            if p != pos:
                continue
            n += 1
            if i < 4:
                if cfg.worot:
                    A(f'buffer_load_dwordx4 {vr(24+4*i)}, v161, {srd(SWO)}, s{32+i} offen {nt}')
                else:
                    A(f's_add_u32 s13, s21, {4096*i}')
                    A(f'buffer_load_dwordx4 {vr(24+4*i)}, v161, {srd(SWO)}, s13 offen {nt}')
            else:
                if cfg.worot:
                    A(f'buffer_load_dwordx4 {vr(40+4*(i-4))}, v162, {srd(SDN)}, s{36+(i-4)} offen {nt}')
                else:
                    A(f's_add_u32 s13, s22, {4096*(i-4)}')
                    A(f'buffer_load_dwordx4 {vr(40+4*(i-4))}, v162, {srd(SDN)}, s13 offen {nt}')
        return n
    nearly = 0
    nearly += tail_loads(1)
    A.c('addresses for the attention tail (computed while the loads are in flight)')
    if cfg.worot:
        A('s_add_u32 s38, s4, s3')
        A('s_and_b32 s38, s38, 3')
        for i in range(4):
            A(f's_add_u32 s11, s38, {i}')
            A('s_and_b32 s11, s11, 3')
            A('s_lshl_b32 s11, s11, 12')
            A(f's_add_u32 s{32+i}, s21, s11')
        A('s_and_b32 s11, s38, 1')
        A('s_lshl_b32 s11, s11, 12')
        A('s_add_u32 s36, s22, s11')
        A('s_xor_b32 s11, s11, 4096')
        A('s_add_u32 s37, s22, s11')
    A('v_lshrrev_b32 v84, 2, v3')
    A('v_lshl_add_u32 v85, v2, 2, v84')
    A('v_and_b32 v84, 7, v85')
    A('v_lshlrev_b32 v85, 8, v85')
    A('v_lshl_add_u32 v85, v84, 5, v85')
    A('v_and_b32 v84, 3, v3')
    A('v_lshl_add_u32 v85, v84, 3, v85')
    A(f'v_add_u32 v85, {L_V}, v85')
    A('s_lshl_b32 s11, s3, 6')
    A('v_xor_b32 v48, s11, v85')
    A('v_xor_b32 v49, 32, v48')
    A('v_and_b32 v84, 3, v3')
    A('v_lshlrev_b32 v84, 14, v84')
    A('v_bfe_u32 v85, v3, 2, 1')
    A(f'v_lshl_add_u32 v84, v85, {6 if cfg.oline else 11}, v84')
    A('v_lshl_add_u32 v84, v2, 4, v84')
    A('s_lshl_b32 s11, s4, 16')
    A('s_lshl_b32 s12, s3, 12')
    A('s_add_u32 s11, s11, s12')
    A(f's_lshl_b32 s12, s5, {7 if cfg.oline else 6}')
    A('s_add_u32 s11, s11, s12')
    A(f's_add_u32 s11, s11, {OIO}')
    A('v_add_u32 v50, s11, v84')
    A('s_lshr_b32 s14, s5, 3')
    A('s_lshl_b32 s11, s4, 2')
    A('s_add_u32 s11, s11, s14')
    A('s_lshl_b32 s12, s11, 9')
    A(f's_add_u32 s12, s12, {MLO}')
    A('v_lshrrev_b32 v84, 2, v1')
    A('v_lshl_add_u32 v52, v84, 4, s12')
    A('s_bfe_u32 s12, s5, 0x10002')
    if cfg.oline:
        A('s_lshl_b32 s11, s11, 14')
        A('s_lshl_b32 s13, s12, 2')
        A('s_add_u32 s13, s13, s3')
        A('s_lshr_b32 s15, s13, 1')
        A('s_lshl_b32 s15, s15, 12')
        A('s_add_u32 s11, s11, s15')
        A('s_and_b32 s13, s13, 1')
        A('s_lshl_b32 s13, s13, 6')
        A('s_add_u32 s11, s11, s13')
        A(f's_add_u32 s11, s11, {OIO}')
        A('v_lshrrev_b32 v84, 2, v1')
        A('v_lshlrev_b32 v84, 7, v84')
        A('v_and_b32 v85, 3, v1')
        A('v_lshl_add_u32 v84, v85, 4, v84')
        A('v_add_u32 v51, s11, v84')
    else:
        A('s_lshl_b32 s11, s11, 3')
        A('s_lshl_b32 s13, s12, 2')
        A('s_add_u32 s11, s11, s13')
        A('s_add_u32 s11, s11, s3')
        A('s_lshl_b32 s11, s11, 11')
        A(f's_add_u32 s11, s11, {OIO}')
        if cfg.worot:
            A('v_add_u32 v84, s38, v1')
            A('v_and_b32 v84, 3, v84')
            A('v_and_b32 v85, 0x3c, v1')
            A('v_or_b32 v84, v84, v85')
            A('v_lshl_add_u32 v51, v84, 4, s11')
        else:
            A('v_lshl_add_u32 v51, v1, 4, s11')
    A('s_lshl_b32 s11, s4, 2')
    A('s_add_u32 s11, s11, s14')
    A('s_lshl_b32 s11, s11, 12')
    A('s_lshl_b32 s12, s12, 7')
    A('s_add_u32 s11, s11, s12')
    A('s_lshl_b32 s12, s3, 5')
    A('s_add_u32 s11, s11, s12')
    A(f's_add_u32 s11, s11, {GUO}')
    A('v_bfe_u32 v84, v1, 2, 3')
    A('v_lshlrev_b32 v84, 9, v84')
    A('v_bfe_u32 v85, v1, 1, 1')
    A('v_lshl_add_u32 v84, v85, 8, v84')
    if cfg.worot:
        A('v_xor_b32 v85, s38, v1')
        A('v_and_b32 v85, 1, v85')
    else:
        A('v_and_b32 v85, 1, v1')
    A('v_lshl_add_u32 v84, v85, 4, v84')
    A('v_add_u32 v53, s11, v84')
    A('v_mul_u32_u24 v54, 0x020202, v2')
    A('v_lshlrev_b32 v84, 25, v2')
    A('v_add_u32 v54, v54, v84')
    A('v_add_u32 v54, 0x01000100, v54')
    A('v_and_b32 v84, 1, v1')
    A('v_mov_b32 v85, 0xffff')
    A('v_lshlrev_b32 v84, 4, v84')
    A('v_lshlrev_b32 v84, v84, v85')
    for jj, m in enumerate((M0, M1, M2, M3)):
        A(f'v_cndmask_b32_e64 v{136+jj}, 0, v84, s[{m}:{m+1}]')
    A('v_and_b32 v84, 3, v1')
    A('s_lshl_b32 s11, s3, 2')
    A(f's_add_u32 s11, s11, {L_MW}')
    A('v_lshl_add_u32 v55, v84, 4, s11')
    A('v_lshlrev_b32 v84, 4, v84')
    A(f'v_add_u32 v56, {L_MW}, v84')
    A('v_lshlrev_b32 v84, 4, v1')
    A('s_lshl_b32 s11, s3, 10')
    A(f's_add_u32 s11, s11, {L_PB}')
    A('v_add_u32 v57, s11, v84')
    A(f'v_add_u32 v58, {L_PB}, v84')
    A('v_lshrrev_b32 v60, 2, v1')
    A('v_lshlrev_b32 v60, 12, v60')
    A('v_and_b32 v61, 3, v1')
    A('v_lshl_add_u32 v60, v61, 4, v60')
    A('s_and_b32 s11, s5, 3')
    A('s_lshl_b32 s11, s11, 15')
    A('s_lshl_b32 s12, s4, 3')
    A('s_lshr_b32 s13, s5, 2')
    A('s_add_u32 s12, s12, s13')
    A('s_lshl_b32 s12, s12, 6')
    A('s_add_u32 s11, s11, s12')
    A(f's_add_u32 s11, s11, {FIN}')
    A('v_add_u32 v60, s11, v60')
    A('v_lshlrev_b32 v62, 4, v1')
    A(f'v_add_u32 v62, {L_RED}, v62')
    A('v_lshlrev_b32 v85, 5, v3')
    A('v_lshl_add_u32 v85, v2, 4, v85')
    A('s_lshl_b32 s11, s3, 9')
    A(f's_add_u32 s11, s11, {L_RED}')
    A('v_add_u32 v59, s11, v85')
    A.c('gate/up partial products')
    P(17)
    A(f's_waitcnt vmcnt({8 + nearly})')
    P(18)
    for i in range(2):
        A(f'v_mfma_f32_16x16x32_bf16 v[72:75], {vr(64+4*i)}, {vr(8+4*i)}, {"0" if i == 0 else "v[72:75]"}')
    for i in range(2):
        A(f'v_mfma_f32_16x16x32_bf16 v[76:79], {vr(64+4*i)}, {vr(16+4*i)}, {"0" if i == 0 else "v[76:79]"}')
    A.nop(7)
    A('s_mov_b32 exec_lo, 0x00ff00ff')
    A('s_mov_b32 exec_hi, 0xff00ff00')
    A('ds_write_b128 v163, v[72:75] offset:2048')
    A('ds_write_b128 v163, v[76:79] offset:4096')
    A('s_mov_b64 exec, -1')
    A('s_waitcnt lgkmcnt(0)')
    P(6)
    A('s_barrier')
    P(7)
    A.c('scores')
    for j in range(4):
        A(f'ds_read_b128 {vr(112+4*j)}, v4 offset:{64*j}')
    for t in range(2):
        for j in range(4):
            A(f'ds_read_b128 {vr(80+16*t+4*j)}, v{156+j} offset:{L_K + 4096*t}')
    A(f'v_mov_b32 v6, {L_MODE}')
    A('ds_read_b32 v7, v6')
    tail_loads(2)
    for j in range(4):
        A(f's_waitcnt lgkmcnt({8-j})')
        A(f'v_mfma_f32_16x16x32_bf16 v[144:147], {vr(80+4*j)}, {vr(112+4*j)}, {"0" if j == 0 else "v[144:147]"}')
    for j in range(4):
        A(f's_waitcnt lgkmcnt({4-j})')
        A(f'v_mfma_f32_16x16x32_bf16 v[148:151], {vr(96+4*j)}, {vr(112+4*j)}, {"0" if j == 0 else "v[148:151]"}')
    A.nop(7)
    A('s_waitcnt lgkmcnt(0)')
    A('v_readfirstlane_b32 s24, v7')
    A.c('softmax')
    for k in range(4):
        A(f'v_cvt_pk_bf16_f32 v{152+k}, v{144+2*k}, v{145+2*k}')
    for k in range(4):
        A(f'v_lshlrev_b32 v{144+2*k}, 16, v{152+k}')
        A(f'v_and_b32 v{145+2*k}, 0xffff0000, v{152+k}')
    for k in range(8):
        A(f'v_mul_f32 v{144+k}, s{sSCALE}, v{144+k}')
    for k in range(4):
        A(f'v_cvt_pk_bf16_f32 v{152+k}, v{144+2*k}, v{145+2*k}')
    for k in range(4):
        A(f'v_lshlrev_b32 v{144+2*k}, 16, v{152+k}')
        A(f'v_and_b32 v{145+2*k}, 0xffff0000, v{152+k}')
    A('v_max3_f32 v82, v144, v145, v146')
    A('v_max3_f32 v83, v147, v148, v149')
    A('v_max3_f32 v82, v82, v150, v151')
    A('v_max_f32 v82, v82, v83')
    cross_rows(A, 82, 83, 'v_max_f32')
    A('s_mov_b64 exec, 15')
    A('ds_write_b32 v55, v82')
    A('s_mov_b64 exec, -1')
    tail_loads(25)
    A('s_waitcnt lgkmcnt(0)')
    A('s_barrier')
    tail_loads(26)
    P(8)
    A('ds_read_b128 v[84:87], v56')
    A('s_waitcnt lgkmcnt(0)')
    A('v_max3_f32 v82, v84, v85, v86')
    A('v_max_f32 v82, v82, v87')
    A(f'v_mul_f32 v83, s{sLOG2E}, v82')
    for k in range(8):
        A(f'v_fma_f32 v{144+k}, v{144+k}, s{sLOG2E}, -v83')
    for k in range(8):
        A(f'v_exp_f32 v{144+k}, v{144+k}')
    A.nop(1)
    for k in range(4):
        A(f'v_cvt_pk_bf16_f32 v{152+k}, v{144+2*k}, v{145+2*k}')
    A('v_add_f32 v84, v144, v145')
    A('v_add_f32 v85, v146, v147')
    A('ds_write_b128 v57, v[152:155]')
    A('v_add_f32 v86, v148, v149')
    A('v_add_f32 v87, v150, v151')
    A('v_add_f32 v84, v84, v85')
    A('v_add_f32 v86, v86, v87')
    A('v_add_f32 v84, v84, v86')
    cross_rows(A, 84, 85, 'v_add_f32')
    A('s_mov_b64 exec, 15')
    A(f'ds_write_b32 v55, v84 offset:{L_LW - L_MW}')
    A('s_mov_b64 exec, -1')
    tail_loads(3)
    P(9)
    A('s_waitcnt vmcnt(6) lgkmcnt(0)')
    A('s_barrier')
    P(10)
    A.c('PV over all 128 keys for tiles 2w, 2w+1')
    for ks in range(4):
        A(f'ds_read_b128 {vr(112+4*ks)}, v58 offset:{1024*ks}')
        for tt in range(2):
            base = 80 + (ks*2 + tt)*4
            A(f'ds_read_b64_tr_b16 v[{base}:{base+1}], v{48+tt} offset:{8192*ks}')
            A(f'ds_read_b64_tr_b16 v[{base+2}:{base+3}], v{48+tt} offset:{8192*ks + 4096}')
    for ks in range(4):
        for tt in range(2):
            base = 80 + (ks*2 + tt)*4
            left = 20 - (5*ks + 1 + 2*(tt+1))
            A(f's_waitcnt lgkmcnt({min(left, 15)})')
            A(f'v_mfma_f32_16x16x32_bf16 {vr(128+4*tt)}, {vr(base)}, {vr(112+4*ks)}, {"0" if ks == 0 else vr(128+4*tt)}')
    A('s_mov_b32 s12, 0x00f000f0')
    A('s_mov_b32 s13, 0x00f000f0')
    A('s_mov_b32 exec_lo, 0x00ff00ff')
    A('s_mov_b32 exec_hi, 0x00ff00ff')
    A.nop(4)
    for k in range(4):
        A(f'v_cndmask_b32_e64 v{128+k}, v{128+k}, v{132+k}, s[12:13]')
    tag_insert(A, 128)
    A('s_cmp_eq_u32 s24, 1')
    A('s_cbranch_scc0 L_opub_slow')
    A(f'buffer_store_dwordx4 v[128:131], v50, {srd(SWS)}, 0 offen')
    A('s_branch L_opub_done')
    A.label('L_opub_slow')
    A(f'buffer_store_dwordx4 v[128:131], v50, {srd(SWS)}, 0 offen sc1')
    A.label('L_opub_done')
    A('s_mov_b64 exec, -1')
    P(11)
    A.c('gather the partial attention outputs and the gate/up sums')
    if cfg.owait is not None:
        A(f's_waitcnt vmcnt({cfg.owait})')
        P(28)
    A(f's_mov_b32 s{sIT}, 0')
    A.label('L_ogat')
    A(f'buffer_load_dwordx4 v[80:83], v52, {srd(SWS)}, 0 offen {cfg.gat}')
    A(f'buffer_load_dwordx4 v[84:87], v52, {srd(SWS)}, 0 offen offset:256 {cfg.gat}')
    A(f'buffer_load_dwordx4 v[96:99], v53, {srd(SWS)}, 0 offen {cfg.gat}')
    A(f'buffer_load_dwordx4 v[88:91], v51, {srd(SWS)}, 0 offen {cfg.gat}')
    A(f'buffer_load_dwordx4 v[92:95], v51, {srd(SWS)}, 0 offen offset:{2048 if cfg.oline else 1024} {cfg.gat}')
    A('s_waitcnt vmcnt(0)')
    for q in range(5):
        tag_check(A, 80+4*q, 100, 101, q == 0)
    poll_tail(A, cfg, 'L_ogat', 'L_ook')
    A.label('L_ook')
    if cfg.prof in (True, 'heavy'):
        A(f'v_writelane_b32 v{vPROF}, s{sIT}, 21')
    P(12)
    if cfg.domask is True:
        mask_vals(A, 80, 2)
        mask_vals(A, 84, 2)
        mask_vals(A, 88, 12)
    else:
        mask_vals(A, 80, 1)
        mask_vals(A, 84, 1)
    A('v_max_f32 v100, v80, v84')
    for st in ('row_ror:8', 'row_ror:4'):
        for k in range(4):
            A(f'v_add_f32_dpp v{96+k}, v{96+k}, v{96+k} {st} row_mask:0xf bank_mask:0xf')
        A(f'v_max_f32_dpp v100, v100, v100 {st} row_mask:0xf bank_mask:0xf')
    for k in range(4):
        A(f'v_mov_b32 v{104+k}, v{96+k}')
    A('v_mov_b32 v101, v100')
    for k in range(4):
        A(f'v_permlane16_swap_b32 v{104+k}, v{96+k}')
    A('v_permlane16_swap_b32 v101, v100')
    for k in range(4):
        A(f'v_add_f32 v{96+k}, v{104+k}, v{96+k}')
    A('v_max_f32 v100, v101, v100')
    A('v_cvt_pk_bf16_f32 v104, v96, v97')
    A('v_mov_b32 v101, v100')
    A('v_cvt_pk_bf16_f32 v105, v98, v99')
    A('v_lshlrev_b32 v96, 16, v104')
    A('v_permlane32_swap_b32 v101, v100')
    A('v_and_b32 v97, 0xffff0000, v104')
    A('v_max_f32 v100, v101, v100')
    A('v_lshlrev_b32 v98, 16, v105')
    A('v_and_b32 v99, 0xffff0000, v105')
    A('v_sub_f32 v80, v80, v100')
    A('v_sub_f32 v84, v84, v100')
    A(f'v_mul_f32 v80, s{sLOG2E}, v80')
    A(f'v_mul_f32 v84, s{sLOG2E}, v84')
    A('v_exp_f32 v80, v80')
    A('v_exp_f32 v84, v84')
    for k in range(4):
        A(f'v_mul_f32_dpp v{104+k}, v{96+k}, v{96+k} quad_perm:[2,3,0,1] row_mask:0xf bank_mask:0xf')
    A('v_mul_f32 v102, v80, v81')
    A('v_fmac_f32 v102, v84, v85')
    for k in range(4):
        A(f'v_mul_f32 v{88+k}, v80, v{88+k}')
    for k in range(4):
        A(f'v_fmac_f32 v{88+k}, v84, v{92+k}')
    A('v_cvt_pk_bf16_f32 v96, v104, v105')
    A('v_cvt_pk_bf16_f32 v97, v106, v107')
    A('v_permlane32_swap_b32 v88, v89')
    A('v_permlane32_swap_b32 v90, v91')
    A('v_perm_b32 v98, v97, v96, v54')
    A('v_add_f32 v88, v88, v89')
    A('v_add_f32 v90, v90, v91')
    A('v_mov_b32 v103, v102')
    for i in range(2):
        for jj in range(4):
            A(f'v_and_b32_dpp v{64+4*i+jj}, v98, v{136+jj} quad_perm:[{i},{i},{i},{i}] row_mask:0xf bank_mask:0xf')
        if i == 0:
            A('v_permlane16_swap_b32 v88, v90')
            A('v_permlane16_swap_b32 v103, v102')
    A('v_add_f32 v88, v88, v90')
    A('v_add_f32 v102, v103, v102')
    A('v_mfma_f32_16x16x32_bf16 v[72:75], v[64:67], v[40:43], 0')
    A('v_mov_b32 v103, v102')
    A(f'v_add_f32_dpp v88, v88, v88 row_ror:8 row_mask:0xf bank_mask:0xf')
    A('v_mfma_f32_16x16x32_bf16 v[72:75], v[68:71], v[44:47], v[72:75]')
    A('v_permlane32_swap_b32 v103, v102')
    A(f'v_add_f32_dpp v88, v88, v88 row_ror:4 row_mask:0xf bank_mask:0xf')
    A('v_add_f32 v102, v103, v102')
    A.nop(2)
    A(f'v_add_f32_dpp v102, v102, v102 row_ror:8 row_mask:0xf bank_mask:0xf')
    A.nop(2)
    A(f'v_add_f32_dpp v102, v102, v102 row_ror:4 row_mask:0xf bank_mask:0xf')
    A.nop(1)
    A('v_rcp_f32 v102, v102')
    A.nop(1)
    A('v_mul_f32 v88, v88, v102')
    A('v_cvt_pk_bf16_f32 v88, v88, v88')
    A.nop(2)
    for i in range(4):
        for jj in range(4):
            A(f'v_and_b32_dpp v{112+4*i+jj}, v88, v{136+jj} quad_perm:[{i},{i},{i},{i}] row_mask:0xf bank_mask:0xf')
        if i:
            A(f'v_mfma_f32_16x16x32_bf16 v[72:75], {vr(112+4*(i-1))}, {vr(24+4*(i-1))}, v[72:75]')
    A.nop(1)
    A('v_mfma_f32_16x16x32_bf16 v[72:75], v[124:127], v[36:39], v[72:75]')
    A('s_mov_b32 exec_hi, 0')
    A.nop(7)
    A('ds_write_b128 v59, v[72:75]')
    A('s_mov_b64 exec, -1')
    A('s_waitcnt lgkmcnt(0)')
    A('s_barrier')
    P(13)
    A('s_cmp_lg_u32 s3, 0')
    A('s_cbranch_scc1 L_cmp_end')
    for w in range(4):
        A(f'ds_read_b128 {vr(88+4*w)}, v62 offset:{512*w}')
    A('s_waitcnt lgkmcnt(2)')
    for k in range(4):
        A(f'v_add_f32 v{88+k}, v{88+k}, v{92+k}')
    A('s_waitcnt lgkmcnt(0)')
    for k in range(4):
        A(f'v_add_f32 v{96+k}, v{96+k}, v{100+k}')
    for k in range(4):
        A(f'v_add_f32 v{88+k}, v{88+k}, v{96+k}')
    tag_insert(A, 88)
    A('s_mov_b32 exec_hi, 0')
    A(f'buffer_store_dwordx4 v[88:91], v60, {srd(SWS)}, 0 offen {cfg.fpub}')
    A('s_mov_b64 exec, -1')
    A.label('L_cmp_end')
    P(14)
    P.flush(); P.reset()
    A('s_branch L_done')
    A.label('L_comm')
    P.reset(prev=0, k=0)
    P(1)
    A(f's_load_dwordx2 s[{SOUT}:{SOUT+1}], s[0:1], 72')
    A(f's_mov_b32 s{SOUT+2}, s{SX+2}')
    A(f's_mov_b32 s{SOUT+3}, s{SWQ+3}')
    A(f's_lshl_b32 s{sT}, s{sRB}, 3')
    A(f's_add_u32 s{sT}, s{sT}, s4')
    A('v_lshrrev_b32 v2, 4, v1')
    A('v_and_b32 v3, 15, v1')
    A(f'v_mov_b32 v4, {EOFF}')
    if cfg.exp_dirty:
        A('s_cmp_eq_u32 s3, 4')
        A('s_cbranch_scc0 L_nodirty')
        A('s_waitcnt lgkmcnt(0)')
        A(f's_mov_b32 s{SWS+2}, 0x2000000')
        A(f's_mul_i32 s11, s2, {cfg.exp_dirty*1024}')
        A('s_add_u32 s11, s11, 0x400000')
        A('v_lshlrev_b32 v20, 4, v1')
        for i in range(cfg.exp_dirty):
            A(f'buffer_store_dwordx4 v[16:19], v20, {srd(SWS)}, s11 offen')
            A('s_add_u32 s11, s11, 1024')
        A.label('L_nodirty')
    def pretouch():
        A('s_cmp_eq_u32 s3, 4')
        A('s_cbranch_scc0 L_nopre')
        A('s_waitcnt lgkmcnt(0)')
        A('s_lshl_b32 s11, s4, 5')
        A('s_add_u32 s11, s11, s5')
        A('s_lshl_b32 s12, s11, 11')
        A(f's_add_u32 s12, s12, {OIO}')
        A('v_lshl_add_u32 v10, v1, 7, s12')
        A('s_lshl_b32 s12, s11, 9')
        A(f's_add_u32 s12, s12, {GUO - 16*128}')
        A('v_lshl_add_u32 v11, v1, 7, s12')
        A('v_cmp_le_u32 vcc, 16, v1')
        A('s_lshl_b32 s12, s11, 8')
        A(f's_add_u32 s12, s12, {QA - 20*128}')
        A('v_cndmask_b32 v10, v10, v11, vcc')
        A('v_lshl_add_u32 v11, v1, 7, s12')
        A('v_cmp_le_u32 vcc, 20, v1')
        A('s_lshl_b32 s12, s4, 9')
        A('s_and_b32 s13, s5, 3')
        A('s_lshl_b32 s13, s13, 7')
        A('s_add_u32 s12, s12, s13')
        A(f's_add_u32 s12, s12, {IDA}')
        A('v_cndmask_b32 v10, v10, v11, vcc')
        A('v_mov_b32 v11, s12')
        A('v_cmp_le_u32 vcc, 22, v1')
        A('s_lshl_b32 s12, s4, 11')
        A('s_and_b32 s13, s5, 15')
        A('s_lshl_b32 s13, s13, 7')
        A('s_add_u32 s12, s12, s13')
        A(f's_add_u32 s12, s12, {MLO}')
        A('v_cndmask_b32 v10, v10, v11, vcc')
        A('v_mov_b32 v11, s12')
        A('v_cmp_le_u32 vcc, 23, v1')
        A.nop(2)
        A('v_cndmask_b32 v10, v10, v11, vcc')
        A('s_mov_b64 exec, 0xffffff')
        A(f'buffer_load_dword v12, v10, {srd(SWS)}, 0 offen {cfg.pre_fl}')
        A('s_mov_b64 exec, -1')
        A.label('L_nopre')
    if cfg.pretouch == 1:
        pretouch()
    if cfg.finpre == 1:
        A('s_cmp_eq_u32 s3, 5')
        A('s_cbranch_scc0 L_nofinpre')
        A('s_cmp_lt_u32 s2, 32')
        A('s_cbranch_scc0 L_nofinpre')
        A('s_waitcnt lgkmcnt(0)')
        A('s_lshl_b32 s11, s2, 14')
        A(f's_add_u32 s11, s11, {FIN}')
        A('v_lshl_add_u32 v10, v1, 7, s11')
        A('s_mov_b32 s12, 8192')
        A(f'buffer_load_dword v12, v10, {srd(SWS)}, 0 offen {cfg.finpre_fl}')
        A(f'buffer_load_dword v13, v10, {srd(SWS)}, s12 offen {cfg.finpre_fl}')
        A.label('L_nofinpre')
    elif cfg.finpre == 2:
        A('s_cmp_eq_u32 s3, 5')
        A('s_cbranch_scc0 L_nofinpre')
        A('s_waitcnt lgkmcnt(0)')
        A('s_lshl_b32 s11, s2, 11')
        A(f's_add_u32 s11, s11, {FIN}')
        A('v_lshl_add_u32 v10, v1, 7, s11')
        A('s_mov_b64 exec, 0xffff')
        A(f'buffer_load_dword v12, v10, {srd(SWS)}, 0 offen {cfg.finpre_fl}')
        A('s_mov_b64 exec, -1')
        A.label('L_nofinpre')
    A('s_lshl_b32 s11, s4, 13')
    A('s_sub_u32 s12, s3, 4')
    A('s_lshl_b32 s12, s12, 10')
    A('s_add_u32 s11, s11, s12')
    A(f's_add_u32 s11, s11, {QA}')
    A('v_lshlrev_b32 v6, 4, v1')
    A('v_add_u32 v6, s11, v6')
    A('s_lshl_b32 s11, s4, 9')
    A(f's_add_u32 s11, s11, {IDA}')
    A('v_and_b32 v7, 31, v1')
    A('v_lshl_add_u32 v7, v7, 4, s11')
    A('s_sub_u32 s12, s3, 4')
    A('s_lshl_b32 s12, s12, 1')
    A('v_lshrrev_b32 v8, 5, v1')
    A('v_add_u32 v8, s12, v8')
    A('v_mul_u32_u24 v8, 272, v8')
    A('v_and_b32 v9, 31, v1')
    A('v_lshl_add_u32 v8, v9, 3, v8')
    A(f'v_add_u32 v8, {L_QB}, v8')
    P(3)
    if cfg.xone is not None:
        A('s_barrier')
    A('s_barrier')
    P(4)
    if cfg.b1a:
        A('s_barrier')
    A('s_waitcnt lgkmcnt(0)')
    A(f'buffer_load_dword v5, v4, {srd(SWS)}, 0 offen {cfg.xnt}')
    A(f's_mov_b32 s{sIT}, 0')
    A('s_mov_b32 s14, 0')
    if cfg.b1b:
        A('s_barrier')
    P(5)
    def q_issue():
        A('s_add_u32 s15, s14, 4096')
        A(f'buffer_load_dwordx4 v[16:19], v6, {srd(SWS)}, s14 offen {cfg.gat}')
        A(f'buffer_load_dwordx4 v[20:23], v6, {srd(SWS)}, s14 offen offset:2048 {cfg.gat}')
        A(f'buffer_load_dwordx4 v[24:27], v6, {srd(SWS)}, s15 offen {cfg.gat}')
        A(f'buffer_load_dwordx4 v[28:31], v6, {srd(SWS)}, s15 offen offset:2048 {cfg.gat}')
        A(f'buffer_load_dwordx4 v[32:35], v7, {srd(SWS)}, s14 offen {cfg.gat}')
    def q_check():
        for q in range(5):
            tag_check(A, 16+4*q, 36, 37, q == 0)
    if cfg.b1c:
        q_issue()
        A('s_waitcnt vmcnt(0)')
        A('v_add_u32 v9, 0x01010101, v5')
        A.nop(1)
        A('v_readfirstlane_b32 s6, v9')
        q_check()
        A('s_cmp_eq_u64 s[88:89], 0')
        A('s_cbranch_scc1 L_qfirst_ok')
        q_issue()
        A('s_barrier')
        A(f's_mov_b32 s{sIT}, 1')
        A('s_branch L_qwait')
        A.label('L_qfirst_ok')
        A('s_barrier')
        A('s_branch L_qok')
        A.label('L_qgat')
        q_issue()
        A.label('L_qwait')
        A('s_waitcnt vmcnt(0)')
        q_check()
        poll_tail(A, cfg, 'L_qgat', 'L_qok', switch=14)
    else:
        A.label('L_qgat')
        q_issue()
        A('s_waitcnt vmcnt(0)')
        A('v_add_u32 v9, 0x01010101, v5')
        A.nop(1)
        A('v_readfirstlane_b32 s6, v9')
        q_check()
        poll_tail(A, cfg, 'L_qgat', 'L_qok', switch=14)
    A.label('L_qok')
    if cfg.prof in (True, 'heavy'):
        A(f'v_writelane_b32 v{vPROF}, s{sIT}, 20')
    P(6)
    mask_vals(A, 16, 16)
    for k in range(4):
        A(f'v_add_f32 v{16+k}, v{16+k}, v{20+k}')
        A(f'v_add_f32 v{24+k}, v{24+k}, v{28+k}')
    for k in range(4):
        A(f'v_add_f32 v{16+k}, v{16+k}, v{24+k}')
    A('v_cvt_pk_bf16_f32 v16, v16, v17')
    A('v_cvt_pk_bf16_f32 v17, v18, v19')
    A('ds_write_b64 v8, v[16:17]')
    if cfg.pretouch == 2:
        pretouch()
    A('s_getreg_b32 s13, hwreg(HW_REG_XCC_ID, 0, 4)')
    A('v_bfe_u32 v32, v32, 8, 8')
    A('v_cmp_ne_u32 vcc, s13, v32')
    A('s_cmp_eq_u64 vcc, 0')
    A('s_cselect_b32 s13, 1, 0')
    if cfg.forceslow:
        A('s_mov_b32 s13, 0')
    A('s_mov_b32 s24, s13')
    A('v_mov_b32 v33, s13')
    A(f'v_mov_b32 v34, {L_MODE}')
    A('s_cmp_eq_u32 s3, 5')
    A('s_cbranch_scc0 L_nomode')
    A('ds_write_b32 v34, v33')
    A.label('L_nomode')
    A('s_waitcnt lgkmcnt(0)')
    A('s_barrier')
    P(7)
    P.flush(); P.reset()
    A('s_lshl_b32 s11, s2, 12')
    A(f's_add_u32 s11, s11, {FIN}')
    A('v_lshl_add_u32 v60, v1, 4, s11')
    A('v_and_b32 v61, 1, v2')
    A('v_lshrrev_b32 v62, 1, v2')
    A('v_lshl_or_b32 v61, v61, 1, v62')
    A('v_and_b32 v62, 3, v1')
    A('v_lshl_add_u32 v61, v62, 2, v61')
    A('s_and_b32 s11, s2, 31')
    A('s_lshl_b32 s11, s11, 4')
    A('v_add_u32 v61, s11, v61')
    A('v_lshlrev_b32 v61, 1, v61')
    if cfg.poll2:
        A(f'v_mov_b32 v63, {L_FLAG}')
        A('v_mov_b32 v59, 0')
    A('s_cmp_eq_u32 s3, 5')
    A('s_cbranch_scc1 L_comm5')
    A(f'buffer_load_ushort v62, v61, {srd(SX)}, 0 offen')
    if cfg.poll2:
        A('ds_write_b32 v63, v59')
        A('s_waitcnt lgkmcnt(0)')
    if cfg.finpre2:
        A('s_cmp_ge_u32 s2, 32')
        A('s_cbranch_scc1 L_nofp2')
        A('s_lshl_b32 s11, s2, 12')
        A(f's_add_u32 s11, s11, {FIN}')
        A('v_lshl_add_u32 v10, v1, 7, s11')
        A('s_mov_b32 exec_hi, 0')
        A(f'buffer_load_dword v11, v10, {srd(SWS)}, 0 offen {cfg.finpre_fl}')
        A('s_mov_b64 exec, -1')
        A.label('L_nofp2')
    A('s_barrier')
    A('s_barrier')
    A('s_barrier')
    P(13)
    P.flush(); P.reset()
    A.label('L_final')
    A('s_cmp_ge_u32 s2, 32')
    A('s_cbranch_scc1 L_done')
    A(f's_mov_b32 s{sIT}, 0')
    A.label('L_fgat')
    for q in range(4):
        A(f'buffer_load_dwordx4 {vr(16+4*q)}, v60, {srd(SWS)}, 0 offen offset:{1024*q} {cfg.fgat}')
    A('s_waitcnt vmcnt(0)')
    if cfg.poll2:
        A('ds_read_b32 v38, v63')
    for q in range(4):
        tag_check(A, 16+4*q, 36, 37, q == 0)
    if cfg.poll2:
        A('s_waitcnt lgkmcnt(0)')
        A('v_readfirstlane_b32 s11, v38')
        A('s_cmp_lg_u32 s11, 0')
        A('s_cbranch_scc1 L_done')
    poll_tail(A, cfg, 'L_fgat', 'L_fok')
    A.label('L_fok')
    if cfg.poll2:
        A('v_mov_b32 v59, 1')
        A('ds_write_b32 v63, v59')
    if cfg.prof in (True, 'heavy'):
        A(f'v_writelane_b32 v{vPROF}, s{sIT}, 22')
    P(14)
    P.flush(); P.reset()
    if cfg.domask is True:
        mask_vals(A, 16, 16)
    for k in range(4):
        A(f'v_add_f32 v{16+k}, v{16+k}, v{20+k}')
        A(f'v_add_f32 v{24+k}, v{24+k}, v{28+k}')
    for k in range(4):
        A(f'v_add_f32 v{16+k}, v{16+k}, v{24+k}')
    transpose_reduce4(A, 16)
    A('v_lshlrev_b32 v62, 16, v62')
    A.nop(1)
    A('v_add_f32_dpp v16, v16, v16 row_ror:8 row_mask:0xf bank_mask:0xf')
    A.nop(2)
    A('v_add_f32_dpp v16, v16, v16 row_ror:4 row_mask:0xf bank_mask:0xf')
    A('v_add_f32 v16, v16, v62')
    A('v_cvt_pk_bf16_f32 v16, v16, v16')
    if cfg.calib:
        A('s_cmp_lg_u32 s2, 0')
        A('s_cbranch_scc1 L_nocal')
        A(f's_add_u32 s36, s36, {cfg.calib}')
        A.label('L_cal')
        A('s_memrealtime s[38:39]')
        A('s_waitcnt lgkmcnt(0)')
        A('s_sub_u32 s37, s38, s36')
        A('s_cmp_lt_i32 s37, 0')
        A('s_cbranch_scc1 L_cal')
        A.label('L_nocal')
    A('s_mov_b32 exec_lo, 0x000f000f')
    A('s_mov_b32 exec_hi, 0x000f000f')
    A(f'buffer_store_short v16, v61, {srd(SOUT)}, 0 offen')
    A('s_cmp_lg_u32 s2, 0')
    A('s_cbranch_scc1 L_noepoch')
    A('s_mov_b64 exec, 1')
    A(f'v_mov_b32 v17, {EOFF}')
    A(f'v_mov_b32 v18, s{sTAG}')
    A(f'buffer_store_dword v18, v17, {srd(SWS)}, 0 offen')
    A.label('L_noepoch')
    A('s_mov_b64 exec, -1')
    A('s_branch L_done')
    A.label('L_comm5')
    P.reset()
    A(f'v_mov_b32 v{vTAG}, s6')
    A('v_lshlrev_b32 v6, 4, v3')
    A('v_and_b32 v7, 1, v2')
    A('v_lshl_add_u32 v7, v7, 11, v6')
    A(f'v_add_u32 v7, {L_PART + 2048}, v7')
    for k in range(8):
        A(f'ds_read_b128 {vr(16+4*k)}, v7 offset:{256*k}')
    A('s_lshl_b32 s12, s4, 2')
    A(f's_add_u32 s12, s12, s{sRB}')
    A('s_lshl_b32 s12, s12, 3')
    A(f's_add_u32 s12, s12, s{sCB}')
    A('s_lshl_b32 s12, s12, 9')
    A(f's_add_u32 s12, s12, {GUO}')
    A('v_and_b32 v7, 1, v2')
    A('v_lshl_add_u32 v6, v7, 8, v6')
    A('v_add_u32 v6, s12, v6')
    A('s_waitcnt lgkmcnt(0)')
    for k in range(4):
        A(f'v_add_f32 v{16+k}, v{16+k}, v{20+k}')
        A(f'v_add_f32 v{24+k}, v{24+k}, v{28+k}')
        A(f'v_add_f32 v{32+k}, v{32+k}, v{36+k}')
        A(f'v_add_f32 v{40+k}, v{40+k}, v{44+k}')
    for k in range(4):
        A(f'v_add_f32 v{16+k}, v{16+k}, v{24+k}')
        A(f'v_add_f32 v{32+k}, v{32+k}, v{40+k}')
    for k in range(4):
        A(f'v_add_f32 v{16+k}, v{16+k}, v{32+k}')
    tag_insert(A, 16)
    A('s_mov_b32 exec_hi, 0')
    A('s_cmp_eq_u32 s24, 1')
    A('s_cbranch_scc0 L_gupub_slow')
    A(f'buffer_store_dwordx4 v[16:19], v6, {srd(SWS)}, 0 offen')
    A('s_branch L_gupub_done')
    A.label('L_gupub_slow')
    A(f'buffer_store_dwordx4 v[16:19], v6, {srd(SWS)}, 0 offen sc1')
    A.label('L_gupub_done')
    A('s_mov_b64 exec, -1')
    A('v_and_b32 v8, 3, v1')
    A('v_lshlrev_b32 v9, 4, v8')
    A(f'v_add_u32 v9, {L_MW}, v9')
    A('s_lshl_b32 s11, s4, 11')
    A('s_lshl_b32 s12, s5, 4')
    A('s_add_u32 s11, s11, s12')
    A(f's_add_u32 s11, s11, {MLO}')
    A('v_lshl_add_u32 v8, v8, 9, s11')
    A('s_barrier')
    A('s_barrier')
    A('ds_read_b128 v[20:23], v9')
    A(f'ds_read_b128 v[24:27], v9 offset:{L_LW - L_MW}')
    A('s_waitcnt lgkmcnt(0)')
    A('v_max3_f32 v20, v20, v21, v22')
    A('v_add_f32 v24, v24, v25')
    A('v_add_f32 v26, v26, v27')
    A('v_max_f32 v20, v20, v23')
    A('v_add_f32 v21, v24, v26')
    tag_insert(A, 20)
    A('s_mov_b64 exec, 15')
    A('s_cmp_eq_u32 s24, 1')
    A('s_cbranch_scc0 L_mlpub_slow')
    A(f'buffer_store_dwordx4 v[20:23], v8, {srd(SWS)}, 0 offen')
    A('s_branch L_mlpub_done')
    A.label('L_mlpub_slow')
    A(f'buffer_store_dwordx4 v[20:23], v8, {srd(SWS)}, 0 offen sc1')
    A.label('L_mlpub_done')
    A('s_mov_b64 exec, -1')
    A('s_barrier')
    if cfg.poll2:
        A(f'buffer_load_ushort v62, v61, {srd(SX)}, 0 offen')
        A('s_waitcnt vmcnt(0)')
        A('s_branch L_final')
    A.label('L_done')
    if cfg.exp_hwid:
        A('s_getreg_b32 s11, hwreg(HW_REG_HW_ID)')
        A(f'v_writelane_b32 v{vPROF}, s11, 31')
    if cfg.prof == 'lite':
        A('s_memrealtime s[30:31]')
        A('s_waitcnt lgkmcnt(0)')
        A(f'v_writelane_b32 v{vPROF}, s28, 0')
        A(f'v_writelane_b32 v{vPROF}, s30, 15')
    elif cfg.prof:
        P(15)
        P.flush()
    if cfg.prof:
        A('s_mul_i32 s11, s2, 6')
        A('s_add_u32 s11, s11, s3')
        A('s_lshl_b32 s11, s11, 7')
        A(f's_add_u32 s11, s11, {PROF}')
        A('v_lshl_add_u32 v86, v1, 2, s11')
        A('s_mov_b32 exec_hi, 0')
        A(f'buffer_store_dword v{vPROF}, v86, {srd(SWS)}, 0 offen')
        A('s_mov_b64 exec, -1')
    A.label('L_end')
    A('s_endpgm')
    A('.section .rodata,"a"')
    A('.p2align 6')
    A(f'.amdhsa_kernel {NAME}')
    A(f'  .amdhsa_next_free_vgpr {cfg.nvgpr}')
    A('  .amdhsa_next_free_sgpr 102')
    A(f'  .amdhsa_accum_offset {min(cfg.nvgpr, 256)}')
    A('  .amdhsa_group_segment_fixed_size 0')
    A('  .amdhsa_kernarg_size 96')
    A('  .amdhsa_user_sgpr_count 2')
    A('  .amdhsa_user_sgpr_kernarg_segment_ptr 1')
    A('  .amdhsa_system_sgpr_workgroup_id_x 1')
    A('  .amdhsa_float_denorm_mode_32 3')
    A('.end_amdhsa_kernel')
    return A.text()

HEADER = open('parallel_sum__sliding_block_cached__glu_gated_bilinear__decode.s.ref').read().split('; Override launch')[0]

DOC = """;
"""

def full(cfg):
    body = gen(cfg)
    probs = check(body)
    for p in probs:
        if 'wide store WAR' in p and 'v_lshlrev_b32 v86, 4, v3' in p:
            continue
        print('HAZARD', p)
    return HEADER + f'; @launch grid=(256,1,1) block=(384,1,1) lds={cfg.ldsbytes}\n' + DOC + body

if __name__ == '__main__':
    cfg = Cfg()
    for a in sys.argv[2:]:
        k, v = a.split('=')
        old = getattr(cfg, k, None)
        setattr(cfg, k, v if ((isinstance(old, str) or v in ('lite', 'heavy')) and v not in ('False', 'True')) else eval(v))
    open(sys.argv[1], 'w').write(full(cfg))
```

```python
import sys
from asmlib import Asm, check

NAME = 'parallel_sum__sliding_block_cached__glu_gated_bilinear__decode_kernel'

EOFF  = 0
QA    = 0x1000
IDA   = 0x11000
BDELTA = 0x11000
GUO   = 0x23000
MLO   = 0x43000
OIO   = 0x48000
FIN   = 0xC8000
PROF  = 0x180000
WS_BYTES = 0x200000

L_K = 0
L_V = 32768
L_XN = 65536
L_PART = 66560
L_QB = 72704
L_HB = 73792
L_MODE = 73808
L_MW = 73824
L_LW = 73888
L_PB = L_PART
L_RED = L_PART + 4096
L_FLAG = 73812
LDS_BYTES = 73984

sW, sG, sS, sTAG = 3, 4, 5, 6
SX, SK, SV, SWQ, SWO, SGA, SUP, SDN, SOUT, SWS = 40, 44, 48, 52, 56, 60, 64, 68, 72, 76
M0, M1, M2, M3 = 80, 82, 84, 86
sX0, sX1 = 90, 91
sIT = 92
sLOG2E, sSCALE = 93, 94
sMSK = 95
sP01, sP23 = 96, 97
sI0, sI1, sI2, sI3 = 98, 99, 100, 101
sRB, sT, sCB = 7, 8, 10
vTAG, vSH = 167, 166
vPROF = 165
def srd(n): return f's[{n}:{n+3}]'
def vr(n, k=4): return f'v[{n}:{n+k-1}]'

class Cfg:
    nt = 'nt'
    gat = 'sc1'
    nk1 = 8
    domask = 'm'
    elate = True
    tlbwarm = False
    xone = 0
    poll2 = False
    finpre2 = True
    fpub = 'sc1'
    fgat = 'sc1'
    worot = True
    kearly = True
    owait = None
    oline = False
    tpos = (2, 2, 2, 2, 2, 2)
    calib = 0
    ldsbytes = LDS_BYTES
    nvgpr = 168
    b1a = True
    win = None
    win2 = None
    exp_dirty = 0
    b1c = False
    nv2 = 4
    kwait = 3
    exp_cb = 0
    exp_hwid = False
    swap = True
    wo_early = -1
    b0 = 0
    prio = 3
    align = 12
    xnt = ''
    finpre = 0
    finpre_fl = ''
    codepf_n = 4
    nv1 = 3
    b1b = True
    b3b = True
    maxit = 200000
    swit = 24
    prof = False
    dbgprof = None
    pretouch = 0
    pre_fl = 'nt'
    codepf = 's'
    forceslow = False
    forceb = False

ROW_FULL = ['quad_perm:[1,0,3,2]', 'quad_perm:[2,3,0,1]', 'row_half_mirror', 'row_mirror']

def rowred(A, regs, op, steps):
    for st in steps:
        A.nop(2 if len(regs) < 3 else max(0, 2 - (len(regs) - 1)))
        for v in regs:
            A(f'{op}_dpp v{v}, v{v}, v{v} {st} row_mask:0xf bank_mask:0xf')
        if len(regs) >= 3:
            pass

def cross_rows(A, v, tmp, op):
    A(f'v_mov_b32 v{tmp}, v{v}')
    A.nop(2)
    A(f'v_permlane16_swap_b32 v{tmp}, v{v}')
    A.nop(1)
    A(f'{op} v{v}, v{tmp}, v{v}')
    A(f'v_mov_b32 v{tmp}, v{v}')
    A.nop(2)
    A(f'v_permlane32_swap_b32 v{tmp}, v{v}')
    A.nop(1)
    A(f'{op} v{v}, v{tmp}, v{v}')

def wave_allreduce(A, v, tmp, op):
    rowred(A, [v], op, ROW_FULL)
    cross_rows(A, v, tmp, op)

def transpose_reduce4(A, v):
    A.nop(1)
    A(f'v_permlane32_swap_b32 v{v}, v{v+1}')
    A(f'v_permlane32_swap_b32 v{v+2}, v{v+3}')
    A.nop(1)
    A(f'v_add_f32 v{v}, v{v}, v{v+1}')
    A(f'v_add_f32 v{v+2}, v{v+2}, v{v+3}')
    A.nop(2)
    A(f'v_permlane16_swap_b32 v{v}, v{v+2}')
    A.nop(1)
    A(f'v_add_f32 v{v}, v{v}, v{v+2}')

def tag_insert(A, v):
    for k, s in enumerate((sI0, sI1, sI2, sI3)):
        A(f'v_perm_b32 v{v+k}, v{v+k}, v{vTAG}, s{s}')

def tag_check(A, v, t0, t1, first):
    A(f'v_perm_b32 v{t0}, v{v+1}, v{v}, s{sP01}')
    A(f'v_perm_b32 v{t1}, v{v+3}, v{v+2}, s{sP23}')
    A(f'v_or_b32 v{t0}, v{t0}, v{t1}')
    if first:
        A(f'v_cmp_ne_u32 s[88:89], s{sTAG}, v{t0}')
    else:
        A(f'v_cmp_ne_u32 s[90:91], s{sTAG}, v{t0}')
        A('s_or_b64 s[88:89], s[88:89], s[90:91]')

def mask_vals(A, v, n=4):
    for k in range(n):
        A(f'v_and_b32 v{v+k}, s{sMSK}, v{v+k}')

def build_sel(A, dst, val, tmp):
    A(f'v_lshlrev_b32 v{tmp}, v{vSH}, v{val}')
    for j, m in enumerate((M0, M1, M2, M3)):
        A(f'v_cndmask_b32_e64 v{dst+j}, 0, v{tmp}, s[{m}:{m+1}]')

class Prof:
    def __init__(self, A, cfg):
        self.A, self.on, self.prev, self.k = A, cfg.prof, None, 0
        self.lite = cfg.prof == 'lite'
    def reset(self, prev=None, k=0):
        if self.lite:
            self.prev = None
            return
        self.prev, self.k = prev, k
    def __call__(self, idx):
        if not self.on: return
        if self.on == 'lite' and idx not in (0, 15): return
        if idx >= 23 and self.on != 'heavy': return
        A = self.A
        if self.on == 'heavy' and self.prev is not None:
            A('s_waitcnt lgkmcnt(0)')
        if self.prev is not None:
            A(f'v_writelane_b32 v{vPROF}, s{28 + 2*self.k}, {self.prev}')
            self.k ^= 1
        A(f's_memrealtime s[{28+2*self.k}:{29+2*self.k}]')
        self.prev = None if self.lite else idx
    def flush(self):
        if not self.on: return
        if self.prev is None: return
        A = self.A
        A('s_waitcnt lgkmcnt(0)')
        A(f'v_writelane_b32 v{vPROF}, s{28 + 2*self.k}, {self.prev}')

def common_consts(A):
    A(f's_mov_b32 s{sLOG2E}, 0x3fb8aa3b')
    A(f's_mov_b32 s{sSCALE}, 0x3db504f3')
    A(f's_mov_b32 s{sMSK}, 0xffffff00')
    A(f's_mov_b32 s{sP01}, 0x0c0c0400')
    A(f's_mov_b32 s{sP23}, 0x04000c0c')
    A(f's_mov_b32 s{sI0}, 0x07060500')
    A(f's_mov_b32 s{sI1}, 0x07060501')
    A(f's_mov_b32 s{sI2}, 0x07060502')
    A(f's_mov_b32 s{sI3}, 0x07060503')

def poll_tail(A, cfg, label, oklabel, switch=None):
    A('s_cmp_eq_u64 s[88:89], 0')
    A(f's_cbranch_scc1 {oklabel}')
    A(f's_add_u32 s{sIT}, s{sIT}, 1')
    if switch:
        A(f's_cmp_eq_u32 s{sIT}, {cfg.swit}')
        A(f's_cselect_b32 s{switch}, {BDELTA}, s{switch}')
    A(f's_cmp_le_u32 s{sIT}, {cfg.maxit}')
    A(f's_cbranch_scc1 {label}')

def gen(cfg):
    A = Asm()
    P = Prof(A, cfg)
    nt = cfg.nt
    A('.amdgcn_target "amdgcn-amd-amdhsa--gfx950"')
    A('.text')
    A(f'.globl {NAME}')
    A(f'.p2align {cfg.align}')
    A(f'.type {NAME},@function')
    A.label(NAME)
    A('s_cmp_ge_u32 s2, 256')
    A('s_cbranch_scc1 L_end')
    P(0)
    if cfg.calib:
        A('s_memrealtime s[36:37]')
    for sr, off in ((SWQ, 24), (SX, 0), (SWS, 88), (SK, 8)):
        A(f's_load_dwordx2 s[{sr}:{sr+1}], s[0:1], {off}')
    A('v_lshrrev_b32 v2, 6, v0')
    A('v_and_b32 v1, 63, v0')
    A('s_and_b32 s4, s2, 7')
    A('v_readfirstlane_b32 s3, v2')
    A('s_lshr_b32 s5, s2, 3')
    A(f's_lshr_b32 s{sRB}, s5, 3')
    A(f's_and_b32 s{sCB}, s5, 7')
    for sr, n in ((SWQ, 4194304), (SX, 1024), (SWS, WS_BYTES), (SK, 134217728)):
        A(f's_mov_b32 s{sr+2}, {n}')
        A(f's_mov_b32 s{sr+3}, ' + ('0x20000' if sr == SWQ else f's{SWQ+3}'))
    common_consts(A)
    A('s_cmp_ge_u32 s3, 4')
    A('s_cbranch_scc1 L_comm0')
    def kcalc():
        A('v_lshrrev_b32 v2, 4, v1')
        A('v_and_b32 v3, 15, v1')
        A('v_xor_b32 v5, v2, v3')
        A('v_lshlrev_b32 v5, 4, v5')
        A('v_lshl_add_u32 v156, v2, 8, v5')
        for i in range(1, 4):
            A(f'v_xor_b32 v{156+i}, {64*i}, v156')
        A('s_lshl_b32 s19, s4, 24')
        A('s_lshl_b32 s11, s5, 15')
        A('s_add_u32 s19, s19, s11')
        A('s_lshl_b32 s20, s3, 13')
        A('s_add_u32 s19, s19, s20')
        A('s_add_u32 s19, s19, 15728640')
        A('s_and_b32 s25, s4, 1')
        A('s_lshl_b32 s25, s25, 12')
        A('s_xor_b32 s26, s25, 4096')
        A('s_add_u32 s27, s19, s26')
        A('s_add_u32 s19, s19, s25')
        A('s_add_u32 s25, s25, s20')
        A('s_add_u32 s26, s26, s20')
        A('s_mov_b32 m0, s25')
    A(f's_lshl_b32 s12, s{sRB}, 20')
    A('s_lshl_b32 s11, s3, 18')
    A('s_add_u32 s12, s12, s11')
    A('s_lshl_b32 s11, s4, 10')
    A('s_add_u32 s12, s12, s11')
    A(f's_lshl_b32 s11, s{sCB}, 7')
    A('s_add_u32 s12, s12, s11')
    A('v_lshlrev_b32 v163, 4, v1')
    A('v_lshrrev_b32 v164, 3, v1')
    A('v_and_b32 v4, 0x70, v163')
    A('v_lshl_add_u32 v6, v164, 13, v4')
    A(f'v_mov_b32 v7, {EOFF}')
    A('s_add_u32 s13, s12, 65536')
    A('s_add_u32 s14, s12, 131072')
    A('s_add_u32 s15, s12, 196608')
    if cfg.kearly:
        kcalc()
    A('s_waitcnt lgkmcnt(0)')
    P(27)
    if cfg.xone is not None:
        A(f's_cmp_lg_u32 s3, {cfg.xone}')
        A('s_cbranch_scc1 L_nox')
    A(f'buffer_load_dwordx4 v[8:11], v163, {srd(SX)}, 0 offen {cfg.xnt}')
    if cfg.xone is not None:
        A.label('L_nox')
    if not cfg.elate:
        A(f'buffer_load_dword v{vTAG}, v7, {srd(SWS)}, 0 offen {cfg.xnt}')
    for i in range(4):
        A(f'buffer_load_dwordx4 {vr(12+4*i)}, v6, {srd(SWQ)}, s{12+i} offen {nt}')
    if cfg.elate:
        A(f'buffer_load_dword v{vTAG}, v7, {srd(SWS)}, 0 offen {cfg.xnt}')
    for sr, off in ((SV, 16), (SGA, 48), (SUP, 56), (SWO, 32), (SDN, 64)):
        A(f's_load_dwordx2 s[{sr}:{sr+1}], s[0:1], {off}')
    if not cfg.kearly:
        kcalc()
        A.nop(1)
    def kloads(lo, hi):
        for i in range(lo, hi):
            if i == 4:
                A('s_mov_b32 m0, s26')
                A.nop(1)
            A(f'buffer_load_dwordx4 v{156+(i&3)}, {srd(SK)}, s{19 if i < 4 else 27} offen offset:{1024*(i&3)} {nt} lds')
    kloads(0, cfg.nk1)
    A('v_mul_u32_u24 v162, 3584, v164')
    A('v_add_u32 v161, v162, v4')
    A(f's_lshl_b32 s{sT}, s{sRB}, 3')
    A(f's_add_u32 s{sT}, s{sT}, s4')
    A(f's_cmp_lt_u32 s{sT}, 28')
    A('s_cselect_b32 s9, 1835008, 0')
    for sr, n in ((SV, f's{SK+2}'), (SWO, f's{SWQ+2}')):
        A(f's_mov_b32 s{sr+2}, {n}')
        A(f's_mov_b32 s{sr+3}, s{SWQ+3}')
    for sr in (SGA, SUP, SDN):
        A(f's_mov_b32 s{sr+2}, s9')
        A(f's_mov_b32 s{sr+3}, s{SWQ+3}')
    A('s_branch L_cmp_go')
    A.label('L_comm0')
    if cfg.codepf:
        A('s_cmp_eq_u32 s3, 5')
        A('s_cbranch_scc0 L_nocodepf')
        A('s_getpc_b64 s[12:13]')
        A.label('L_pc')
        A(f's_sub_u32 s12, s12, L_pc-{NAME}')
        A('s_subb_u32 s13, s13, 0')
        A('s_lshl_b32 s14, s5, 6')
        A('s_add_u32 s12, s12, s14')
        A('s_addc_u32 s13, s13, 0')
        for i in range(cfg.codepf_n - 1):
            A(f's_load_dword s{32+(i&3)}, s[12:13], {2048*i}')
        A(f's_add_u32 s15, s14, {2048*(cfg.codepf_n-1)}')
        A(f's_min_u32 s15, s15, L_end-{NAME}')
        A('s_sub_u32 s15, s15, s14')
        A('s_load_dword s35, s[12:13], s15')
        A.label('L_nocodepf')
    if cfg.prio:
        A(f's_setprio {cfg.prio}')
    A('s_branch L_comm')
    A.label('L_cmp_go')
    for m, lo in ((M0, 0x03030303), (M1, 0x0c0c0c0c), (M2, 0x30303030), (M3, 0xc0c0c0c0)):
        A(f's_mov_b32 s{m}, {hex(lo)}')
        A(f's_mov_b32 s{m+1}, s{m}')
    A(f'v_and_b32 v{vSH}, 1, v1')
    A(f'v_lshlrev_b32 v{vSH}, 4, v{vSH}')
    A(f's_lshl_b32 s17, s{sCB}, 6')
    A('s_lshl_b32 s11, s3, 4')
    A('s_add_u32 s17, s17, s11')
    A('s_mul_i32 s17, s17, 3584')
    A(f's_lshl_b32 s11, s{sT}, 7')
    A('s_add_u32 s17, s17, s11')
    A('s_lshl_b32 s21, s4, 19')
    A('s_lshr_b32 s11, s5, 2')
    A('s_lshl_b32 s12, s11, 16')
    A('s_add_u32 s21, s21, s12')
    A('s_lshl_b32 s12, s3, 14')
    A('s_add_u32 s21, s21, s12')
    A('s_and_b32 s23, s5, 3')
    A('s_lshl_b32 s23, s23, 8')
    A('s_add_u32 s21, s21, s23')
    A(f's_lshl_b32 s22, s{sT}, 16')
    A('s_and_b32 s11, s11, 1')
    A('s_lshl_b32 s11, s11, 15')
    A('s_add_u32 s22, s22, s11')
    A('s_lshl_b32 s12, s3, 13')
    A('s_add_u32 s22, s22, s12')
    A('s_add_u32 s22, s22, s23')
    A('v_lshlrev_b32 v162, 4, v3')
    A('v_lshl_add_u32 v162, v2, 10, v162')
    P(1)
    A('v_lshrrev_b32 v105, 3, v3')
    A('v_lshl_add_u32 v105, v2, 1, v105')
    A(f's_lshl_b32 s11, s{sRB}, 7')
    A('s_lshl_b32 s12, s3, 5')
    A('s_add_u32 s11, s11, s12')
    A('s_lshl_b32 s11, s11, 1')
    A(f's_add_u32 s11, s11, {L_XN}')
    A('v_lshl_add_u32 v106, v105, 1, s11')
    A(f's_lshl_b32 s11, s{sCB}, 6')
    A('s_lshl_b32 s12, s3, 4')
    A('s_add_u32 s11, s11, s12')
    A('s_lshl_b32 s11, s11, 1')
    A(f's_add_u32 s11, s11, {L_XN}')
    A('v_lshl_add_u32 v107, v105, 1, s11')
    A.c('layernorm')
    if cfg.xone is not None:
        A(f's_cmp_lg_u32 s3, {cfg.xone}')
        A('s_cbranch_scc1 L_noln')
    A(f's_waitcnt vmcnt({4 + cfg.nk1 + (1 if cfg.elate else 0)})')
    P(2)
    for k in range(4):
        A(f'v_lshlrev_b32 v{80+2*k}, 16, v{8+k}')
        A(f'v_and_b32 v{81+2*k}, 0xffff0000, v{8+k}')
    A('v_add_f32 v88, v80, v81')
    A('v_add_f32 v89, v82, v83')
    A('v_add_f32 v90, v84, v85')
    A('v_add_f32 v91, v86, v87')
    A('v_add_f32 v88, v88, v89')
    A('v_add_f32 v90, v90, v91')
    A('v_add_f32 v88, v88, v90')
    wave_allreduce(A, 88, 89, 'v_add_f32')
    A('v_mul_f32 v88, 0x3b000000, v88')
    for k in range(8):
        A(f'v_sub_f32 v{92+k}, v{80+k}, v88')
    A('v_mul_f32 v90, v92, v92')
    for k in range(1, 8):
        A(f'v_fmac_f32 v90, v{92+k}, v{92+k}')
    wave_allreduce(A, 90, 89, 'v_add_f32')
    P(23)
    A('v_mul_f32 v90, 0x3b000000, v90')
    A('v_cvt_pk_bf16_f32 v88, v88, v90')
    A('v_and_b32 v90, 0xffff0000, v88')
    A('v_lshlrev_b32 v88, 16, v88')
    A('v_add_f32 v90, 0x3727c5ac, v90')
    A('v_cvt_pk_bf16_f32 v90, v90, v90')
    A('v_lshlrev_b32 v90, 16, v90')
    A('v_sqrt_f32 v90, v90')
    for k in range(8):
        A(f'v_sub_f32 v{92+k}, v{80+k}, v88')
    A('v_cvt_pk_bf16_f32 v90, v90, v90')
    A('v_lshlrev_b32 v90, 16, v90')
    A('v_rcp_f32 v90, v90')
    for k in range(4):
        A(f'v_cvt_pk_bf16_f32 v{100+k}, v{92+2*k}, v{93+2*k}')
    for k in range(4):
        A(f'v_lshlrev_b32 v{92+2*k}, 16, v{100+k}')
        A(f'v_and_b32 v{93+2*k}, 0xffff0000, v{100+k}')
    for k in range(8):
        A(f'v_mul_f32 v{92+k}, v{92+k}, v90')
    for k in range(4):
        A(f'v_cvt_pk_bf16_f32 v{100+k}, v{92+2*k}, v{93+2*k}')
    A(f'v_add_u32 v104, {L_XN}, v163')
    A('ds_write_b128 v104, v[100:103]')
    P(24)
    if cfg.xone is not None:
        A.label('L_noln')
        A('s_waitcnt lgkmcnt(0)')
        A('s_barrier')
    A('s_waitcnt lgkmcnt(0)')
    for i in range(4):
        A(f'ds_read_u16 v{80+i}, v106 offset:{16*i}')
    for i in range(2):
        A(f'ds_read_u16 v{84+i}, v107 offset:{16*i}')
    if not cfg.elate:
        A(f'v_add_u32 v{vTAG}, 0x01010101, v{vTAG}')
    P(25)
    kloads(cfg.nk1, 8)
    P(26)
    if not cfg.elate:
        A.nop(1)
        A(f'v_readfirstlane_b32 s6, v{vTAG}')
    A('s_waitcnt lgkmcnt(0)')
    for i in range(4):
        build_sel(A, 48+4*i, 80+i, 86)
    for i in range(2):
        build_sel(A, 64+4*i, 84+i, 86)
    A('v_lshlrev_b32 v86, 1, v2')
    A('v_xor_b32 v86, v86, v3')
    A('v_lshlrev_b32 v86, 4, v86')
    A('v_lshl_add_u32 v160, v2, 8, v86')
    A('v_xor_b32 v164, 128, v160')
    A('v_lshrrev_b32 v87, 5, v1')
    A('v_lshlrev_b32 v87, 8, v87')
    A('v_and_b32 v86, 7, v1')
    A('v_lshl_add_u32 v87, v86, 5, v87')
    A('v_and_b32 v86, 1, v2')
    A('v_lshl_add_u32 v87, v86, 4, v87')
    A('s_lshl_b32 s11, s3, 9')
    A(f's_add_u32 s11, s11, {L_PART}')
    A('v_add_u32 v163, s11, v87')
    P(3)
    A.c('q partial product')
    A('s_waitcnt vmcnt(8)')
    P(16)
    if cfg.elate:
        A(f'v_add_u32 v{vTAG}, 0x01010101, v{vTAG}')
    for i in range(4):
        A(f'v_mfma_f32_16x16x32_bf16 v[72:75], {vr(48+4*i)}, {vr(12+4*i)}, {"0" if i == 0 else "v[72:75]"}')
    A('s_mov_b32 exec_lo, 0x00ff00ff')
    A('s_mov_b32 exec_hi, 0xff00ff00')
    A.nop(6)
    A('ds_write_b128 v163, v[72:75]')
    A('s_mov_b64 exec, -1')
    if cfg.elate:
        A(f'v_readfirstlane_b32 s6, v{vTAG}')
    A('s_waitcnt lgkmcnt(0)')
    A('s_barrier')
    P(4)
    A('s_cmp_lg_u32 s3, 3')
    A('s_cbranch_scc1 L_pub1_done')
    A('v_lshlrev_b32 v86, 4, v3')
    A(f'v_add_u32 v87, {L_PART}, v86')
    for k in range(8):
        A(f'ds_read_b128 {vr(80+4*k+32)}, v87 offset:{256*k}')
    A('s_lshl_b32 s11, s4, 2')
    A(f's_add_u32 s11, s11, s{sRB}')
    A('s_lshl_b32 s11, s11, 11')
    A(f's_lshl_b32 s12, s{sCB}, 8')
    A('s_add_u32 s11, s11, s12')
    A(f's_add_u32 s11, s11, {QA}')
    A('v_add_u32 v86, s11, v86')
    A('s_lshl_b32 s12, s4, 9')
    A('s_lshl_b32 s13, s5, 4')
    A('s_add_u32 s12, s12, s13')
    A(f's_add_u32 s12, s12, {IDA}')
    A('v_mov_b32 v87, s12')
    A('v_cmp_eq_u32 vcc, 0, v2')
    A('s_getreg_b32 s13, hwreg(HW_REG_XCC_ID, 0, 4)')
    A('s_lshl_b32 s13, s13, 8')
    A('v_cndmask_b32 v86, v87, v86, vcc')
    A('s_waitcnt lgkmcnt(0)')
    for k in range(4):
        A(f'v_add_f32 v{112+k}, v{112+k}, v{116+k}')
        A(f'v_add_f32 v{120+k}, v{120+k}, v{124+k}')
        A(f'v_add_f32 v{128+k}, v{128+k}, v{132+k}')
        A(f'v_add_f32 v{136+k}, v{136+k}, v{140+k}')
    for k in range(4):
        A(f'v_add_f32 v{112+k}, v{112+k}, v{120+k}')
        A(f'v_add_f32 v{128+k}, v{128+k}, v{136+k}')
    for k in range(4):
        A(f'v_add_f32 v{112+k}, v{112+k}, v{128+k}')
    A('v_mov_b32 v116, s13')
    A('v_cndmask_b32 v112, v116, v112, vcc')
    tag_insert(A, 112)
    A('s_mov_b32 exec_lo, 0x0001ffff')
    A('s_mov_b32 exec_hi, 0')
    if not cfg.forceb:
        A(f'buffer_store_dwordx4 v[112:115], v86, {srd(SWS)}, 0 offen')
    A(f's_mov_b32 s12, {BDELTA}')
    A(f'buffer_store_dwordx4 v[112:115], v86, {srd(SWS)}, s12 offen sc1')
    A('s_mov_b64 exec, -1')
    A.label('L_pub1_done')
    if cfg.b1a:
        A('s_barrier')
    nst = (1 if cfg.forceb else 2)
    A.c('gate/up loads, V loads')
    A('s_add_u32 s18, s17, 28672')
    A(f'buffer_load_dwordx4 {vr(8)}, v161, {srd(SGA)}, s17 offen {nt}')
    A(f'buffer_load_dwordx4 {vr(12)}, v161, {srd(SGA)}, s18 offen {nt}')
    A(f'buffer_load_dwordx4 {vr(16)}, v161, {srd(SUP)}, s17 offen {nt}')
    A(f'buffer_load_dwordx4 {vr(20)}, v161, {srd(SUP)}, s18 offen {nt}')
    def vloads(lo, hi, win=None):
        for i in range(lo, hi):
            if win:
                A(f's_waitcnt vmcnt({win-1})')
            if i % 4 == 0 or i == lo:
                A(f's_add_u32 m0, s{25 if i < 4 else 26}, {L_V}')
                A.nop(1)
            A(f'buffer_load_dwordx4 v{(160, 164)[i&1]}, {srd(SV)}, s{19 if i < 4 else 27} offen offset:{1024*(i&3)} {nt} lds')
    vloads(0, cfg.nv1)
    if cfg.kwait is not None:
        A('s_cmp_eq_u32 s3, 3')
        A('s_cbranch_scc1 L_nokwait')
        A(f's_waitcnt vmcnt({cfg.kwait + cfg.nv1})')
        A.label('L_nokwait')
    if cfg.b1b:
        A('s_barrier')
    P(5)
    A('v_and_b32 v85, 1, v2')
    A('v_lshrrev_b32 v86, 1, v2')
    A('v_lshl_or_b32 v85, v85, 1, v86')
    A('v_lshlrev_b32 v86, 4, v3')
    A('v_lshl_add_u32 v161, v85, 10, v86')
    A('v_xor_b32 v86, v2, v3')
    A('v_lshlrev_b32 v86, 4, v86')
    A('v_lshl_add_u32 v156, v3, 8, v86')
    A('v_add_u32 v156, s20, v156')
    for j in range(1, 4):
        A(f'v_xor_b32 v{156+j}, {64*j}, v156')
    A('v_and_b32 v86, 3, v1')
    A('v_mul_u32_u24 v86, 272, v86')
    A('v_lshl_add_u32 v4, v2, 4, v86')
    A(f'v_add_u32 v4, {L_QB}, v4')
    if cfg.b1c:
        vloads(cfg.nv1, cfg.nv2)
        A('s_barrier')
        vloads(cfg.nv2, 8)
    else:
        vloads(cfg.nv1, 8, cfg.win)
    def tail_loads(pos):
        n = 0
        for i, p in enumerate(cfg.tpos):
            if p != pos:
                continue
            n += 1
            if i < 4:
                if cfg.worot:
                    A(f'buffer_load_dwordx4 {vr(24+4*i)}, v161, {srd(SWO)}, s{32+i} offen {nt}')
                else:
                    A(f's_add_u32 s13, s21, {4096*i}')
                    A(f'buffer_load_dwordx4 {vr(24+4*i)}, v161, {srd(SWO)}, s13 offen {nt}')
            else:
                if cfg.worot:
                    A(f'buffer_load_dwordx4 {vr(40+4*(i-4))}, v162, {srd(SDN)}, s{36+(i-4)} offen {nt}')
                else:
                    A(f's_add_u32 s13, s22, {4096*(i-4)}')
                    A(f'buffer_load_dwordx4 {vr(40+4*(i-4))}, v162, {srd(SDN)}, s13 offen {nt}')
        return n
    nearly = 0
    nearly += tail_loads(1)
    A.c('addresses for the attention tail (computed while the loads are in flight)')
    if cfg.worot:
        A('s_add_u32 s38, s4, s3')
        A('s_and_b32 s38, s38, 3')
        for i in range(4):
            A(f's_add_u32 s11, s38, {i}')
            A('s_and_b32 s11, s11, 3')
            A('s_lshl_b32 s11, s11, 12')
            A(f's_add_u32 s{32+i}, s21, s11')
        A('s_and_b32 s11, s38, 1')
        A('s_lshl_b32 s11, s11, 12')
        A('s_add_u32 s36, s22, s11')
        A('s_xor_b32 s11, s11, 4096')
        A('s_add_u32 s37, s22, s11')
    A('v_lshrrev_b32 v84, 2, v3')
    A('v_lshl_add_u32 v85, v2, 2, v84')
    A('v_and_b32 v84, 7, v85')
    A('v_lshlrev_b32 v85, 8, v85')
    A('v_lshl_add_u32 v85, v84, 5, v85')
    A('v_and_b32 v84, 3, v3')
    A('v_lshl_add_u32 v85, v84, 3, v85')
    A(f'v_add_u32 v85, {L_V}, v85')
    A('s_lshl_b32 s11, s3, 6')
    A('v_xor_b32 v48, s11, v85')
    A('v_xor_b32 v49, 32, v48')
    A('v_and_b32 v84, 3, v3')
    A('v_lshlrev_b32 v84, 14, v84')
    A('v_bfe_u32 v85, v3, 2, 1')
    A(f'v_lshl_add_u32 v84, v85, {6 if cfg.oline else 11}, v84')
    A('v_lshl_add_u32 v84, v2, 4, v84')
    A('s_lshl_b32 s11, s4, 16')
    A('s_lshl_b32 s12, s3, 12')
    A('s_add_u32 s11, s11, s12')
    A(f's_lshl_b32 s12, s5, {7 if cfg.oline else 6}')
    A('s_add_u32 s11, s11, s12')
    A(f's_add_u32 s11, s11, {OIO}')
    A('v_add_u32 v50, s11, v84')
    A('s_lshr_b32 s14, s5, 3')
    A('s_lshl_b32 s11, s4, 2')
    A('s_add_u32 s11, s11, s14')
    A('s_lshl_b32 s12, s11, 9')
    A(f's_add_u32 s12, s12, {MLO}')
    A('v_lshrrev_b32 v84, 2, v1')
    A('v_lshl_add_u32 v52, v84, 4, s12')
    A('s_bfe_u32 s12, s5, 0x10002')
    if cfg.oline:
        A('s_lshl_b32 s11, s11, 14')
        A('s_lshl_b32 s13, s12, 2')
        A('s_add_u32 s13, s13, s3')
        A('s_lshr_b32 s15, s13, 1')
        A('s_lshl_b32 s15, s15, 12')
        A('s_add_u32 s11, s11, s15')
        A('s_and_b32 s13, s13, 1')
        A('s_lshl_b32 s13, s13, 6')
        A('s_add_u32 s11, s11, s13')
        A(f's_add_u32 s11, s11, {OIO}')
        A('v_lshrrev_b32 v84, 2, v1')
        A('v_lshlrev_b32 v84, 7, v84')
        A('v_and_b32 v85, 3, v1')
        A('v_lshl_add_u32 v84, v85, 4, v84')
        A('v_add_u32 v51, s11, v84')
    else:
        A('s_lshl_b32 s11, s11, 3')
        A('s_lshl_b32 s13, s12, 2')
        A('s_add_u32 s11, s11, s13')
        A('s_add_u32 s11, s11, s3')
        A('s_lshl_b32 s11, s11, 11')
        A(f's_add_u32 s11, s11, {OIO}')
        if cfg.worot:
            A('v_add_u32 v84, s38, v1')
            A('v_and_b32 v84, 3, v84')
            A('v_and_b32 v85, 0x3c, v1')
            A('v_or_b32 v84, v84, v85')
            A('v_lshl_add_u32 v51, v84, 4, s11')
        else:
            A('v_lshl_add_u32 v51, v1, 4, s11')
    A('s_lshl_b32 s11, s4, 2')
    A('s_add_u32 s11, s11, s14')
    A('s_lshl_b32 s11, s11, 12')
    A('s_lshl_b32 s12, s12, 7')
    A('s_add_u32 s11, s11, s12')
    A('s_lshl_b32 s12, s3, 5')
    A('s_add_u32 s11, s11, s12')
    A(f's_add_u32 s11, s11, {GUO}')
    A('v_bfe_u32 v84, v1, 2, 3')
    A('v_lshlrev_b32 v84, 9, v84')
    A('v_bfe_u32 v85, v1, 1, 1')
    A('v_lshl_add_u32 v84, v85, 8, v84')
    if cfg.worot:
        A('v_xor_b32 v85, s38, v1')
        A('v_and_b32 v85, 1, v85')
    else:
        A('v_and_b32 v85, 1, v1')
    A('v_lshl_add_u32 v84, v85, 4, v84')
    A('v_add_u32 v53, s11, v84')
    A('v_mul_u32_u24 v54, 0x020202, v2')
    A('v_lshlrev_b32 v84, 25, v2')
    A('v_add_u32 v54, v54, v84')
    A('v_add_u32 v54, 0x01000100, v54')
    A('v_and_b32 v84, 1, v1')
    A('v_mov_b32 v85, 0xffff')
    A('v_lshlrev_b32 v84, 4, v84')
    A('v_lshlrev_b32 v84, v84, v85')
    for jj, m in enumerate((M0, M1, M2, M3)):
        A(f'v_cndmask_b32_e64 v{136+jj}, 0, v84, s[{m}:{m+1}]')
    A('v_and_b32 v84, 3, v1')
    A('s_lshl_b32 s11, s3, 2')
    A(f's_add_u32 s11, s11, {L_MW}')
    A('v_lshl_add_u32 v55, v84, 4, s11')
    A('v_lshlrev_b32 v84, 4, v84')
    A(f'v_add_u32 v56, {L_MW}, v84')
    A('v_lshlrev_b32 v84, 4, v1')
    A('s_lshl_b32 s11, s3, 10')
    A(f's_add_u32 s11, s11, {L_PB}')
    A('v_add_u32 v57, s11, v84')
    A(f'v_add_u32 v58, {L_PB}, v84')
    A('v_lshrrev_b32 v60, 2, v1')
    A('v_lshlrev_b32 v60, 12, v60')
    A('v_and_b32 v61, 3, v1')
    A('v_lshl_add_u32 v60, v61, 4, v60')
    A('s_and_b32 s11, s5, 3')
    A('s_lshl_b32 s11, s11, 15')
    A('s_lshl_b32 s12, s4, 3')
    A('s_lshr_b32 s13, s5, 2')
    A('s_add_u32 s12, s12, s13')
    A('s_lshl_b32 s12, s12, 6')
    A('s_add_u32 s11, s11, s12')
    A(f's_add_u32 s11, s11, {FIN}')
    A('v_add_u32 v60, s11, v60')
    A('v_lshlrev_b32 v62, 4, v1')
    A(f'v_add_u32 v62, {L_RED}, v62')
    A('v_lshlrev_b32 v85, 5, v3')
    A('v_lshl_add_u32 v85, v2, 4, v85')
    A('s_lshl_b32 s11, s3, 9')
    A(f's_add_u32 s11, s11, {L_RED}')
    A('v_add_u32 v59, s11, v85')
    A.c('gate/up partial products')
    P(17)
    A(f's_waitcnt vmcnt({8 + nearly})')
    P(18)
    for i in range(2):
        A(f'v_mfma_f32_16x16x32_bf16 v[72:75], {vr(64+4*i)}, {vr(8+4*i)}, {"0" if i == 0 else "v[72:75]"}')
    for i in range(2):
        A(f'v_mfma_f32_16x16x32_bf16 v[76:79], {vr(64+4*i)}, {vr(16+4*i)}, {"0" if i == 0 else "v[76:79]"}')
    A.nop(7)
    A('s_mov_b32 exec_lo, 0x00ff00ff')
    A('s_mov_b32 exec_hi, 0xff00ff00')
    A('ds_write_b128 v163, v[72:75] offset:2048')
    A('ds_write_b128 v163, v[76:79] offset:4096')
    A('s_mov_b64 exec, -1')
    A('s_waitcnt lgkmcnt(0)')
    P(6)
    A('s_barrier')
    P(7)
    A.c('scores')
    for j in range(4):
        A(f'ds_read_b128 {vr(112+4*j)}, v4 offset:{64*j}')
    for t in range(2):
        for j in range(4):
            A(f'ds_read_b128 {vr(80+16*t+4*j)}, v{156+j} offset:{L_K + 4096*t}')
    A(f'v_mov_b32 v6, {L_MODE}')
    A('ds_read_b32 v7, v6')
    tail_loads(2)
    for j in range(4):
        A(f's_waitcnt lgkmcnt({8-j})')
        A(f'v_mfma_f32_16x16x32_bf16 v[144:147], {vr(80+4*j)}, {vr(112+4*j)}, {"0" if j == 0 else "v[144:147]"}')
    for j in range(4):
        A(f's_waitcnt lgkmcnt({4-j})')
        A(f'v_mfma_f32_16x16x32_bf16 v[148:151], {vr(96+4*j)}, {vr(112+4*j)}, {"0" if j == 0 else "v[148:151]"}')
    A.nop(7)
    A('s_waitcnt lgkmcnt(0)')
    A('v_readfirstlane_b32 s24, v7')
    A.c('softmax')
    for k in range(4):
        A(f'v_cvt_pk_bf16_f32 v{152+k}, v{144+2*k}, v{145+2*k}')
    for k in range(4):
        A(f'v_lshlrev_b32 v{144+2*k}, 16, v{152+k}')
        A(f'v_and_b32 v{145+2*k}, 0xffff0000, v{152+k}')
    for k in range(8):
        A(f'v_mul_f32 v{144+k}, s{sSCALE}, v{144+k}')
    for k in range(4):
        A(f'v_cvt_pk_bf16_f32 v{152+k}, v{144+2*k}, v{145+2*k}')
    for k in range(4):
        A(f'v_lshlrev_b32 v{144+2*k}, 16, v{152+k}')
        A(f'v_and_b32 v{145+2*k}, 0xffff0000, v{152+k}')
    A('v_max3_f32 v82, v144, v145, v146')
    A('v_max3_f32 v83, v147, v148, v149')
    A('v_max3_f32 v82, v82, v150, v151')
    A('v_max_f32 v82, v82, v83')
    cross_rows(A, 82, 83, 'v_max_f32')
    A('s_mov_b64 exec, 15')
    A('ds_write_b32 v55, v82')
    A('s_mov_b64 exec, -1')
    tail_loads(25)
    A('s_waitcnt lgkmcnt(0)')
    A('s_barrier')
    tail_loads(26)
    P(8)
    A('ds_read_b128 v[84:87], v56')
    A('s_waitcnt lgkmcnt(0)')
    A('v_max3_f32 v82, v84, v85, v86')
    A('v_max_f32 v82, v82, v87')
    A(f'v_mul_f32 v83, s{sLOG2E}, v82')
    for k in range(8):
        A(f'v_fma_f32 v{144+k}, v{144+k}, s{sLOG2E}, -v83')
    for k in range(8):
        A(f'v_exp_f32 v{144+k}, v{144+k}')
    A.nop(1)
    for k in range(4):
        A(f'v_cvt_pk_bf16_f32 v{152+k}, v{144+2*k}, v{145+2*k}')
    A('v_add_f32 v84, v144, v145')
    A('v_add_f32 v85, v146, v147')
    A('ds_write_b128 v57, v[152:155]')
    A('v_add_f32 v86, v148, v149')
    A('v_add_f32 v87, v150, v151')
    A('v_add_f32 v84, v84, v85')
    A('v_add_f32 v86, v86, v87')
    A('v_add_f32 v84, v84, v86')
    cross_rows(A, 84, 85, 'v_add_f32')
    A('s_mov_b64 exec, 15')
    A(f'ds_write_b32 v55, v84 offset:{L_LW - L_MW}')
    A('s_mov_b64 exec, -1')
    tail_loads(3)
    P(9)
    A('s_waitcnt vmcnt(6) lgkmcnt(0)')
    A('s_barrier')
    P(10)
    A.c('PV over all 128 keys for tiles 2w, 2w+1')
    for ks in range(4):
        A(f'ds_read_b128 {vr(112+4*ks)}, v58 offset:{1024*ks}')
        for tt in range(2):
            base = 80 + (ks*2 + tt)*4
            A(f'ds_read_b64_tr_b16 v[{base}:{base+1}], v{48+tt} offset:{8192*ks}')
            A(f'ds_read_b64_tr_b16 v[{base+2}:{base+3}], v{48+tt} offset:{8192*ks + 4096}')
    for ks in range(4):
        for tt in range(2):
            base = 80 + (ks*2 + tt)*4
            left = 20 - (5*ks + 1 + 2*(tt+1))
            A(f's_waitcnt lgkmcnt({min(left, 15)})')
            A(f'v_mfma_f32_16x16x32_bf16 {vr(128+4*tt)}, {vr(base)}, {vr(112+4*ks)}, {"0" if ks == 0 else vr(128+4*tt)}')
    A('s_mov_b32 s12, 0x00f000f0')
    A('s_mov_b32 s13, 0x00f000f0')
    A('s_mov_b32 exec_lo, 0x00ff00ff')
    A('s_mov_b32 exec_hi, 0x00ff00ff')
    A.nop(4)
    for k in range(4):
        A(f'v_cndmask_b32_e64 v{128+k}, v{128+k}, v{132+k}, s[12:13]')
    tag_insert(A, 128)
    A('s_cmp_eq_u32 s24, 1')
    A('s_cbranch_scc0 L_opub_slow')
    A(f'buffer_store_dwordx4 v[128:131], v50, {srd(SWS)}, 0 offen')
    A('s_branch L_opub_done')
    A.label('L_opub_slow')
    A(f'buffer_store_dwordx4 v[128:131], v50, {srd(SWS)}, 0 offen sc1')
    A.label('L_opub_done')
    A('s_mov_b64 exec, -1')
    P(11)
    A.c('gather the partial attention outputs and the gate/up sums')
    if cfg.owait is not None:
        A(f's_waitcnt vmcnt({cfg.owait})')
        P(28)
    A(f's_mov_b32 s{sIT}, 0')
    A.label('L_ogat')
    A(f'buffer_load_dwordx4 v[80:83], v52, {srd(SWS)}, 0 offen {cfg.gat}')
    A(f'buffer_load_dwordx4 v[84:87], v52, {srd(SWS)}, 0 offen offset:256 {cfg.gat}')
    A(f'buffer_load_dwordx4 v[96:99], v53, {srd(SWS)}, 0 offen {cfg.gat}')
    A(f'buffer_load_dwordx4 v[88:91], v51, {srd(SWS)}, 0 offen {cfg.gat}')
    A(f'buffer_load_dwordx4 v[92:95], v51, {srd(SWS)}, 0 offen offset:{2048 if cfg.oline else 1024} {cfg.gat}')
    A('s_waitcnt vmcnt(0)')
    for q in range(5):
        tag_check(A, 80+4*q, 100, 101, q == 0)
    poll_tail(A, cfg, 'L_ogat', 'L_ook')
    A.label('L_ook')
    if cfg.prof in (True, 'heavy'):
        A(f'v_writelane_b32 v{vPROF}, s{sIT}, 21')
    P(12)
    if cfg.domask is True:
        mask_vals(A, 80, 2)
        mask_vals(A, 84, 2)
        mask_vals(A, 88, 12)
    else:
        mask_vals(A, 80, 1)
        mask_vals(A, 84, 1)
    A('v_max_f32 v100, v80, v84')
    for st in ('row_ror:8', 'row_ror:4'):
        for k in range(4):
            A(f'v_add_f32_dpp v{96+k}, v{96+k}, v{96+k} {st} row_mask:0xf bank_mask:0xf')
        A(f'v_max_f32_dpp v100, v100, v100 {st} row_mask:0xf bank_mask:0xf')
    for k in range(4):
        A(f'v_mov_b32 v{104+k}, v{96+k}')
    A('v_mov_b32 v101, v100')
    for k in range(4):
        A(f'v_permlane16_swap_b32 v{104+k}, v{96+k}')
    A('v_permlane16_swap_b32 v101, v100')
    for k in range(4):
        A(f'v_add_f32 v{96+k}, v{104+k}, v{96+k}')
    A('v_max_f32 v100, v101, v100')
    A('v_cvt_pk_bf16_f32 v104, v96, v97')
    A('v_mov_b32 v101, v100')
    A('v_cvt_pk_bf16_f32 v105, v98, v99')
    A('v_lshlrev_b32 v96, 16, v104')
    A('v_permlane32_swap_b32 v101, v100')
    A('v_and_b32 v97, 0xffff0000, v104')
    A('v_max_f32 v100, v101, v100')
    A('v_lshlrev_b32 v98, 16, v105')
    A('v_and_b32 v99, 0xffff0000, v105')
    A('v_sub_f32 v80, v80, v100')
    A('v_sub_f32 v84, v84, v100')
    A(f'v_mul_f32 v80, s{sLOG2E}, v80')
    A(f'v_mul_f32 v84, s{sLOG2E}, v84')
    A('v_exp_f32 v80, v80')
    A('v_exp_f32 v84, v84')
    for k in range(4):
        A(f'v_mul_f32_dpp v{104+k}, v{96+k}, v{96+k} quad_perm:[2,3,0,1] row_mask:0xf bank_mask:0xf')
    A('v_mul_f32 v102, v80, v81')
    A('v_fmac_f32 v102, v84, v85')
    for k in range(4):
        A(f'v_mul_f32 v{88+k}, v80, v{88+k}')
    for k in range(4):
        A(f'v_fmac_f32 v{88+k}, v84, v{92+k}')
    A('v_cvt_pk_bf16_f32 v96, v104, v105')
    A('v_cvt_pk_bf16_f32 v97, v106, v107')
    A('v_permlane32_swap_b32 v88, v89')
    A('v_permlane32_swap_b32 v90, v91')
    A('v_perm_b32 v98, v97, v96, v54')
    A('v_add_f32 v88, v88, v89')
    A('v_add_f32 v90, v90, v91')
    A('v_mov_b32 v103, v102')
    for i in range(2):
        for jj in range(4):
            A(f'v_and_b32_dpp v{64+4*i+jj}, v98, v{136+jj} quad_perm:[{i},{i},{i},{i}] row_mask:0xf bank_mask:0xf')
        if i == 0:
            A('v_permlane16_swap_b32 v88, v90')
            A('v_permlane16_swap_b32 v103, v102')
    A('v_add_f32 v88, v88, v90')
    A('v_add_f32 v102, v103, v102')
    A('v_mfma_f32_16x16x32_bf16 v[72:75], v[64:67], v[40:43], 0')
    A('v_mov_b32 v103, v102')
    A(f'v_add_f32_dpp v88, v88, v88 row_ror:8 row_mask:0xf bank_mask:0xf')
    A('v_mfma_f32_16x16x32_bf16 v[72:75], v[68:71], v[44:47], v[72:75]')
    A('v_permlane32_swap_b32 v103, v102')
    A(f'v_add_f32_dpp v88, v88, v88 row_ror:4 row_mask:0xf bank_mask:0xf')
    A('v_add_f32 v102, v103, v102')
    A.nop(2)
    A(f'v_add_f32_dpp v102, v102, v102 row_ror:8 row_mask:0xf bank_mask:0xf')
    A.nop(2)
    A(f'v_add_f32_dpp v102, v102, v102 row_ror:4 row_mask:0xf bank_mask:0xf')
    A.nop(1)
    A('v_rcp_f32 v102, v102')
    A.nop(1)
    A('v_mul_f32 v88, v88, v102')
    A('v_cvt_pk_bf16_f32 v88, v88, v88')
    A.nop(2)
    for i in range(4):
        for jj in range(4):
            A(f'v_and_b32_dpp v{112+4*i+jj}, v88, v{136+jj} quad_perm:[{i},{i},{i},{i}] row_mask:0xf bank_mask:0xf')
        if i:
            A(f'v_mfma_f32_16x16x32_bf16 v[72:75], {vr(112+4*(i-1))}, {vr(24+4*(i-1))}, v[72:75]')
    A.nop(1)
    A('v_mfma_f32_16x16x32_bf16 v[72:75], v[124:127], v[36:39], v[72:75]')
    A('s_mov_b32 exec_hi, 0')
    A.nop(7)
    A('ds_write_b128 v59, v[72:75]')
    A('s_mov_b64 exec, -1')
    A('s_waitcnt lgkmcnt(0)')
    A('s_barrier')
    P(13)
    A('s_cmp_lg_u32 s3, 0')
    A('s_cbranch_scc1 L_cmp_end')
    for w in range(4):
        A(f'ds_read_b128 {vr(88+4*w)}, v62 offset:{512*w}')
    A('s_waitcnt lgkmcnt(2)')
    for k in range(4):
        A(f'v_add_f32 v{88+k}, v{88+k}, v{92+k}')
    A('s_waitcnt lgkmcnt(0)')
    for k in range(4):
        A(f'v_add_f32 v{96+k}, v{96+k}, v{100+k}')
    for k in range(4):
        A(f'v_add_f32 v{88+k}, v{88+k}, v{96+k}')
    tag_insert(A, 88)
    A('s_mov_b32 exec_hi, 0')
    A(f'buffer_store_dwordx4 v[88:91], v60, {srd(SWS)}, 0 offen {cfg.fpub}')
    A('s_mov_b64 exec, -1')
    A.label('L_cmp_end')
    P(14)
    P.flush(); P.reset()
    A('s_branch L_done')
    A.label('L_comm')
    P.reset(prev=0, k=0)
    P(1)
    A(f's_load_dwordx2 s[{SOUT}:{SOUT+1}], s[0:1], 72')
    A(f's_mov_b32 s{SOUT+2}, s{SX+2}')
    A(f's_mov_b32 s{SOUT+3}, s{SWQ+3}')
    A(f's_lshl_b32 s{sT}, s{sRB}, 3')
    A(f's_add_u32 s{sT}, s{sT}, s4')
    A('v_lshrrev_b32 v2, 4, v1')
    A('v_and_b32 v3, 15, v1')
    A(f'v_mov_b32 v4, {EOFF}')
    if cfg.tlbwarm:
        A('s_cmp_eq_u32 s3, 4')
        A('s_cbranch_scc0 L_nowarm')
        for sr, off in ((SV, 16), (SGA, 48), (SUP, 56), (SWO, 32), (SDN, 64)):
            A(f's_load_dwordx2 s[{sr}:{sr+1}], s[0:1], {off}')
        A('s_lshl_b32 s11, s4, 24')
        A('s_lshl_b32 s12, s5, 15')
        A('s_add_u32 s11, s11, s12')
        A('s_add_u32 s11, s11, 15728640')
        A('s_lshl_b32 s12, s4, 19')
        A('s_lshl_b32 s13, s5, 15')
        A('s_waitcnt lgkmcnt(0)')
        A(f's_load_dword s32, s[{SV}:{SV+1}], s11')
        A(f's_load_dword s33, s[{SWO}:{SWO+1}], s12')
        A(f's_load_dword s34, s[{SGA}:{SGA+1}], s13')
        A(f's_load_dword s35, s[{SUP}:{SUP+1}], s13')
        A(f's_load_dword s32, s[{SDN}:{SDN+1}], s13')
        A(f's_load_dword s33, s[{SGA}:{SGA+1}], 0x100000') if False else None
        A.label('L_nowarm')
    if cfg.exp_dirty:
        A('s_cmp_eq_u32 s3, 4')
        A('s_cbranch_scc0 L_nodirty')
        A('s_waitcnt lgkmcnt(0)')
        A(f's_mov_b32 s{SWS+2}, 0x2000000')
        A(f's_mul_i32 s11, s2, {cfg.exp_dirty*1024}')
        A('s_add_u32 s11, s11, 0x400000')
        A('v_lshlrev_b32 v20, 4, v1')
        for i in range(cfg.exp_dirty):
            A(f'buffer_store_dwordx4 v[16:19], v20, {srd(SWS)}, s11 offen')
            A('s_add_u32 s11, s11, 1024')
        A.label('L_nodirty')
    def pretouch():
        A('s_cmp_eq_u32 s3, 4')
        A('s_cbranch_scc0 L_nopre')
        A('s_waitcnt lgkmcnt(0)')
        A('s_lshl_b32 s11, s4, 5')
        A('s_add_u32 s11, s11, s5')
        A('s_lshl_b32 s12, s11, 11')
        A(f's_add_u32 s12, s12, {OIO}')
        A('v_lshl_add_u32 v10, v1, 7, s12')
        A('s_lshl_b32 s12, s11, 9')
        A(f's_add_u32 s12, s12, {GUO - 16*128}')
        A('v_lshl_add_u32 v11, v1, 7, s12')
        A('v_cmp_le_u32 vcc, 16, v1')
        A('s_lshl_b32 s12, s11, 8')
        A(f's_add_u32 s12, s12, {QA - 20*128}')
        A('v_cndmask_b32 v10, v10, v11, vcc')
        A('v_lshl_add_u32 v11, v1, 7, s12')
        A('v_cmp_le_u32 vcc, 20, v1')
        A('s_lshl_b32 s12, s4, 9')
        A('s_and_b32 s13, s5, 3')
        A('s_lshl_b32 s13, s13, 7')
        A('s_add_u32 s12, s12, s13')
        A(f's_add_u32 s12, s12, {IDA}')
        A('v_cndmask_b32 v10, v10, v11, vcc')
        A('v_mov_b32 v11, s12')
        A('v_cmp_le_u32 vcc, 22, v1')
        A('s_lshl_b32 s12, s4, 11')
        A('s_and_b32 s13, s5, 15')
        A('s_lshl_b32 s13, s13, 7')
        A('s_add_u32 s12, s12, s13')
        A(f's_add_u32 s12, s12, {MLO}')
        A('v_cndmask_b32 v10, v10, v11, vcc')
        A('v_mov_b32 v11, s12')
        A('v_cmp_le_u32 vcc, 23, v1')
        A.nop(2)
        A('v_cndmask_b32 v10, v10, v11, vcc')
        A('s_mov_b64 exec, 0xffffff')
        A(f'buffer_load_dword v12, v10, {srd(SWS)}, 0 offen {cfg.pre_fl}')
        A('s_mov_b64 exec, -1')
        A.label('L_nopre')
    if cfg.pretouch == 1:
        pretouch()
    if cfg.finpre == 1:
        A('s_cmp_eq_u32 s3, 5')
        A('s_cbranch_scc0 L_nofinpre')
        A('s_cmp_lt_u32 s2, 32')
        A('s_cbranch_scc0 L_nofinpre')
        A('s_waitcnt lgkmcnt(0)')
        A('s_lshl_b32 s11, s2, 14')
        A(f's_add_u32 s11, s11, {FIN}')
        A('v_lshl_add_u32 v10, v1, 7, s11')
        A('s_mov_b32 s12, 8192')
        A(f'buffer_load_dword v12, v10, {srd(SWS)}, 0 offen {cfg.finpre_fl}')
        A(f'buffer_load_dword v13, v10, {srd(SWS)}, s12 offen {cfg.finpre_fl}')
        A.label('L_nofinpre')
    elif cfg.finpre == 2:
        A('s_cmp_eq_u32 s3, 5')
        A('s_cbranch_scc0 L_nofinpre')
        A('s_waitcnt lgkmcnt(0)')
        A('s_lshl_b32 s11, s2, 11')
        A(f's_add_u32 s11, s11, {FIN}')
        A('v_lshl_add_u32 v10, v1, 7, s11')
        A('s_mov_b64 exec, 0xffff')
        A(f'buffer_load_dword v12, v10, {srd(SWS)}, 0 offen {cfg.finpre_fl}')
        A('s_mov_b64 exec, -1')
        A.label('L_nofinpre')
    A('s_lshl_b32 s11, s4, 13')
    A('s_sub_u32 s12, s3, 4')
    A('s_lshl_b32 s12, s12, 10')
    A('s_add_u32 s11, s11, s12')
    A(f's_add_u32 s11, s11, {QA}')
    A('v_lshlrev_b32 v6, 4, v1')
    A('v_add_u32 v6, s11, v6')
    A('s_lshl_b32 s11, s4, 9')
    A(f's_add_u32 s11, s11, {IDA}')
    A('v_and_b32 v7, 31, v1')
    A('v_lshl_add_u32 v7, v7, 4, s11')
    A('s_sub_u32 s12, s3, 4')
    A('s_lshl_b32 s12, s12, 1')
    A('v_lshrrev_b32 v8, 5, v1')
    A('v_add_u32 v8, s12, v8')
    A('v_mul_u32_u24 v8, 272, v8')
    A('v_and_b32 v9, 31, v1')
    A('v_lshl_add_u32 v8, v9, 3, v8')
    A(f'v_add_u32 v8, {L_QB}, v8')
    P(3)
    if cfg.xone is not None:
        A('s_barrier')
    A('s_barrier')
    P(4)
    if cfg.b1a:
        A('s_barrier')
    A('s_waitcnt lgkmcnt(0)')
    A(f'buffer_load_dword v5, v4, {srd(SWS)}, 0 offen {cfg.xnt}')
    A(f's_mov_b32 s{sIT}, 0')
    A('s_mov_b32 s14, 0')
    if cfg.b1b:
        A('s_barrier')
    P(5)
    def q_issue():
        A('s_add_u32 s15, s14, 4096')
        A(f'buffer_load_dwordx4 v[16:19], v6, {srd(SWS)}, s14 offen {cfg.gat}')
        A(f'buffer_load_dwordx4 v[20:23], v6, {srd(SWS)}, s14 offen offset:2048 {cfg.gat}')
        A(f'buffer_load_dwordx4 v[24:27], v6, {srd(SWS)}, s15 offen {cfg.gat}')
        A(f'buffer_load_dwordx4 v[28:31], v6, {srd(SWS)}, s15 offen offset:2048 {cfg.gat}')
        A(f'buffer_load_dwordx4 v[32:35], v7, {srd(SWS)}, s14 offen {cfg.gat}')
    def q_check():
        for q in range(5):
            tag_check(A, 16+4*q, 36, 37, q == 0)
    if cfg.b1c:
        q_issue()
        A('s_waitcnt vmcnt(0)')
        A('v_add_u32 v9, 0x01010101, v5')
        A.nop(1)
        A('v_readfirstlane_b32 s6, v9')
        q_check()
        A('s_cmp_eq_u64 s[88:89], 0')
        A('s_cbranch_scc1 L_qfirst_ok')
        q_issue()
        A('s_barrier')
        A(f's_mov_b32 s{sIT}, 1')
        A('s_branch L_qwait')
        A.label('L_qfirst_ok')
        A('s_barrier')
        A('s_branch L_qok')
        A.label('L_qgat')
        q_issue()
        A.label('L_qwait')
        A('s_waitcnt vmcnt(0)')
        q_check()
        poll_tail(A, cfg, 'L_qgat', 'L_qok', switch=14)
    else:
        A.label('L_qgat')
        q_issue()
        A('s_waitcnt vmcnt(0)')
        A('v_add_u32 v9, 0x01010101, v5')
        A.nop(1)
        A('v_readfirstlane_b32 s6, v9')
        q_check()
        poll_tail(A, cfg, 'L_qgat', 'L_qok', switch=14)
    A.label('L_qok')
    if cfg.prof in (True, 'heavy'):
        A(f'v_writelane_b32 v{vPROF}, s{sIT}, 20')
    P(6)
    mask_vals(A, 16, 16)
    for k in range(4):
        A(f'v_add_f32 v{16+k}, v{16+k}, v{20+k}')
        A(f'v_add_f32 v{24+k}, v{24+k}, v{28+k}')
    for k in range(4):
        A(f'v_add_f32 v{16+k}, v{16+k}, v{24+k}')
    A('v_cvt_pk_bf16_f32 v16, v16, v17')
    A('v_cvt_pk_bf16_f32 v17, v18, v19')
    A('ds_write_b64 v8, v[16:17]')
    if cfg.pretouch == 2:
        pretouch()
    A('s_getreg_b32 s13, hwreg(HW_REG_XCC_ID, 0, 4)')
    A('v_bfe_u32 v32, v32, 8, 8')
    A('v_cmp_ne_u32 vcc, s13, v32')
    A('s_cmp_eq_u64 vcc, 0')
    A('s_cselect_b32 s13, 1, 0')
    if cfg.forceslow:
        A('s_mov_b32 s13, 0')
    A('s_mov_b32 s24, s13')
    A('v_mov_b32 v33, s13')
    A(f'v_mov_b32 v34, {L_MODE}')
    A('s_cmp_eq_u32 s3, 5')
    A('s_cbranch_scc0 L_nomode')
    A('ds_write_b32 v34, v33')
    A.label('L_nomode')
    A('s_waitcnt lgkmcnt(0)')
    A('s_barrier')
    P(7)
    P.flush(); P.reset()
    A('s_lshl_b32 s11, s2, 12')
    A(f's_add_u32 s11, s11, {FIN}')
    A('v_lshl_add_u32 v60, v1, 4, s11')
    A('v_and_b32 v61, 1, v2')
    A('v_lshrrev_b32 v62, 1, v2')
    A('v_lshl_or_b32 v61, v61, 1, v62')
    A('v_and_b32 v62, 3, v1')
    A('v_lshl_add_u32 v61, v62, 2, v61')
    A('s_and_b32 s11, s2, 31')
    A('s_lshl_b32 s11, s11, 4')
    A('v_add_u32 v61, s11, v61')
    A('v_lshlrev_b32 v61, 1, v61')
    if cfg.poll2:
        A(f'v_mov_b32 v63, {L_FLAG}')
        A('v_mov_b32 v59, 0')
    A('s_cmp_eq_u32 s3, 5')
    A('s_cbranch_scc1 L_comm5')
    A(f'buffer_load_ushort v62, v61, {srd(SX)}, 0 offen')
    if cfg.poll2:
        A('ds_write_b32 v63, v59')
        A('s_waitcnt lgkmcnt(0)')
    if cfg.finpre2:
        A('s_cmp_ge_u32 s2, 32')
        A('s_cbranch_scc1 L_nofp2')
        A('s_lshl_b32 s11, s2, 12')
        A(f's_add_u32 s11, s11, {FIN}')
        A('v_lshl_add_u32 v10, v1, 7, s11')
        A('s_mov_b32 exec_hi, 0')
        A(f'buffer_load_dword v11, v10, {srd(SWS)}, 0 offen {cfg.finpre_fl}')
        A('s_mov_b64 exec, -1')
        A.label('L_nofp2')
    A('s_barrier')
    A('s_barrier')
    A('s_barrier')
    P(13)
    P.flush(); P.reset()
    A.label('L_final')
    A('s_cmp_ge_u32 s2, 32')
    A('s_cbranch_scc1 L_done')
    A(f's_mov_b32 s{sIT}, 0')
    A.label('L_fgat')
    for q in range(4):
        A(f'buffer_load_dwordx4 {vr(16+4*q)}, v60, {srd(SWS)}, 0 offen offset:{1024*q} {cfg.fgat}')
    A('s_waitcnt vmcnt(0)')
    if cfg.poll2:
        A('ds_read_b32 v38, v63')
    for q in range(4):
        tag_check(A, 16+4*q, 36, 37, q == 0)
    if cfg.poll2:
        A('s_waitcnt lgkmcnt(0)')
        A('v_readfirstlane_b32 s11, v38')
        A('s_cmp_lg_u32 s11, 0')
        A('s_cbranch_scc1 L_done')
    poll_tail(A, cfg, 'L_fgat', 'L_fok')
    A.label('L_fok')
    if cfg.poll2:
        A('v_mov_b32 v59, 1')
        A('ds_write_b32 v63, v59')
    if cfg.prof in (True, 'heavy'):
        A(f'v_writelane_b32 v{vPROF}, s{sIT}, 22')
    P(14)
    P.flush(); P.reset()
    if cfg.domask is True:
        mask_vals(A, 16, 16)
    for k in range(4):
        A(f'v_add_f32 v{16+k}, v{16+k}, v{20+k}')
        A(f'v_add_f32 v{24+k}, v{24+k}, v{28+k}')
    for k in range(4):
        A(f'v_add_f32 v{16+k}, v{16+k}, v{24+k}')
    transpose_reduce4(A, 16)
    A('v_lshlrev_b32 v62, 16, v62')
    A.nop(1)
    A('v_add_f32_dpp v16, v16, v16 row_ror:8 row_mask:0xf bank_mask:0xf')
    A.nop(2)
    A('v_add_f32_dpp v16, v16, v16 row_ror:4 row_mask:0xf bank_mask:0xf')
    A('v_add_f32 v16, v16, v62')
    A('v_cvt_pk_bf16_f32 v16, v16, v16')
    if cfg.calib:
        A('s_cmp_lg_u32 s2, 0')
        A('s_cbranch_scc1 L_nocal')
        A(f's_add_u32 s36, s36, {cfg.calib}')
        A.label('L_cal')
        A('s_memrealtime s[38:39]')
        A('s_waitcnt lgkmcnt(0)')
        A('s_sub_u32 s37, s38, s36')
        A('s_cmp_lt_i32 s37, 0')
        A('s_cbranch_scc1 L_cal')
        A.label('L_nocal')
    A('s_mov_b32 exec_lo, 0x000f000f')
    A('s_mov_b32 exec_hi, 0x000f000f')
    A(f'buffer_store_short v16, v61, {srd(SOUT)}, 0 offen')
    A('s_cmp_lg_u32 s2, 0')
    A('s_cbranch_scc1 L_noepoch')
    A('s_mov_b64 exec, 1')
    A(f'v_mov_b32 v17, {EOFF}')
    A(f'v_mov_b32 v18, s{sTAG}')
    A(f'buffer_store_dword v18, v17, {srd(SWS)}, 0 offen')
    A.label('L_noepoch')
    A('s_mov_b64 exec, -1')
    A('s_branch L_done')
    A.label('L_comm5')
    P.reset()
    A(f'v_mov_b32 v{vTAG}, s6')
    A('v_lshlrev_b32 v6, 4, v3')
    A('v_and_b32 v7, 1, v2')
    A('v_lshl_add_u32 v7, v7, 11, v6')
    A(f'v_add_u32 v7, {L_PART + 2048}, v7')
    for k in range(8):
        A(f'ds_read_b128 {vr(16+4*k)}, v7 offset:{256*k}')
    A('s_lshl_b32 s12, s4, 2')
    A(f's_add_u32 s12, s12, s{sRB}')
    A('s_lshl_b32 s12, s12, 3')
    A(f's_add_u32 s12, s12, s{sCB}')
    A('s_lshl_b32 s12, s12, 9')
    A(f's_add_u32 s12, s12, {GUO}')
    A('v_and_b32 v7, 1, v2')
    A('v_lshl_add_u32 v6, v7, 8, v6')
    A('v_add_u32 v6, s12, v6')
    A('s_waitcnt lgkmcnt(0)')
    for k in range(4):
        A(f'v_add_f32 v{16+k}, v{16+k}, v{20+k}')
        A(f'v_add_f32 v{24+k}, v{24+k}, v{28+k}')
        A(f'v_add_f32 v{32+k}, v{32+k}, v{36+k}')
        A(f'v_add_f32 v{40+k}, v{40+k}, v{44+k}')
    for k in range(4):
        A(f'v_add_f32 v{16+k}, v{16+k}, v{24+k}')
        A(f'v_add_f32 v{32+k}, v{32+k}, v{40+k}')
    for k in range(4):
        A(f'v_add_f32 v{16+k}, v{16+k}, v{32+k}')
    tag_insert(A, 16)
    A('s_mov_b32 exec_hi, 0')
    A('s_cmp_eq_u32 s24, 1')
    A('s_cbranch_scc0 L_gupub_slow')
    A(f'buffer_store_dwordx4 v[16:19], v6, {srd(SWS)}, 0 offen')
    A('s_branch L_gupub_done')
    A.label('L_gupub_slow')
    A(f'buffer_store_dwordx4 v[16:19], v6, {srd(SWS)}, 0 offen sc1')
    A.label('L_gupub_done')
    A('s_mov_b64 exec, -1')
    A('v_and_b32 v8, 3, v1')
    A('v_lshlrev_b32 v9, 4, v8')
    A(f'v_add_u32 v9, {L_MW}, v9')
    A('s_lshl_b32 s11, s4, 11')
    A('s_lshl_b32 s12, s5, 4')
    A('s_add_u32 s11, s11, s12')
    A(f's_add_u32 s11, s11, {MLO}')
    A('v_lshl_add_u32 v8, v8, 9, s11')
    A('s_barrier')
    A('s_barrier')
    A('ds_read_b128 v[20:23], v9')
    A(f'ds_read_b128 v[24:27], v9 offset:{L_LW - L_MW}')
    A('s_waitcnt lgkmcnt(0)')
    A('v_max3_f32 v20, v20, v21, v22')
    A('v_add_f32 v24, v24, v25')
    A('v_add_f32 v26, v26, v27')
    A('v_max_f32 v20, v20, v23')
    A('v_add_f32 v21, v24, v26')
    tag_insert(A, 20)
    A('s_mov_b64 exec, 15')
    A('s_cmp_eq_u32 s24, 1')
    A('s_cbranch_scc0 L_mlpub_slow')
    A(f'buffer_store_dwordx4 v[20:23], v8, {srd(SWS)}, 0 offen')
    A('s_branch L_mlpub_done')
    A.label('L_mlpub_slow')
    A(f'buffer_store_dwordx4 v[20:23], v8, {srd(SWS)}, 0 offen sc1')
    A.label('L_mlpub_done')
    A('s_mov_b64 exec, -1')
    A('s_barrier')
    if cfg.poll2:
        A(f'buffer_load_ushort v62, v61, {srd(SX)}, 0 offen')
        A('s_waitcnt vmcnt(0)')
        A('s_branch L_final')
    A.label('L_done')
    if cfg.exp_hwid:
        A('s_getreg_b32 s11, hwreg(HW_REG_HW_ID)')
        A(f'v_writelane_b32 v{vPROF}, s11, 31')
    if cfg.prof == 'lite':
        A('s_memrealtime s[30:31]')
        A('s_waitcnt lgkmcnt(0)')
        A(f'v_writelane_b32 v{vPROF}, s28, 0')
        A(f'v_writelane_b32 v{vPROF}, s30, 15')
    elif cfg.prof:
        P(15)
        P.flush()
    if cfg.prof:
        A('s_mul_i32 s11, s2, 6')
        A('s_add_u32 s11, s11, s3')
        A('s_lshl_b32 s11, s11, 7')
        A(f's_add_u32 s11, s11, {PROF}')
        A('v_lshl_add_u32 v86, v1, 2, s11')
        A('s_mov_b32 exec_hi, 0')
        A(f'buffer_store_dword v{vPROF}, v86, {srd(SWS)}, 0 offen')
        A('s_mov_b64 exec, -1')
    A.label('L_end')
    A('s_endpgm')
    A('.section .rodata,"a"')
    A('.p2align 6')
    A(f'.amdhsa_kernel {NAME}')
    A(f'  .amdhsa_next_free_vgpr {cfg.nvgpr}')
    A('  .amdhsa_next_free_sgpr 102')
    A(f'  .amdhsa_accum_offset {min(cfg.nvgpr, 256)}')
    A('  .amdhsa_group_segment_fixed_size 0')
    A('  .amdhsa_kernarg_size 96')
    A('  .amdhsa_user_sgpr_count 2')
    A('  .amdhsa_user_sgpr_kernarg_segment_ptr 1')
    A('  .amdhsa_system_sgpr_workgroup_id_x 1')
    A('  .amdhsa_float_denorm_mode_32 3')
    A('.end_amdhsa_kernel')
    return A.text()

HEADER = open('parallel_sum__sliding_block_cached__glu_gated_bilinear__decode.s.ref').read().split('; Override launch')[0]

DOC = """;
"""

def full(cfg):
    body = gen(cfg)
    probs = check(body)
    for p in probs:
        if 'wide store WAR' in p and 'v_lshlrev_b32 v86, 4, v3' in p:
            continue
        print('HAZARD', p)
    return HEADER + f'; @launch grid=(256,1,1) block=(384,1,1) lds={cfg.ldsbytes}\n' + DOC + body

if __name__ == '__main__':
    cfg = Cfg()
    for a in sys.argv[2:]:
        k, v = a.split('=')
        old = getattr(cfg, k, None)
        setattr(cfg, k, v if ((isinstance(old, str) or v in ('lite', 'heavy')) and v not in ('False', 'True')) else eval(v))
    open(sys.argv[1], 'w').write(full(cfg))
```

```python
import sys
from asmlib import Asm, check

NAME = 'parallel_sum__sliding_block_cached__glu_gated_bilinear__decode_kernel'

EOFF  = 0
QA    = 0x1000
IDA   = 0x11000
BDELTA = 0x11000
GUO   = 0x23000
MLO   = 0x43000
OIO   = 0x48000
FIN   = 0xC8000
PROF  = 0x180000
WS_BYTES = 0x200000

L_K = 0
L_V = 32768
L_XN = 65536
L_PART = 66560
L_QB = 72704
L_HB = 73792
L_MODE = 73808
L_MW = 73824
L_LW = 73888
L_PB = L_PART
L_RED = L_PART + 4096
L_FLAG = 73812
LDS_BYTES = 73984

sW, sG, sS, sTAG = 3, 4, 5, 6
SX, SK, SV, SWQ, SWO, SGA, SUP, SDN, SOUT, SWS = 40, 44, 48, 52, 56, 60, 64, 68, 72, 76
M0, M1, M2, M3 = 80, 82, 84, 86
sX0, sX1 = 90, 91
sIT = 92
sLOG2E, sSCALE = 93, 94
sMSK = 95
sP01, sP23 = 96, 97
sI0, sI1, sI2, sI3 = 98, 99, 100, 101
sRB, sT, sCB = 7, 8, 10
vTAG, vSH = 167, 166
vPROF = 165
def srd(n): return f's[{n}:{n+3}]'
def vr(n, k=4): return f'v[{n}:{n+k-1}]'

class Cfg:
    nt = 'nt'
    gat = 'sc1'
    nk1 = 8
    domask = 'm'
    elate = True
    tlbwarm = False
    xone = 0
    poll2 = False
    finpre2 = True
    fpub = 'sc1'
    fgat = 'sc1'
    worot = True
    kearly = True
    owait = None
    oline = False
    tpos = (21, 21, 25, 25, 26, 26)
    calib = 0
    ldsbytes = LDS_BYTES
    nvgpr = 168
    b1a = True
    win = None
    win2 = None
    exp_dirty = 0
    b1c = False
    nv2 = 4
    kwait = 3
    exp_cb = 0
    exp_hwid = False
    swap = True
    wo_early = -1
    b0 = 0
    prio = 3
    align = 12
    xnt = ''
    finpre = 0
    finpre_fl = ''
    codepf_n = 4
    nv1 = 3
    b1b = True
    b3b = True
    maxit = 200000
    swit = 24
    prof = False
    dbgprof = None
    pretouch = 0
    pre_fl = 'nt'
    codepf = 's'
    forceslow = False
    forceb = False

ROW_FULL = ['quad_perm:[1,0,3,2]', 'quad_perm:[2,3,0,1]', 'row_half_mirror', 'row_mirror']

def rowred(A, regs, op, steps):
    for st in steps:
        A.nop(2 if len(regs) < 3 else max(0, 2 - (len(regs) - 1)))
        for v in regs:
            A(f'{op}_dpp v{v}, v{v}, v{v} {st} row_mask:0xf bank_mask:0xf')
        if len(regs) >= 3:
            pass

def cross_rows(A, v, tmp, op):
    A(f'v_mov_b32 v{tmp}, v{v}')
    A.nop(2)
    A(f'v_permlane16_swap_b32 v{tmp}, v{v}')
    A.nop(1)
    A(f'{op} v{v}, v{tmp}, v{v}')
    A(f'v_mov_b32 v{tmp}, v{v}')
    A.nop(2)
    A(f'v_permlane32_swap_b32 v{tmp}, v{v}')
    A.nop(1)
    A(f'{op} v{v}, v{tmp}, v{v}')

def wave_allreduce(A, v, tmp, op):
    rowred(A, [v], op, ROW_FULL)
    cross_rows(A, v, tmp, op)

def transpose_reduce4(A, v):
    A.nop(1)
    A(f'v_permlane32_swap_b32 v{v}, v{v+1}')
    A(f'v_permlane32_swap_b32 v{v+2}, v{v+3}')
    A.nop(1)
    A(f'v_add_f32 v{v}, v{v}, v{v+1}')
    A(f'v_add_f32 v{v+2}, v{v+2}, v{v+3}')
    A.nop(2)
    A(f'v_permlane16_swap_b32 v{v}, v{v+2}')
    A.nop(1)
    A(f'v_add_f32 v{v}, v{v}, v{v+2}')

def tag_insert(A, v):
    for k, s in enumerate((sI0, sI1, sI2, sI3)):
        A(f'v_perm_b32 v{v+k}, v{v+k}, v{vTAG}, s{s}')

def tag_check(A, v, t0, t1, first):
    A(f'v_perm_b32 v{t0}, v{v+1}, v{v}, s{sP01}')
    A(f'v_perm_b32 v{t1}, v{v+3}, v{v+2}, s{sP23}')
    A(f'v_or_b32 v{t0}, v{t0}, v{t1}')
    if first:
        A(f'v_cmp_ne_u32 s[88:89], s{sTAG}, v{t0}')
    else:
        A(f'v_cmp_ne_u32 s[90:91], s{sTAG}, v{t0}')
        A('s_or_b64 s[88:89], s[88:89], s[90:91]')

def mask_vals(A, v, n=4):
    for k in range(n):
        A(f'v_and_b32 v{v+k}, s{sMSK}, v{v+k}')

def build_sel(A, dst, val, tmp):
    A(f'v_lshlrev_b32 v{tmp}, v{vSH}, v{val}')
    for j, m in enumerate((M0, M1, M2, M3)):
        A(f'v_cndmask_b32_e64 v{dst+j}, 0, v{tmp}, s[{m}:{m+1}]')

class Prof:
    def __init__(self, A, cfg):
        self.A, self.on, self.prev, self.k = A, cfg.prof, None, 0
        self.lite = cfg.prof == 'lite'
    def reset(self, prev=None, k=0):
        if self.lite:
            self.prev = None
            return
        self.prev, self.k = prev, k
    def __call__(self, idx):
        if not self.on: return
        if self.on == 'lite' and idx not in (0, 15): return
        if idx >= 23 and self.on != 'heavy': return
        A = self.A
        if self.on == 'heavy' and self.prev is not None:
            A('s_waitcnt lgkmcnt(0)')
        if self.prev is not None:
            A(f'v_writelane_b32 v{vPROF}, s{28 + 2*self.k}, {self.prev}')
            self.k ^= 1
        A(f's_memrealtime s[{28+2*self.k}:{29+2*self.k}]')
        self.prev = None if self.lite else idx
    def flush(self):
        if not self.on: return
        if self.prev is None: return
        A = self.A
        A('s_waitcnt lgkmcnt(0)')
        A(f'v_writelane_b32 v{vPROF}, s{28 + 2*self.k}, {self.prev}')

def common_consts(A):
    A(f's_mov_b32 s{sLOG2E}, 0x3fb8aa3b')
    A(f's_mov_b32 s{sSCALE}, 0x3db504f3')
    A(f's_mov_b32 s{sMSK}, 0xffffff00')
    A(f's_mov_b32 s{sP01}, 0x0c0c0400')
    A(f's_mov_b32 s{sP23}, 0x04000c0c')
    A(f's_mov_b32 s{sI0}, 0x07060500')
    A(f's_mov_b32 s{sI1}, 0x07060501')
    A(f's_mov_b32 s{sI2}, 0x07060502')
    A(f's_mov_b32 s{sI3}, 0x07060503')

def poll_tail(A, cfg, label, oklabel, switch=None):
    A('s_cmp_eq_u64 s[88:89], 0')
    A(f's_cbranch_scc1 {oklabel}')
    A(f's_add_u32 s{sIT}, s{sIT}, 1')
    if switch:
        A(f's_cmp_eq_u32 s{sIT}, {cfg.swit}')
        A(f's_cselect_b32 s{switch}, {BDELTA}, s{switch}')
    A(f's_cmp_le_u32 s{sIT}, {cfg.maxit}')
    A(f's_cbranch_scc1 {label}')

def gen(cfg):
    A = Asm()
    P = Prof(A, cfg)
    nt = cfg.nt
    A('.amdgcn_target "amdgcn-amd-amdhsa--gfx950"')
    A('.text')
    A(f'.globl {NAME}')
    A(f'.p2align {cfg.align}')
    A(f'.type {NAME},@function')
    A.label(NAME)
    A('s_cmp_ge_u32 s2, 256')
    A('s_cbranch_scc1 L_end')
    P(0)
    if cfg.calib:
        A('s_memrealtime s[36:37]')
    for sr, off in ((SWQ, 24), (SX, 0), (SWS, 88), (SK, 8)):
        A(f's_load_dwordx2 s[{sr}:{sr+1}], s[0:1], {off}')
    A('v_lshrrev_b32 v2, 6, v0')
    A('v_and_b32 v1, 63, v0')
    A('s_and_b32 s4, s2, 7')
    A('v_readfirstlane_b32 s3, v2')
    A('s_lshr_b32 s5, s2, 3')
    A(f's_lshr_b32 s{sRB}, s5, 3')
    A(f's_and_b32 s{sCB}, s5, 7')
    for sr, n in ((SWQ, 4194304), (SX, 1024), (SWS, WS_BYTES), (SK, 134217728)):
        A(f's_mov_b32 s{sr+2}, {n}')
        A(f's_mov_b32 s{sr+3}, ' + ('0x20000' if sr == SWQ else f's{SWQ+3}'))
    common_consts(A)
    A('s_cmp_ge_u32 s3, 4')
    A('s_cbranch_scc1 L_comm0')
    def kcalc():
        A('v_lshrrev_b32 v2, 4, v1')
        A('v_and_b32 v3, 15, v1')
        A('v_xor_b32 v5, v2, v3')
        A('v_lshlrev_b32 v5, 4, v5')
        A('v_lshl_add_u32 v156, v2, 8, v5')
        for i in range(1, 4):
            A(f'v_xor_b32 v{156+i}, {64*i}, v156')
        A('s_lshl_b32 s19, s4, 24')
        A('s_lshl_b32 s11, s5, 15')
        A('s_add_u32 s19, s19, s11')
        A('s_lshl_b32 s20, s3, 13')
        A('s_add_u32 s19, s19, s20')
        A('s_add_u32 s19, s19, 15728640')
        A('s_and_b32 s25, s4, 1')
        A('s_lshl_b32 s25, s25, 12')
        A('s_xor_b32 s26, s25, 4096')
        A('s_add_u32 s27, s19, s26')
        A('s_add_u32 s19, s19, s25')
        A('s_add_u32 s25, s25, s20')
        A('s_add_u32 s26, s26, s20')
        A('s_mov_b32 m0, s25')
    A(f's_lshl_b32 s12, s{sRB}, 20')
    A('s_lshl_b32 s11, s3, 18')
    A('s_add_u32 s12, s12, s11')
    A('s_lshl_b32 s11, s4, 10')
    A('s_add_u32 s12, s12, s11')
    A(f's_lshl_b32 s11, s{sCB}, 7')
    A('s_add_u32 s12, s12, s11')
    A('v_lshlrev_b32 v163, 4, v1')
    A('v_lshrrev_b32 v164, 3, v1')
    A('v_and_b32 v4, 0x70, v163')
    A('v_lshl_add_u32 v6, v164, 13, v4')
    A(f'v_mov_b32 v7, {EOFF}')
    A('s_add_u32 s13, s12, 65536')
    A('s_add_u32 s14, s12, 131072')
    A('s_add_u32 s15, s12, 196608')
    if cfg.kearly:
        kcalc()
    A('s_waitcnt lgkmcnt(0)')
    P(27)
    if cfg.xone is not None:
        A(f's_cmp_lg_u32 s3, {cfg.xone}')
        A('s_cbranch_scc1 L_nox')
    A(f'buffer_load_dwordx4 v[8:11], v163, {srd(SX)}, 0 offen {cfg.xnt}')
    if cfg.xone is not None:
        A.label('L_nox')
    if not cfg.elate:
        A(f'buffer_load_dword v{vTAG}, v7, {srd(SWS)}, 0 offen {cfg.xnt}')
    for i in range(4):
        A(f'buffer_load_dwordx4 {vr(12+4*i)}, v6, {srd(SWQ)}, s{12+i} offen {nt}')
    if cfg.elate:
        A(f'buffer_load_dword v{vTAG}, v7, {srd(SWS)}, 0 offen {cfg.xnt}')
    for sr, off in ((SV, 16), (SGA, 48), (SUP, 56), (SWO, 32), (SDN, 64)):
        A(f's_load_dwordx2 s[{sr}:{sr+1}], s[0:1], {off}')
    if not cfg.kearly:
        kcalc()
        A.nop(1)
    def kloads(lo, hi):
        for i in range(lo, hi):
            if i == 4:
                A('s_mov_b32 m0, s26')
                A.nop(1)
            A(f'buffer_load_dwordx4 v{156+(i&3)}, {srd(SK)}, s{19 if i < 4 else 27} offen offset:{1024*(i&3)} {nt} lds')
    kloads(0, cfg.nk1)
    A('v_mul_u32_u24 v162, 3584, v164')
    A('v_add_u32 v161, v162, v4')
    A(f's_lshl_b32 s{sT}, s{sRB}, 3')
    A(f's_add_u32 s{sT}, s{sT}, s4')
    A(f's_cmp_lt_u32 s{sT}, 28')
    A('s_cselect_b32 s9, 1835008, 0')
    for sr, n in ((SV, f's{SK+2}'), (SWO, f's{SWQ+2}')):
        A(f's_mov_b32 s{sr+2}, {n}')
        A(f's_mov_b32 s{sr+3}, s{SWQ+3}')
    for sr in (SGA, SUP, SDN):
        A(f's_mov_b32 s{sr+2}, s9')
        A(f's_mov_b32 s{sr+3}, s{SWQ+3}')
    A('s_branch L_cmp_go')
    A.label('L_comm0')
    if cfg.codepf:
        A('s_cmp_eq_u32 s3, 5')
        A('s_cbranch_scc0 L_nocodepf')
        A('s_getpc_b64 s[12:13]')
        A.label('L_pc')
        A(f's_sub_u32 s12, s12, L_pc-{NAME}')
        A('s_subb_u32 s13, s13, 0')
        A('s_lshl_b32 s14, s5, 6')
        A('s_add_u32 s12, s12, s14')
        A('s_addc_u32 s13, s13, 0')
        for i in range(cfg.codepf_n - 1):
            A(f's_load_dword s{32+(i&3)}, s[12:13], {2048*i}')
        A(f's_add_u32 s15, s14, {2048*(cfg.codepf_n-1)}')
        A(f's_min_u32 s15, s15, L_end-{NAME}')
        A('s_sub_u32 s15, s15, s14')
        A('s_load_dword s35, s[12:13], s15')
        A.label('L_nocodepf')
    if cfg.prio:
        A(f's_setprio {cfg.prio}')
    A('s_branch L_comm')
    A.label('L_cmp_go')
    for m, lo in ((M0, 0x03030303), (M1, 0x0c0c0c0c), (M2, 0x30303030), (M3, 0xc0c0c0c0)):
        A(f's_mov_b32 s{m}, {hex(lo)}')
        A(f's_mov_b32 s{m+1}, s{m}')
    A(f'v_and_b32 v{vSH}, 1, v1')
    A(f'v_lshlrev_b32 v{vSH}, 4, v{vSH}')
    A(f's_lshl_b32 s17, s{sCB}, 6')
    A('s_lshl_b32 s11, s3, 4')
    A('s_add_u32 s17, s17, s11')
    A('s_mul_i32 s17, s17, 3584')
    A(f's_lshl_b32 s11, s{sT}, 7')
    A('s_add_u32 s17, s17, s11')
    A('s_lshl_b32 s21, s4, 19')
    A('s_lshr_b32 s11, s5, 2')
    A('s_lshl_b32 s12, s11, 16')
    A('s_add_u32 s21, s21, s12')
    A('s_lshl_b32 s12, s3, 14')
    A('s_add_u32 s21, s21, s12')
    A('s_and_b32 s23, s5, 3')
    A('s_lshl_b32 s23, s23, 8')
    A('s_add_u32 s21, s21, s23')
    A(f's_lshl_b32 s22, s{sT}, 16')
    A('s_and_b32 s11, s11, 1')
    A('s_lshl_b32 s11, s11, 15')
    A('s_add_u32 s22, s22, s11')
    A('s_lshl_b32 s12, s3, 13')
    A('s_add_u32 s22, s22, s12')
    A('s_add_u32 s22, s22, s23')
    A('v_lshlrev_b32 v162, 4, v3')
    A('v_lshl_add_u32 v162, v2, 10, v162')
    P(1)
    A('v_lshrrev_b32 v105, 3, v3')
    A('v_lshl_add_u32 v105, v2, 1, v105')
    A(f's_lshl_b32 s11, s{sRB}, 7')
    A('s_lshl_b32 s12, s3, 5')
    A('s_add_u32 s11, s11, s12')
    A('s_lshl_b32 s11, s11, 1')
    A(f's_add_u32 s11, s11, {L_XN}')
    A('v_lshl_add_u32 v106, v105, 1, s11')
    A(f's_lshl_b32 s11, s{sCB}, 6')
    A('s_lshl_b32 s12, s3, 4')
    A('s_add_u32 s11, s11, s12')
    A('s_lshl_b32 s11, s11, 1')
    A(f's_add_u32 s11, s11, {L_XN}')
    A('v_lshl_add_u32 v107, v105, 1, s11')
    A.c('layernorm')
    if cfg.xone is not None:
        A(f's_cmp_lg_u32 s3, {cfg.xone}')
        A('s_cbranch_scc1 L_noln')
    A(f's_waitcnt vmcnt({4 + cfg.nk1 + (1 if cfg.elate else 0)})')
    P(2)
    for k in range(4):
        A(f'v_lshlrev_b32 v{80+2*k}, 16, v{8+k}')
        A(f'v_and_b32 v{81+2*k}, 0xffff0000, v{8+k}')
    A('v_add_f32 v88, v80, v81')
    A('v_add_f32 v89, v82, v83')
    A('v_add_f32 v90, v84, v85')
    A('v_add_f32 v91, v86, v87')
    A('v_add_f32 v88, v88, v89')
    A('v_add_f32 v90, v90, v91')
    A('v_add_f32 v88, v88, v90')
    wave_allreduce(A, 88, 89, 'v_add_f32')
    A('v_mul_f32 v88, 0x3b000000, v88')
    for k in range(8):
        A(f'v_sub_f32 v{92+k}, v{80+k}, v88')
    A('v_mul_f32 v90, v92, v92')
    for k in range(1, 8):
        A(f'v_fmac_f32 v90, v{92+k}, v{92+k}')
    wave_allreduce(A, 90, 89, 'v_add_f32')
    P(23)
    A('v_mul_f32 v90, 0x3b000000, v90')
    A('v_cvt_pk_bf16_f32 v88, v88, v90')
    A('v_and_b32 v90, 0xffff0000, v88')
    A('v_lshlrev_b32 v88, 16, v88')
    A('v_add_f32 v90, 0x3727c5ac, v90')
    A('v_cvt_pk_bf16_f32 v90, v90, v90')
    A('v_lshlrev_b32 v90, 16, v90')
    A('v_sqrt_f32 v90, v90')
    for k in range(8):
        A(f'v_sub_f32 v{92+k}, v{80+k}, v88')
    A('v_cvt_pk_bf16_f32 v90, v90, v90')
    A('v_lshlrev_b32 v90, 16, v90')
    A('v_rcp_f32 v90, v90')
    for k in range(4):
        A(f'v_cvt_pk_bf16_f32 v{100+k}, v{92+2*k}, v{93+2*k}')
    for k in range(4):
        A(f'v_lshlrev_b32 v{92+2*k}, 16, v{100+k}')
        A(f'v_and_b32 v{93+2*k}, 0xffff0000, v{100+k}')
    for k in range(8):
        A(f'v_mul_f32 v{92+k}, v{92+k}, v90')
    for k in range(4):
        A(f'v_cvt_pk_bf16_f32 v{100+k}, v{92+2*k}, v{93+2*k}')
    A(f'v_add_u32 v104, {L_XN}, v163')
    A('ds_write_b128 v104, v[100:103]')
    P(24)
    if cfg.xone is not None:
        A.label('L_noln')
        A('s_waitcnt lgkmcnt(0)')
        A('s_barrier')
    A('s_waitcnt lgkmcnt(0)')
    for i in range(4):
        A(f'ds_read_u16 v{80+i}, v106 offset:{16*i}')
    for i in range(2):
        A(f'ds_read_u16 v{84+i}, v107 offset:{16*i}')
    if not cfg.elate:
        A(f'v_add_u32 v{vTAG}, 0x01010101, v{vTAG}')
    P(25)
    kloads(cfg.nk1, 8)
    P(26)
    if not cfg.elate:
        A.nop(1)
        A(f'v_readfirstlane_b32 s6, v{vTAG}')
    A('s_waitcnt lgkmcnt(0)')
    for i in range(4):
        build_sel(A, 48+4*i, 80+i, 86)
    for i in range(2):
        build_sel(A, 64+4*i, 84+i, 86)
    A('v_lshlrev_b32 v86, 1, v2')
    A('v_xor_b32 v86, v86, v3')
    A('v_lshlrev_b32 v86, 4, v86')
    A('v_lshl_add_u32 v160, v2, 8, v86')
    A('v_xor_b32 v164, 128, v160')
    A('v_lshrrev_b32 v87, 5, v1')
    A('v_lshlrev_b32 v87, 8, v87')
    A('v_and_b32 v86, 7, v1')
    A('v_lshl_add_u32 v87, v86, 5, v87')
    A('v_and_b32 v86, 1, v2')
    A('v_lshl_add_u32 v87, v86, 4, v87')
    A('s_lshl_b32 s11, s3, 9')
    A(f's_add_u32 s11, s11, {L_PART}')
    A('v_add_u32 v163, s11, v87')
    P(3)
    A.c('q partial product')
    A('s_waitcnt vmcnt(8)')
    P(16)
    if cfg.elate:
        A(f'v_add_u32 v{vTAG}, 0x01010101, v{vTAG}')
    for i in range(4):
        A(f'v_mfma_f32_16x16x32_bf16 v[72:75], {vr(48+4*i)}, {vr(12+4*i)}, {"0" if i == 0 else "v[72:75]"}')
    A('s_mov_b32 exec_lo, 0x00ff00ff')
    A('s_mov_b32 exec_hi, 0xff00ff00')
    A.nop(6)
    A('ds_write_b128 v163, v[72:75]')
    A('s_mov_b64 exec, -1')
    if cfg.elate:
        A(f'v_readfirstlane_b32 s6, v{vTAG}')
    A('s_waitcnt lgkmcnt(0)')
    A('s_barrier')
    P(4)
    A('s_cmp_lg_u32 s3, 3')
    A('s_cbranch_scc1 L_pub1_done')
    A('v_lshlrev_b32 v86, 4, v3')
    A(f'v_add_u32 v87, {L_PART}, v86')
    for k in range(8):
        A(f'ds_read_b128 {vr(80+4*k+32)}, v87 offset:{256*k}')
    A('s_lshl_b32 s11, s4, 2')
    A(f's_add_u32 s11, s11, s{sRB}')
    A('s_lshl_b32 s11, s11, 11')
    A(f's_lshl_b32 s12, s{sCB}, 8')
    A('s_add_u32 s11, s11, s12')
    A(f's_add_u32 s11, s11, {QA}')
    A('v_add_u32 v86, s11, v86')
    A('s_lshl_b32 s12, s4, 9')
    A('s_lshl_b32 s13, s5, 4')
    A('s_add_u32 s12, s12, s13')
    A(f's_add_u32 s12, s12, {IDA}')
    A('v_mov_b32 v87, s12')
    A('v_cmp_eq_u32 vcc, 0, v2')
    A('s_getreg_b32 s13, hwreg(HW_REG_XCC_ID, 0, 4)')
    A('s_lshl_b32 s13, s13, 8')
    A('v_cndmask_b32 v86, v87, v86, vcc')
    A('s_waitcnt lgkmcnt(0)')
    for k in range(4):
        A(f'v_add_f32 v{112+k}, v{112+k}, v{116+k}')
        A(f'v_add_f32 v{120+k}, v{120+k}, v{124+k}')
        A(f'v_add_f32 v{128+k}, v{128+k}, v{132+k}')
        A(f'v_add_f32 v{136+k}, v{136+k}, v{140+k}')
    for k in range(4):
        A(f'v_add_f32 v{112+k}, v{112+k}, v{120+k}')
        A(f'v_add_f32 v{128+k}, v{128+k}, v{136+k}')
    for k in range(4):
        A(f'v_add_f32 v{112+k}, v{112+k}, v{128+k}')
    A('v_mov_b32 v116, s13')
    A('v_cndmask_b32 v112, v116, v112, vcc')
    tag_insert(A, 112)
    A('s_mov_b32 exec_lo, 0x0001ffff')
    A('s_mov_b32 exec_hi, 0')
    if not cfg.forceb:
        A(f'buffer_store_dwordx4 v[112:115], v86, {srd(SWS)}, 0 offen')
    A(f's_mov_b32 s12, {BDELTA}')
    A(f'buffer_store_dwordx4 v[112:115], v86, {srd(SWS)}, s12 offen sc1')
    A('s_mov_b64 exec, -1')
    A.label('L_pub1_done')
    if cfg.b1a:
        A('s_barrier')
    nst = (1 if cfg.forceb else 2)
    A.c('gate/up loads, V loads')
    A('s_add_u32 s18, s17, 28672')
    A(f'buffer_load_dwordx4 {vr(8)}, v161, {srd(SGA)}, s17 offen {nt}')
    A(f'buffer_load_dwordx4 {vr(12)}, v161, {srd(SGA)}, s18 offen {nt}')
    A(f'buffer_load_dwordx4 {vr(16)}, v161, {srd(SUP)}, s17 offen {nt}')
    A(f'buffer_load_dwordx4 {vr(20)}, v161, {srd(SUP)}, s18 offen {nt}')
    def vloads(lo, hi, win=None):
        for i in range(lo, hi):
            if win:
                A(f's_waitcnt vmcnt({win-1})')
            if i % 4 == 0 or i == lo:
                A(f's_add_u32 m0, s{25 if i < 4 else 26}, {L_V}')
                A.nop(1)
            A(f'buffer_load_dwordx4 v{(160, 164)[i&1]}, {srd(SV)}, s{19 if i < 4 else 27} offen offset:{1024*(i&3)} {nt} lds')
    vloads(0, cfg.nv1)
    if cfg.kwait is not None:
        A('s_cmp_eq_u32 s3, 3')
        A('s_cbranch_scc1 L_nokwait')
        A(f's_waitcnt vmcnt({cfg.kwait + cfg.nv1})')
        A.label('L_nokwait')
    if cfg.b1b:
        A('s_barrier')
    P(5)
    A('v_and_b32 v85, 1, v2')
    A('v_lshrrev_b32 v86, 1, v2')
    A('v_lshl_or_b32 v85, v85, 1, v86')
    A('v_lshlrev_b32 v86, 4, v3')
    A('v_lshl_add_u32 v161, v85, 10, v86')
    A('v_xor_b32 v86, v2, v3')
    A('v_lshlrev_b32 v86, 4, v86')
    A('v_lshl_add_u32 v156, v3, 8, v86')
    A('v_add_u32 v156, s20, v156')
    for j in range(1, 4):
        A(f'v_xor_b32 v{156+j}, {64*j}, v156')
    A('v_and_b32 v86, 3, v1')
    A('v_mul_u32_u24 v86, 272, v86')
    A('v_lshl_add_u32 v4, v2, 4, v86')
    A(f'v_add_u32 v4, {L_QB}, v4')
    if cfg.b1c:
        vloads(cfg.nv1, cfg.nv2)
        A('s_barrier')
        vloads(cfg.nv2, 8)
    else:
        vloads(cfg.nv1, 8, cfg.win)
    def tail_loads(pos):
        n = 0
        for i, p in enumerate(cfg.tpos):
            if p != pos:
                continue
            n += 1
            if i < 4:
                if cfg.worot:
                    A(f'buffer_load_dwordx4 {vr(24+4*i)}, v161, {srd(SWO)}, s{32+i} offen {nt}')
                else:
                    A(f's_add_u32 s13, s21, {4096*i}')
                    A(f'buffer_load_dwordx4 {vr(24+4*i)}, v161, {srd(SWO)}, s13 offen {nt}')
            else:
                if cfg.worot:
                    A(f'buffer_load_dwordx4 {vr(40+4*(i-4))}, v162, {srd(SDN)}, s{36+(i-4)} offen {nt}')
                else:
                    A(f's_add_u32 s13, s22, {4096*(i-4)}')
                    A(f'buffer_load_dwordx4 {vr(40+4*(i-4))}, v162, {srd(SDN)}, s13 offen {nt}')
        return n
    nearly = 0
    nearly += tail_loads(1)
    A.c('addresses for the attention tail (computed while the loads are in flight)')
    if cfg.worot:
        A('s_add_u32 s38, s4, s3')
        A('s_and_b32 s38, s38, 3')
        for i in range(4):
            A(f's_add_u32 s11, s38, {i}')
            A('s_and_b32 s11, s11, 3')
            A('s_lshl_b32 s11, s11, 12')
            A(f's_add_u32 s{32+i}, s21, s11')
        A('s_and_b32 s11, s38, 1')
        A('s_lshl_b32 s11, s11, 12')
        A('s_add_u32 s36, s22, s11')
        A('s_xor_b32 s11, s11, 4096')
        A('s_add_u32 s37, s22, s11')
    A('v_lshrrev_b32 v84, 2, v3')
    A('v_lshl_add_u32 v85, v2, 2, v84')
    A('v_and_b32 v84, 7, v85')
    A('v_lshlrev_b32 v85, 8, v85')
    A('v_lshl_add_u32 v85, v84, 5, v85')
    A('v_and_b32 v84, 3, v3')
    A('v_lshl_add_u32 v85, v84, 3, v85')
    A(f'v_add_u32 v85, {L_V}, v85')
    A('s_lshl_b32 s11, s3, 6')
    A('v_xor_b32 v48, s11, v85')
    A('v_xor_b32 v49, 32, v48')
    A('v_and_b32 v84, 3, v3')
    A('v_lshlrev_b32 v84, 14, v84')
    A('v_bfe_u32 v85, v3, 2, 1')
    A(f'v_lshl_add_u32 v84, v85, {6 if cfg.oline else 11}, v84')
    A('v_lshl_add_u32 v84, v2, 4, v84')
    A('s_lshl_b32 s11, s4, 16')
    A('s_lshl_b32 s12, s3, 12')
    A('s_add_u32 s11, s11, s12')
    A(f's_lshl_b32 s12, s5, {7 if cfg.oline else 6}')
    A('s_add_u32 s11, s11, s12')
    A(f's_add_u32 s11, s11, {OIO}')
    A('v_add_u32 v50, s11, v84')
    A('s_lshr_b32 s14, s5, 3')
    A('s_lshl_b32 s11, s4, 2')
    A('s_add_u32 s11, s11, s14')
    A('s_lshl_b32 s12, s11, 9')
    A(f's_add_u32 s12, s12, {MLO}')
    A('v_lshrrev_b32 v84, 2, v1')
    A('v_lshl_add_u32 v52, v84, 4, s12')
    A('s_bfe_u32 s12, s5, 0x10002')
    if cfg.oline:
        A('s_lshl_b32 s11, s11, 14')
        A('s_lshl_b32 s13, s12, 2')
        A('s_add_u32 s13, s13, s3')
        A('s_lshr_b32 s15, s13, 1')
        A('s_lshl_b32 s15, s15, 12')
        A('s_add_u32 s11, s11, s15')
        A('s_and_b32 s13, s13, 1')
        A('s_lshl_b32 s13, s13, 6')
        A('s_add_u32 s11, s11, s13')
        A(f's_add_u32 s11, s11, {OIO}')
        A('v_lshrrev_b32 v84, 2, v1')
        A('v_lshlrev_b32 v84, 7, v84')
        A('v_and_b32 v85, 3, v1')
        A('v_lshl_add_u32 v84, v85, 4, v84')
        A('v_add_u32 v51, s11, v84')
    else:
        A('s_lshl_b32 s11, s11, 3')
        A('s_lshl_b32 s13, s12, 2')
        A('s_add_u32 s11, s11, s13')
        A('s_add_u32 s11, s11, s3')
        A('s_lshl_b32 s11, s11, 11')
        A(f's_add_u32 s11, s11, {OIO}')
        if cfg.worot:
            A('v_add_u32 v84, s38, v1')
            A('v_and_b32 v84, 3, v84')
            A('v_and_b32 v85, 0x3c, v1')
            A('v_or_b32 v84, v84, v85')
            A('v_lshl_add_u32 v51, v84, 4, s11')
        else:
            A('v_lshl_add_u32 v51, v1, 4, s11')
    A('s_lshl_b32 s11, s4, 2')
    A('s_add_u32 s11, s11, s14')
    A('s_lshl_b32 s11, s11, 12')
    A('s_lshl_b32 s12, s12, 7')
    A('s_add_u32 s11, s11, s12')
    A('s_lshl_b32 s12, s3, 5')
    A('s_add_u32 s11, s11, s12')
    A(f's_add_u32 s11, s11, {GUO}')
    A('v_bfe_u32 v84, v1, 2, 3')
    A('v_lshlrev_b32 v84, 9, v84')
    A('v_bfe_u32 v85, v1, 1, 1')
    A('v_lshl_add_u32 v84, v85, 8, v84')
    if cfg.worot:
        A('v_xor_b32 v85, s38, v1')
        A('v_and_b32 v85, 1, v85')
    else:
        A('v_and_b32 v85, 1, v1')
    A('v_lshl_add_u32 v84, v85, 4, v84')
    A('v_add_u32 v53, s11, v84')
    A('v_mul_u32_u24 v54, 0x020202, v2')
    A('v_lshlrev_b32 v84, 25, v2')
    A('v_add_u32 v54, v54, v84')
    A('v_add_u32 v54, 0x01000100, v54')
    A('v_and_b32 v84, 1, v1')
    A('v_mov_b32 v85, 0xffff')
    A('v_lshlrev_b32 v84, 4, v84')
    A('v_lshlrev_b32 v84, v84, v85')
    for jj, m in enumerate((M0, M1, M2, M3)):
        A(f'v_cndmask_b32_e64 v{136+jj}, 0, v84, s[{m}:{m+1}]')
    A('v_and_b32 v84, 3, v1')
    A('s_lshl_b32 s11, s3, 2')
    A(f's_add_u32 s11, s11, {L_MW}')
    A('v_lshl_add_u32 v55, v84, 4, s11')
    A('v_lshlrev_b32 v84, 4, v84')
    A(f'v_add_u32 v56, {L_MW}, v84')
    A('v_lshlrev_b32 v84, 4, v1')
    A('s_lshl_b32 s11, s3, 10')
    A(f's_add_u32 s11, s11, {L_PB}')
    A('v_add_u32 v57, s11, v84')
    A(f'v_add_u32 v58, {L_PB}, v84')
    A('v_lshrrev_b32 v60, 2, v1')
    A('v_lshlrev_b32 v60, 12, v60')
    A('v_and_b32 v61, 3, v1')
    A('v_lshl_add_u32 v60, v61, 4, v60')
    A('s_and_b32 s11, s5, 3')
    A('s_lshl_b32 s11, s11, 15')
    A('s_lshl_b32 s12, s4, 3')
    A('s_lshr_b32 s13, s5, 2')
    A('s_add_u32 s12, s12, s13')
    A('s_lshl_b32 s12, s12, 6')
    A('s_add_u32 s11, s11, s12')
    A(f's_add_u32 s11, s11, {FIN}')
    A('v_add_u32 v60, s11, v60')
    A('v_lshlrev_b32 v62, 4, v1')
    A(f'v_add_u32 v62, {L_RED}, v62')
    A('v_lshlrev_b32 v85, 5, v3')
    A('v_lshl_add_u32 v85, v2, 4, v85')
    A('s_lshl_b32 s11, s3, 9')
    A(f's_add_u32 s11, s11, {L_RED}')
    A('v_add_u32 v59, s11, v85')
    A.c('gate/up partial products')
    P(17)
    A(f's_waitcnt vmcnt({8 + nearly})')
    P(18)
    for i in range(2):
        A(f'v_mfma_f32_16x16x32_bf16 v[72:75], {vr(64+4*i)}, {vr(8+4*i)}, {"0" if i == 0 else "v[72:75]"}')
    for i in range(2):
        A(f'v_mfma_f32_16x16x32_bf16 v[76:79], {vr(64+4*i)}, {vr(16+4*i)}, {"0" if i == 0 else "v[76:79]"}')
    A.nop(7)
    A('s_mov_b32 exec_lo, 0x00ff00ff')
    A('s_mov_b32 exec_hi, 0xff00ff00')
    A('ds_write_b128 v163, v[72:75] offset:2048')
    A('ds_write_b128 v163, v[76:79] offset:4096')
    A('s_mov_b64 exec, -1')
    A('s_waitcnt lgkmcnt(0)')
    P(6)
    A('s_barrier')
    P(7)
    A.c('scores')
    for j in range(4):
        A(f'ds_read_b128 {vr(112+4*j)}, v4 offset:{64*j}')
    for t in range(2):
        for j in range(4):
            A(f'ds_read_b128 {vr(80+16*t+4*j)}, v{156+j} offset:{L_K + 4096*t}')
    A(f'v_mov_b32 v6, {L_MODE}')
    A('ds_read_b32 v7, v6')
    P(29)
    tail_loads(2)
    P(30)
    for j in range(4):
        A(f's_waitcnt lgkmcnt({8-j})')
        A(f'v_mfma_f32_16x16x32_bf16 v[144:147], {vr(80+4*j)}, {vr(112+4*j)}, {"0" if j == 0 else "v[144:147]"}')
    for j in range(4):
        A(f's_waitcnt lgkmcnt({4-j})')
        A(f'v_mfma_f32_16x16x32_bf16 v[148:151], {vr(96+4*j)}, {vr(112+4*j)}, {"0" if j == 0 else "v[148:151]"}')
    n21 = tail_loads(21)
    A.nop(max(0, 7 - n21))
    A('s_waitcnt lgkmcnt(0)')
    A('v_readfirstlane_b32 s24, v7')
    P(31)
    A.c('softmax')
    for k in range(4):
        A(f'v_cvt_pk_bf16_f32 v{152+k}, v{144+2*k}, v{145+2*k}')
    for k in range(4):
        A(f'v_lshlrev_b32 v{144+2*k}, 16, v{152+k}')
        A(f'v_and_b32 v{145+2*k}, 0xffff0000, v{152+k}')
    for k in range(8):
        A(f'v_mul_f32 v{144+k}, s{sSCALE}, v{144+k}')
    for k in range(4):
        A(f'v_cvt_pk_bf16_f32 v{152+k}, v{144+2*k}, v{145+2*k}')
    for k in range(4):
        A(f'v_lshlrev_b32 v{144+2*k}, 16, v{152+k}')
        A(f'v_and_b32 v{145+2*k}, 0xffff0000, v{152+k}')
    A('v_max3_f32 v82, v144, v145, v146')
    A('v_max3_f32 v83, v147, v148, v149')
    A('v_max3_f32 v82, v82, v150, v151')
    A('v_max_f32 v82, v82, v83')
    cross_rows(A, 82, 83, 'v_max_f32')
    A('s_mov_b64 exec, 15')
    A('ds_write_b32 v55, v82')
    A('s_mov_b64 exec, -1')
    tail_loads(25)
    A('s_waitcnt lgkmcnt(0)')
    A('s_barrier')
    tail_loads(26)
    P(8)
    A('ds_read_b128 v[84:87], v56')
    A('s_waitcnt lgkmcnt(0)')
    A('v_max3_f32 v82, v84, v85, v86')
    A('v_max_f32 v82, v82, v87')
    A(f'v_mul_f32 v83, s{sLOG2E}, v82')
    for k in range(8):
        A(f'v_fma_f32 v{144+k}, v{144+k}, s{sLOG2E}, -v83')
    for k in range(8):
        A(f'v_exp_f32 v{144+k}, v{144+k}')
    A.nop(1)
    for k in range(4):
        A(f'v_cvt_pk_bf16_f32 v{152+k}, v{144+2*k}, v{145+2*k}')
    A('v_add_f32 v84, v144, v145')
    A('v_add_f32 v85, v146, v147')
    A('ds_write_b128 v57, v[152:155]')
    A('v_add_f32 v86, v148, v149')
    A('v_add_f32 v87, v150, v151')
    A('v_add_f32 v84, v84, v85')
    A('v_add_f32 v86, v86, v87')
    A('v_add_f32 v84, v84, v86')
    cross_rows(A, 84, 85, 'v_add_f32')
    A('s_mov_b64 exec, 15')
    A(f'ds_write_b32 v55, v84 offset:{L_LW - L_MW}')
    A('s_mov_b64 exec, -1')
    tail_loads(3)
    P(9)
    A('s_waitcnt vmcnt(6) lgkmcnt(0)')
    A('s_barrier')
    P(10)
    A.c('PV over all 128 keys for tiles 2w, 2w+1')
    for ks in range(4):
        A(f'ds_read_b128 {vr(112+4*ks)}, v58 offset:{1024*ks}')
        for tt in range(2):
            base = 80 + (ks*2 + tt)*4
            A(f'ds_read_b64_tr_b16 v[{base}:{base+1}], v{48+tt} offset:{8192*ks}')
            A(f'ds_read_b64_tr_b16 v[{base+2}:{base+3}], v{48+tt} offset:{8192*ks + 4096}')
    for ks in range(4):
        for tt in range(2):
            base = 80 + (ks*2 + tt)*4
            left = 20 - (5*ks + 1 + 2*(tt+1))
            A(f's_waitcnt lgkmcnt({min(left, 15)})')
            A(f'v_mfma_f32_16x16x32_bf16 {vr(128+4*tt)}, {vr(base)}, {vr(112+4*ks)}, {"0" if ks == 0 else vr(128+4*tt)}')
    A('s_mov_b32 s12, 0x00f000f0')
    A('s_mov_b32 s13, 0x00f000f0')
    A('s_mov_b32 exec_lo, 0x00ff00ff')
    A('s_mov_b32 exec_hi, 0x00ff00ff')
    A.nop(4)
    for k in range(4):
        A(f'v_cndmask_b32_e64 v{128+k}, v{128+k}, v{132+k}, s[12:13]')
    tag_insert(A, 128)
    A('s_cmp_eq_u32 s24, 1')
    A('s_cbranch_scc0 L_opub_slow')
    A(f'buffer_store_dwordx4 v[128:131], v50, {srd(SWS)}, 0 offen')
    A('s_branch L_opub_done')
    A.label('L_opub_slow')
    A(f'buffer_store_dwordx4 v[128:131], v50, {srd(SWS)}, 0 offen sc1')
    A.label('L_opub_done')
    A('s_mov_b64 exec, -1')
    P(11)
    A.c('gather the partial attention outputs and the gate/up sums')
    if cfg.owait is not None:
        A(f's_waitcnt vmcnt({cfg.owait})')
        P(28)
    A(f's_mov_b32 s{sIT}, 0')
    A.label('L_ogat')
    A(f'buffer_load_dwordx4 v[80:83], v52, {srd(SWS)}, 0 offen {cfg.gat}')
    A(f'buffer_load_dwordx4 v[84:87], v52, {srd(SWS)}, 0 offen offset:256 {cfg.gat}')
    A(f'buffer_load_dwordx4 v[96:99], v53, {srd(SWS)}, 0 offen {cfg.gat}')
    A(f'buffer_load_dwordx4 v[88:91], v51, {srd(SWS)}, 0 offen {cfg.gat}')
    A(f'buffer_load_dwordx4 v[92:95], v51, {srd(SWS)}, 0 offen offset:{2048 if cfg.oline else 1024} {cfg.gat}')
    A('s_waitcnt vmcnt(0)')
    for q in range(5):
        tag_check(A, 80+4*q, 100, 101, q == 0)
    poll_tail(A, cfg, 'L_ogat', 'L_ook')
    A.label('L_ook')
    if cfg.prof in (True, 'heavy'):
        A(f'v_writelane_b32 v{vPROF}, s{sIT}, 21')
    P(12)
    if cfg.domask is True:
        mask_vals(A, 80, 2)
        mask_vals(A, 84, 2)
        mask_vals(A, 88, 12)
    else:
        mask_vals(A, 80, 1)
        mask_vals(A, 84, 1)
    A('v_max_f32 v100, v80, v84')
    for st in ('row_ror:8', 'row_ror:4'):
        for k in range(4):
            A(f'v_add_f32_dpp v{96+k}, v{96+k}, v{96+k} {st} row_mask:0xf bank_mask:0xf')
        A(f'v_max_f32_dpp v100, v100, v100 {st} row_mask:0xf bank_mask:0xf')
    for k in range(4):
        A(f'v_mov_b32 v{104+k}, v{96+k}')
    A('v_mov_b32 v101, v100')
    for k in range(4):
        A(f'v_permlane16_swap_b32 v{104+k}, v{96+k}')
    A('v_permlane16_swap_b32 v101, v100')
    for k in range(4):
        A(f'v_add_f32 v{96+k}, v{104+k}, v{96+k}')
    A('v_max_f32 v100, v101, v100')
    A('v_cvt_pk_bf16_f32 v104, v96, v97')
    A('v_mov_b32 v101, v100')
    A('v_cvt_pk_bf16_f32 v105, v98, v99')
    A('v_lshlrev_b32 v96, 16, v104')
    A('v_permlane32_swap_b32 v101, v100')
    A('v_and_b32 v97, 0xffff0000, v104')
    A('v_max_f32 v100, v101, v100')
    A('v_lshlrev_b32 v98, 16, v105')
    A('v_and_b32 v99, 0xffff0000, v105')
    A('v_sub_f32 v80, v80, v100')
    A('v_sub_f32 v84, v84, v100')
    A(f'v_mul_f32 v80, s{sLOG2E}, v80')
    A(f'v_mul_f32 v84, s{sLOG2E}, v84')
    A('v_exp_f32 v80, v80')
    A('v_exp_f32 v84, v84')
    for k in range(4):
        A(f'v_mul_f32_dpp v{104+k}, v{96+k}, v{96+k} quad_perm:[2,3,0,1] row_mask:0xf bank_mask:0xf')
    A('v_mul_f32 v102, v80, v81')
    A('v_fmac_f32 v102, v84, v85')
    for k in range(4):
        A(f'v_mul_f32 v{88+k}, v80, v{88+k}')
    for k in range(4):
        A(f'v_fmac_f32 v{88+k}, v84, v{92+k}')
    A('v_cvt_pk_bf16_f32 v96, v104, v105')
    A('v_cvt_pk_bf16_f32 v97, v106, v107')
    A('v_permlane32_swap_b32 v88, v89')
    A('v_permlane32_swap_b32 v90, v91')
    A('v_perm_b32 v98, v97, v96, v54')
    A('v_add_f32 v88, v88, v89')
    A('v_add_f32 v90, v90, v91')
    A('v_mov_b32 v103, v102')
    for i in range(2):
        for jj in range(4):
            A(f'v_and_b32_dpp v{64+4*i+jj}, v98, v{136+jj} quad_perm:[{i},{i},{i},{i}] row_mask:0xf bank_mask:0xf')
        if i == 0:
            A('v_permlane16_swap_b32 v88, v90')
            A('v_permlane16_swap_b32 v103, v102')
    A('v_add_f32 v88, v88, v90')
    A('v_add_f32 v102, v103, v102')
    A('v_mfma_f32_16x16x32_bf16 v[72:75], v[64:67], v[40:43], 0')
    A('v_mov_b32 v103, v102')
    A(f'v_add_f32_dpp v88, v88, v88 row_ror:8 row_mask:0xf bank_mask:0xf')
    A('v_mfma_f32_16x16x32_bf16 v[72:75], v[68:71], v[44:47], v[72:75]')
    A('v_permlane32_swap_b32 v103, v102')
    A(f'v_add_f32_dpp v88, v88, v88 row_ror:4 row_mask:0xf bank_mask:0xf')
    A('v_add_f32 v102, v103, v102')
    A.nop(2)
    A(f'v_add_f32_dpp v102, v102, v102 row_ror:8 row_mask:0xf bank_mask:0xf')
    A.nop(2)
    A(f'v_add_f32_dpp v102, v102, v102 row_ror:4 row_mask:0xf bank_mask:0xf')
    A.nop(1)
    A('v_rcp_f32 v102, v102')
    A.nop(1)
    A('v_mul_f32 v88, v88, v102')
    A('v_cvt_pk_bf16_f32 v88, v88, v88')
    A.nop(2)
    for i in range(4):
        for jj in range(4):
            A(f'v_and_b32_dpp v{112+4*i+jj}, v88, v{136+jj} quad_perm:[{i},{i},{i},{i}] row_mask:0xf bank_mask:0xf')
        if i:
            A(f'v_mfma_f32_16x16x32_bf16 v[72:75], {vr(112+4*(i-1))}, {vr(24+4*(i-1))}, v[72:75]')
    A.nop(1)
    A('v_mfma_f32_16x16x32_bf16 v[72:75], v[124:127], v[36:39], v[72:75]')
    A('s_mov_b32 exec_hi, 0')
    A.nop(7)
    A('ds_write_b128 v59, v[72:75]')
    A('s_mov_b64 exec, -1')
    A('s_waitcnt lgkmcnt(0)')
    A('s_barrier')
    P(13)
    A('s_cmp_lg_u32 s3, 0')
    A('s_cbranch_scc1 L_cmp_end')
    for w in range(4):
        A(f'ds_read_b128 {vr(88+4*w)}, v62 offset:{512*w}')
    A('s_waitcnt lgkmcnt(2)')
    for k in range(4):
        A(f'v_add_f32 v{88+k}, v{88+k}, v{92+k}')
    A('s_waitcnt lgkmcnt(0)')
    for k in range(4):
        A(f'v_add_f32 v{96+k}, v{96+k}, v{100+k}')
    for k in range(4):
        A(f'v_add_f32 v{88+k}, v{88+k}, v{96+k}')
    tag_insert(A, 88)
    A('s_mov_b32 exec_hi, 0')
    A(f'buffer_store_dwordx4 v[88:91], v60, {srd(SWS)}, 0 offen {cfg.fpub}')
    A('s_mov_b64 exec, -1')
    A.label('L_cmp_end')
    P(14)
    P.flush(); P.reset()
    A('s_branch L_done')
    A.label('L_comm')
    P.reset(prev=0, k=0)
    P(1)
    A(f's_load_dwordx2 s[{SOUT}:{SOUT+1}], s[0:1], 72')
    A(f's_mov_b32 s{SOUT+2}, s{SX+2}')
    A(f's_mov_b32 s{SOUT+3}, s{SWQ+3}')
    A(f's_lshl_b32 s{sT}, s{sRB}, 3')
    A(f's_add_u32 s{sT}, s{sT}, s4')
    A('v_lshrrev_b32 v2, 4, v1')
    A('v_and_b32 v3, 15, v1')
    A(f'v_mov_b32 v4, {EOFF}')
    if cfg.tlbwarm:
        A('s_cmp_eq_u32 s3, 4')
        A('s_cbranch_scc0 L_nowarm')
        for sr, off in ((SV, 16), (SGA, 48), (SUP, 56), (SWO, 32), (SDN, 64)):
            A(f's_load_dwordx2 s[{sr}:{sr+1}], s[0:1], {off}')
        A('s_lshl_b32 s11, s4, 24')
        A('s_lshl_b32 s12, s5, 15')
        A('s_add_u32 s11, s11, s12')
        A('s_add_u32 s11, s11, 15728640')
        A('s_lshl_b32 s12, s4, 19')
        A('s_lshl_b32 s13, s5, 15')
        A('s_waitcnt lgkmcnt(0)')
        A(f's_load_dword s32, s[{SV}:{SV+1}], s11')
        A(f's_load_dword s33, s[{SWO}:{SWO+1}], s12')
        A(f's_load_dword s34, s[{SGA}:{SGA+1}], s13')
        A(f's_load_dword s35, s[{SUP}:{SUP+1}], s13')
        A(f's_load_dword s32, s[{SDN}:{SDN+1}], s13')
        A(f's_load_dword s33, s[{SGA}:{SGA+1}], 0x100000') if False else None
        A.label('L_nowarm')
    if cfg.exp_dirty:
        A('s_cmp_eq_u32 s3, 4')
        A('s_cbranch_scc0 L_nodirty')
        A('s_waitcnt lgkmcnt(0)')
        A(f's_mov_b32 s{SWS+2}, 0x2000000')
        A(f's_mul_i32 s11, s2, {cfg.exp_dirty*1024}')
        A('s_add_u32 s11, s11, 0x400000')
        A('v_lshlrev_b32 v20, 4, v1')
        for i in range(cfg.exp_dirty):
            A(f'buffer_store_dwordx4 v[16:19], v20, {srd(SWS)}, s11 offen')
            A('s_add_u32 s11, s11, 1024')
        A.label('L_nodirty')
    def pretouch():
        A('s_cmp_eq_u32 s3, 4')
        A('s_cbranch_scc0 L_nopre')
        A('s_waitcnt lgkmcnt(0)')
        A('s_lshl_b32 s11, s4, 5')
        A('s_add_u32 s11, s11, s5')
        A('s_lshl_b32 s12, s11, 11')
        A(f's_add_u32 s12, s12, {OIO}')
        A('v_lshl_add_u32 v10, v1, 7, s12')
        A('s_lshl_b32 s12, s11, 9')
        A(f's_add_u32 s12, s12, {GUO - 16*128}')
        A('v_lshl_add_u32 v11, v1, 7, s12')
        A('v_cmp_le_u32 vcc, 16, v1')
        A('s_lshl_b32 s12, s11, 8')
        A(f's_add_u32 s12, s12, {QA - 20*128}')
        A('v_cndmask_b32 v10, v10, v11, vcc')
        A('v_lshl_add_u32 v11, v1, 7, s12')
        A('v_cmp_le_u32 vcc, 20, v1')
        A('s_lshl_b32 s12, s4, 9')
        A('s_and_b32 s13, s5, 3')
        A('s_lshl_b32 s13, s13, 7')
        A('s_add_u32 s12, s12, s13')
        A(f's_add_u32 s12, s12, {IDA}')
        A('v_cndmask_b32 v10, v10, v11, vcc')
        A('v_mov_b32 v11, s12')
        A('v_cmp_le_u32 vcc, 22, v1')
        A('s_lshl_b32 s12, s4, 11')
        A('s_and_b32 s13, s5, 15')
        A('s_lshl_b32 s13, s13, 7')
        A('s_add_u32 s12, s12, s13')
        A(f's_add_u32 s12, s12, {MLO}')
        A('v_cndmask_b32 v10, v10, v11, vcc')
        A('v_mov_b32 v11, s12')
        A('v_cmp_le_u32 vcc, 23, v1')
        A.nop(2)
        A('v_cndmask_b32 v10, v10, v11, vcc')
        A('s_mov_b64 exec, 0xffffff')
        A(f'buffer_load_dword v12, v10, {srd(SWS)}, 0 offen {cfg.pre_fl}')
        A('s_mov_b64 exec, -1')
        A.label('L_nopre')
    if cfg.pretouch == 1:
        pretouch()
    if cfg.finpre == 1:
        A('s_cmp_eq_u32 s3, 5')
        A('s_cbranch_scc0 L_nofinpre')
        A('s_cmp_lt_u32 s2, 32')
        A('s_cbranch_scc0 L_nofinpre')
        A('s_waitcnt lgkmcnt(0)')
        A('s_lshl_b32 s11, s2, 14')
        A(f's_add_u32 s11, s11, {FIN}')
        A('v_lshl_add_u32 v10, v1, 7, s11')
        A('s_mov_b32 s12, 8192')
        A(f'buffer_load_dword v12, v10, {srd(SWS)}, 0 offen {cfg.finpre_fl}')
        A(f'buffer_load_dword v13, v10, {srd(SWS)}, s12 offen {cfg.finpre_fl}')
        A.label('L_nofinpre')
    elif cfg.finpre == 2:
        A('s_cmp_eq_u32 s3, 5')
        A('s_cbranch_scc0 L_nofinpre')
        A('s_waitcnt lgkmcnt(0)')
        A('s_lshl_b32 s11, s2, 11')
        A(f's_add_u32 s11, s11, {FIN}')
        A('v_lshl_add_u32 v10, v1, 7, s11')
        A('s_mov_b64 exec, 0xffff')
        A(f'buffer_load_dword v12, v10, {srd(SWS)}, 0 offen {cfg.finpre_fl}')
        A('s_mov_b64 exec, -1')
        A.label('L_nofinpre')
    A('s_lshl_b32 s11, s4, 13')
    A('s_sub_u32 s12, s3, 4')
    A('s_lshl_b32 s12, s12, 10')
    A('s_add_u32 s11, s11, s12')
    A(f's_add_u32 s11, s11, {QA}')
    A('v_lshlrev_b32 v6, 4, v1')
    A('v_add_u32 v6, s11, v6')
    A('s_lshl_b32 s11, s4, 9')
    A(f's_add_u32 s11, s11, {IDA}')
    A('v_and_b32 v7, 31, v1')
    A('v_lshl_add_u32 v7, v7, 4, s11')
    A('s_sub_u32 s12, s3, 4')
    A('s_lshl_b32 s12, s12, 1')
    A('v_lshrrev_b32 v8, 5, v1')
    A('v_add_u32 v8, s12, v8')
    A('v_mul_u32_u24 v8, 272, v8')
    A('v_and_b32 v9, 31, v1')
    A('v_lshl_add_u32 v8, v9, 3, v8')
    A(f'v_add_u32 v8, {L_QB}, v8')
    P(3)
    if cfg.xone is not None:
        A('s_barrier')
    A('s_barrier')
    P(4)
    if cfg.b1a:
        A('s_barrier')
    A('s_waitcnt lgkmcnt(0)')
    A(f'buffer_load_dword v5, v4, {srd(SWS)}, 0 offen {cfg.xnt}')
    A(f's_mov_b32 s{sIT}, 0')
    A('s_mov_b32 s14, 0')
    if cfg.b1b:
        A('s_barrier')
    P(5)
    def q_issue():
        A('s_add_u32 s15, s14, 4096')
        A(f'buffer_load_dwordx4 v[16:19], v6, {srd(SWS)}, s14 offen {cfg.gat}')
        A(f'buffer_load_dwordx4 v[20:23], v6, {srd(SWS)}, s14 offen offset:2048 {cfg.gat}')
        A(f'buffer_load_dwordx4 v[24:27], v6, {srd(SWS)}, s15 offen {cfg.gat}')
        A(f'buffer_load_dwordx4 v[28:31], v6, {srd(SWS)}, s15 offen offset:2048 {cfg.gat}')
        A(f'buffer_load_dwordx4 v[32:35], v7, {srd(SWS)}, s14 offen {cfg.gat}')
    def q_check():
        for q in range(5):
            tag_check(A, 16+4*q, 36, 37, q == 0)
    if cfg.b1c:
        q_issue()
        A('s_waitcnt vmcnt(0)')
        A('v_add_u32 v9, 0x01010101, v5')
        A.nop(1)
        A('v_readfirstlane_b32 s6, v9')
        q_check()
        A('s_cmp_eq_u64 s[88:89], 0')
        A('s_cbranch_scc1 L_qfirst_ok')
        q_issue()
        A('s_barrier')
        A(f's_mov_b32 s{sIT}, 1')
        A('s_branch L_qwait')
        A.label('L_qfirst_ok')
        A('s_barrier')
        A('s_branch L_qok')
        A.label('L_qgat')
        q_issue()
        A.label('L_qwait')
        A('s_waitcnt vmcnt(0)')
        q_check()
        poll_tail(A, cfg, 'L_qgat', 'L_qok', switch=14)
    else:
        A.label('L_qgat')
        q_issue()
        A('s_waitcnt vmcnt(0)')
        A('v_add_u32 v9, 0x01010101, v5')
        A.nop(1)
        A('v_readfirstlane_b32 s6, v9')
        q_check()
        poll_tail(A, cfg, 'L_qgat', 'L_qok', switch=14)
    A.label('L_qok')
    if cfg.prof in (True, 'heavy'):
        A(f'v_writelane_b32 v{vPROF}, s{sIT}, 20')
    P(6)
    mask_vals(A, 16, 16)
    for k in range(4):
        A(f'v_add_f32 v{16+k}, v{16+k}, v{20+k}')
        A(f'v_add_f32 v{24+k}, v{24+k}, v{28+k}')
    for k in range(4):
        A(f'v_add_f32 v{16+k}, v{16+k}, v{24+k}')
    A('v_cvt_pk_bf16_f32 v16, v16, v17')
    A('v_cvt_pk_bf16_f32 v17, v18, v19')
    A('ds_write_b64 v8, v[16:17]')
    if cfg.pretouch == 2:
        pretouch()
    A('s_getreg_b32 s13, hwreg(HW_REG_XCC_ID, 0, 4)')
    A('v_bfe_u32 v32, v32, 8, 8')
    A('v_cmp_ne_u32 vcc, s13, v32')
    A('s_cmp_eq_u64 vcc, 0')
    A('s_cselect_b32 s13, 1, 0')
    if cfg.forceslow:
        A('s_mov_b32 s13, 0')
    A('s_mov_b32 s24, s13')
    A('v_mov_b32 v33, s13')
    A(f'v_mov_b32 v34, {L_MODE}')
    A('s_cmp_eq_u32 s3, 5')
    A('s_cbranch_scc0 L_nomode')
    A('ds_write_b32 v34, v33')
    A.label('L_nomode')
    A('s_waitcnt lgkmcnt(0)')
    A('s_barrier')
    P(7)
    P.flush(); P.reset()
    A('s_lshl_b32 s11, s2, 12')
    A(f's_add_u32 s11, s11, {FIN}')
    A('v_lshl_add_u32 v60, v1, 4, s11')
    A('v_and_b32 v61, 1, v2')
    A('v_lshrrev_b32 v62, 1, v2')
    A('v_lshl_or_b32 v61, v61, 1, v62')
    A('v_and_b32 v62, 3, v1')
    A('v_lshl_add_u32 v61, v62, 2, v61')
    A('s_and_b32 s11, s2, 31')
    A('s_lshl_b32 s11, s11, 4')
    A('v_add_u32 v61, s11, v61')
    A('v_lshlrev_b32 v61, 1, v61')
    if cfg.poll2:
        A(f'v_mov_b32 v63, {L_FLAG}')
        A('v_mov_b32 v59, 0')
    A('s_cmp_eq_u32 s3, 5')
    A('s_cbranch_scc1 L_comm5')
    A(f'buffer_load_ushort v62, v61, {srd(SX)}, 0 offen')
    if cfg.poll2:
        A('ds_write_b32 v63, v59')
        A('s_waitcnt lgkmcnt(0)')
    if cfg.finpre2:
        A('s_cmp_ge_u32 s2, 32')
        A('s_cbranch_scc1 L_nofp2')
        A('s_lshl_b32 s11, s2, 12')
        A(f's_add_u32 s11, s11, {FIN}')
        A('v_lshl_add_u32 v10, v1, 7, s11')
        A('s_mov_b32 exec_hi, 0')
        A(f'buffer_load_dword v11, v10, {srd(SWS)}, 0 offen {cfg.finpre_fl}')
        A('s_mov_b64 exec, -1')
        A.label('L_nofp2')
    A('s_barrier')
    A('s_barrier')
    A('s_barrier')
    P(13)
    P.flush(); P.reset()
    A.label('L_final')
    A('s_cmp_ge_u32 s2, 32')
    A('s_cbranch_scc1 L_done')
    A(f's_mov_b32 s{sIT}, 0')
    A.label('L_fgat')
    for q in range(4):
        A(f'buffer_load_dwordx4 {vr(16+4*q)}, v60, {srd(SWS)}, 0 offen offset:{1024*q} {cfg.fgat}')
    A('s_waitcnt vmcnt(0)')
    if cfg.poll2:
        A('ds_read_b32 v38, v63')
    for q in range(4):
        tag_check(A, 16+4*q, 36, 37, q == 0)
    if cfg.poll2:
        A('s_waitcnt lgkmcnt(0)')
        A('v_readfirstlane_b32 s11, v38')
        A('s_cmp_lg_u32 s11, 0')
        A('s_cbranch_scc1 L_done')
    poll_tail(A, cfg, 'L_fgat', 'L_fok')
    A.label('L_fok')
    if cfg.poll2:
        A('v_mov_b32 v59, 1')
        A('ds_write_b32 v63, v59')
    if cfg.prof in (True, 'heavy'):
        A(f'v_writelane_b32 v{vPROF}, s{sIT}, 22')
    P(14)
    P.flush(); P.reset()
    if cfg.domask is True:
        mask_vals(A, 16, 16)
    for k in range(4):
        A(f'v_add_f32 v{16+k}, v{16+k}, v{20+k}')
        A(f'v_add_f32 v{24+k}, v{24+k}, v{28+k}')
    for k in range(4):
        A(f'v_add_f32 v{16+k}, v{16+k}, v{24+k}')
    transpose_reduce4(A, 16)
    A('v_lshlrev_b32 v62, 16, v62')
    A.nop(1)
    A('v_add_f32_dpp v16, v16, v16 row_ror:8 row_mask:0xf bank_mask:0xf')
    A.nop(2)
    A('v_add_f32_dpp v16, v16, v16 row_ror:4 row_mask:0xf bank_mask:0xf')
    A('v_add_f32 v16, v16, v62')
    A('v_cvt_pk_bf16_f32 v16, v16, v16')
    if cfg.calib:
        A('s_cmp_lg_u32 s2, 0')
        A('s_cbranch_scc1 L_nocal')
        A(f's_add_u32 s36, s36, {cfg.calib}')
        A.label('L_cal')
        A('s_memrealtime s[38:39]')
        A('s_waitcnt lgkmcnt(0)')
        A('s_sub_u32 s37, s38, s36')
        A('s_cmp_lt_i32 s37, 0')
        A('s_cbranch_scc1 L_cal')
        A.label('L_nocal')
    A('s_mov_b32 exec_lo, 0x000f000f')
    A('s_mov_b32 exec_hi, 0x000f000f')
    A(f'buffer_store_short v16, v61, {srd(SOUT)}, 0 offen')
    A('s_cmp_lg_u32 s2, 0')
    A('s_cbranch_scc1 L_noepoch')
    A('s_mov_b64 exec, 1')
    A(f'v_mov_b32 v17, {EOFF}')
    A(f'v_mov_b32 v18, s{sTAG}')
    A(f'buffer_store_dword v18, v17, {srd(SWS)}, 0 offen')
    A.label('L_noepoch')
    A('s_mov_b64 exec, -1')
    A('s_branch L_done')
    A.label('L_comm5')
    P.reset()
    A(f'v_mov_b32 v{vTAG}, s6')
    A('v_lshlrev_b32 v6, 4, v3')
    A('v_and_b32 v7, 1, v2')
    A('v_lshl_add_u32 v7, v7, 11, v6')
    A(f'v_add_u32 v7, {L_PART + 2048}, v7')
    for k in range(8):
        A(f'ds_read_b128 {vr(16+4*k)}, v7 offset:{256*k}')
    A('s_lshl_b32 s12, s4, 2')
    A(f's_add_u32 s12, s12, s{sRB}')
    A('s_lshl_b32 s12, s12, 3')
    A(f's_add_u32 s12, s12, s{sCB}')
    A('s_lshl_b32 s12, s12, 9')
    A(f's_add_u32 s12, s12, {GUO}')
    A('v_and_b32 v7, 1, v2')
    A('v_lshl_add_u32 v6, v7, 8, v6')
    A('v_add_u32 v6, s12, v6')
    A('s_waitcnt lgkmcnt(0)')
    for k in range(4):
        A(f'v_add_f32 v{16+k}, v{16+k}, v{20+k}')
        A(f'v_add_f32 v{24+k}, v{24+k}, v{28+k}')
        A(f'v_add_f32 v{32+k}, v{32+k}, v{36+k}')
        A(f'v_add_f32 v{40+k}, v{40+k}, v{44+k}')
    for k in range(4):
        A(f'v_add_f32 v{16+k}, v{16+k}, v{24+k}')
        A(f'v_add_f32 v{32+k}, v{32+k}, v{40+k}')
    for k in range(4):
        A(f'v_add_f32 v{16+k}, v{16+k}, v{32+k}')
    tag_insert(A, 16)
    A('s_mov_b32 exec_hi, 0')
    A('s_cmp_eq_u32 s24, 1')
    A('s_cbranch_scc0 L_gupub_slow')
    A(f'buffer_store_dwordx4 v[16:19], v6, {srd(SWS)}, 0 offen')
    A('s_branch L_gupub_done')
    A.label('L_gupub_slow')
    A(f'buffer_store_dwordx4 v[16:19], v6, {srd(SWS)}, 0 offen sc1')
    A.label('L_gupub_done')
    A('s_mov_b64 exec, -1')
    A('v_and_b32 v8, 3, v1')
    A('v_lshlrev_b32 v9, 4, v8')
    A(f'v_add_u32 v9, {L_MW}, v9')
    A('s_lshl_b32 s11, s4, 11')
    A('s_lshl_b32 s12, s5, 4')
    A('s_add_u32 s11, s11, s12')
    A(f's_add_u32 s11, s11, {MLO}')
    A('v_lshl_add_u32 v8, v8, 9, s11')
    A('s_barrier')
    A('s_barrier')
    A('ds_read_b128 v[20:23], v9')
    A(f'ds_read_b128 v[24:27], v9 offset:{L_LW - L_MW}')
    A('s_waitcnt lgkmcnt(0)')
    A('v_max3_f32 v20, v20, v21, v22')
    A('v_add_f32 v24, v24, v25')
    A('v_add_f32 v26, v26, v27')
    A('v_max_f32 v20, v20, v23')
    A('v_add_f32 v21, v24, v26')
    tag_insert(A, 20)
    A('s_mov_b64 exec, 15')
    A('s_cmp_eq_u32 s24, 1')
    A('s_cbranch_scc0 L_mlpub_slow')
    A(f'buffer_store_dwordx4 v[20:23], v8, {srd(SWS)}, 0 offen')
    A('s_branch L_mlpub_done')
    A.label('L_mlpub_slow')
    A(f'buffer_store_dwordx4 v[20:23], v8, {srd(SWS)}, 0 offen sc1')
    A.label('L_mlpub_done')
    A('s_mov_b64 exec, -1')
    A('s_barrier')
    if cfg.poll2:
        A(f'buffer_load_ushort v62, v61, {srd(SX)}, 0 offen')
        A('s_waitcnt vmcnt(0)')
        A('s_branch L_final')
    A.label('L_done')
    if cfg.exp_hwid:
        A('s_getreg_b32 s11, hwreg(HW_REG_HW_ID)')
        A(f'v_writelane_b32 v{vPROF}, s11, 31')
    if cfg.prof == 'lite':
        A('s_memrealtime s[30:31]')
        A('s_waitcnt lgkmcnt(0)')
        A(f'v_writelane_b32 v{vPROF}, s28, 0')
        A(f'v_writelane_b32 v{vPROF}, s30, 15')
    elif cfg.prof:
        P(15)
        P.flush()
    if cfg.prof:
        A('s_mul_i32 s11, s2, 6')
        A('s_add_u32 s11, s11, s3')
        A('s_lshl_b32 s11, s11, 7')
        A(f's_add_u32 s11, s11, {PROF}')
        A('v_lshl_add_u32 v86, v1, 2, s11')
        A('s_mov_b32 exec_hi, 0')
        A(f'buffer_store_dword v{vPROF}, v86, {srd(SWS)}, 0 offen')
        A('s_mov_b64 exec, -1')
    A.label('L_end')
    A('s_endpgm')
    A('.section .rodata,"a"')
    A('.p2align 6')
    A(f'.amdhsa_kernel {NAME}')
    A(f'  .amdhsa_next_free_vgpr {cfg.nvgpr}')
    A('  .amdhsa_next_free_sgpr 102')
    A(f'  .amdhsa_accum_offset {min(cfg.nvgpr, 256)}')
    A('  .amdhsa_group_segment_fixed_size 0')
    A('  .amdhsa_kernarg_size 96')
    A('  .amdhsa_user_sgpr_count 2')
    A('  .amdhsa_user_sgpr_kernarg_segment_ptr 1')
    A('  .amdhsa_system_sgpr_workgroup_id_x 1')
    A('  .amdhsa_float_denorm_mode_32 3')
    A('.end_amdhsa_kernel')
    return A.text()

HEADER = open('parallel_sum__sliding_block_cached__glu_gated_bilinear__decode.s.ref').read().split('; Override launch')[0]

DOC = """;
"""

def full(cfg):
    body = gen(cfg)
    probs = check(body)
    for p in probs:
        if 'wide store WAR' in p and 'v_lshlrev_b32 v86, 4, v3' in p:
            continue
        print('HAZARD', p)
    return HEADER + f'; @launch grid=(256,1,1) block=(384,1,1) lds={cfg.ldsbytes}\n' + DOC + body

if __name__ == '__main__':
    cfg = Cfg()
    for a in sys.argv[2:]:
        k, v = a.split('=')
        old = getattr(cfg, k, None)
        setattr(cfg, k, v if ((isinstance(old, str) or v in ('lite', 'heavy')) and v not in ('False', 'True')) else eval(v))
    open(sys.argv[1], 'w').write(full(cfg))
```

```python
import sys
from asmlib import Asm, check

NAME = 'parallel_sum__sliding_block_cached__glu_gated_bilinear__decode_kernel'

EOFF  = 0
QA    = 0x1000
IDA   = 0x11000
BDELTA = 0x11000
GUO   = 0x23000
MLO   = 0x43000
OIO   = 0x48000
FIN   = 0xC8000
PROF  = 0x180000
WS_BYTES = 0x200000

L_K = 0
L_V = 32768
L_XN = 65536
L_PART = 66560
L_QB = 72704
L_HB = 73792
L_MODE = 73808
L_MW = 73824
L_LW = 73888
L_PB = L_PART
L_RED = L_PART + 4096
L_FLAG = 73812
LDS_BYTES = 73984

sW, sG, sS, sTAG = 3, 4, 5, 6
SX, SK, SV, SWQ, SWO, SGA, SUP, SDN, SOUT, SWS = 40, 44, 48, 52, 56, 60, 64, 68, 72, 76
M0, M1, M2, M3 = 80, 82, 84, 86
sX0, sX1 = 90, 91
sIT = 92
sLOG2E, sSCALE = 93, 94
sMSK = 95
sP01, sP23 = 96, 97
sI0, sI1, sI2, sI3 = 98, 99, 100, 101
sRB, sT, sCB = 7, 8, 10
vTAG, vSH = 167, 166
vPROF = 165
def srd(n): return f's[{n}:{n+3}]'
def vr(n, k=4): return f'v[{n}:{n+k-1}]'

class Cfg:
    nt = 'nt'
    gat = 'sc1'
    nk1 = 8
    domask = 'm'
    elate = True
    tlbwarm = False
    xone = 0
    addr_early = True
    nk0 = None
    poll2 = False
    finpre2 = True
    fpub = 'sc1'
    fgat = 'sc1'
    worot = True
    kearly = True
    owait = None
    oline = False
    tpos = (21, 21, 25, 25, 26, 26)
    calib = 0
    ldsbytes = LDS_BYTES
    nvgpr = 168
    b1a = True
    win = None
    win2 = None
    exp_dirty = 0
    b1c = False
    nv2 = 4
    kwait = 3
    exp_cb = 0
    exp_hwid = False
    swap = True
    wo_early = -1
    b0 = 0
    prio = 3
    align = 12
    xnt = ''
    finpre = 0
    finpre_fl = ''
    codepf_n = 4
    nv1 = 3
    b1b = True
    b3b = True
    maxit = 200000
    swit = 24
    prof = False
    dbgprof = None
    pretouch = 0
    pre_fl = 'nt'
    codepf = 's'
    forceslow = False
    forceb = False

ROW_FULL = ['quad_perm:[1,0,3,2]', 'quad_perm:[2,3,0,1]', 'row_half_mirror', 'row_mirror']

def rowred(A, regs, op, steps):
    for st in steps:
        A.nop(2 if len(regs) < 3 else max(0, 2 - (len(regs) - 1)))
        for v in regs:
            A(f'{op}_dpp v{v}, v{v}, v{v} {st} row_mask:0xf bank_mask:0xf')
        if len(regs) >= 3:
            pass

def cross_rows(A, v, tmp, op):
    A(f'v_mov_b32 v{tmp}, v{v}')
    A.nop(2)
    A(f'v_permlane16_swap_b32 v{tmp}, v{v}')
    A.nop(1)
    A(f'{op} v{v}, v{tmp}, v{v}')
    A(f'v_mov_b32 v{tmp}, v{v}')
    A.nop(2)
    A(f'v_permlane32_swap_b32 v{tmp}, v{v}')
    A.nop(1)
    A(f'{op} v{v}, v{tmp}, v{v}')

def wave_allreduce(A, v, tmp, op):
    rowred(A, [v], op, ROW_FULL)
    cross_rows(A, v, tmp, op)

def transpose_reduce4(A, v):
    A.nop(1)
    A(f'v_permlane32_swap_b32 v{v}, v{v+1}')
    A(f'v_permlane32_swap_b32 v{v+2}, v{v+3}')
    A.nop(1)
    A(f'v_add_f32 v{v}, v{v}, v{v+1}')
    A(f'v_add_f32 v{v+2}, v{v+2}, v{v+3}')
    A.nop(2)
    A(f'v_permlane16_swap_b32 v{v}, v{v+2}')
    A.nop(1)
    A(f'v_add_f32 v{v}, v{v}, v{v+2}')

def tag_insert(A, v):
    for k, s in enumerate((sI0, sI1, sI2, sI3)):
        A(f'v_perm_b32 v{v+k}, v{v+k}, v{vTAG}, s{s}')

def tag_check(A, v, t0, t1, first):
    A(f'v_perm_b32 v{t0}, v{v+1}, v{v}, s{sP01}')
    A(f'v_perm_b32 v{t1}, v{v+3}, v{v+2}, s{sP23}')
    A(f'v_or_b32 v{t0}, v{t0}, v{t1}')
    if first:
        A(f'v_cmp_ne_u32 s[88:89], s{sTAG}, v{t0}')
    else:
        A(f'v_cmp_ne_u32 s[90:91], s{sTAG}, v{t0}')
        A('s_or_b64 s[88:89], s[88:89], s[90:91]')

def mask_vals(A, v, n=4):
    for k in range(n):
        A(f'v_and_b32 v{v+k}, s{sMSK}, v{v+k}')

def build_sel(A, dst, val, tmp):
    A(f'v_lshlrev_b32 v{tmp}, v{vSH}, v{val}')
    for j, m in enumerate((M0, M1, M2, M3)):
        A(f'v_cndmask_b32_e64 v{dst+j}, 0, v{tmp}, s[{m}:{m+1}]')

class Prof:
    def __init__(self, A, cfg):
        self.A, self.on, self.prev, self.k = A, cfg.prof, None, 0
        self.lite = cfg.prof == 'lite'
    def reset(self, prev=None, k=0):
        if self.lite:
            self.prev = None
            return
        self.prev, self.k = prev, k
    def __call__(self, idx):
        if not self.on: return
        if self.on == 'lite' and idx not in (0, 15): return
        if idx >= 23 and self.on != 'heavy': return
        A = self.A
        if self.on == 'heavy' and self.prev is not None:
            A('s_waitcnt lgkmcnt(0)')
        if self.prev is not None:
            A(f'v_writelane_b32 v{vPROF}, s{28 + 2*self.k}, {self.prev}')
            self.k ^= 1
        A(f's_memrealtime s[{28+2*self.k}:{29+2*self.k}]')
        self.prev = None if self.lite else idx
    def flush(self):
        if not self.on: return
        if self.prev is None: return
        A = self.A
        A('s_waitcnt lgkmcnt(0)')
        A(f'v_writelane_b32 v{vPROF}, s{28 + 2*self.k}, {self.prev}')

def common_consts(A):
    A(f's_mov_b32 s{sLOG2E}, 0x3fb8aa3b')
    A(f's_mov_b32 s{sSCALE}, 0x3db504f3')
    A(f's_mov_b32 s{sMSK}, 0xffffff00')
    A(f's_mov_b32 s{sP01}, 0x0c0c0400')
    A(f's_mov_b32 s{sP23}, 0x04000c0c')
    A(f's_mov_b32 s{sI0}, 0x07060500')
    A(f's_mov_b32 s{sI1}, 0x07060501')
    A(f's_mov_b32 s{sI2}, 0x07060502')
    A(f's_mov_b32 s{sI3}, 0x07060503')

def poll_tail(A, cfg, label, oklabel, switch=None):
    A('s_cmp_eq_u64 s[88:89], 0')
    A(f's_cbranch_scc1 {oklabel}')
    A(f's_add_u32 s{sIT}, s{sIT}, 1')
    if switch:
        A(f's_cmp_eq_u32 s{sIT}, {cfg.swit}')
        A(f's_cselect_b32 s{switch}, {BDELTA}, s{switch}')
    A(f's_cmp_le_u32 s{sIT}, {cfg.maxit}')
    A(f's_cbranch_scc1 {label}')

def gen(cfg):
    A = Asm()
    P = Prof(A, cfg)
    nt = cfg.nt
    A('.amdgcn_target "amdgcn-amd-amdhsa--gfx950"')
    A('.text')
    A(f'.globl {NAME}')
    A(f'.p2align {cfg.align}')
    A(f'.type {NAME},@function')
    A.label(NAME)
    A('s_cmp_ge_u32 s2, 256')
    A('s_cbranch_scc1 L_end')
    P(0)
    if cfg.calib:
        A('s_memrealtime s[36:37]')
    for sr, off in ((SWQ, 24), (SX, 0), (SWS, 88), (SK, 8)):
        A(f's_load_dwordx2 s[{sr}:{sr+1}], s[0:1], {off}')
    A('v_lshrrev_b32 v2, 6, v0')
    A('v_and_b32 v1, 63, v0')
    A('s_and_b32 s4, s2, 7')
    A('v_readfirstlane_b32 s3, v2')
    A('s_lshr_b32 s5, s2, 3')
    A(f's_lshr_b32 s{sRB}, s5, 3')
    A(f's_and_b32 s{sCB}, s5, 7')
    for sr, n in ((SWQ, 4194304), (SX, 1024), (SWS, WS_BYTES), (SK, 134217728)):
        A(f's_mov_b32 s{sr+2}, {n}')
        A(f's_mov_b32 s{sr+3}, ' + ('0x20000' if sr == SWQ else f's{SWQ+3}'))
    common_consts(A)
    A('s_cmp_ge_u32 s3, 4')
    A('s_cbranch_scc1 L_comm0')
    def kcalc():
        A('v_lshrrev_b32 v2, 4, v1')
        A('v_and_b32 v3, 15, v1')
        A('v_xor_b32 v5, v2, v3')
        A('v_lshlrev_b32 v5, 4, v5')
        A('v_lshl_add_u32 v156, v2, 8, v5')
        for i in range(1, 4):
            A(f'v_xor_b32 v{156+i}, {64*i}, v156')
        A('s_lshl_b32 s19, s4, 24')
        A('s_lshl_b32 s11, s5, 15')
        A('s_add_u32 s19, s19, s11')
        A('s_lshl_b32 s20, s3, 13')
        A('s_add_u32 s19, s19, s20')
        A('s_add_u32 s19, s19, 15728640')
        A('s_and_b32 s25, s4, 1')
        A('s_lshl_b32 s25, s25, 12')
        A('s_xor_b32 s26, s25, 4096')
        A('s_add_u32 s27, s19, s26')
        A('s_add_u32 s19, s19, s25')
        A('s_add_u32 s25, s25, s20')
        A('s_add_u32 s26, s26, s20')
        A('s_mov_b32 m0, s25')
    A(f's_lshl_b32 s12, s{sRB}, 20')
    A('s_lshl_b32 s11, s3, 18')
    A('s_add_u32 s12, s12, s11')
    A('s_lshl_b32 s11, s4, 10')
    A('s_add_u32 s12, s12, s11')
    A(f's_lshl_b32 s11, s{sCB}, 7')
    A('s_add_u32 s12, s12, s11')
    A('v_lshlrev_b32 v163, 4, v1')
    A('v_lshrrev_b32 v164, 3, v1')
    A('v_and_b32 v4, 0x70, v163')
    A('v_lshl_add_u32 v6, v164, 13, v4')
    A(f'v_mov_b32 v7, {EOFF}')
    A('s_add_u32 s13, s12, 65536')
    A('s_add_u32 s14, s12, 131072')
    A('s_add_u32 s15, s12, 196608')
    if cfg.kearly:
        kcalc()
    A('s_waitcnt lgkmcnt(0)')
    P(27)
    if cfg.xone is not None:
        A(f's_cmp_lg_u32 s3, {cfg.xone}')
        A('s_cbranch_scc1 L_nox')
    A(f'buffer_load_dwordx4 v[8:11], v163, {srd(SX)}, 0 offen {cfg.xnt}')
    if cfg.xone is not None:
        A.label('L_nox')
    if not cfg.elate:
        A(f'buffer_load_dword v{vTAG}, v7, {srd(SWS)}, 0 offen {cfg.xnt}')
    for i in range(4):
        A(f'buffer_load_dwordx4 {vr(12+4*i)}, v6, {srd(SWQ)}, s{12+i} offen {nt}')
    if cfg.elate:
        A(f'buffer_load_dword v{vTAG}, v7, {srd(SWS)}, 0 offen {cfg.xnt}')
    for sr, off in ((SV, 16), (SGA, 48), (SUP, 56), (SWO, 32), (SDN, 64)):
        A(f's_load_dwordx2 s[{sr}:{sr+1}], s[0:1], {off}')
    if not cfg.kearly:
        kcalc()
        A.nop(1)
    def kloads(lo, hi):
        for i in range(lo, hi):
            if i == 4:
                A('s_mov_b32 m0, s26')
                A.nop(1)
            A(f'buffer_load_dwordx4 v{156+(i&3)}, {srd(SK)}, s{19 if i < 4 else 27} offen offset:{1024*(i&3)} {nt} lds')
    if cfg.nk0 is not None:
        kloads(0, cfg.nk0)
        A(f's_cmp_eq_u32 s3, {cfg.xone}')
        A('s_cbranch_scc1 L_klater')
        kloads(cfg.nk0, 8)
        A.label('L_klater')
    else:
        kloads(0, cfg.nk1)
    A('v_mul_u32_u24 v162, 3584, v164')
    A('v_add_u32 v161, v162, v4')
    A(f's_lshl_b32 s{sT}, s{sRB}, 3')
    A(f's_add_u32 s{sT}, s{sT}, s4')
    A(f's_cmp_lt_u32 s{sT}, 28')
    A('s_cselect_b32 s9, 1835008, 0')
    for sr, n in ((SV, f's{SK+2}'), (SWO, f's{SWQ+2}')):
        A(f's_mov_b32 s{sr+2}, {n}')
        A(f's_mov_b32 s{sr+3}, s{SWQ+3}')
    for sr in (SGA, SUP, SDN):
        A(f's_mov_b32 s{sr+2}, s9')
        A(f's_mov_b32 s{sr+3}, s{SWQ+3}')
    A('s_branch L_cmp_go')
    A.label('L_comm0')
    if cfg.codepf:
        A('s_cmp_eq_u32 s3, 5')
        A('s_cbranch_scc0 L_nocodepf')
        A('s_getpc_b64 s[12:13]')
        A.label('L_pc')
        A(f's_sub_u32 s12, s12, L_pc-{NAME}')
        A('s_subb_u32 s13, s13, 0')
        A('s_lshl_b32 s14, s5, 6')
        A('s_add_u32 s12, s12, s14')
        A('s_addc_u32 s13, s13, 0')
        for i in range(cfg.codepf_n - 1):
            A(f's_load_dword s{32+(i&3)}, s[12:13], {2048*i}')
        A(f's_add_u32 s15, s14, {2048*(cfg.codepf_n-1)}')
        A(f's_min_u32 s15, s15, L_end-{NAME}')
        A('s_sub_u32 s15, s15, s14')
        A('s_load_dword s35, s[12:13], s15')
        A.label('L_nocodepf')
    if cfg.prio:
        A(f's_setprio {cfg.prio}')
    A('s_branch L_comm')
    A.label('L_cmp_go')
    for m, lo in ((M0, 0x03030303), (M1, 0x0c0c0c0c), (M2, 0x30303030), (M3, 0xc0c0c0c0)):
        A(f's_mov_b32 s{m}, {hex(lo)}')
        A(f's_mov_b32 s{m+1}, s{m}')
    A(f'v_and_b32 v{vSH}, 1, v1')
    A(f'v_lshlrev_b32 v{vSH}, 4, v{vSH}')
    A(f's_lshl_b32 s17, s{sCB}, 6')
    A('s_lshl_b32 s11, s3, 4')
    A('s_add_u32 s17, s17, s11')
    A('s_mul_i32 s17, s17, 3584')
    A(f's_lshl_b32 s11, s{sT}, 7')
    A('s_add_u32 s17, s17, s11')
    A('s_lshl_b32 s21, s4, 19')
    A('s_lshr_b32 s11, s5, 2')
    A('s_lshl_b32 s12, s11, 16')
    A('s_add_u32 s21, s21, s12')
    A('s_lshl_b32 s12, s3, 14')
    A('s_add_u32 s21, s21, s12')
    A('s_and_b32 s23, s5, 3')
    A('s_lshl_b32 s23, s23, 8')
    A('s_add_u32 s21, s21, s23')
    A(f's_lshl_b32 s22, s{sT}, 16')
    A('s_and_b32 s11, s11, 1')
    A('s_lshl_b32 s11, s11, 15')
    A('s_add_u32 s22, s22, s11')
    A('s_lshl_b32 s12, s3, 13')
    A('s_add_u32 s22, s22, s12')
    A('s_add_u32 s22, s22, s23')
    A('v_lshlrev_b32 v162, 4, v3')
    A('v_lshl_add_u32 v162, v2, 10, v162')
    P(1)
    A('v_lshrrev_b32 v105, 3, v3')
    A('v_lshl_add_u32 v105, v2, 1, v105')
    A(f's_lshl_b32 s11, s{sRB}, 7')
    A('s_lshl_b32 s12, s3, 5')
    A('s_add_u32 s11, s11, s12')
    A('s_lshl_b32 s11, s11, 1')
    A(f's_add_u32 s11, s11, {L_XN}')
    A('v_lshl_add_u32 v106, v105, 1, s11')
    A(f's_lshl_b32 s11, s{sCB}, 6')
    A('s_lshl_b32 s12, s3, 4')
    A('s_add_u32 s11, s11, s12')
    A('s_lshl_b32 s11, s11, 1')
    A(f's_add_u32 s11, s11, {L_XN}')
    A('v_lshl_add_u32 v107, v105, 1, s11')
    A.c('layernorm')
    if cfg.xone is not None:
        A(f's_cmp_lg_u32 s3, {cfg.xone}')
        A('s_cbranch_scc1 L_noln')
    A(f's_waitcnt vmcnt({4 + (cfg.nk0 if cfg.nk0 is not None else cfg.nk1) + (1 if cfg.elate else 0)})')
    P(2)
    for k in range(4):
        A(f'v_lshlrev_b32 v{80+2*k}, 16, v{8+k}')
        A(f'v_and_b32 v{81+2*k}, 0xffff0000, v{8+k}')
    A('v_add_f32 v88, v80, v81')
    A('v_add_f32 v89, v82, v83')
    A('v_add_f32 v90, v84, v85')
    A('v_add_f32 v91, v86, v87')
    A('v_add_f32 v88, v88, v89')
    A('v_add_f32 v90, v90, v91')
    A('v_add_f32 v88, v88, v90')
    wave_allreduce(A, 88, 89, 'v_add_f32')
    A('v_mul_f32 v88, 0x3b000000, v88')
    for k in range(8):
        A(f'v_sub_f32 v{92+k}, v{80+k}, v88')
    A('v_mul_f32 v90, v92, v92')
    for k in range(1, 8):
        A(f'v_fmac_f32 v90, v{92+k}, v{92+k}')
    wave_allreduce(A, 90, 89, 'v_add_f32')
    P(23)
    A('v_mul_f32 v90, 0x3b000000, v90')
    A('v_cvt_pk_bf16_f32 v88, v88, v90')
    A('v_and_b32 v90, 0xffff0000, v88')
    A('v_lshlrev_b32 v88, 16, v88')
    A('v_add_f32 v90, 0x3727c5ac, v90')
    A('v_cvt_pk_bf16_f32 v90, v90, v90')
    A('v_lshlrev_b32 v90, 16, v90')
    A('v_sqrt_f32 v90, v90')
    for k in range(8):
        A(f'v_sub_f32 v{92+k}, v{80+k}, v88')
    A('v_cvt_pk_bf16_f32 v90, v90, v90')
    A('v_lshlrev_b32 v90, 16, v90')
    A('v_rcp_f32 v90, v90')
    for k in range(4):
        A(f'v_cvt_pk_bf16_f32 v{100+k}, v{92+2*k}, v{93+2*k}')
    for k in range(4):
        A(f'v_lshlrev_b32 v{92+2*k}, 16, v{100+k}')
        A(f'v_and_b32 v{93+2*k}, 0xffff0000, v{100+k}')
    for k in range(8):
        A(f'v_mul_f32 v{92+k}, v{92+k}, v90')
    for k in range(4):
        A(f'v_cvt_pk_bf16_f32 v{100+k}, v{92+2*k}, v{93+2*k}')
    A(f'v_add_u32 v104, {L_XN}, v163')
    A('ds_write_b128 v104, v[100:103]')
    P(24)
    if cfg.xone is not None:
        A.label('L_noln')
        A('s_waitcnt lgkmcnt(0)')
        A('s_barrier')
    A('s_waitcnt lgkmcnt(0)')
    for i in range(4):
        A(f'ds_read_u16 v{80+i}, v106 offset:{16*i}')
    for i in range(2):
        A(f'ds_read_u16 v{84+i}, v107 offset:{16*i}')
    if cfg.nk0 is not None:
        A(f's_cmp_eq_u32 s3, {cfg.xone}')
        A('s_cbranch_scc0 L_kdone')
        kloads(cfg.nk0, 8)
        A.label('L_kdone')
    if not cfg.elate:
        A(f'v_add_u32 v{vTAG}, 0x01010101, v{vTAG}')
    P(25)
    kloads(cfg.nk1, 8)
    P(26)
    if not cfg.elate:
        A.nop(1)
        A(f'v_readfirstlane_b32 s6, v{vTAG}')
    A('s_waitcnt lgkmcnt(0)')
    for i in range(4):
        build_sel(A, 48+4*i, 80+i, 86)
    for i in range(2):
        build_sel(A, 64+4*i, 84+i, 86)
    A('v_lshlrev_b32 v86, 1, v2')
    A('v_xor_b32 v86, v86, v3')
    A('v_lshlrev_b32 v86, 4, v86')
    A('v_lshl_add_u32 v160, v2, 8, v86')
    A('v_xor_b32 v164, 128, v160')
    A('v_lshrrev_b32 v87, 5, v1')
    A('v_lshlrev_b32 v87, 8, v87')
    A('v_and_b32 v86, 7, v1')
    A('v_lshl_add_u32 v87, v86, 5, v87')
    A('v_and_b32 v86, 1, v2')
    A('v_lshl_add_u32 v87, v86, 4, v87')
    A('s_lshl_b32 s11, s3, 9')
    A(f's_add_u32 s11, s11, {L_PART}')
    A('v_add_u32 v163, s11, v87')
    P(3)
    A.c('q partial product')
    A('s_waitcnt vmcnt(8)')
    P(16)
    if cfg.elate:
        A(f'v_add_u32 v{vTAG}, 0x01010101, v{vTAG}')
    for i in range(4):
        A(f'v_mfma_f32_16x16x32_bf16 v[72:75], {vr(48+4*i)}, {vr(12+4*i)}, {"0" if i == 0 else "v[72:75]"}')
    A('s_mov_b32 exec_lo, 0x00ff00ff')
    A('s_mov_b32 exec_hi, 0xff00ff00')
    A.nop(6)
    A('ds_write_b128 v163, v[72:75]')
    A('s_mov_b64 exec, -1')
    if cfg.elate:
        A(f'v_readfirstlane_b32 s6, v{vTAG}')
    A('s_waitcnt lgkmcnt(0)')
    A('s_barrier')
    P(4)
    A('s_cmp_lg_u32 s3, 3')
    A('s_cbranch_scc1 L_pub1_done')
    A('v_lshlrev_b32 v86, 4, v3')
    A(f'v_add_u32 v87, {L_PART}, v86')
    for k in range(8):
        A(f'ds_read_b128 {vr(80+4*k+32)}, v87 offset:{256*k}')
    A('s_lshl_b32 s11, s4, 2')
    A(f's_add_u32 s11, s11, s{sRB}')
    A('s_lshl_b32 s11, s11, 11')
    A(f's_lshl_b32 s12, s{sCB}, 8')
    A('s_add_u32 s11, s11, s12')
    A(f's_add_u32 s11, s11, {QA}')
    A('v_add_u32 v86, s11, v86')
    A('s_lshl_b32 s12, s4, 9')
    A('s_lshl_b32 s13, s5, 4')
    A('s_add_u32 s12, s12, s13')
    A(f's_add_u32 s12, s12, {IDA}')
    A('v_mov_b32 v87, s12')
    A('v_cmp_eq_u32 vcc, 0, v2')
    A('s_getreg_b32 s13, hwreg(HW_REG_XCC_ID, 0, 4)')
    A('s_lshl_b32 s13, s13, 8')
    A('v_cndmask_b32 v86, v87, v86, vcc')
    A('s_waitcnt lgkmcnt(0)')
    for k in range(4):
        A(f'v_add_f32 v{112+k}, v{112+k}, v{116+k}')
        A(f'v_add_f32 v{120+k}, v{120+k}, v{124+k}')
        A(f'v_add_f32 v{128+k}, v{128+k}, v{132+k}')
        A(f'v_add_f32 v{136+k}, v{136+k}, v{140+k}')
    for k in range(4):
        A(f'v_add_f32 v{112+k}, v{112+k}, v{120+k}')
        A(f'v_add_f32 v{128+k}, v{128+k}, v{136+k}')
    for k in range(4):
        A(f'v_add_f32 v{112+k}, v{112+k}, v{128+k}')
    A('v_mov_b32 v116, s13')
    A('v_cndmask_b32 v112, v116, v112, vcc')
    tag_insert(A, 112)
    A('s_mov_b32 exec_lo, 0x0001ffff')
    A('s_mov_b32 exec_hi, 0')
    if not cfg.forceb:
        A(f'buffer_store_dwordx4 v[112:115], v86, {srd(SWS)}, 0 offen')
    A(f's_mov_b32 s12, {BDELTA}')
    A(f'buffer_store_dwordx4 v[112:115], v86, {srd(SWS)}, s12 offen sc1')
    A('s_mov_b64 exec, -1')
    A.label('L_pub1_done')
    if cfg.b1a:
        A('s_barrier')
    nst = (1 if cfg.forceb else 2)
    A.c('gate/up loads, V loads')
    A('s_add_u32 s18, s17, 28672')
    A(f'buffer_load_dwordx4 {vr(8)}, v161, {srd(SGA)}, s17 offen {nt}')
    A(f'buffer_load_dwordx4 {vr(12)}, v161, {srd(SGA)}, s18 offen {nt}')
    A(f'buffer_load_dwordx4 {vr(16)}, v161, {srd(SUP)}, s17 offen {nt}')
    A(f'buffer_load_dwordx4 {vr(20)}, v161, {srd(SUP)}, s18 offen {nt}')
    def vloads(lo, hi, win=None):
        for i in range(lo, hi):
            if win:
                A(f's_waitcnt vmcnt({win-1})')
            if i % 4 == 0 or i == lo:
                A(f's_add_u32 m0, s{25 if i < 4 else 26}, {L_V}')
                A.nop(1)
            A(f'buffer_load_dwordx4 v{(160, 164)[i&1]}, {srd(SV)}, s{19 if i < 4 else 27} offen offset:{1024*(i&3)} {nt} lds')
    def tail_addresses():
        A.c('addresses for the attention tail (computed while the loads are in flight)')
        if cfg.worot:
            A('s_add_u32 s38, s4, s3')
            A('s_and_b32 s38, s38, 3')
            for i in range(4):
                A(f's_add_u32 s11, s38, {i}')
                A('s_and_b32 s11, s11, 3')
                A('s_lshl_b32 s11, s11, 12')
                A(f's_add_u32 s{32+i}, s21, s11')
            A('s_and_b32 s11, s38, 1')
            A('s_lshl_b32 s11, s11, 12')
            A('s_add_u32 s36, s22, s11')
            A('s_xor_b32 s11, s11, 4096')
            A('s_add_u32 s37, s22, s11')
        A('v_lshrrev_b32 v84, 2, v3')
        A('v_lshl_add_u32 v85, v2, 2, v84')
        A('v_and_b32 v84, 7, v85')
        A('v_lshlrev_b32 v85, 8, v85')
        A('v_lshl_add_u32 v85, v84, 5, v85')
        A('v_and_b32 v84, 3, v3')
        A('v_lshl_add_u32 v85, v84, 3, v85')
        A(f'v_add_u32 v85, {L_V}, v85')
        A('s_lshl_b32 s11, s3, 6')
        A('v_xor_b32 v48, s11, v85')
        A('v_xor_b32 v49, 32, v48')
        A('v_and_b32 v84, 3, v3')
        A('v_lshlrev_b32 v84, 14, v84')
        A('v_bfe_u32 v85, v3, 2, 1')
        A(f'v_lshl_add_u32 v84, v85, {6 if cfg.oline else 11}, v84')
        A('v_lshl_add_u32 v84, v2, 4, v84')
        A('s_lshl_b32 s11, s4, 16')
        A('s_lshl_b32 s12, s3, 12')
        A('s_add_u32 s11, s11, s12')
        A(f's_lshl_b32 s12, s5, {7 if cfg.oline else 6}')
        A('s_add_u32 s11, s11, s12')
        A(f's_add_u32 s11, s11, {OIO}')
        A('v_add_u32 v50, s11, v84')
        A('s_lshr_b32 s14, s5, 3')
        A('s_lshl_b32 s11, s4, 2')
        A('s_add_u32 s11, s11, s14')
        A('s_lshl_b32 s12, s11, 9')
        A(f's_add_u32 s12, s12, {MLO}')
        A('v_lshrrev_b32 v84, 2, v1')
        A('v_lshl_add_u32 v52, v84, 4, s12')
        A('s_bfe_u32 s12, s5, 0x10002')
        if cfg.oline:
            A('s_lshl_b32 s11, s11, 14')
            A('s_lshl_b32 s13, s12, 2')
            A('s_add_u32 s13, s13, s3')
            A('s_lshr_b32 s15, s13, 1')
            A('s_lshl_b32 s15, s15, 12')
            A('s_add_u32 s11, s11, s15')
            A('s_and_b32 s13, s13, 1')
            A('s_lshl_b32 s13, s13, 6')
            A('s_add_u32 s11, s11, s13')
            A(f's_add_u32 s11, s11, {OIO}')
            A('v_lshrrev_b32 v84, 2, v1')
            A('v_lshlrev_b32 v84, 7, v84')
            A('v_and_b32 v85, 3, v1')
            A('v_lshl_add_u32 v84, v85, 4, v84')
            A('v_add_u32 v51, s11, v84')
        else:
            A('s_lshl_b32 s11, s11, 3')
            A('s_lshl_b32 s13, s12, 2')
            A('s_add_u32 s11, s11, s13')
            A('s_add_u32 s11, s11, s3')
            A('s_lshl_b32 s11, s11, 11')
            A(f's_add_u32 s11, s11, {OIO}')
            if cfg.worot:
                A('v_add_u32 v84, s38, v1')
                A('v_and_b32 v84, 3, v84')
                A('v_and_b32 v85, 0x3c, v1')
                A('v_or_b32 v84, v84, v85')
                A('v_lshl_add_u32 v51, v84, 4, s11')
            else:
                A('v_lshl_add_u32 v51, v1, 4, s11')
        A('s_lshl_b32 s11, s4, 2')
        A('s_add_u32 s11, s11, s14')
        A('s_lshl_b32 s11, s11, 12')
        A('s_lshl_b32 s12, s12, 7')
        A('s_add_u32 s11, s11, s12')
        A('s_lshl_b32 s12, s3, 5')
        A('s_add_u32 s11, s11, s12')
        A(f's_add_u32 s11, s11, {GUO}')
        A('v_bfe_u32 v84, v1, 2, 3')
        A('v_lshlrev_b32 v84, 9, v84')
        A('v_bfe_u32 v85, v1, 1, 1')
        A('v_lshl_add_u32 v84, v85, 8, v84')
        if cfg.worot:
            A('v_xor_b32 v85, s38, v1')
            A('v_and_b32 v85, 1, v85')
        else:
            A('v_and_b32 v85, 1, v1')
        A('v_lshl_add_u32 v84, v85, 4, v84')
        A('v_add_u32 v53, s11, v84')
        A('v_mul_u32_u24 v54, 0x020202, v2')
        A('v_lshlrev_b32 v84, 25, v2')
        A('v_add_u32 v54, v54, v84')
        A('v_add_u32 v54, 0x01000100, v54')
        A('v_and_b32 v84, 1, v1')
        A('v_mov_b32 v85, 0xffff')
        A('v_lshlrev_b32 v84, 4, v84')
        A('v_lshlrev_b32 v84, v84, v85')
        for jj, m in enumerate((M0, M1, M2, M3)):
            A(f'v_cndmask_b32_e64 v{136+jj}, 0, v84, s[{m}:{m+1}]')
        A('v_and_b32 v84, 3, v1')
        A('s_lshl_b32 s11, s3, 2')
        A(f's_add_u32 s11, s11, {L_MW}')
        A('v_lshl_add_u32 v55, v84, 4, s11')
        A('v_lshlrev_b32 v84, 4, v84')
        A(f'v_add_u32 v56, {L_MW}, v84')
        A('v_lshlrev_b32 v84, 4, v1')
        A('s_lshl_b32 s11, s3, 10')
        A(f's_add_u32 s11, s11, {L_PB}')
        A('v_add_u32 v57, s11, v84')
        A(f'v_add_u32 v58, {L_PB}, v84')
        A('v_lshrrev_b32 v60, 2, v1')
        A('v_lshlrev_b32 v60, 12, v60')
        A('v_and_b32 v61, 3, v1')
        A('v_lshl_add_u32 v60, v61, 4, v60')
        A('s_and_b32 s11, s5, 3')
        A('s_lshl_b32 s11, s11, 15')
        A('s_lshl_b32 s12, s4, 3')
        A('s_lshr_b32 s13, s5, 2')
        A('s_add_u32 s12, s12, s13')
        A('s_lshl_b32 s12, s12, 6')
        A('s_add_u32 s11, s11, s12')
        A(f's_add_u32 s11, s11, {FIN}')
        A('v_add_u32 v60, s11, v60')
        A('v_lshlrev_b32 v62, 4, v1')
        A(f'v_add_u32 v62, {L_RED}, v62')
        A('v_lshlrev_b32 v85, 5, v3')
        A('v_lshl_add_u32 v85, v2, 4, v85')
        A('s_lshl_b32 s11, s3, 9')
        A(f's_add_u32 s11, s11, {L_RED}')
        A('v_add_u32 v59, s11, v85')
    vloads(0, cfg.nv1)
    if cfg.addr_early:
        tail_addresses()
    if cfg.kwait is not None:
        A('s_cmp_eq_u32 s3, 3')
        A('s_cbranch_scc1 L_nokwait')
        A(f's_waitcnt vmcnt({cfg.kwait + cfg.nv1})')
        A.label('L_nokwait')
    if cfg.b1b:
        A('s_barrier')
    P(5)
    A('v_and_b32 v85, 1, v2')
    A('v_lshrrev_b32 v86, 1, v2')
    A('v_lshl_or_b32 v85, v85, 1, v86')
    A('v_lshlrev_b32 v86, 4, v3')
    A('v_lshl_add_u32 v161, v85, 10, v86')
    A('v_xor_b32 v86, v2, v3')
    A('v_lshlrev_b32 v86, 4, v86')
    A('v_lshl_add_u32 v156, v3, 8, v86')
    A('v_add_u32 v156, s20, v156')
    for j in range(1, 4):
        A(f'v_xor_b32 v{156+j}, {64*j}, v156')
    A('v_and_b32 v86, 3, v1')
    A('v_mul_u32_u24 v86, 272, v86')
    A('v_lshl_add_u32 v4, v2, 4, v86')
    A(f'v_add_u32 v4, {L_QB}, v4')
    if cfg.b1c:
        vloads(cfg.nv1, cfg.nv2)
        A('s_barrier')
        vloads(cfg.nv2, 8)
    else:
        vloads(cfg.nv1, 8, cfg.win)
    def tail_loads(pos):
        n = 0
        for i, p in enumerate(cfg.tpos):
            if p != pos:
                continue
            n += 1
            if i < 4:
                if cfg.worot:
                    A(f'buffer_load_dwordx4 {vr(24+4*i)}, v161, {srd(SWO)}, s{32+i} offen {nt}')
                else:
                    A(f's_add_u32 s13, s21, {4096*i}')
                    A(f'buffer_load_dwordx4 {vr(24+4*i)}, v161, {srd(SWO)}, s13 offen {nt}')
            else:
                if cfg.worot:
                    A(f'buffer_load_dwordx4 {vr(40+4*(i-4))}, v162, {srd(SDN)}, s{36+(i-4)} offen {nt}')
                else:
                    A(f's_add_u32 s13, s22, {4096*(i-4)}')
                    A(f'buffer_load_dwordx4 {vr(40+4*(i-4))}, v162, {srd(SDN)}, s13 offen {nt}')
        return n
    nearly = 0
    nearly += tail_loads(1)
    if not cfg.addr_early:
        tail_addresses()
    A.c('gate/up partial products')
    P(17)
    A(f's_waitcnt vmcnt({8 + nearly})')
    P(18)
    for i in range(2):
        A(f'v_mfma_f32_16x16x32_bf16 v[72:75], {vr(64+4*i)}, {vr(8+4*i)}, {"0" if i == 0 else "v[72:75]"}')
    for i in range(2):
        A(f'v_mfma_f32_16x16x32_bf16 v[76:79], {vr(64+4*i)}, {vr(16+4*i)}, {"0" if i == 0 else "v[76:79]"}')
    A.nop(7)
    A('s_mov_b32 exec_lo, 0x00ff00ff')
    A('s_mov_b32 exec_hi, 0xff00ff00')
    A('ds_write_b128 v163, v[72:75] offset:2048')
    A('ds_write_b128 v163, v[76:79] offset:4096')
    A('s_mov_b64 exec, -1')
    A('s_waitcnt lgkmcnt(0)')
    P(6)
    A('s_barrier')
    P(7)
    A.c('scores')
    for j in range(4):
        A(f'ds_read_b128 {vr(112+4*j)}, v4 offset:{64*j}')
    for t in range(2):
        for j in range(4):
            A(f'ds_read_b128 {vr(80+16*t+4*j)}, v{156+j} offset:{L_K + 4096*t}')
    A(f'v_mov_b32 v6, {L_MODE}')
    A('ds_read_b32 v7, v6')
    P(29)
    tail_loads(2)
    P(30)
    for j in range(4):
        A(f's_waitcnt lgkmcnt({8-j})')
        A(f'v_mfma_f32_16x16x32_bf16 v[144:147], {vr(80+4*j)}, {vr(112+4*j)}, {"0" if j == 0 else "v[144:147]"}')
    for j in range(4):
        A(f's_waitcnt lgkmcnt({4-j})')
        A(f'v_mfma_f32_16x16x32_bf16 v[148:151], {vr(96+4*j)}, {vr(112+4*j)}, {"0" if j == 0 else "v[148:151]"}')
    n21 = tail_loads(21)
    A.nop(max(0, 7 - n21))
    A('s_waitcnt lgkmcnt(0)')
    A('v_readfirstlane_b32 s24, v7')
    P(31)
    A.c('softmax')
    for k in range(4):
        A(f'v_cvt_pk_bf16_f32 v{152+k}, v{144+2*k}, v{145+2*k}')
    for k in range(4):
        A(f'v_lshlrev_b32 v{144+2*k}, 16, v{152+k}')
        A(f'v_and_b32 v{145+2*k}, 0xffff0000, v{152+k}')
    for k in range(8):
        A(f'v_mul_f32 v{144+k}, s{sSCALE}, v{144+k}')
    for k in range(4):
        A(f'v_cvt_pk_bf16_f32 v{152+k}, v{144+2*k}, v{145+2*k}')
    for k in range(4):
        A(f'v_lshlrev_b32 v{144+2*k}, 16, v{152+k}')
        A(f'v_and_b32 v{145+2*k}, 0xffff0000, v{152+k}')
    A('v_max3_f32 v82, v144, v145, v146')
    A('v_max3_f32 v83, v147, v148, v149')
    A('v_max3_f32 v82, v82, v150, v151')
    A('v_max_f32 v82, v82, v83')
    cross_rows(A, 82, 83, 'v_max_f32')
    A('s_mov_b64 exec, 15')
    A('ds_write_b32 v55, v82')
    A('s_mov_b64 exec, -1')
    tail_loads(25)
    A('s_waitcnt lgkmcnt(0)')
    A('s_barrier')
    tail_loads(26)
    P(8)
    A('ds_read_b128 v[84:87], v56')
    A('s_waitcnt lgkmcnt(0)')
    A('v_max3_f32 v82, v84, v85, v86')
    A('v_max_f32 v82, v82, v87')
    A(f'v_mul_f32 v83, s{sLOG2E}, v82')
    for k in range(8):
        A(f'v_fma_f32 v{144+k}, v{144+k}, s{sLOG2E}, -v83')
    for k in range(8):
        A(f'v_exp_f32 v{144+k}, v{144+k}')
    A.nop(1)
    for k in range(4):
        A(f'v_cvt_pk_bf16_f32 v{152+k}, v{144+2*k}, v{145+2*k}')
    A('v_add_f32 v84, v144, v145')
    A('v_add_f32 v85, v146, v147')
    A('ds_write_b128 v57, v[152:155]')
    A('v_add_f32 v86, v148, v149')
    A('v_add_f32 v87, v150, v151')
    A('v_add_f32 v84, v84, v85')
    A('v_add_f32 v86, v86, v87')
    A('v_add_f32 v84, v84, v86')
    cross_rows(A, 84, 85, 'v_add_f32')
    A('s_mov_b64 exec, 15')
    A(f'ds_write_b32 v55, v84 offset:{L_LW - L_MW}')
    A('s_mov_b64 exec, -1')
    tail_loads(3)
    P(9)
    A('s_waitcnt vmcnt(6) lgkmcnt(0)')
    A('s_barrier')
    P(10)
    A.c('PV over all 128 keys for tiles 2w, 2w+1')
    for ks in range(4):
        A(f'ds_read_b128 {vr(112+4*ks)}, v58 offset:{1024*ks}')
        for tt in range(2):
            base = 80 + (ks*2 + tt)*4
            A(f'ds_read_b64_tr_b16 v[{base}:{base+1}], v{48+tt} offset:{8192*ks}')
            A(f'ds_read_b64_tr_b16 v[{base+2}:{base+3}], v{48+tt} offset:{8192*ks + 4096}')
    for ks in range(4):
        for tt in range(2):
            base = 80 + (ks*2 + tt)*4
            left = 20 - (5*ks + 1 + 2*(tt+1))
            A(f's_waitcnt lgkmcnt({min(left, 15)})')
            A(f'v_mfma_f32_16x16x32_bf16 {vr(128+4*tt)}, {vr(base)}, {vr(112+4*ks)}, {"0" if ks == 0 else vr(128+4*tt)}')
    A('s_mov_b32 s12, 0x00f000f0')
    A('s_mov_b32 s13, 0x00f000f0')
    A('s_mov_b32 exec_lo, 0x00ff00ff')
    A('s_mov_b32 exec_hi, 0x00ff00ff')
    A.nop(4)
    for k in range(4):
        A(f'v_cndmask_b32_e64 v{128+k}, v{128+k}, v{132+k}, s[12:13]')
    tag_insert(A, 128)
    A('s_cmp_eq_u32 s24, 1')
    A('s_cbranch_scc0 L_opub_slow')
    A(f'buffer_store_dwordx4 v[128:131], v50, {srd(SWS)}, 0 offen')
    A('s_branch L_opub_done')
    A.label('L_opub_slow')
    A(f'buffer_store_dwordx4 v[128:131], v50, {srd(SWS)}, 0 offen sc1')
    A.label('L_opub_done')
    A('s_mov_b64 exec, -1')
    P(11)
    A.c('gather the partial attention outputs and the gate/up sums')
    if cfg.owait is not None:
        A(f's_waitcnt vmcnt({cfg.owait})')
        P(28)
    A(f's_mov_b32 s{sIT}, 0')
    A.label('L_ogat')
    A(f'buffer_load_dwordx4 v[80:83], v52, {srd(SWS)}, 0 offen {cfg.gat}')
    A(f'buffer_load_dwordx4 v[84:87], v52, {srd(SWS)}, 0 offen offset:256 {cfg.gat}')
    A(f'buffer_load_dwordx4 v[96:99], v53, {srd(SWS)}, 0 offen {cfg.gat}')
    A(f'buffer_load_dwordx4 v[88:91], v51, {srd(SWS)}, 0 offen {cfg.gat}')
    A(f'buffer_load_dwordx4 v[92:95], v51, {srd(SWS)}, 0 offen offset:{2048 if cfg.oline else 1024} {cfg.gat}')
    A('s_waitcnt vmcnt(0)')
    for q in range(5):
        tag_check(A, 80+4*q, 100, 101, q == 0)
    poll_tail(A, cfg, 'L_ogat', 'L_ook')
    A.label('L_ook')
    if cfg.prof in (True, 'heavy'):
        A(f'v_writelane_b32 v{vPROF}, s{sIT}, 21')
    P(12)
    if cfg.domask is True:
        mask_vals(A, 80, 2)
        mask_vals(A, 84, 2)
        mask_vals(A, 88, 12)
    else:
        mask_vals(A, 80, 1)
        mask_vals(A, 84, 1)
    A('v_max_f32 v100, v80, v84')
    for st in ('row_ror:8', 'row_ror:4'):
        for k in range(4):
            A(f'v_add_f32_dpp v{96+k}, v{96+k}, v{96+k} {st} row_mask:0xf bank_mask:0xf')
        A(f'v_max_f32_dpp v100, v100, v100 {st} row_mask:0xf bank_mask:0xf')
    for k in range(4):
        A(f'v_mov_b32 v{104+k}, v{96+k}')
    A('v_mov_b32 v101, v100')
    for k in range(4):
        A(f'v_permlane16_swap_b32 v{104+k}, v{96+k}')
    A('v_permlane16_swap_b32 v101, v100')
    for k in range(4):
        A(f'v_add_f32 v{96+k}, v{104+k}, v{96+k}')
    A('v_max_f32 v100, v101, v100')
    A('v_cvt_pk_bf16_f32 v104, v96, v97')
    A('v_mov_b32 v101, v100')
    A('v_cvt_pk_bf16_f32 v105, v98, v99')
    A('v_lshlrev_b32 v96, 16, v104')
    A('v_permlane32_swap_b32 v101, v100')
    A('v_and_b32 v97, 0xffff0000, v104')
    A('v_max_f32 v100, v101, v100')
    A('v_lshlrev_b32 v98, 16, v105')
    A('v_and_b32 v99, 0xffff0000, v105')
    A('v_sub_f32 v80, v80, v100')
    A('v_sub_f32 v84, v84, v100')
    A(f'v_mul_f32 v80, s{sLOG2E}, v80')
    A(f'v_mul_f32 v84, s{sLOG2E}, v84')
    A('v_exp_f32 v80, v80')
    A('v_exp_f32 v84, v84')
    for k in range(4):
        A(f'v_mul_f32_dpp v{104+k}, v{96+k}, v{96+k} quad_perm:[2,3,0,1] row_mask:0xf bank_mask:0xf')
    A('v_mul_f32 v102, v80, v81')
    A('v_fmac_f32 v102, v84, v85')
    for k in range(4):
        A(f'v_mul_f32 v{88+k}, v80, v{88+k}')
    for k in range(4):
        A(f'v_fmac_f32 v{88+k}, v84, v{92+k}')
    A('v_cvt_pk_bf16_f32 v96, v104, v105')
    A('v_cvt_pk_bf16_f32 v97, v106, v107')
    A('v_permlane32_swap_b32 v88, v89')
    A('v_permlane32_swap_b32 v90, v91')
    A('v_perm_b32 v98, v97, v96, v54')
    A('v_add_f32 v88, v88, v89')
    A('v_add_f32 v90, v90, v91')
    A('v_mov_b32 v103, v102')
    for i in range(2):
        for jj in range(4):
            A(f'v_and_b32_dpp v{64+4*i+jj}, v98, v{136+jj} quad_perm:[{i},{i},{i},{i}] row_mask:0xf bank_mask:0xf')
        if i == 0:
            A('v_permlane16_swap_b32 v88, v90')
            A('v_permlane16_swap_b32 v103, v102')
    A('v_add_f32 v88, v88, v90')
    A('v_add_f32 v102, v103, v102')
    A('v_mfma_f32_16x16x32_bf16 v[72:75], v[64:67], v[40:43], 0')
    A('v_mov_b32 v103, v102')
    A(f'v_add_f32_dpp v88, v88, v88 row_ror:8 row_mask:0xf bank_mask:0xf')
    A('v_mfma_f32_16x16x32_bf16 v[72:75], v[68:71], v[44:47], v[72:75]')
    A('v_permlane32_swap_b32 v103, v102')
    A(f'v_add_f32_dpp v88, v88, v88 row_ror:4 row_mask:0xf bank_mask:0xf')
    A('v_add_f32 v102, v103, v102')
    A.nop(2)
    A(f'v_add_f32_dpp v102, v102, v102 row_ror:8 row_mask:0xf bank_mask:0xf')
    A.nop(2)
    A(f'v_add_f32_dpp v102, v102, v102 row_ror:4 row_mask:0xf bank_mask:0xf')
    A.nop(1)
    A('v_rcp_f32 v102, v102')
    A.nop(1)
    A('v_mul_f32 v88, v88, v102')
    A('v_cvt_pk_bf16_f32 v88, v88, v88')
    A.nop(2)
    for i in range(4):
        for jj in range(4):
            A(f'v_and_b32_dpp v{112+4*i+jj}, v88, v{136+jj} quad_perm:[{i},{i},{i},{i}] row_mask:0xf bank_mask:0xf')
        if i:
            A(f'v_mfma_f32_16x16x32_bf16 v[72:75], {vr(112+4*(i-1))}, {vr(24+4*(i-1))}, v[72:75]')
    A.nop(1)
    A('v_mfma_f32_16x16x32_bf16 v[72:75], v[124:127], v[36:39], v[72:75]')
    A('s_mov_b32 exec_hi, 0')
    A.nop(7)
    A('ds_write_b128 v59, v[72:75]')
    A('s_mov_b64 exec, -1')
    A('s_waitcnt lgkmcnt(0)')
    A('s_barrier')
    P(13)
    A('s_cmp_lg_u32 s3, 0')
    A('s_cbranch_scc1 L_cmp_end')
    for w in range(4):
        A(f'ds_read_b128 {vr(88+4*w)}, v62 offset:{512*w}')
    A('s_waitcnt lgkmcnt(2)')
    for k in range(4):
        A(f'v_add_f32 v{88+k}, v{88+k}, v{92+k}')
    A('s_waitcnt lgkmcnt(0)')
    for k in range(4):
        A(f'v_add_f32 v{96+k}, v{96+k}, v{100+k}')
    for k in range(4):
        A(f'v_add_f32 v{88+k}, v{88+k}, v{96+k}')
    tag_insert(A, 88)
    A('s_mov_b32 exec_hi, 0')
    A(f'buffer_store_dwordx4 v[88:91], v60, {srd(SWS)}, 0 offen {cfg.fpub}')
    A('s_mov_b64 exec, -1')
    A.label('L_cmp_end')
    P(14)
    P.flush(); P.reset()
    A('s_branch L_done')
    A.label('L_comm')
    P.reset(prev=0, k=0)
    P(1)
    A(f's_load_dwordx2 s[{SOUT}:{SOUT+1}], s[0:1], 72')
    A(f's_mov_b32 s{SOUT+2}, s{SX+2}')
    A(f's_mov_b32 s{SOUT+3}, s{SWQ+3}')
    A(f's_lshl_b32 s{sT}, s{sRB}, 3')
    A(f's_add_u32 s{sT}, s{sT}, s4')
    A('v_lshrrev_b32 v2, 4, v1')
    A('v_and_b32 v3, 15, v1')
    A(f'v_mov_b32 v4, {EOFF}')
    if cfg.tlbwarm:
        A('s_cmp_eq_u32 s3, 4')
        A('s_cbranch_scc0 L_nowarm')
        for sr, off in ((SV, 16), (SGA, 48), (SUP, 56), (SWO, 32), (SDN, 64)):
            A(f's_load_dwordx2 s[{sr}:{sr+1}], s[0:1], {off}')
        A('s_lshl_b32 s11, s4, 24')
        A('s_lshl_b32 s12, s5, 15')
        A('s_add_u32 s11, s11, s12')
        A('s_add_u32 s11, s11, 15728640')
        A('s_lshl_b32 s12, s4, 19')
        A('s_lshl_b32 s13, s5, 15')
        A('s_waitcnt lgkmcnt(0)')
        A(f's_load_dword s32, s[{SV}:{SV+1}], s11')
        A(f's_load_dword s33, s[{SWO}:{SWO+1}], s12')
        A(f's_load_dword s34, s[{SGA}:{SGA+1}], s13')
        A(f's_load_dword s35, s[{SUP}:{SUP+1}], s13')
        A(f's_load_dword s32, s[{SDN}:{SDN+1}], s13')
        A(f's_load_dword s33, s[{SGA}:{SGA+1}], 0x100000') if False else None
        A.label('L_nowarm')
    if cfg.exp_dirty:
        A('s_cmp_eq_u32 s3, 4')
        A('s_cbranch_scc0 L_nodirty')
        A('s_waitcnt lgkmcnt(0)')
        A(f's_mov_b32 s{SWS+2}, 0x2000000')
        A(f's_mul_i32 s11, s2, {cfg.exp_dirty*1024}')
        A('s_add_u32 s11, s11, 0x400000')
        A('v_lshlrev_b32 v20, 4, v1')
        for i in range(cfg.exp_dirty):
            A(f'buffer_store_dwordx4 v[16:19], v20, {srd(SWS)}, s11 offen')
            A('s_add_u32 s11, s11, 1024')
        A.label('L_nodirty')
    def pretouch():
        A('s_cmp_eq_u32 s3, 4')
        A('s_cbranch_scc0 L_nopre')
        A('s_waitcnt lgkmcnt(0)')
        A('s_lshl_b32 s11, s4, 5')
        A('s_add_u32 s11, s11, s5')
        A('s_lshl_b32 s12, s11, 11')
        A(f's_add_u32 s12, s12, {OIO}')
        A('v_lshl_add_u32 v10, v1, 7, s12')
        A('s_lshl_b32 s12, s11, 9')
        A(f's_add_u32 s12, s12, {GUO - 16*128}')
        A('v_lshl_add_u32 v11, v1, 7, s12')
        A('v_cmp_le_u32 vcc, 16, v1')
        A('s_lshl_b32 s12, s11, 8')
        A(f's_add_u32 s12, s12, {QA - 20*128}')
        A('v_cndmask_b32 v10, v10, v11, vcc')
        A('v_lshl_add_u32 v11, v1, 7, s12')
        A('v_cmp_le_u32 vcc, 20, v1')
        A('s_lshl_b32 s12, s4, 9')
        A('s_and_b32 s13, s5, 3')
        A('s_lshl_b32 s13, s13, 7')
        A('s_add_u32 s12, s12, s13')
        A(f's_add_u32 s12, s12, {IDA}')
        A('v_cndmask_b32 v10, v10, v11, vcc')
        A('v_mov_b32 v11, s12')
        A('v_cmp_le_u32 vcc, 22, v1')
        A('s_lshl_b32 s12, s4, 11')
        A('s_and_b32 s13, s5, 15')
        A('s_lshl_b32 s13, s13, 7')
        A('s_add_u32 s12, s12, s13')
        A(f's_add_u32 s12, s12, {MLO}')
        A('v_cndmask_b32 v10, v10, v11, vcc')
        A('v_mov_b32 v11, s12')
        A('v_cmp_le_u32 vcc, 23, v1')
        A.nop(2)
        A('v_cndmask_b32 v10, v10, v11, vcc')
        A('s_mov_b64 exec, 0xffffff')
        A(f'buffer_load_dword v12, v10, {srd(SWS)}, 0 offen {cfg.pre_fl}')
        A('s_mov_b64 exec, -1')
        A.label('L_nopre')
    if cfg.pretouch == 1:
        pretouch()
    if cfg.finpre == 1:
        A('s_cmp_eq_u32 s3, 5')
        A('s_cbranch_scc0 L_nofinpre')
        A('s_cmp_lt_u32 s2, 32')
        A('s_cbranch_scc0 L_nofinpre')
        A('s_waitcnt lgkmcnt(0)')
        A('s_lshl_b32 s11, s2, 14')
        A(f's_add_u32 s11, s11, {FIN}')
        A('v_lshl_add_u32 v10, v1, 7, s11')
        A('s_mov_b32 s12, 8192')
        A(f'buffer_load_dword v12, v10, {srd(SWS)}, 0 offen {cfg.finpre_fl}')
        A(f'buffer_load_dword v13, v10, {srd(SWS)}, s12 offen {cfg.finpre_fl}')
        A.label('L_nofinpre')
    elif cfg.finpre == 2:
        A('s_cmp_eq_u32 s3, 5')
        A('s_cbranch_scc0 L_nofinpre')
        A('s_waitcnt lgkmcnt(0)')
        A('s_lshl_b32 s11, s2, 11')
        A(f's_add_u32 s11, s11, {FIN}')
        A('v_lshl_add_u32 v10, v1, 7, s11')
        A('s_mov_b64 exec, 0xffff')
        A(f'buffer_load_dword v12, v10, {srd(SWS)}, 0 offen {cfg.finpre_fl}')
        A('s_mov_b64 exec, -1')
        A.label('L_nofinpre')
    A('s_lshl_b32 s11, s4, 13')
    A('s_sub_u32 s12, s3, 4')
    A('s_lshl_b32 s12, s12, 10')
    A('s_add_u32 s11, s11, s12')
    A(f's_add_u32 s11, s11, {QA}')
    A('v_lshlrev_b32 v6, 4, v1')
    A('v_add_u32 v6, s11, v6')
    A('s_lshl_b32 s11, s4, 9')
    A(f's_add_u32 s11, s11, {IDA}')
    A('v_and_b32 v7, 31, v1')
    A('v_lshl_add_u32 v7, v7, 4, s11')
    A('s_sub_u32 s12, s3, 4')
    A('s_lshl_b32 s12, s12, 1')
    A('v_lshrrev_b32 v8, 5, v1')
    A('v_add_u32 v8, s12, v8')
    A('v_mul_u32_u24 v8, 272, v8')
    A('v_and_b32 v9, 31, v1')
    A('v_lshl_add_u32 v8, v9, 3, v8')
    A(f'v_add_u32 v8, {L_QB}, v8')
    P(3)
    if cfg.xone is not None:
        A('s_barrier')
    A('s_barrier')
    P(4)
    if cfg.b1a:
        A('s_barrier')
    A('s_waitcnt lgkmcnt(0)')
    A(f'buffer_load_dword v5, v4, {srd(SWS)}, 0 offen {cfg.xnt}')
    A(f's_mov_b32 s{sIT}, 0')
    A('s_mov_b32 s14, 0')
    if cfg.b1b:
        A('s_barrier')
    P(5)
    def q_issue():
        A('s_add_u32 s15, s14, 4096')
        A(f'buffer_load_dwordx4 v[16:19], v6, {srd(SWS)}, s14 offen {cfg.gat}')
        A(f'buffer_load_dwordx4 v[20:23], v6, {srd(SWS)}, s14 offen offset:2048 {cfg.gat}')
        A(f'buffer_load_dwordx4 v[24:27], v6, {srd(SWS)}, s15 offen {cfg.gat}')
        A(f'buffer_load_dwordx4 v[28:31], v6, {srd(SWS)}, s15 offen offset:2048 {cfg.gat}')
        A(f'buffer_load_dwordx4 v[32:35], v7, {srd(SWS)}, s14 offen {cfg.gat}')
    def q_check():
        for q in range(5):
            tag_check(A, 16+4*q, 36, 37, q == 0)
    if cfg.b1c:
        q_issue()
        A('s_waitcnt vmcnt(0)')
        A('v_add_u32 v9, 0x01010101, v5')
        A.nop(1)
        A('v_readfirstlane_b32 s6, v9')
        q_check()
        A('s_cmp_eq_u64 s[88:89], 0')
        A('s_cbranch_scc1 L_qfirst_ok')
        q_issue()
        A('s_barrier')
        A(f's_mov_b32 s{sIT}, 1')
        A('s_branch L_qwait')
        A.label('L_qfirst_ok')
        A('s_barrier')
        A('s_branch L_qok')
        A.label('L_qgat')
        q_issue()
        A.label('L_qwait')
        A('s_waitcnt vmcnt(0)')
        q_check()
        poll_tail(A, cfg, 'L_qgat', 'L_qok', switch=14)
    else:
        A.label('L_qgat')
        q_issue()
        A('s_waitcnt vmcnt(0)')
        A('v_add_u32 v9, 0x01010101, v5')
        A.nop(1)
        A('v_readfirstlane_b32 s6, v9')
        q_check()
        poll_tail(A, cfg, 'L_qgat', 'L_qok', switch=14)
    A.label('L_qok')
    if cfg.prof in (True, 'heavy'):
        A(f'v_writelane_b32 v{vPROF}, s{sIT}, 20')
    P(6)
    mask_vals(A, 16, 16)
    for k in range(4):
        A(f'v_add_f32 v{16+k}, v{16+k}, v{20+k}')
        A(f'v_add_f32 v{24+k}, v{24+k}, v{28+k}')
    for k in range(4):
        A(f'v_add_f32 v{16+k}, v{16+k}, v{24+k}')
    A('v_cvt_pk_bf16_f32 v16, v16, v17')
    A('v_cvt_pk_bf16_f32 v17, v18, v19')
    A('ds_write_b64 v8, v[16:17]')
    if cfg.pretouch == 2:
        pretouch()
    A('s_getreg_b32 s13, hwreg(HW_REG_XCC_ID, 0, 4)')
    A('v_bfe_u32 v32, v32, 8, 8')
    A('v_cmp_ne_u32 vcc, s13, v32')
    A('s_cmp_eq_u64 vcc, 0')
    A('s_cselect_b32 s13, 1, 0')
    if cfg.forceslow:
        A('s_mov_b32 s13, 0')
    A('s_mov_b32 s24, s13')
    A('v_mov_b32 v33, s13')
    A(f'v_mov_b32 v34, {L_MODE}')
    A('s_cmp_eq_u32 s3, 5')
    A('s_cbranch_scc0 L_nomode')
    A('ds_write_b32 v34, v33')
    A.label('L_nomode')
    A('s_waitcnt lgkmcnt(0)')
    A('s_barrier')
    P(7)
    P.flush(); P.reset()
    A('s_lshl_b32 s11, s2, 12')
    A(f's_add_u32 s11, s11, {FIN}')
    A('v_lshl_add_u32 v60, v1, 4, s11')
    A('v_and_b32 v61, 1, v2')
    A('v_lshrrev_b32 v62, 1, v2')
    A('v_lshl_or_b32 v61, v61, 1, v62')
    A('v_and_b32 v62, 3, v1')
    A('v_lshl_add_u32 v61, v62, 2, v61')
    A('s_and_b32 s11, s2, 31')
    A('s_lshl_b32 s11, s11, 4')
    A('v_add_u32 v61, s11, v61')
    A('v_lshlrev_b32 v61, 1, v61')
    if cfg.poll2:
        A(f'v_mov_b32 v63, {L_FLAG}')
        A('v_mov_b32 v59, 0')
    A('s_cmp_eq_u32 s3, 5')
    A('s_cbranch_scc1 L_comm5')
    A(f'buffer_load_ushort v62, v61, {srd(SX)}, 0 offen')
    if cfg.poll2:
        A('ds_write_b32 v63, v59')
        A('s_waitcnt lgkmcnt(0)')
    if cfg.finpre2:
        A('s_cmp_ge_u32 s2, 32')
        A('s_cbranch_scc1 L_nofp2')
        A('s_lshl_b32 s11, s2, 12')
        A(f's_add_u32 s11, s11, {FIN}')
        A('v_lshl_add_u32 v10, v1, 7, s11')
        A('s_mov_b32 exec_hi, 0')
        A(f'buffer_load_dword v11, v10, {srd(SWS)}, 0 offen {cfg.finpre_fl}')
        A('s_mov_b64 exec, -1')
        A.label('L_nofp2')
    A('s_barrier')
    A('s_barrier')
    A('s_barrier')
    P(13)
    P.flush(); P.reset()
    A.label('L_final')
    A('s_cmp_ge_u32 s2, 32')
    A('s_cbranch_scc1 L_done')
    A(f's_mov_b32 s{sIT}, 0')
    A.label('L_fgat')
    for q in range(4):
        A(f'buffer_load_dwordx4 {vr(16+4*q)}, v60, {srd(SWS)}, 0 offen offset:{1024*q} {cfg.fgat}')
    A('s_waitcnt vmcnt(0)')
    if cfg.poll2:
        A('ds_read_b32 v38, v63')
    for q in range(4):
        tag_check(A, 16+4*q, 36, 37, q == 0)
    if cfg.poll2:
        A('s_waitcnt lgkmcnt(0)')
        A('v_readfirstlane_b32 s11, v38')
        A('s_cmp_lg_u32 s11, 0')
        A('s_cbranch_scc1 L_done')
    poll_tail(A, cfg, 'L_fgat', 'L_fok')
    A.label('L_fok')
    if cfg.poll2:
        A('v_mov_b32 v59, 1')
        A('ds_write_b32 v63, v59')
    if cfg.prof in (True, 'heavy'):
        A(f'v_writelane_b32 v{vPROF}, s{sIT}, 22')
    P(14)
    P.flush(); P.reset()
    if cfg.domask is True:
        mask_vals(A, 16, 16)
    for k in range(4):
        A(f'v_add_f32 v{16+k}, v{16+k}, v{20+k}')
        A(f'v_add_f32 v{24+k}, v{24+k}, v{28+k}')
    for k in range(4):
        A(f'v_add_f32 v{16+k}, v{16+k}, v{24+k}')
    transpose_reduce4(A, 16)
    A('v_lshlrev_b32 v62, 16, v62')
    A.nop(1)
    A('v_add_f32_dpp v16, v16, v16 row_ror:8 row_mask:0xf bank_mask:0xf')
    A.nop(2)
    A('v_add_f32_dpp v16, v16, v16 row_ror:4 row_mask:0xf bank_mask:0xf')
    A('v_add_f32 v16, v16, v62')
    A('v_cvt_pk_bf16_f32 v16, v16, v16')
    if cfg.calib:
        A('s_cmp_lg_u32 s2, 0')
        A('s_cbranch_scc1 L_nocal')
        A(f's_add_u32 s36, s36, {cfg.calib}')
        A.label('L_cal')
        A('s_memrealtime s[38:39]')
        A('s_waitcnt lgkmcnt(0)')
        A('s_sub_u32 s37, s38, s36')
        A('s_cmp_lt_i32 s37, 0')
        A('s_cbranch_scc1 L_cal')
        A.label('L_nocal')
    A('s_mov_b32 exec_lo, 0x000f000f')
    A('s_mov_b32 exec_hi, 0x000f000f')
    A(f'buffer_store_short v16, v61, {srd(SOUT)}, 0 offen')
    A('s_cmp_lg_u32 s2, 0')
    A('s_cbranch_scc1 L_noepoch')
    A('s_mov_b64 exec, 1')
    A(f'v_mov_b32 v17, {EOFF}')
    A(f'v_mov_b32 v18, s{sTAG}')
    A(f'buffer_store_dword v18, v17, {srd(SWS)}, 0 offen')
    A.label('L_noepoch')
    A('s_mov_b64 exec, -1')
    A('s_branch L_done')
    A.label('L_comm5')
    P.reset()
    A(f'v_mov_b32 v{vTAG}, s6')
    A('v_lshlrev_b32 v6, 4, v3')
    A('v_and_b32 v7, 1, v2')
    A('v_lshl_add_u32 v7, v7, 11, v6')
    A(f'v_add_u32 v7, {L_PART + 2048}, v7')
    for k in range(8):
        A(f'ds_read_b128 {vr(16+4*k)}, v7 offset:{256*k}')
    A('s_lshl_b32 s12, s4, 2')
    A(f's_add_u32 s12, s12, s{sRB}')
    A('s_lshl_b32 s12, s12, 3')
    A(f's_add_u32 s12, s12, s{sCB}')
    A('s_lshl_b32 s12, s12, 9')
    A(f's_add_u32 s12, s12, {GUO}')
    A('v_and_b32 v7, 1, v2')
    A('v_lshl_add_u32 v6, v7, 8, v6')
    A('v_add_u32 v6, s12, v6')
    A('s_waitcnt lgkmcnt(0)')
    for k in range(4):
        A(f'v_add_f32 v{16+k}, v{16+k}, v{20+k}')
        A(f'v_add_f32 v{24+k}, v{24+k}, v{28+k}')
        A(f'v_add_f32 v{32+k}, v{32+k}, v{36+k}')
        A(f'v_add_f32 v{40+k}, v{40+k}, v{44+k}')
    for k in range(4):
        A(f'v_add_f32 v{16+k}, v{16+k}, v{24+k}')
        A(f'v_add_f32 v{32+k}, v{32+k}, v{40+k}')
    for k in range(4):
        A(f'v_add_f32 v{16+k}, v{16+k}, v{32+k}')
    tag_insert(A, 16)
    A('s_mov_b32 exec_hi, 0')
    A('s_cmp_eq_u32 s24, 1')
    A('s_cbranch_scc0 L_gupub_slow')
    A(f'buffer_store_dwordx4 v[16:19], v6, {srd(SWS)}, 0 offen')
    A('s_branch L_gupub_done')
    A.label('L_gupub_slow')
    A(f'buffer_store_dwordx4 v[16:19], v6, {srd(SWS)}, 0 offen sc1')
    A.label('L_gupub_done')
    A('s_mov_b64 exec, -1')
    A('v_and_b32 v8, 3, v1')
    A('v_lshlrev_b32 v9, 4, v8')
    A(f'v_add_u32 v9, {L_MW}, v9')
    A('s_lshl_b32 s11, s4, 11')
    A('s_lshl_b32 s12, s5, 4')
    A('s_add_u32 s11, s11, s12')
    A(f's_add_u32 s11, s11, {MLO}')
    A('v_lshl_add_u32 v8, v8, 9, s11')
    A('s_barrier')
    A('s_barrier')
    A('ds_read_b128 v[20:23], v9')
    A(f'ds_read_b128 v[24:27], v9 offset:{L_LW - L_MW}')
    A('s_waitcnt lgkmcnt(0)')
    A('v_max3_f32 v20, v20, v21, v22')
    A('v_add_f32 v24, v24, v25')
    A('v_add_f32 v26, v26, v27')
    A('v_max_f32 v20, v20, v23')
    A('v_add_f32 v21, v24, v26')
    tag_insert(A, 20)
    A('s_mov_b64 exec, 15')
    A('s_cmp_eq_u32 s24, 1')
    A('s_cbranch_scc0 L_mlpub_slow')
    A(f'buffer_store_dwordx4 v[20:23], v8, {srd(SWS)}, 0 offen')
    A('s_branch L_mlpub_done')
    A.label('L_mlpub_slow')
    A(f'buffer_store_dwordx4 v[20:23], v8, {srd(SWS)}, 0 offen sc1')
    A.label('L_mlpub_done')
    A('s_mov_b64 exec, -1')
    A('s_barrier')
    if cfg.poll2:
        A(f'buffer_load_ushort v62, v61, {srd(SX)}, 0 offen')
        A('s_waitcnt vmcnt(0)')
        A('s_branch L_final')
    A.label('L_done')
    if cfg.exp_hwid:
        A('s_getreg_b32 s11, hwreg(HW_REG_HW_ID)')
        A(f'v_writelane_b32 v{vPROF}, s11, 31')
    if cfg.prof == 'lite':
        A('s_memrealtime s[30:31]')
        A('s_waitcnt lgkmcnt(0)')
        A(f'v_writelane_b32 v{vPROF}, s28, 0')
        A(f'v_writelane_b32 v{vPROF}, s30, 15')
    elif cfg.prof:
        P(15)
        P.flush()
    if cfg.prof:
        A('s_mul_i32 s11, s2, 6')
        A('s_add_u32 s11, s11, s3')
        A('s_lshl_b32 s11, s11, 7')
        A(f's_add_u32 s11, s11, {PROF}')
        A('v_lshl_add_u32 v86, v1, 2, s11')
        A('s_mov_b32 exec_hi, 0')
        A(f'buffer_store_dword v{vPROF}, v86, {srd(SWS)}, 0 offen')
        A('s_mov_b64 exec, -1')
    A.label('L_end')
    A('s_endpgm')
    A('.section .rodata,"a"')
    A('.p2align 6')
    A(f'.amdhsa_kernel {NAME}')
    A(f'  .amdhsa_next_free_vgpr {cfg.nvgpr}')
    A('  .amdhsa_next_free_sgpr 102')
    A(f'  .amdhsa_accum_offset {min(cfg.nvgpr, 256)}')
    A('  .amdhsa_group_segment_fixed_size 0')
    A('  .amdhsa_kernarg_size 96')
    A('  .amdhsa_user_sgpr_count 2')
    A('  .amdhsa_user_sgpr_kernarg_segment_ptr 1')
    A('  .amdhsa_system_sgpr_workgroup_id_x 1')
    A('  .amdhsa_float_denorm_mode_32 3')
    A('.end_amdhsa_kernel')
    return A.text()

HEADER = open('parallel_sum__sliding_block_cached__glu_gated_bilinear__decode.s.ref').read().split('; Override launch')[0]

DOC = """;
"""

def full(cfg):
    body = gen(cfg)
    probs = check(body)
    for p in probs:
        if 'wide store WAR' in p and 'v_lshlrev_b32 v86, 4, v3' in p:
            continue
        print('HAZARD', p)
    return HEADER + f'; @launch grid=(256,1,1) block=(384,1,1) lds={cfg.ldsbytes}\n' + DOC + body

if __name__ == '__main__':
    cfg = Cfg()
    for a in sys.argv[2:]:
        k, v = a.split('=')
        old = getattr(cfg, k, None)
        setattr(cfg, k, v if ((isinstance(old, str) or v in ('lite', 'heavy')) and v not in ('False', 'True')) else eval(v))
    open(sys.argv[1], 'w').write(full(cfg))
```

```python
import sys
from asmlib import Asm, check

NAME = 'parallel_sum__sliding_block_cached__glu_gated_bilinear__decode_kernel'

EOFF  = 0
QA    = 0x1000
IDA   = 0x11000
BDELTA = 0x11000
GUO   = 0x23000
MLO   = 0x43000
OIO   = 0x48000
FIN   = 0xC8000
PROF  = 0x180000
WS_BYTES = 0x200000

L_K = 0
L_V = 32768
L_XN = 65536
L_PART = 66560
L_QB = 72704
L_HB = 73792
L_MODE = 73808
L_MW = 73824
L_LW = 73888
L_PB = L_PART
L_RED = L_PART + 4096
L_FLAG = 73812
LDS_BYTES = 73984

sW, sG, sS, sTAG = 3, 4, 5, 6
SX, SK, SV, SWQ, SWO, SGA, SUP, SDN, SOUT, SWS = 40, 44, 48, 52, 56, 60, 64, 68, 72, 76
M0, M1, M2, M3 = 80, 82, 84, 86
sX0, sX1 = 90, 91
sIT = 92
sLOG2E, sSCALE = 93, 94
sMSK = 95
sP01, sP23 = 96, 97
sI0, sI1, sI2, sI3 = 98, 99, 100, 101
sRB, sT, sCB = 7, 8, 10
vTAG, vSH = 167, 166
vPROF = 165
def srd(n): return f's[{n}:{n+3}]'
def vr(n, k=4): return f'v[{n}:{n+k-1}]'

class Cfg:
    nt = 'nt'
    gat = 'sc1'
    nk1 = 8
    domask = 'm'
    elate = True
    tlbwarm = False
    xone = 0
    addr_early = False
    nk0 = None
    poll2 = False
    finpre2 = 3
    fpub = 'sc1'
    fgat = 'sc1'
    worot = True
    kearly = True
    owait = None
    oline = False
    tpos = (21, 21, 25, 25, 26, 26)
    calib = 0
    ldsbytes = LDS_BYTES
    nvgpr = 168
    b1a = True
    win = None
    win2 = None
    exp_dirty = 0
    b1c = False
    nv2 = 4
    kwait = 3
    exp_cb = 0
    exp_hwid = False
    swap = True
    wo_early = -1
    b0 = 0
    prio = 3
    align = 12
    xnt = ''
    finpre = 0
    finpre_fl = ''
    codepf_n = 4
    nv1 = 3
    b1b = True
    b3b = True
    maxit = 200000
    swit = 24
    prof = False
    dbgprof = None
    pretouch = 0
    pre_fl = 'nt'
    codepf = 's'
    forceslow = False
    forceb = False

ROW_FULL = ['quad_perm:[1,0,3,2]', 'quad_perm:[2,3,0,1]', 'row_half_mirror', 'row_mirror']

def rowred(A, regs, op, steps):
    for st in steps:
        A.nop(2 if len(regs) < 3 else max(0, 2 - (len(regs) - 1)))
        for v in regs:
            A(f'{op}_dpp v{v}, v{v}, v{v} {st} row_mask:0xf bank_mask:0xf')
        if len(regs) >= 3:
            pass

def cross_rows(A, v, tmp, op):
    A(f'v_mov_b32 v{tmp}, v{v}')
    A.nop(2)
    A(f'v_permlane16_swap_b32 v{tmp}, v{v}')
    A.nop(1)
    A(f'{op} v{v}, v{tmp}, v{v}')
    A(f'v_mov_b32 v{tmp}, v{v}')
    A.nop(2)
    A(f'v_permlane32_swap_b32 v{tmp}, v{v}')
    A.nop(1)
    A(f'{op} v{v}, v{tmp}, v{v}')

def wave_allreduce(A, v, tmp, op):
    rowred(A, [v], op, ROW_FULL)
    cross_rows(A, v, tmp, op)

def transpose_reduce4(A, v):
    A.nop(1)
    A(f'v_permlane32_swap_b32 v{v}, v{v+1}')
    A(f'v_permlane32_swap_b32 v{v+2}, v{v+3}')
    A.nop(1)
    A(f'v_add_f32 v{v}, v{v}, v{v+1}')
    A(f'v_add_f32 v{v+2}, v{v+2}, v{v+3}')
    A.nop(2)
    A(f'v_permlane16_swap_b32 v{v}, v{v+2}')
    A.nop(1)
    A(f'v_add_f32 v{v}, v{v}, v{v+2}')

def tag_insert(A, v):
    for k, s in enumerate((sI0, sI1, sI2, sI3)):
        A(f'v_perm_b32 v{v+k}, v{v+k}, v{vTAG}, s{s}')

def tag_check(A, v, t0, t1, first):
    A(f'v_perm_b32 v{t0}, v{v+1}, v{v}, s{sP01}')
    A(f'v_perm_b32 v{t1}, v{v+3}, v{v+2}, s{sP23}')
    A(f'v_or_b32 v{t0}, v{t0}, v{t1}')
    if first:
        A(f'v_cmp_ne_u32 s[88:89], s{sTAG}, v{t0}')
    else:
        A(f'v_cmp_ne_u32 s[90:91], s{sTAG}, v{t0}')
        A('s_or_b64 s[88:89], s[88:89], s[90:91]')

def mask_vals(A, v, n=4):
    for k in range(n):
        A(f'v_and_b32 v{v+k}, s{sMSK}, v{v+k}')

def build_sel(A, dst, val, tmp):
    A(f'v_lshlrev_b32 v{tmp}, v{vSH}, v{val}')
    for j, m in enumerate((M0, M1, M2, M3)):
        A(f'v_cndmask_b32_e64 v{dst+j}, 0, v{tmp}, s[{m}:{m+1}]')

class Prof:
    def __init__(self, A, cfg):
        self.A, self.on, self.prev, self.k = A, cfg.prof, None, 0
        self.lite = cfg.prof == 'lite'
    def reset(self, prev=None, k=0):
        if self.lite:
            self.prev = None
            return
        self.prev, self.k = prev, k
    def __call__(self, idx):
        if not self.on: return
        if self.on == 'lite' and idx not in (0, 15): return
        if idx >= 23 and self.on != 'heavy': return
        A = self.A
        if self.on == 'heavy' and self.prev is not None:
            A('s_waitcnt lgkmcnt(0)')
        if self.prev is not None:
            A(f'v_writelane_b32 v{vPROF}, s{28 + 2*self.k}, {self.prev}')
            self.k ^= 1
        A(f's_memrealtime s[{28+2*self.k}:{29+2*self.k}]')
        self.prev = None if self.lite else idx
    def flush(self):
        if not self.on: return
        if self.prev is None: return
        A = self.A
        A('s_waitcnt lgkmcnt(0)')
        A(f'v_writelane_b32 v{vPROF}, s{28 + 2*self.k}, {self.prev}')

def common_consts(A):
    A(f's_mov_b32 s{sLOG2E}, 0x3fb8aa3b')
    A(f's_mov_b32 s{sSCALE}, 0x3db504f3')
    A(f's_mov_b32 s{sMSK}, 0xffffff00')
    A(f's_mov_b32 s{sP01}, 0x0c0c0400')
    A(f's_mov_b32 s{sP23}, 0x04000c0c')
    A(f's_mov_b32 s{sI0}, 0x07060500')
    A(f's_mov_b32 s{sI1}, 0x07060501')
    A(f's_mov_b32 s{sI2}, 0x07060502')
    A(f's_mov_b32 s{sI3}, 0x07060503')

def poll_tail(A, cfg, label, oklabel, switch=None):
    A('s_cmp_eq_u64 s[88:89], 0')
    A(f's_cbranch_scc1 {oklabel}')
    A(f's_add_u32 s{sIT}, s{sIT}, 1')
    if switch:
        A(f's_cmp_eq_u32 s{sIT}, {cfg.swit}')
        A(f's_cselect_b32 s{switch}, {BDELTA}, s{switch}')
    A(f's_cmp_le_u32 s{sIT}, {cfg.maxit}')
    A(f's_cbranch_scc1 {label}')

def gen(cfg):
    A = Asm()
    P = Prof(A, cfg)
    nt = cfg.nt
    A('.amdgcn_target "amdgcn-amd-amdhsa--gfx950"')
    A('.text')
    A(f'.globl {NAME}')
    A(f'.p2align {cfg.align}')
    A(f'.type {NAME},@function')
    A.label(NAME)
    A('s_cmp_ge_u32 s2, 256')
    A('s_cbranch_scc1 L_end')
    P(0)
    if cfg.calib:
        A('s_memrealtime s[36:37]')
    for sr, off in ((SWQ, 24), (SX, 0), (SWS, 88), (SK, 8)):
        A(f's_load_dwordx2 s[{sr}:{sr+1}], s[0:1], {off}')
    A('v_lshrrev_b32 v2, 6, v0')
    A('v_and_b32 v1, 63, v0')
    A('s_and_b32 s4, s2, 7')
    A('v_readfirstlane_b32 s3, v2')
    A('s_lshr_b32 s5, s2, 3')
    A(f's_lshr_b32 s{sRB}, s5, 3')
    A(f's_and_b32 s{sCB}, s5, 7')
    for sr, n in ((SWQ, 4194304), (SX, 1024), (SWS, WS_BYTES), (SK, 134217728)):
        A(f's_mov_b32 s{sr+2}, {n}')
        A(f's_mov_b32 s{sr+3}, ' + ('0x20000' if sr == SWQ else f's{SWQ+3}'))
    common_consts(A)
    A('s_cmp_ge_u32 s3, 4')
    A('s_cbranch_scc1 L_comm0')
    def kcalc():
        A('v_lshrrev_b32 v2, 4, v1')
        A('v_and_b32 v3, 15, v1')
        A('v_xor_b32 v5, v2, v3')
        A('v_lshlrev_b32 v5, 4, v5')
        A('v_lshl_add_u32 v156, v2, 8, v5')
        for i in range(1, 4):
            A(f'v_xor_b32 v{156+i}, {64*i}, v156')
        A('s_lshl_b32 s19, s4, 24')
        A('s_lshl_b32 s11, s5, 15')
        A('s_add_u32 s19, s19, s11')
        A('s_lshl_b32 s20, s3, 13')
        A('s_add_u32 s19, s19, s20')
        A('s_add_u32 s19, s19, 15728640')
        A('s_and_b32 s25, s4, 1')
        A('s_lshl_b32 s25, s25, 12')
        A('s_xor_b32 s26, s25, 4096')
        A('s_add_u32 s27, s19, s26')
        A('s_add_u32 s19, s19, s25')
        A('s_add_u32 s25, s25, s20')
        A('s_add_u32 s26, s26, s20')
        A('s_mov_b32 m0, s25')
    A(f's_lshl_b32 s12, s{sRB}, 20')
    A('s_lshl_b32 s11, s3, 18')
    A('s_add_u32 s12, s12, s11')
    A('s_lshl_b32 s11, s4, 10')
    A('s_add_u32 s12, s12, s11')
    A(f's_lshl_b32 s11, s{sCB}, 7')
    A('s_add_u32 s12, s12, s11')
    A('v_lshlrev_b32 v163, 4, v1')
    A('v_lshrrev_b32 v164, 3, v1')
    A('v_and_b32 v4, 0x70, v163')
    A('v_lshl_add_u32 v6, v164, 13, v4')
    A(f'v_mov_b32 v7, {EOFF}')
    A('s_add_u32 s13, s12, 65536')
    A('s_add_u32 s14, s12, 131072')
    A('s_add_u32 s15, s12, 196608')
    if cfg.kearly:
        kcalc()
    A('s_waitcnt lgkmcnt(0)')
    P(27)
    if cfg.xone is not None:
        A(f's_cmp_lg_u32 s3, {cfg.xone}')
        A('s_cbranch_scc1 L_nox')
    A(f'buffer_load_dwordx4 v[8:11], v163, {srd(SX)}, 0 offen {cfg.xnt}')
    if cfg.xone is not None:
        A.label('L_nox')
    if not cfg.elate:
        A(f'buffer_load_dword v{vTAG}, v7, {srd(SWS)}, 0 offen {cfg.xnt}')
    for i in range(4):
        A(f'buffer_load_dwordx4 {vr(12+4*i)}, v6, {srd(SWQ)}, s{12+i} offen {nt}')
    if cfg.elate:
        A(f'buffer_load_dword v{vTAG}, v7, {srd(SWS)}, 0 offen {cfg.xnt}')
    for sr, off in ((SV, 16), (SGA, 48), (SUP, 56), (SWO, 32), (SDN, 64)):
        A(f's_load_dwordx2 s[{sr}:{sr+1}], s[0:1], {off}')
    if not cfg.kearly:
        kcalc()
        A.nop(1)
    def kloads(lo, hi):
        for i in range(lo, hi):
            if i == 4:
                A('s_mov_b32 m0, s26')
                A.nop(1)
            A(f'buffer_load_dwordx4 v{156+(i&3)}, {srd(SK)}, s{19 if i < 4 else 27} offen offset:{1024*(i&3)} {nt} lds')
    if cfg.nk0 is not None:
        kloads(0, cfg.nk0)
        A(f's_cmp_eq_u32 s3, {cfg.xone}')
        A('s_cbranch_scc1 L_klater')
        kloads(cfg.nk0, 8)
        A.label('L_klater')
    else:
        kloads(0, cfg.nk1)
    A('v_mul_u32_u24 v162, 3584, v164')
    A('v_add_u32 v161, v162, v4')
    A(f's_lshl_b32 s{sT}, s{sRB}, 3')
    A(f's_add_u32 s{sT}, s{sT}, s4')
    A(f's_cmp_lt_u32 s{sT}, 28')
    A('s_cselect_b32 s9, 1835008, 0')
    for sr, n in ((SV, f's{SK+2}'), (SWO, f's{SWQ+2}')):
        A(f's_mov_b32 s{sr+2}, {n}')
        A(f's_mov_b32 s{sr+3}, s{SWQ+3}')
    for sr in (SGA, SUP, SDN):
        A(f's_mov_b32 s{sr+2}, s9')
        A(f's_mov_b32 s{sr+3}, s{SWQ+3}')
    A('s_branch L_cmp_go')
    A.label('L_comm0')
    if cfg.codepf:
        A('s_cmp_eq_u32 s3, 5')
        A('s_cbranch_scc0 L_nocodepf')
        A('s_getpc_b64 s[12:13]')
        A.label('L_pc')
        A(f's_sub_u32 s12, s12, L_pc-{NAME}')
        A('s_subb_u32 s13, s13, 0')
        A('s_lshl_b32 s14, s5, 6')
        A('s_add_u32 s12, s12, s14')
        A('s_addc_u32 s13, s13, 0')
        for i in range(cfg.codepf_n - 1):
            A(f's_load_dword s{32+(i&3)}, s[12:13], {2048*i}')
        A(f's_add_u32 s15, s14, {2048*(cfg.codepf_n-1)}')
        A(f's_min_u32 s15, s15, L_end-{NAME}')
        A('s_sub_u32 s15, s15, s14')
        A('s_load_dword s35, s[12:13], s15')
        A.label('L_nocodepf')
    if cfg.prio:
        A(f's_setprio {cfg.prio}')
    A('s_branch L_comm')
    A.label('L_cmp_go')
    for m, lo in ((M0, 0x03030303), (M1, 0x0c0c0c0c), (M2, 0x30303030), (M3, 0xc0c0c0c0)):
        A(f's_mov_b32 s{m}, {hex(lo)}')
        A(f's_mov_b32 s{m+1}, s{m}')
    A(f'v_and_b32 v{vSH}, 1, v1')
    A(f'v_lshlrev_b32 v{vSH}, 4, v{vSH}')
    A(f's_lshl_b32 s17, s{sCB}, 6')
    A('s_lshl_b32 s11, s3, 4')
    A('s_add_u32 s17, s17, s11')
    A('s_mul_i32 s17, s17, 3584')
    A(f's_lshl_b32 s11, s{sT}, 7')
    A('s_add_u32 s17, s17, s11')
    A('s_lshl_b32 s21, s4, 19')
    A('s_lshr_b32 s11, s5, 2')
    A('s_lshl_b32 s12, s11, 16')
    A('s_add_u32 s21, s21, s12')
    A('s_lshl_b32 s12, s3, 14')
    A('s_add_u32 s21, s21, s12')
    A('s_and_b32 s23, s5, 3')
    A('s_lshl_b32 s23, s23, 8')
    A('s_add_u32 s21, s21, s23')
    A(f's_lshl_b32 s22, s{sT}, 16')
    A('s_and_b32 s11, s11, 1')
    A('s_lshl_b32 s11, s11, 15')
    A('s_add_u32 s22, s22, s11')
    A('s_lshl_b32 s12, s3, 13')
    A('s_add_u32 s22, s22, s12')
    A('s_add_u32 s22, s22, s23')
    A('v_lshlrev_b32 v162, 4, v3')
    A('v_lshl_add_u32 v162, v2, 10, v162')
    P(1)
    A('v_lshrrev_b32 v105, 3, v3')
    A('v_lshl_add_u32 v105, v2, 1, v105')
    A(f's_lshl_b32 s11, s{sRB}, 7')
    A('s_lshl_b32 s12, s3, 5')
    A('s_add_u32 s11, s11, s12')
    A('s_lshl_b32 s11, s11, 1')
    A(f's_add_u32 s11, s11, {L_XN}')
    A('v_lshl_add_u32 v106, v105, 1, s11')
    A(f's_lshl_b32 s11, s{sCB}, 6')
    A('s_lshl_b32 s12, s3, 4')
    A('s_add_u32 s11, s11, s12')
    A('s_lshl_b32 s11, s11, 1')
    A(f's_add_u32 s11, s11, {L_XN}')
    A('v_lshl_add_u32 v107, v105, 1, s11')
    A.c('layernorm')
    if cfg.xone is not None:
        A(f's_cmp_lg_u32 s3, {cfg.xone}')
        A('s_cbranch_scc1 L_noln')
    A(f's_waitcnt vmcnt({4 + (cfg.nk0 if cfg.nk0 is not None else cfg.nk1) + (1 if cfg.elate else 0)})')
    P(2)
    for k in range(4):
        A(f'v_lshlrev_b32 v{80+2*k}, 16, v{8+k}')
        A(f'v_and_b32 v{81+2*k}, 0xffff0000, v{8+k}')
    A('v_add_f32 v88, v80, v81')
    A('v_add_f32 v89, v82, v83')
    A('v_add_f32 v90, v84, v85')
    A('v_add_f32 v91, v86, v87')
    A('v_add_f32 v88, v88, v89')
    A('v_add_f32 v90, v90, v91')
    A('v_add_f32 v88, v88, v90')
    wave_allreduce(A, 88, 89, 'v_add_f32')
    A('v_mul_f32 v88, 0x3b000000, v88')
    for k in range(8):
        A(f'v_sub_f32 v{92+k}, v{80+k}, v88')
    A('v_mul_f32 v90, v92, v92')
    for k in range(1, 8):
        A(f'v_fmac_f32 v90, v{92+k}, v{92+k}')
    wave_allreduce(A, 90, 89, 'v_add_f32')
    P(23)
    A('v_mul_f32 v90, 0x3b000000, v90')
    A('v_cvt_pk_bf16_f32 v88, v88, v90')
    A('v_and_b32 v90, 0xffff0000, v88')
    A('v_lshlrev_b32 v88, 16, v88')
    A('v_add_f32 v90, 0x3727c5ac, v90')
    A('v_cvt_pk_bf16_f32 v90, v90, v90')
    A('v_lshlrev_b32 v90, 16, v90')
    A('v_sqrt_f32 v90, v90')
    for k in range(8):
        A(f'v_sub_f32 v{92+k}, v{80+k}, v88')
    A('v_cvt_pk_bf16_f32 v90, v90, v90')
    A('v_lshlrev_b32 v90, 16, v90')
    A('v_rcp_f32 v90, v90')
    for k in range(4):
        A(f'v_cvt_pk_bf16_f32 v{100+k}, v{92+2*k}, v{93+2*k}')
    for k in range(4):
        A(f'v_lshlrev_b32 v{92+2*k}, 16, v{100+k}')
        A(f'v_and_b32 v{93+2*k}, 0xffff0000, v{100+k}')
    for k in range(8):
        A(f'v_mul_f32 v{92+k}, v{92+k}, v90')
    for k in range(4):
        A(f'v_cvt_pk_bf16_f32 v{100+k}, v{92+2*k}, v{93+2*k}')
    A(f'v_add_u32 v104, {L_XN}, v163')
    A('ds_write_b128 v104, v[100:103]')
    P(24)
    if cfg.xone is not None:
        A.label('L_noln')
        A('s_waitcnt lgkmcnt(0)')
        A('s_barrier')
    A('s_waitcnt lgkmcnt(0)')
    for i in range(4):
        A(f'ds_read_u16 v{80+i}, v106 offset:{16*i}')
    for i in range(2):
        A(f'ds_read_u16 v{84+i}, v107 offset:{16*i}')
    if cfg.nk0 is not None:
        A(f's_cmp_eq_u32 s3, {cfg.xone}')
        A('s_cbranch_scc0 L_kdone')
        kloads(cfg.nk0, 8)
        A.label('L_kdone')
    if not cfg.elate:
        A(f'v_add_u32 v{vTAG}, 0x01010101, v{vTAG}')
    P(25)
    kloads(cfg.nk1, 8)
    P(26)
    if not cfg.elate:
        A.nop(1)
        A(f'v_readfirstlane_b32 s6, v{vTAG}')
    A('s_waitcnt lgkmcnt(0)')
    for i in range(4):
        build_sel(A, 48+4*i, 80+i, 86)
    for i in range(2):
        build_sel(A, 64+4*i, 84+i, 86)
    A('v_lshlrev_b32 v86, 1, v2')
    A('v_xor_b32 v86, v86, v3')
    A('v_lshlrev_b32 v86, 4, v86')
    A('v_lshl_add_u32 v160, v2, 8, v86')
    A('v_xor_b32 v164, 128, v160')
    A('v_lshrrev_b32 v87, 5, v1')
    A('v_lshlrev_b32 v87, 8, v87')
    A('v_and_b32 v86, 7, v1')
    A('v_lshl_add_u32 v87, v86, 5, v87')
    A('v_and_b32 v86, 1, v2')
    A('v_lshl_add_u32 v87, v86, 4, v87')
    A('s_lshl_b32 s11, s3, 9')
    A(f's_add_u32 s11, s11, {L_PART}')
    A('v_add_u32 v163, s11, v87')
    P(3)
    A.c('q partial product')
    A('s_waitcnt vmcnt(8)')
    P(16)
    if cfg.elate:
        A(f'v_add_u32 v{vTAG}, 0x01010101, v{vTAG}')
    for i in range(4):
        A(f'v_mfma_f32_16x16x32_bf16 v[72:75], {vr(48+4*i)}, {vr(12+4*i)}, {"0" if i == 0 else "v[72:75]"}')
    A('s_mov_b32 exec_lo, 0x00ff00ff')
    A('s_mov_b32 exec_hi, 0xff00ff00')
    A.nop(6)
    A('ds_write_b128 v163, v[72:75]')
    A('s_mov_b64 exec, -1')
    if cfg.elate:
        A(f'v_readfirstlane_b32 s6, v{vTAG}')
    A('s_waitcnt lgkmcnt(0)')
    A('s_barrier')
    P(4)
    A('s_cmp_lg_u32 s3, 3')
    A('s_cbranch_scc1 L_pub1_done')
    A('v_lshlrev_b32 v86, 4, v3')
    A(f'v_add_u32 v87, {L_PART}, v86')
    for k in range(8):
        A(f'ds_read_b128 {vr(80+4*k+32)}, v87 offset:{256*k}')
    A('s_lshl_b32 s11, s4, 2')
    A(f's_add_u32 s11, s11, s{sRB}')
    A('s_lshl_b32 s11, s11, 11')
    A(f's_lshl_b32 s12, s{sCB}, 8')
    A('s_add_u32 s11, s11, s12')
    A(f's_add_u32 s11, s11, {QA}')
    A('v_add_u32 v86, s11, v86')
    A('s_lshl_b32 s12, s4, 9')
    A('s_lshl_b32 s13, s5, 4')
    A('s_add_u32 s12, s12, s13')
    A(f's_add_u32 s12, s12, {IDA}')
    A('v_mov_b32 v87, s12')
    A('v_cmp_eq_u32 vcc, 0, v2')
    A('s_getreg_b32 s13, hwreg(HW_REG_XCC_ID, 0, 4)')
    A('s_lshl_b32 s13, s13, 8')
    A('v_cndmask_b32 v86, v87, v86, vcc')
    A('s_waitcnt lgkmcnt(0)')
    for k in range(4):
        A(f'v_add_f32 v{112+k}, v{112+k}, v{116+k}')
        A(f'v_add_f32 v{120+k}, v{120+k}, v{124+k}')
        A(f'v_add_f32 v{128+k}, v{128+k}, v{132+k}')
        A(f'v_add_f32 v{136+k}, v{136+k}, v{140+k}')
    for k in range(4):
        A(f'v_add_f32 v{112+k}, v{112+k}, v{120+k}')
        A(f'v_add_f32 v{128+k}, v{128+k}, v{136+k}')
    for k in range(4):
        A(f'v_add_f32 v{112+k}, v{112+k}, v{128+k}')
    A('v_mov_b32 v116, s13')
    A('v_cndmask_b32 v112, v116, v112, vcc')
    tag_insert(A, 112)
    A('s_mov_b32 exec_lo, 0x0001ffff')
    A('s_mov_b32 exec_hi, 0')
    if not cfg.forceb:
        A(f'buffer_store_dwordx4 v[112:115], v86, {srd(SWS)}, 0 offen')
    A(f's_mov_b32 s12, {BDELTA}')
    A(f'buffer_store_dwordx4 v[112:115], v86, {srd(SWS)}, s12 offen sc1')
    A('s_mov_b64 exec, -1')
    A.label('L_pub1_done')
    if cfg.b1a:
        A('s_barrier')
    nst = (1 if cfg.forceb else 2)
    A.c('gate/up loads, V loads')
    A('s_add_u32 s18, s17, 28672')
    A(f'buffer_load_dwordx4 {vr(8)}, v161, {srd(SGA)}, s17 offen {nt}')
    A(f'buffer_load_dwordx4 {vr(12)}, v161, {srd(SGA)}, s18 offen {nt}')
    A(f'buffer_load_dwordx4 {vr(16)}, v161, {srd(SUP)}, s17 offen {nt}')
    A(f'buffer_load_dwordx4 {vr(20)}, v161, {srd(SUP)}, s18 offen {nt}')
    def vloads(lo, hi, win=None):
        for i in range(lo, hi):
            if win:
                A(f's_waitcnt vmcnt({win-1})')
            if i % 4 == 0 or i == lo:
                A(f's_add_u32 m0, s{25 if i < 4 else 26}, {L_V}')
                A.nop(1)
            A(f'buffer_load_dwordx4 v{(160, 164)[i&1]}, {srd(SV)}, s{19 if i < 4 else 27} offen offset:{1024*(i&3)} {nt} lds')
    def tail_addresses():
        A.c('addresses for the attention tail (computed while the loads are in flight)')
        if cfg.worot:
            A('s_add_u32 s38, s4, s3')
            A('s_and_b32 s38, s38, 3')
            for i in range(4):
                A(f's_add_u32 s11, s38, {i}')
                A('s_and_b32 s11, s11, 3')
                A('s_lshl_b32 s11, s11, 12')
                A(f's_add_u32 s{32+i}, s21, s11')
            A('s_and_b32 s11, s38, 1')
            A('s_lshl_b32 s11, s11, 12')
            A('s_add_u32 s36, s22, s11')
            A('s_xor_b32 s11, s11, 4096')
            A('s_add_u32 s37, s22, s11')
        A('v_lshrrev_b32 v84, 2, v3')
        A('v_lshl_add_u32 v85, v2, 2, v84')
        A('v_and_b32 v84, 7, v85')
        A('v_lshlrev_b32 v85, 8, v85')
        A('v_lshl_add_u32 v85, v84, 5, v85')
        A('v_and_b32 v84, 3, v3')
        A('v_lshl_add_u32 v85, v84, 3, v85')
        A(f'v_add_u32 v85, {L_V}, v85')
        A('s_lshl_b32 s11, s3, 6')
        A('v_xor_b32 v48, s11, v85')
        A('v_xor_b32 v49, 32, v48')
        A('v_and_b32 v84, 3, v3')
        A('v_lshlrev_b32 v84, 14, v84')
        A('v_bfe_u32 v85, v3, 2, 1')
        A(f'v_lshl_add_u32 v84, v85, {6 if cfg.oline else 11}, v84')
        A('v_lshl_add_u32 v84, v2, 4, v84')
        A('s_lshl_b32 s11, s4, 16')
        A('s_lshl_b32 s12, s3, 12')
        A('s_add_u32 s11, s11, s12')
        A(f's_lshl_b32 s12, s5, {7 if cfg.oline else 6}')
        A('s_add_u32 s11, s11, s12')
        A(f's_add_u32 s11, s11, {OIO}')
        A('v_add_u32 v50, s11, v84')
        A('s_lshr_b32 s14, s5, 3')
        A('s_lshl_b32 s11, s4, 2')
        A('s_add_u32 s11, s11, s14')
        A('s_lshl_b32 s12, s11, 9')
        A(f's_add_u32 s12, s12, {MLO}')
        A('v_lshrrev_b32 v84, 2, v1')
        A('v_lshl_add_u32 v52, v84, 4, s12')
        A('s_bfe_u32 s12, s5, 0x10002')
        if cfg.oline:
            A('s_lshl_b32 s11, s11, 14')
            A('s_lshl_b32 s13, s12, 2')
            A('s_add_u32 s13, s13, s3')
            A('s_lshr_b32 s15, s13, 1')
            A('s_lshl_b32 s15, s15, 12')
            A('s_add_u32 s11, s11, s15')
            A('s_and_b32 s13, s13, 1')
            A('s_lshl_b32 s13, s13, 6')
            A('s_add_u32 s11, s11, s13')
            A(f's_add_u32 s11, s11, {OIO}')
            A('v_lshrrev_b32 v84, 2, v1')
            A('v_lshlrev_b32 v84, 7, v84')
            A('v_and_b32 v85, 3, v1')
            A('v_lshl_add_u32 v84, v85, 4, v84')
            A('v_add_u32 v51, s11, v84')
        else:
            A('s_lshl_b32 s11, s11, 3')
            A('s_lshl_b32 s13, s12, 2')
            A('s_add_u32 s11, s11, s13')
            A('s_add_u32 s11, s11, s3')
            A('s_lshl_b32 s11, s11, 11')
            A(f's_add_u32 s11, s11, {OIO}')
            if cfg.worot:
                A('v_add_u32 v84, s38, v1')
                A('v_and_b32 v84, 3, v84')
                A('v_and_b32 v85, 0x3c, v1')
                A('v_or_b32 v84, v84, v85')
                A('v_lshl_add_u32 v51, v84, 4, s11')
            else:
                A('v_lshl_add_u32 v51, v1, 4, s11')
        A('s_lshl_b32 s11, s4, 2')
        A('s_add_u32 s11, s11, s14')
        A('s_lshl_b32 s11, s11, 12')
        A('s_lshl_b32 s12, s12, 7')
        A('s_add_u32 s11, s11, s12')
        A('s_lshl_b32 s12, s3, 5')
        A('s_add_u32 s11, s11, s12')
        A(f's_add_u32 s11, s11, {GUO}')
        A('v_bfe_u32 v84, v1, 2, 3')
        A('v_lshlrev_b32 v84, 9, v84')
        A('v_bfe_u32 v85, v1, 1, 1')
        A('v_lshl_add_u32 v84, v85, 8, v84')
        if cfg.worot:
            A('v_xor_b32 v85, s38, v1')
            A('v_and_b32 v85, 1, v85')
        else:
            A('v_and_b32 v85, 1, v1')
        A('v_lshl_add_u32 v84, v85, 4, v84')
        A('v_add_u32 v53, s11, v84')
        A('v_mul_u32_u24 v54, 0x020202, v2')
        A('v_lshlrev_b32 v84, 25, v2')
        A('v_add_u32 v54, v54, v84')
        A('v_add_u32 v54, 0x01000100, v54')
        A('v_and_b32 v84, 1, v1')
        A('v_mov_b32 v85, 0xffff')
        A('v_lshlrev_b32 v84, 4, v84')
        A('v_lshlrev_b32 v84, v84, v85')
        for jj, m in enumerate((M0, M1, M2, M3)):
            A(f'v_cndmask_b32_e64 v{136+jj}, 0, v84, s[{m}:{m+1}]')
        A('v_and_b32 v84, 3, v1')
        A('s_lshl_b32 s11, s3, 2')
        A(f's_add_u32 s11, s11, {L_MW}')
        A('v_lshl_add_u32 v55, v84, 4, s11')
        A('v_lshlrev_b32 v84, 4, v84')
        A(f'v_add_u32 v56, {L_MW}, v84')
        A('v_lshlrev_b32 v84, 4, v1')
        A('s_lshl_b32 s11, s3, 10')
        A(f's_add_u32 s11, s11, {L_PB}')
        A('v_add_u32 v57, s11, v84')
        A(f'v_add_u32 v58, {L_PB}, v84')
        A('v_lshrrev_b32 v60, 2, v1')
        A('v_lshlrev_b32 v60, 12, v60')
        A('v_and_b32 v61, 3, v1')
        A('v_lshl_add_u32 v60, v61, 4, v60')
        A('s_and_b32 s11, s5, 3')
        A('s_lshl_b32 s11, s11, 15')
        A('s_lshl_b32 s12, s4, 3')
        A('s_lshr_b32 s13, s5, 2')
        A('s_add_u32 s12, s12, s13')
        A('s_lshl_b32 s12, s12, 6')
        A('s_add_u32 s11, s11, s12')
        A(f's_add_u32 s11, s11, {FIN}')
        A('v_add_u32 v60, s11, v60')
        A('v_lshlrev_b32 v62, 4, v1')
        A(f'v_add_u32 v62, {L_RED}, v62')
        A('v_lshlrev_b32 v85, 5, v3')
        A('v_lshl_add_u32 v85, v2, 4, v85')
        A('s_lshl_b32 s11, s3, 9')
        A(f's_add_u32 s11, s11, {L_RED}')
        A('v_add_u32 v59, s11, v85')
    vloads(0, cfg.nv1)
    if cfg.addr_early:
        tail_addresses()
    if cfg.kwait is not None:
        A('s_cmp_eq_u32 s3, 3')
        A('s_cbranch_scc1 L_nokwait')
        A(f's_waitcnt vmcnt({cfg.kwait + cfg.nv1})')
        A.label('L_nokwait')
    if cfg.b1b:
        A('s_barrier')
    P(5)
    A('v_and_b32 v85, 1, v2')
    A('v_lshrrev_b32 v86, 1, v2')
    A('v_lshl_or_b32 v85, v85, 1, v86')
    A('v_lshlrev_b32 v86, 4, v3')
    A('v_lshl_add_u32 v161, v85, 10, v86')
    A('v_xor_b32 v86, v2, v3')
    A('v_lshlrev_b32 v86, 4, v86')
    A('v_lshl_add_u32 v156, v3, 8, v86')
    A('v_add_u32 v156, s20, v156')
    for j in range(1, 4):
        A(f'v_xor_b32 v{156+j}, {64*j}, v156')
    A('v_and_b32 v86, 3, v1')
    A('v_mul_u32_u24 v86, 272, v86')
    A('v_lshl_add_u32 v4, v2, 4, v86')
    A(f'v_add_u32 v4, {L_QB}, v4')
    if cfg.b1c:
        vloads(cfg.nv1, cfg.nv2)
        A('s_barrier')
        vloads(cfg.nv2, 8)
    else:
        vloads(cfg.nv1, 8, cfg.win)
    def tail_loads(pos):
        n = 0
        for i, p in enumerate(cfg.tpos):
            if p != pos:
                continue
            n += 1
            if i < 4:
                if cfg.worot:
                    A(f'buffer_load_dwordx4 {vr(24+4*i)}, v161, {srd(SWO)}, s{32+i} offen {nt}')
                else:
                    A(f's_add_u32 s13, s21, {4096*i}')
                    A(f'buffer_load_dwordx4 {vr(24+4*i)}, v161, {srd(SWO)}, s13 offen {nt}')
            else:
                if cfg.worot:
                    A(f'buffer_load_dwordx4 {vr(40+4*(i-4))}, v162, {srd(SDN)}, s{36+(i-4)} offen {nt}')
                else:
                    A(f's_add_u32 s13, s22, {4096*(i-4)}')
                    A(f'buffer_load_dwordx4 {vr(40+4*(i-4))}, v162, {srd(SDN)}, s13 offen {nt}')
        return n
    nearly = 0
    nearly += tail_loads(1)
    if not cfg.addr_early:
        tail_addresses()
    A.c('gate/up partial products')
    P(17)
    A(f's_waitcnt vmcnt({8 + nearly})')
    P(18)
    for i in range(2):
        A(f'v_mfma_f32_16x16x32_bf16 v[72:75], {vr(64+4*i)}, {vr(8+4*i)}, {"0" if i == 0 else "v[72:75]"}')
    for i in range(2):
        A(f'v_mfma_f32_16x16x32_bf16 v[76:79], {vr(64+4*i)}, {vr(16+4*i)}, {"0" if i == 0 else "v[76:79]"}')
    A.nop(7)
    A('s_mov_b32 exec_lo, 0x00ff00ff')
    A('s_mov_b32 exec_hi, 0xff00ff00')
    A('ds_write_b128 v163, v[72:75] offset:2048')
    A('ds_write_b128 v163, v[76:79] offset:4096')
    A('s_mov_b64 exec, -1')
    A('s_waitcnt lgkmcnt(0)')
    P(6)
    A('s_barrier')
    P(7)
    A.c('scores')
    for j in range(4):
        A(f'ds_read_b128 {vr(112+4*j)}, v4 offset:{64*j}')
    for t in range(2):
        for j in range(4):
            A(f'ds_read_b128 {vr(80+16*t+4*j)}, v{156+j} offset:{L_K + 4096*t}')
    A(f'v_mov_b32 v6, {L_MODE}')
    A('ds_read_b32 v7, v6')
    P(29)
    tail_loads(2)
    P(30)
    for j in range(4):
        A(f's_waitcnt lgkmcnt({8-j})')
        A(f'v_mfma_f32_16x16x32_bf16 v[144:147], {vr(80+4*j)}, {vr(112+4*j)}, {"0" if j == 0 else "v[144:147]"}')
    for j in range(4):
        A(f's_waitcnt lgkmcnt({4-j})')
        A(f'v_mfma_f32_16x16x32_bf16 v[148:151], {vr(96+4*j)}, {vr(112+4*j)}, {"0" if j == 0 else "v[148:151]"}')
    n21 = tail_loads(21)
    A.nop(max(0, 7 - n21))
    A('s_waitcnt lgkmcnt(0)')
    A('v_readfirstlane_b32 s24, v7')
    P(31)
    A.c('softmax')
    for k in range(4):
        A(f'v_cvt_pk_bf16_f32 v{152+k}, v{144+2*k}, v{145+2*k}')
    for k in range(4):
        A(f'v_lshlrev_b32 v{144+2*k}, 16, v{152+k}')
        A(f'v_and_b32 v{145+2*k}, 0xffff0000, v{152+k}')
    for k in range(8):
        A(f'v_mul_f32 v{144+k}, s{sSCALE}, v{144+k}')
    for k in range(4):
        A(f'v_cvt_pk_bf16_f32 v{152+k}, v{144+2*k}, v{145+2*k}')
    for k in range(4):
        A(f'v_lshlrev_b32 v{144+2*k}, 16, v{152+k}')
        A(f'v_and_b32 v{145+2*k}, 0xffff0000, v{152+k}')
    A('v_max3_f32 v82, v144, v145, v146')
    A('v_max3_f32 v83, v147, v148, v149')
    A('v_max3_f32 v82, v82, v150, v151')
    A('v_max_f32 v82, v82, v83')
    cross_rows(A, 82, 83, 'v_max_f32')
    A('s_mov_b64 exec, 15')
    A('ds_write_b32 v55, v82')
    A('s_mov_b64 exec, -1')
    tail_loads(25)
    A('s_waitcnt lgkmcnt(0)')
    A('s_barrier')
    tail_loads(26)
    P(8)
    A('ds_read_b128 v[84:87], v56')
    A('s_waitcnt lgkmcnt(0)')
    A('v_max3_f32 v82, v84, v85, v86')
    A('v_max_f32 v82, v82, v87')
    A(f'v_mul_f32 v83, s{sLOG2E}, v82')
    for k in range(8):
        A(f'v_fma_f32 v{144+k}, v{144+k}, s{sLOG2E}, -v83')
    for k in range(8):
        A(f'v_exp_f32 v{144+k}, v{144+k}')
    A.nop(1)
    for k in range(4):
        A(f'v_cvt_pk_bf16_f32 v{152+k}, v{144+2*k}, v{145+2*k}')
    A('v_add_f32 v84, v144, v145')
    A('v_add_f32 v85, v146, v147')
    A('ds_write_b128 v57, v[152:155]')
    A('v_add_f32 v86, v148, v149')
    A('v_add_f32 v87, v150, v151')
    A('v_add_f32 v84, v84, v85')
    A('v_add_f32 v86, v86, v87')
    A('v_add_f32 v84, v84, v86')
    cross_rows(A, 84, 85, 'v_add_f32')
    A('s_mov_b64 exec, 15')
    A(f'ds_write_b32 v55, v84 offset:{L_LW - L_MW}')
    A('s_mov_b64 exec, -1')
    tail_loads(3)
    P(9)
    A('s_waitcnt vmcnt(6) lgkmcnt(0)')
    A('s_barrier')
    P(10)
    A.c('PV over all 128 keys for tiles 2w, 2w+1')
    for ks in range(4):
        A(f'ds_read_b128 {vr(112+4*ks)}, v58 offset:{1024*ks}')
        for tt in range(2):
            base = 80 + (ks*2 + tt)*4
            A(f'ds_read_b64_tr_b16 v[{base}:{base+1}], v{48+tt} offset:{8192*ks}')
            A(f'ds_read_b64_tr_b16 v[{base+2}:{base+3}], v{48+tt} offset:{8192*ks + 4096}')
    for ks in range(4):
        for tt in range(2):
            base = 80 + (ks*2 + tt)*4
            left = 20 - (5*ks + 1 + 2*(tt+1))
            A(f's_waitcnt lgkmcnt({min(left, 15)})')
            A(f'v_mfma_f32_16x16x32_bf16 {vr(128+4*tt)}, {vr(base)}, {vr(112+4*ks)}, {"0" if ks == 0 else vr(128+4*tt)}')
    A('s_mov_b32 s12, 0x00f000f0')
    A('s_mov_b32 s13, 0x00f000f0')
    A('s_mov_b32 exec_lo, 0x00ff00ff')
    A('s_mov_b32 exec_hi, 0x00ff00ff')
    A.nop(4)
    for k in range(4):
        A(f'v_cndmask_b32_e64 v{128+k}, v{128+k}, v{132+k}, s[12:13]')
    tag_insert(A, 128)
    A('s_cmp_eq_u32 s24, 1')
    A('s_cbranch_scc0 L_opub_slow')
    A(f'buffer_store_dwordx4 v[128:131], v50, {srd(SWS)}, 0 offen')
    A('s_branch L_opub_done')
    A.label('L_opub_slow')
    A(f'buffer_store_dwordx4 v[128:131], v50, {srd(SWS)}, 0 offen sc1')
    A.label('L_opub_done')
    A('s_mov_b64 exec, -1')
    P(11)
    A.c('gather the partial attention outputs and the gate/up sums')
    if cfg.owait is not None:
        A(f's_waitcnt vmcnt({cfg.owait})')
        P(28)
    A(f's_mov_b32 s{sIT}, 0')
    A.label('L_ogat')
    A(f'buffer_load_dwordx4 v[80:83], v52, {srd(SWS)}, 0 offen {cfg.gat}')
    A(f'buffer_load_dwordx4 v[84:87], v52, {srd(SWS)}, 0 offen offset:256 {cfg.gat}')
    A(f'buffer_load_dwordx4 v[96:99], v53, {srd(SWS)}, 0 offen {cfg.gat}')
    A(f'buffer_load_dwordx4 v[88:91], v51, {srd(SWS)}, 0 offen {cfg.gat}')
    A(f'buffer_load_dwordx4 v[92:95], v51, {srd(SWS)}, 0 offen offset:{2048 if cfg.oline else 1024} {cfg.gat}')
    A('s_waitcnt vmcnt(0)')
    for q in range(5):
        tag_check(A, 80+4*q, 100, 101, q == 0)
    poll_tail(A, cfg, 'L_ogat', 'L_ook')
    A.label('L_ook')
    if cfg.prof in (True, 'heavy'):
        A(f'v_writelane_b32 v{vPROF}, s{sIT}, 21')
    P(12)
    if cfg.domask is True:
        mask_vals(A, 80, 2)
        mask_vals(A, 84, 2)
        mask_vals(A, 88, 12)
    else:
        mask_vals(A, 80, 1)
        mask_vals(A, 84, 1)
    A('v_max_f32 v100, v80, v84')
    for st in ('row_ror:8', 'row_ror:4'):
        for k in range(4):
            A(f'v_add_f32_dpp v{96+k}, v{96+k}, v{96+k} {st} row_mask:0xf bank_mask:0xf')
        A(f'v_max_f32_dpp v100, v100, v100 {st} row_mask:0xf bank_mask:0xf')
    for k in range(4):
        A(f'v_mov_b32 v{104+k}, v{96+k}')
    A('v_mov_b32 v101, v100')
    for k in range(4):
        A(f'v_permlane16_swap_b32 v{104+k}, v{96+k}')
    A('v_permlane16_swap_b32 v101, v100')
    for k in range(4):
        A(f'v_add_f32 v{96+k}, v{104+k}, v{96+k}')
    A('v_max_f32 v100, v101, v100')
    A('v_cvt_pk_bf16_f32 v104, v96, v97')
    A('v_mov_b32 v101, v100')
    A('v_cvt_pk_bf16_f32 v105, v98, v99')
    A('v_lshlrev_b32 v96, 16, v104')
    A('v_permlane32_swap_b32 v101, v100')
    A('v_and_b32 v97, 0xffff0000, v104')
    A('v_max_f32 v100, v101, v100')
    A('v_lshlrev_b32 v98, 16, v105')
    A('v_and_b32 v99, 0xffff0000, v105')
    A('v_sub_f32 v80, v80, v100')
    A('v_sub_f32 v84, v84, v100')
    A(f'v_mul_f32 v80, s{sLOG2E}, v80')
    A(f'v_mul_f32 v84, s{sLOG2E}, v84')
    A('v_exp_f32 v80, v80')
    A('v_exp_f32 v84, v84')
    for k in range(4):
        A(f'v_mul_f32_dpp v{104+k}, v{96+k}, v{96+k} quad_perm:[2,3,0,1] row_mask:0xf bank_mask:0xf')
    A('v_mul_f32 v102, v80, v81')
    A('v_fmac_f32 v102, v84, v85')
    for k in range(4):
        A(f'v_mul_f32 v{88+k}, v80, v{88+k}')
    for k in range(4):
        A(f'v_fmac_f32 v{88+k}, v84, v{92+k}')
    A('v_cvt_pk_bf16_f32 v96, v104, v105')
    A('v_cvt_pk_bf16_f32 v97, v106, v107')
    A('v_permlane32_swap_b32 v88, v89')
    A('v_permlane32_swap_b32 v90, v91')
    A('v_perm_b32 v98, v97, v96, v54')
    A('v_add_f32 v88, v88, v89')
    A('v_add_f32 v90, v90, v91')
    A('v_mov_b32 v103, v102')
    for i in range(2):
        for jj in range(4):
            A(f'v_and_b32_dpp v{64+4*i+jj}, v98, v{136+jj} quad_perm:[{i},{i},{i},{i}] row_mask:0xf bank_mask:0xf')
        if i == 0:
            A('v_permlane16_swap_b32 v88, v90')
            A('v_permlane16_swap_b32 v103, v102')
    A('v_add_f32 v88, v88, v90')
    A('v_add_f32 v102, v103, v102')
    A('v_mfma_f32_16x16x32_bf16 v[72:75], v[64:67], v[40:43], 0')
    A('v_mov_b32 v103, v102')
    A(f'v_add_f32_dpp v88, v88, v88 row_ror:8 row_mask:0xf bank_mask:0xf')
    A('v_mfma_f32_16x16x32_bf16 v[72:75], v[68:71], v[44:47], v[72:75]')
    A('v_permlane32_swap_b32 v103, v102')
    A(f'v_add_f32_dpp v88, v88, v88 row_ror:4 row_mask:0xf bank_mask:0xf')
    A('v_add_f32 v102, v103, v102')
    A.nop(2)
    A(f'v_add_f32_dpp v102, v102, v102 row_ror:8 row_mask:0xf bank_mask:0xf')
    A.nop(2)
    A(f'v_add_f32_dpp v102, v102, v102 row_ror:4 row_mask:0xf bank_mask:0xf')
    A.nop(1)
    A('v_rcp_f32 v102, v102')
    A.nop(1)
    A('v_mul_f32 v88, v88, v102')
    A('v_cvt_pk_bf16_f32 v88, v88, v88')
    A.nop(2)
    for i in range(4):
        for jj in range(4):
            A(f'v_and_b32_dpp v{112+4*i+jj}, v88, v{136+jj} quad_perm:[{i},{i},{i},{i}] row_mask:0xf bank_mask:0xf')
        if i:
            A(f'v_mfma_f32_16x16x32_bf16 v[72:75], {vr(112+4*(i-1))}, {vr(24+4*(i-1))}, v[72:75]')
    A.nop(1)
    A('v_mfma_f32_16x16x32_bf16 v[72:75], v[124:127], v[36:39], v[72:75]')
    A('s_mov_b32 exec_hi, 0')
    A.nop(7)
    A('ds_write_b128 v59, v[72:75]')
    A('s_mov_b64 exec, -1')
    A('s_waitcnt lgkmcnt(0)')
    A('s_barrier')
    P(13)
    A('s_cmp_lg_u32 s3, 0')
    A('s_cbranch_scc1 L_cmp_end')
    for w in range(4):
        A(f'ds_read_b128 {vr(88+4*w)}, v62 offset:{512*w}')
    A('s_waitcnt lgkmcnt(2)')
    for k in range(4):
        A(f'v_add_f32 v{88+k}, v{88+k}, v{92+k}')
    A('s_waitcnt lgkmcnt(0)')
    for k in range(4):
        A(f'v_add_f32 v{96+k}, v{96+k}, v{100+k}')
    for k in range(4):
        A(f'v_add_f32 v{88+k}, v{88+k}, v{96+k}')
    tag_insert(A, 88)
    A('s_mov_b32 exec_hi, 0')
    A(f'buffer_store_dwordx4 v[88:91], v60, {srd(SWS)}, 0 offen {cfg.fpub}')
    A('s_mov_b64 exec, -1')
    A.label('L_cmp_end')
    P(14)
    P.flush(); P.reset()
    A('s_branch L_done')
    A.label('L_comm')
    P.reset(prev=0, k=0)
    P(1)
    A(f's_load_dwordx2 s[{SOUT}:{SOUT+1}], s[0:1], 72')
    A(f's_mov_b32 s{SOUT+2}, s{SX+2}')
    A(f's_mov_b32 s{SOUT+3}, s{SWQ+3}')
    A(f's_lshl_b32 s{sT}, s{sRB}, 3')
    A(f's_add_u32 s{sT}, s{sT}, s4')
    A('v_lshrrev_b32 v2, 4, v1')
    A('v_and_b32 v3, 15, v1')
    A(f'v_mov_b32 v4, {EOFF}')
    if cfg.tlbwarm:
        A('s_cmp_eq_u32 s3, 4')
        A('s_cbranch_scc0 L_nowarm')
        for sr, off in ((SV, 16), (SGA, 48), (SUP, 56), (SWO, 32), (SDN, 64)):
            A(f's_load_dwordx2 s[{sr}:{sr+1}], s[0:1], {off}')
        A('s_lshl_b32 s11, s4, 24')
        A('s_lshl_b32 s12, s5, 15')
        A('s_add_u32 s11, s11, s12')
        A('s_add_u32 s11, s11, 15728640')
        A('s_lshl_b32 s12, s4, 19')
        A('s_lshl_b32 s13, s5, 15')
        A('s_waitcnt lgkmcnt(0)')
        A(f's_load_dword s32, s[{SV}:{SV+1}], s11')
        A(f's_load_dword s33, s[{SWO}:{SWO+1}], s12')
        A(f's_load_dword s34, s[{SGA}:{SGA+1}], s13')
        A(f's_load_dword s35, s[{SUP}:{SUP+1}], s13')
        A(f's_load_dword s32, s[{SDN}:{SDN+1}], s13')
        A(f's_load_dword s33, s[{SGA}:{SGA+1}], 0x100000') if False else None
        A.label('L_nowarm')
    if cfg.exp_dirty:
        A('s_cmp_eq_u32 s3, 4')
        A('s_cbranch_scc0 L_nodirty')
        A('s_waitcnt lgkmcnt(0)')
        A(f's_mov_b32 s{SWS+2}, 0x2000000')
        A(f's_mul_i32 s11, s2, {cfg.exp_dirty*1024}')
        A('s_add_u32 s11, s11, 0x400000')
        A('v_lshlrev_b32 v20, 4, v1')
        for i in range(cfg.exp_dirty):
            A(f'buffer_store_dwordx4 v[16:19], v20, {srd(SWS)}, s11 offen')
            A('s_add_u32 s11, s11, 1024')
        A.label('L_nodirty')
    def pretouch():
        A('s_cmp_eq_u32 s3, 4')
        A('s_cbranch_scc0 L_nopre')
        A('s_waitcnt lgkmcnt(0)')
        A('s_lshl_b32 s11, s4, 5')
        A('s_add_u32 s11, s11, s5')
        A('s_lshl_b32 s12, s11, 11')
        A(f's_add_u32 s12, s12, {OIO}')
        A('v_lshl_add_u32 v10, v1, 7, s12')
        A('s_lshl_b32 s12, s11, 9')
        A(f's_add_u32 s12, s12, {GUO - 16*128}')
        A('v_lshl_add_u32 v11, v1, 7, s12')
        A('v_cmp_le_u32 vcc, 16, v1')
        A('s_lshl_b32 s12, s11, 8')
        A(f's_add_u32 s12, s12, {QA - 20*128}')
        A('v_cndmask_b32 v10, v10, v11, vcc')
        A('v_lshl_add_u32 v11, v1, 7, s12')
        A('v_cmp_le_u32 vcc, 20, v1')
        A('s_lshl_b32 s12, s4, 9')
        A('s_and_b32 s13, s5, 3')
        A('s_lshl_b32 s13, s13, 7')
        A('s_add_u32 s12, s12, s13')
        A(f's_add_u32 s12, s12, {IDA}')
        A('v_cndmask_b32 v10, v10, v11, vcc')
        A('v_mov_b32 v11, s12')
        A('v_cmp_le_u32 vcc, 22, v1')
        A('s_lshl_b32 s12, s4, 11')
        A('s_and_b32 s13, s5, 15')
        A('s_lshl_b32 s13, s13, 7')
        A('s_add_u32 s12, s12, s13')
        A(f's_add_u32 s12, s12, {MLO}')
        A('v_cndmask_b32 v10, v10, v11, vcc')
        A('v_mov_b32 v11, s12')
        A('v_cmp_le_u32 vcc, 23, v1')
        A.nop(2)
        A('v_cndmask_b32 v10, v10, v11, vcc')
        A('s_mov_b64 exec, 0xffffff')
        A(f'buffer_load_dword v12, v10, {srd(SWS)}, 0 offen {cfg.pre_fl}')
        A('s_mov_b64 exec, -1')
        A.label('L_nopre')
    if cfg.pretouch == 1:
        pretouch()
    if cfg.finpre == 1:
        A('s_cmp_eq_u32 s3, 5')
        A('s_cbranch_scc0 L_nofinpre')
        A('s_cmp_lt_u32 s2, 32')
        A('s_cbranch_scc0 L_nofinpre')
        A('s_waitcnt lgkmcnt(0)')
        A('s_lshl_b32 s11, s2, 14')
        A(f's_add_u32 s11, s11, {FIN}')
        A('v_lshl_add_u32 v10, v1, 7, s11')
        A('s_mov_b32 s12, 8192')
        A(f'buffer_load_dword v12, v10, {srd(SWS)}, 0 offen {cfg.finpre_fl}')
        A(f'buffer_load_dword v13, v10, {srd(SWS)}, s12 offen {cfg.finpre_fl}')
        A.label('L_nofinpre')
    elif cfg.finpre == 2:
        A('s_cmp_eq_u32 s3, 5')
        A('s_cbranch_scc0 L_nofinpre')
        A('s_waitcnt lgkmcnt(0)')
        A('s_lshl_b32 s11, s2, 11')
        A(f's_add_u32 s11, s11, {FIN}')
        A('v_lshl_add_u32 v10, v1, 7, s11')
        A('s_mov_b64 exec, 0xffff')
        A(f'buffer_load_dword v12, v10, {srd(SWS)}, 0 offen {cfg.finpre_fl}')
        A('s_mov_b64 exec, -1')
        A.label('L_nofinpre')
    A('s_lshl_b32 s11, s4, 13')
    A('s_sub_u32 s12, s3, 4')
    A('s_lshl_b32 s12, s12, 10')
    A('s_add_u32 s11, s11, s12')
    A(f's_add_u32 s11, s11, {QA}')
    A('v_lshlrev_b32 v6, 4, v1')
    A('v_add_u32 v6, s11, v6')
    A('s_lshl_b32 s11, s4, 9')
    A(f's_add_u32 s11, s11, {IDA}')
    A('v_and_b32 v7, 31, v1')
    A('v_lshl_add_u32 v7, v7, 4, s11')
    A('s_sub_u32 s12, s3, 4')
    A('s_lshl_b32 s12, s12, 1')
    A('v_lshrrev_b32 v8, 5, v1')
    A('v_add_u32 v8, s12, v8')
    A('v_mul_u32_u24 v8, 272, v8')
    A('v_and_b32 v9, 31, v1')
    A('v_lshl_add_u32 v8, v9, 3, v8')
    A(f'v_add_u32 v8, {L_QB}, v8')
    P(3)
    if cfg.xone is not None:
        A('s_barrier')
    A('s_barrier')
    P(4)
    if cfg.b1a:
        A('s_barrier')
    A('s_waitcnt lgkmcnt(0)')
    A(f'buffer_load_dword v5, v4, {srd(SWS)}, 0 offen {cfg.xnt}')
    def touch_all():
        A('s_lshl_b32 s11, s2, 9')
        A(f's_add_u32 s11, s11, {FIN}')
        A('v_lshl_add_u32 v10, v1, 7, s11')
        A('s_lshl_b32 s12, s4, 5')
        A('s_add_u32 s12, s12, s5')
        A('s_lshl_b32 s11, s12, 11')
        A(f's_add_u32 s11, s11, {OIO - 4*128}')
        A('v_lshl_add_u32 v11, v1, 7, s11')
        A('v_cmp_le_u32 vcc, 4, v1')
        A('s_lshl_b32 s11, s12, 9')
        A(f's_add_u32 s11, s11, {GUO - 20*128}')
        A('v_cndmask_b32 v10, v10, v11, vcc')
        A('v_lshl_add_u32 v11, v1, 7, s11')
        A('v_cmp_le_u32 vcc, 20, v1')
        A('s_lshl_b32 s11, s12, 6')
        A(f's_add_u32 s11, s11, {MLO}')
        A('v_cndmask_b32 v10, v10, v11, vcc')
        A('v_mov_b32 v11, s11')
        A('v_cmp_le_u32 vcc, 24, v1')
        A.nop(2)
        A('v_cndmask_b32 v10, v10, v11, vcc')
        A('s_mov_b64 exec, 0x1ffffff')
        A(f'buffer_load_dword v11, v10, {srd(SWS)}, 0 offen')
        A('s_mov_b64 exec, -1')
    if cfg.finpre2 == 5:
        A('s_cmp_eq_u32 s3, 4')
        A('s_cbranch_scc0 L_notouch')
        touch_all()
        A.label('L_notouch')
    A(f's_mov_b32 s{sIT}, 0')
    A('s_mov_b32 s14, 0')
    if cfg.b1b:
        A('s_barrier')
    P(5)
    def q_issue():
        A('s_add_u32 s15, s14, 4096')
        A(f'buffer_load_dwordx4 v[16:19], v6, {srd(SWS)}, s14 offen {cfg.gat}')
        A(f'buffer_load_dwordx4 v[20:23], v6, {srd(SWS)}, s14 offen offset:2048 {cfg.gat}')
        A(f'buffer_load_dwordx4 v[24:27], v6, {srd(SWS)}, s15 offen {cfg.gat}')
        A(f'buffer_load_dwordx4 v[28:31], v6, {srd(SWS)}, s15 offen offset:2048 {cfg.gat}')
        A(f'buffer_load_dwordx4 v[32:35], v7, {srd(SWS)}, s14 offen {cfg.gat}')
    def q_check():
        for q in range(5):
            tag_check(A, 16+4*q, 36, 37, q == 0)
    if cfg.b1c:
        q_issue()
        A('s_waitcnt vmcnt(0)')
        A('v_add_u32 v9, 0x01010101, v5')
        A.nop(1)
        A('v_readfirstlane_b32 s6, v9')
        q_check()
        A('s_cmp_eq_u64 s[88:89], 0')
        A('s_cbranch_scc1 L_qfirst_ok')
        q_issue()
        A('s_barrier')
        A(f's_mov_b32 s{sIT}, 1')
        A('s_branch L_qwait')
        A.label('L_qfirst_ok')
        A('s_barrier')
        A('s_branch L_qok')
        A.label('L_qgat')
        q_issue()
        A.label('L_qwait')
        A('s_waitcnt vmcnt(0)')
        q_check()
        poll_tail(A, cfg, 'L_qgat', 'L_qok', switch=14)
    else:
        A.label('L_qgat')
        q_issue()
        A('s_waitcnt vmcnt(0)')
        A('v_add_u32 v9, 0x01010101, v5')
        A.nop(1)
        A('v_readfirstlane_b32 s6, v9')
        q_check()
        poll_tail(A, cfg, 'L_qgat', 'L_qok', switch=14)
    A.label('L_qok')
    if cfg.prof in (True, 'heavy'):
        A(f'v_writelane_b32 v{vPROF}, s{sIT}, 20')
    P(6)
    mask_vals(A, 16, 16)
    for k in range(4):
        A(f'v_add_f32 v{16+k}, v{16+k}, v{20+k}')
        A(f'v_add_f32 v{24+k}, v{24+k}, v{28+k}')
    for k in range(4):
        A(f'v_add_f32 v{16+k}, v{16+k}, v{24+k}')
    A('v_cvt_pk_bf16_f32 v16, v16, v17')
    A('v_cvt_pk_bf16_f32 v17, v18, v19')
    A('ds_write_b64 v8, v[16:17]')
    if cfg.pretouch == 2:
        pretouch()
    A('s_getreg_b32 s13, hwreg(HW_REG_XCC_ID, 0, 4)')
    A('v_bfe_u32 v32, v32, 8, 8')
    A('v_cmp_ne_u32 vcc, s13, v32')
    A('s_cmp_eq_u64 vcc, 0')
    A('s_cselect_b32 s13, 1, 0')
    if cfg.forceslow:
        A('s_mov_b32 s13, 0')
    A('s_mov_b32 s24, s13')
    A('v_mov_b32 v33, s13')
    A(f'v_mov_b32 v34, {L_MODE}')
    A('s_cmp_eq_u32 s3, 5')
    A('s_cbranch_scc0 L_nomode')
    A('ds_write_b32 v34, v33')
    A.label('L_nomode')
    A('s_waitcnt lgkmcnt(0)')
    A('s_barrier')
    P(7)
    P.flush(); P.reset()
    A('s_lshl_b32 s11, s2, 12')
    A(f's_add_u32 s11, s11, {FIN}')
    A('v_lshl_add_u32 v60, v1, 4, s11')
    A('v_and_b32 v61, 1, v2')
    A('v_lshrrev_b32 v62, 1, v2')
    A('v_lshl_or_b32 v61, v61, 1, v62')
    A('v_and_b32 v62, 3, v1')
    A('v_lshl_add_u32 v61, v62, 2, v61')
    A('s_and_b32 s11, s2, 31')
    A('s_lshl_b32 s11, s11, 4')
    A('v_add_u32 v61, s11, v61')
    A('v_lshlrev_b32 v61, 1, v61')
    if cfg.poll2:
        A(f'v_mov_b32 v63, {L_FLAG}')
        A('v_mov_b32 v59, 0')
    A('s_cmp_eq_u32 s3, 5')
    A('s_cbranch_scc1 L_comm5')
    A(f'buffer_load_ushort v62, v61, {srd(SX)}, 0 offen')
    if cfg.poll2:
        A('ds_write_b32 v63, v59')
        A('s_waitcnt lgkmcnt(0)')
    if cfg.finpre2 == 4:
        touch_all()
    elif cfg.finpre2 == 5:
        pass
    elif cfg.finpre2 == 3:
        A('s_lshl_b32 s11, s2, 9')
        A(f's_add_u32 s11, s11, {FIN}')
        A('v_lshl_add_u32 v10, v1, 7, s11')
        A('s_mov_b64 exec, 15')
        A(f'buffer_load_dword v11, v10, {srd(SWS)}, 0 offen {cfg.finpre_fl}')
        A('s_mov_b64 exec, -1')
    elif cfg.finpre2:
        A('s_cmp_ge_u32 s2, 32')
        A('s_cbranch_scc1 L_nofp2')
        A('s_lshl_b32 s11, s2, 12')
        A(f's_add_u32 s11, s11, {FIN}')
        A('v_lshl_add_u32 v10, v1, 7, s11')
        A('s_mov_b32 exec_hi, 0')
        A(f'buffer_load_dword v11, v10, {srd(SWS)}, 0 offen {cfg.finpre_fl}')
        A('s_mov_b64 exec, -1')
        A.label('L_nofp2')
    A('s_barrier')
    A('s_barrier')
    A('s_barrier')
    P(13)
    P.flush(); P.reset()
    A.label('L_final')
    A('s_cmp_ge_u32 s2, 32')
    A('s_cbranch_scc1 L_done')
    A(f's_mov_b32 s{sIT}, 0')
    A.label('L_fgat')
    for q in range(4):
        A(f'buffer_load_dwordx4 {vr(16+4*q)}, v60, {srd(SWS)}, 0 offen offset:{1024*q} {cfg.fgat}')
    A('s_waitcnt vmcnt(0)')
    if cfg.poll2:
        A('ds_read_b32 v38, v63')
    for q in range(4):
        tag_check(A, 16+4*q, 36, 37, q == 0)
    if cfg.poll2:
        A('s_waitcnt lgkmcnt(0)')
        A('v_readfirstlane_b32 s11, v38')
        A('s_cmp_lg_u32 s11, 0')
        A('s_cbranch_scc1 L_done')
    poll_tail(A, cfg, 'L_fgat', 'L_fok')
    A.label('L_fok')
    if cfg.poll2:
        A('v_mov_b32 v59, 1')
        A('ds_write_b32 v63, v59')
    if cfg.prof in (True, 'heavy'):
        A(f'v_writelane_b32 v{vPROF}, s{sIT}, 22')
    P(14)
    P.flush(); P.reset()
    if cfg.domask is True:
        mask_vals(A, 16, 16)
    for k in range(4):
        A(f'v_add_f32 v{16+k}, v{16+k}, v{20+k}')
        A(f'v_add_f32 v{24+k}, v{24+k}, v{28+k}')
    for k in range(4):
        A(f'v_add_f32 v{16+k}, v{16+k}, v{24+k}')
    transpose_reduce4(A, 16)
    A('v_lshlrev_b32 v62, 16, v62')
    A.nop(1)
    A('v_add_f32_dpp v16, v16, v16 row_ror:8 row_mask:0xf bank_mask:0xf')
    A.nop(2)
    A('v_add_f32_dpp v16, v16, v16 row_ror:4 row_mask:0xf bank_mask:0xf')
    A('v_add_f32 v16, v16, v62')
    A('v_cvt_pk_bf16_f32 v16, v16, v16')
    if cfg.calib:
        A('s_cmp_lg_u32 s2, 0')
        A('s_cbranch_scc1 L_nocal')
        A(f's_add_u32 s36, s36, {cfg.calib}')
        A.label('L_cal')
        A('s_memrealtime s[38:39]')
        A('s_waitcnt lgkmcnt(0)')
        A('s_sub_u32 s37, s38, s36')
        A('s_cmp_lt_i32 s37, 0')
        A('s_cbranch_scc1 L_cal')
        A.label('L_nocal')
    A('s_mov_b32 exec_lo, 0x000f000f')
    A('s_mov_b32 exec_hi, 0x000f000f')
    A(f'buffer_store_short v16, v61, {srd(SOUT)}, 0 offen')
    A('s_cmp_lg_u32 s2, 0')
    A('s_cbranch_scc1 L_noepoch')
    A('s_mov_b64 exec, 1')
    A(f'v_mov_b32 v17, {EOFF}')
    A(f'v_mov_b32 v18, s{sTAG}')
    A(f'buffer_store_dword v18, v17, {srd(SWS)}, 0 offen')
    A.label('L_noepoch')
    A('s_mov_b64 exec, -1')
    A('s_branch L_done')
    A.label('L_comm5')
    P.reset()
    A(f'v_mov_b32 v{vTAG}, s6')
    A('v_lshlrev_b32 v6, 4, v3')
    A('v_and_b32 v7, 1, v2')
    A('v_lshl_add_u32 v7, v7, 11, v6')
    A(f'v_add_u32 v7, {L_PART + 2048}, v7')
    for k in range(8):
        A(f'ds_read_b128 {vr(16+4*k)}, v7 offset:{256*k}')
    A('s_lshl_b32 s12, s4, 2')
    A(f's_add_u32 s12, s12, s{sRB}')
    A('s_lshl_b32 s12, s12, 3')
    A(f's_add_u32 s12, s12, s{sCB}')
    A('s_lshl_b32 s12, s12, 9')
    A(f's_add_u32 s12, s12, {GUO}')
    A('v_and_b32 v7, 1, v2')
    A('v_lshl_add_u32 v6, v7, 8, v6')
    A('v_add_u32 v6, s12, v6')
    A('s_waitcnt lgkmcnt(0)')
    for k in range(4):
        A(f'v_add_f32 v{16+k}, v{16+k}, v{20+k}')
        A(f'v_add_f32 v{24+k}, v{24+k}, v{28+k}')
        A(f'v_add_f32 v{32+k}, v{32+k}, v{36+k}')
        A(f'v_add_f32 v{40+k}, v{40+k}, v{44+k}')
    for k in range(4):
        A(f'v_add_f32 v{16+k}, v{16+k}, v{24+k}')
        A(f'v_add_f32 v{32+k}, v{32+k}, v{40+k}')
    for k in range(4):
        A(f'v_add_f32 v{16+k}, v{16+k}, v{32+k}')
    tag_insert(A, 16)
    A('s_mov_b32 exec_hi, 0')
    A('s_cmp_eq_u32 s24, 1')
    A('s_cbranch_scc0 L_gupub_slow')
    A(f'buffer_store_dwordx4 v[16:19], v6, {srd(SWS)}, 0 offen')
    A('s_branch L_gupub_done')
    A.label('L_gupub_slow')
    A(f'buffer_store_dwordx4 v[16:19], v6, {srd(SWS)}, 0 offen sc1')
    A.label('L_gupub_done')
    A('s_mov_b64 exec, -1')
    A('v_and_b32 v8, 3, v1')
    A('v_lshlrev_b32 v9, 4, v8')
    A(f'v_add_u32 v9, {L_MW}, v9')
    A('s_lshl_b32 s11, s4, 11')
    A('s_lshl_b32 s12, s5, 4')
    A('s_add_u32 s11, s11, s12')
    A(f's_add_u32 s11, s11, {MLO}')
    A('v_lshl_add_u32 v8, v8, 9, s11')
    A('s_barrier')
    A('s_barrier')
    A('ds_read_b128 v[20:23], v9')
    A(f'ds_read_b128 v[24:27], v9 offset:{L_LW - L_MW}')
    A('s_waitcnt lgkmcnt(0)')
    A('v_max3_f32 v20, v20, v21, v22')
    A('v_add_f32 v24, v24, v25')
    A('v_add_f32 v26, v26, v27')
    A('v_max_f32 v20, v20, v23')
    A('v_add_f32 v21, v24, v26')
    tag_insert(A, 20)
    A('s_mov_b64 exec, 15')
    A('s_cmp_eq_u32 s24, 1')
    A('s_cbranch_scc0 L_mlpub_slow')
    A(f'buffer_store_dwordx4 v[20:23], v8, {srd(SWS)}, 0 offen')
    A('s_branch L_mlpub_done')
    A.label('L_mlpub_slow')
    A(f'buffer_store_dwordx4 v[20:23], v8, {srd(SWS)}, 0 offen sc1')
    A.label('L_mlpub_done')
    A('s_mov_b64 exec, -1')
    A('s_barrier')
    if cfg.poll2:
        A(f'buffer_load_ushort v62, v61, {srd(SX)}, 0 offen')
        A('s_waitcnt vmcnt(0)')
        A('s_branch L_final')
    A.label('L_done')
    if cfg.exp_hwid:
        A('s_getreg_b32 s11, hwreg(HW_REG_HW_ID)')
        A(f'v_writelane_b32 v{vPROF}, s11, 31')
    if cfg.prof == 'lite':
        A('s_memrealtime s[30:31]')
        A('s_waitcnt lgkmcnt(0)')
        A(f'v_writelane_b32 v{vPROF}, s28, 0')
        A(f'v_writelane_b32 v{vPROF}, s30, 15')
    elif cfg.prof:
        P(15)
        P.flush()
    if cfg.prof:
        A('s_mul_i32 s11, s2, 6')
        A('s_add_u32 s11, s11, s3')
        A('s_lshl_b32 s11, s11, 7')
        A(f's_add_u32 s11, s11, {PROF}')
        A('v_lshl_add_u32 v86, v1, 2, s11')
        A('s_mov_b32 exec_hi, 0')
        A(f'buffer_store_dword v{vPROF}, v86, {srd(SWS)}, 0 offen')
        A('s_mov_b64 exec, -1')
    A.label('L_end')
    A('s_endpgm')
    A('.section .rodata,"a"')
    A('.p2align 6')
    A(f'.amdhsa_kernel {NAME}')
    A(f'  .amdhsa_next_free_vgpr {cfg.nvgpr}')
    A('  .amdhsa_next_free_sgpr 102')
    A(f'  .amdhsa_accum_offset {min(cfg.nvgpr, 256)}')
    A('  .amdhsa_group_segment_fixed_size 0')
    A('  .amdhsa_kernarg_size 96')
    A('  .amdhsa_user_sgpr_count 2')
    A('  .amdhsa_user_sgpr_kernarg_segment_ptr 1')
    A('  .amdhsa_system_sgpr_workgroup_id_x 1')
    A('  .amdhsa_float_denorm_mode_32 3')
    A('.end_amdhsa_kernel')
    return A.text()

HEADER = open('parallel_sum__sliding_block_cached__glu_gated_bilinear__decode.s.ref').read().split('; Override launch')[0]

DOC = """;
"""

def full(cfg):
    body = gen(cfg)
    probs = check(body)
    for p in probs:
        if 'wide store WAR' in p and 'v_lshlrev_b32 v86, 4, v3' in p:
            continue
        print('HAZARD', p)
    return HEADER + f'; @launch grid=(256,1,1) block=(384,1,1) lds={cfg.ldsbytes}\n' + DOC + body

if __name__ == '__main__':
    cfg = Cfg()
    for a in sys.argv[2:]:
        k, v = a.split('=')
        old = getattr(cfg, k, None)
        setattr(cfg, k, v if ((isinstance(old, str) or v in ('lite', 'heavy')) and v not in ('False', 'True')) else eval(v))
    open(sys.argv[1], 'w').write(full(cfg))
```
